```python
import torch

def _softmax(x, axis=-1):
    return torch.softmax(x, dim=axis)

def _gelu(x):
    return torch.nn.functional.gelu(x, approximate='tanh')

def _silu(x):
    return torch.nn.functional.silu(x)

def _sigmoid(x):
    return torch.sigmoid(x)

def _layernorm(x, axis=-1, eps=1e-05):
    m = x.mean(dim=axis, keepdim=True)
    v = x.var(dim=axis, keepdim=True, unbiased=False)
    return (x - m) / torch.sqrt(v + eps)

def _scatter_add(tgt, idx, src, axis=0):
    return tgt.clone().index_add_(axis, idx, src)

def _segment_sum(src, seg, n):
    out = torch.zeros((n,) + src.shape[1:], dtype=src.dtype)
    return out.index_add_(0, seg, src)

def _pad(x, pw):
    flat = tuple((v for pair in reversed(pw) for v in pair))
    return torch.nn.functional.pad(x, flat)
kernel_name = 'gated_mix__memory_aug_recurrent_mem_tr__glu_gated_bilinear__prompt'

def setup_inputs():

    _w = lambda a: (lambda t: t.to(torch.bfloat16) if t.is_floating_point() else t)(torch.as_tensor(a))

    def _A_setup():
        B, S, Dm = (1, 2048, 640)
        H, Dh = (32, 128)
        M, seg = (8, 32)
        seg = min(seg, S)
        S = S // seg * seg
        return {'x': _w((lambda *s: torch.randn(*s, dtype=torch.bfloat16) * 0.05)(B, S, Dm)), 'mem0': _w((lambda *s: torch.randn(*s, dtype=torch.bfloat16) * 0.4)(B, M, Dm)), 'Wq': _w((lambda *s: torch.randn(*s, dtype=torch.bfloat16) * 6.4)(Dm, H, Dh) * Dm ** (-0.5)), 'Wk': _w((lambda *s: torch.randn(*s, dtype=torch.bfloat16) * 6.4)(Dm, H, Dh) * Dm ** (-0.5)), 'Wv': _w((lambda *s: torch.randn(*s, dtype=torch.bfloat16) * 0.4)(Dm, H, Dh) * Dm ** (-0.5)), 'Wo': _w((lambda *s: torch.randn(*s, dtype=torch.bfloat16) * 0.4)(H, Dh, Dm) * (H * Dh) ** (-0.5)), 'seg_len': seg}
    _A_in = _A_setup()

    def _B_setup():
        B, S, D, F = (1, 2048, 640, 1728)
        return {'x': _w((lambda *s: torch.randn(*s, dtype=torch.bfloat16) * 0.05)(B, S, D)), 'w_gate': _w((lambda *s: torch.randn(*s, dtype=torch.bfloat16) * 1.6)(D, F) * D ** (-0.5)), 'w_up': _w((lambda *s: torch.randn(*s, dtype=torch.bfloat16) * 1.6)(D, F) * D ** (-0.5)), 'w_down': _w((lambda *s: torch.randn(*s, dtype=torch.bfloat16) * 1.6)(F, D) * F ** (-0.5))}
    _B_in = _B_setup()
    return {'A_x': _A_in['x'], 'A_mem0': _A_in['mem0'], 'A_Wq': _A_in['Wq'], 'A_Wk': _A_in['Wk'], 'A_Wv': _A_in['Wv'], 'A_Wo': _A_in['Wo'], 'A_seg_len': _A_in['seg_len'], 'B_x': _B_in['x'], 'B_w_gate': _B_in['w_gate'], 'B_w_up': _B_in['w_up'], 'B_w_down': _B_in['w_down'], 'gate_w': _w((lambda *s: torch.randn(*s, dtype=torch.bfloat16) * 0.05)(640) * 16.0)}

def reference(A_x, A_mem0, A_Wq, A_Wk, A_Wv, A_Wo, A_seg_len, B_x, B_w_gate, B_w_up, B_w_down, gate_w):

    def _A_ref(x, mem0, Wq, Wk, Wv, Wo, seg_len):
        B, S, Dm = x.shape
        H, Dh = (Wq.shape[1], Wq.shape[2])
        M = mem0.shape[1]
        scale = Dh ** (-0.5)
        n_seg = S // seg_len
        L = M + seg_len
        idx = torch.arange(L)
        mask = (idx[:, None] < M) | (idx[:, None] >= idx[None, :])
        mem = mem0
        outs = []
        for s in range(n_seg):
            xs = x[:, s * seg_len:(s + 1) * seg_len, :].clone()
            h = torch.concatenate([mem, xs], axis=1)
            q = torch.einsum('btd,dhe->bhte', h, Wq)
            k = torch.einsum('btd,dhe->bhte', h, Wk)
            v = torch.einsum('btd,dhe->bhte', h, Wv)
            scores = torch.einsum('bhqe,bhke->bhqk', q, k) * scale
            scores = torch.where(mask[None, None], scores, -1000000000.0)
            p = _softmax(scores, axis=-1)
            o = torch.einsum('bhqk,bhke->bhqe', p, v)
            o = torch.einsum('bhte,hed->btd', o, Wo)
            mem = o[:, :M, :].clone()
            outs.append(o[:, M:, :])
        return torch.concatenate(outs, axis=1)

    def _B_ref(x, w_gate, w_up, w_down):
        g = torch.einsum('bsd,df->bsf', x, w_gate)
        u = torch.einsum('bsd,df->bsf', x, w_up)
        h = g * u
        return torch.einsum('bsf,fd->bsd', h, w_down)
    x = A_x
    g = _sigmoid((x * gate_w).sum(-1, keepdims=True))
    a = _A_ref(x, A_mem0, A_Wq, A_Wk, A_Wv, A_Wo, A_seg_len)
    b = _B_ref(x, B_w_gate, B_w_up, B_w_down)
    return g * a + (1 - g) * b
```

```python
import re

def regs_of(op):
    op = op.strip()
    neg = op.lstrip('-')
    if neg.startswith('abs(') or neg.startswith('|'):
        neg = neg.replace('abs(', '').replace(')', '').replace('|', '')
    m = re.fullmatch(r'([vas])(\d+)', neg)
    if m: return {(m.group(1), int(m.group(2)))}
    m = re.fullmatch(r'([vas])\[(\d+):(\d+)\]', neg)
    if m: return {(m.group(1), i) for i in range(int(m.group(2)), int(m.group(3)) + 1)}
    if neg in ('vcc', 'vcc_lo', 'vcc_hi'): return {('vcc', 0)}
    if neg in ('exec', 'exec_lo', 'exec_hi'): return {('exec', 0)}
    if neg == 'm0': return {('m0', 0)}
    return set()

TRANS = ('v_exp_f32', 'v_log_f32', 'v_rcp_f32', 'v_rsq_f32', 'v_sqrt_f32', 'v_sin_f32', 'v_cos_f32')

class Ins:
    def __init__(self, text):
        self.text = text
        t = text.split(';')[0].strip()
        parts = t.split(None, 1)
        self.mn = parts[0]
        rest = parts[1] if len(parts) > 1 else ''
        rest = re.sub(r'(\w+):\[[^\]]*\]', lambda m: m.group(0).replace(',', '_'), rest)
        ops = [o.strip() for o in rest.split(',')] if rest else []
        self.mods = ''
        if ops:
            lp = ops[-1].split(None, 1)
            ops[-1] = lp[0]
            self.mods = lp[1] if len(lp) > 1 else ''
        self.ops = ops
        mn = self.mn
        R = lambda i: regs_of(ops[i]) if i < len(ops) else set()
        allr = lambda a: set().union(*[R(i) for i in range(a, len(ops))]) if len(ops) > a else set()
        self.kind = 'other'; self.w = set(); self.r = set(); self.srcc = set(); self.ab = set(); self.passes = 0
        self.states = 1
        self.dpp = ('dpp' in mn) or ('row_' in self.mods) or ('quad_perm' in self.mods)
        if mn == 's_nop':
            self.states = int(ops[0], 0) + 1
        elif mn.startswith('v_mfma') or mn.startswith('v_smfmac'):
            self.kind = 'mfma'; self.w = R(0)
            self.passes = 8 if '32x32' in mn else 4
            if mn.startswith('v_mfma'):
                self.ab = R(1) | R(2); self.srcc = R(3)
            else:
                self.ab = R(1) | R(2) | R(3); self.srcc = R(0)
            self.r = self.ab | self.srcc
        elif mn.startswith('v_permlane') or mn.startswith('v_swap'):
            self.kind = 'valu'; self.w = R(0) | R(1); self.r = R(0) | R(1)
        elif mn.startswith('v_cmp'):
            self.kind = 'valu'; self.w = R(0); self.r = allr(1)
        elif mn.startswith('v_readfirstlane') or mn.startswith('v_readlane'):
            self.kind = 'valu'; self.w = R(0); self.r = allr(1)
        elif mn.startswith('v_'):
            self.kind = 'valu'; self.w = R(0); self.r = allr(1)
            if mn.startswith(('v_fmac', 'v_dot2c', 'v_writelane')) or self.dpp: self.r |= R(0)
            if '_co_' in mn: self.w |= R(1)
            if mn.startswith('v_cndmask') and len(ops) == 3: self.r |= {('vcc', 0)}
        elif mn.startswith('ds_'):
            self.kind = 'ds'
            if mn.startswith(('ds_read', 'ds_bpermute', 'ds_permute', 'ds_swizzle')) or '_rtn' in mn:
                self.w = R(0); self.r = allr(1)
            else:
                self.r = allr(0)
        elif mn.startswith(('buffer_', 'global_')):
            self.kind = 'vmem'
            lds = re.search(r'\blds\b', self.mods) is not None or '_lds_' in mn
            self.lds = lds
            if 'load' in mn and not lds:
                self.w = R(0); self.r = allr(1)
            elif 'atomic' in mn and 'sc0' in self.mods:
                self.w = R(0); self.r = allr(0)
            else:
                self.r = allr(0)
            if lds: self.r |= {('m0', 0)}
            self.wide_store = ('store' in mn and ('x3' in mn or 'x4' in mn))
            if self.wide_store:
                self.sdata = R(0) if mn.startswith('buffer_') else R(1)
        elif mn.startswith('s_'):
            self.kind = 'salu'
            if mn.startswith(('s_cmp', 's_bitcmp', 's_cbranch', 's_branch', 's_waitcnt', 's_barrier', 's_sleep', 's_setprio', 's_endpgm')):
                self.r = allr(0)
            else:
                self.w = R(0); self.r = allr(1)
                if 'saveexec' in mn: self.w |= {('exec', 0)}

def vec(s): return {x for x in s if x[0] in 'va'}
def sca(s): return {x for x in s if x[0] in ('s', 'vcc')}

def need(p, c):
    n = 0
    if p.kind == 'valu':
        pw = vec(p.w)
        if c.kind == 'mfma' and pw & c.r: n = max(n, 2)
        if c.kind == 'valu':
            if c.dpp and pw & c.r: n = max(n, 2)
            if c.mn.startswith('v_permlane') and pw & c.r: n = max(n, 2)
            if c.mn.startswith(('v_readfirstlane', 'v_readlane')) and pw & c.r: n = max(n, 1)
            if p.mn.startswith(TRANS) and pw & (c.r | c.w): n = max(n, 1)
            if sca(p.w) & c.r:
                n = max(n, 4 if c.mn.startswith(('v_readlane', 'v_writelane')) else 2)
        if c.kind == 'vmem' and sca(p.w) & c.r: n = max(n, 5)
        if c.kind == 'salu' and sca(p.w) & c.r: n = max(n, 1)
    if p.kind == 'mfma':
        big = {4: 8, 8: 12}[p.passes]
        if c.kind == 'mfma':
            if p.w & c.ab: n = max(n, big)
            if p.w & c.srcc:
                if not (p.w == c.srcc and p.passes == c.passes): n = max(n, big - 2)
            elif p.w & c.w: n = max(n, big)
        elif c.kind in ('valu', 'ds', 'vmem'):
            if p.w & (c.r | c.w): n = max(n, big)
            if c.kind == 'valu' and p.srcc & c.w: n = max(n, {4: 3, 8: 7}[p.passes])
    if p.kind == 'vmem' and getattr(p, 'wide_store', False):
        if p.sdata & c.w: n = max(n, 2)
    if p.kind == 'salu' and ('m0', 0) in p.w and ('m0', 0) in c.r and c.kind in ('vmem', 'ds'): n = max(n, 1)
    return n

class Asm:
    def __init__(self):
        self.lines = []
        self.hist = []
        self.branches = []
        self.nlab = 0
        self.pad_total = 0
    def raw(self, t): self.lines.append(('raw', t))
    def label(self, name): self.lines.append(('label', name))
    def newlabel(self, base):
        self.nlab += 1
        return f'L{base}_{self.nlab}'
    def _pad(self, hist, ins):
        d = 0; req = 0
        for p in reversed(hist):
            n = need(p, ins)
            if n - d > req: req = n - d
            d += p.states
            if d >= 20: break
        return req
    def __call__(self, text):
        for t in text.split('\n'):
            t = t.strip()
            if not t: continue
            if t.startswith(';'):
                self.raw('    ' + t); continue
            if t.endswith(':'):
                self.label(t[:-1]); continue
            ins = Ins(t)
            req = self._pad(self.hist, ins)
            while req > 0:
                k = min(req, 16)
                nop = Ins(f's_nop {k-1}')
                self.lines.append(('ins', nop)); self.hist.append(nop); req -= k; self.pad_total += k
            self.lines.append(('ins', ins)); self.hist.append(ins)
            self.hist = self.hist[-24:]
            if ins.mn.startswith(('s_cbranch', 's_branch')):
                self.branches.append((ins.ops[0], list(self.hist)))
            if ins.mn in ('s_branch', 's_endpgm'):
                self.hist = []
    def check_branches(self):
        idx = {t: i for i, (k, t) in enumerate(self.lines) if k == 'label'}
        bad = 0
        for lab, hist in self.branches:
            assert lab in idx, lab
            h = list(hist); n = 0
            for k, t in self.lines[idx[lab]:]:
                if k != 'ins': continue
                d = sum(x.states for x in h[len(hist):])
                dd = d
                for p in reversed(hist):
                    if need(p, t) > dd:
                        print(f'HAZARD across branch to {lab}: [{p.text}] -> [{t.text}] need {need(p,t)} have {dd}'); bad += 1
                    dd += p.states
                h.append(t); n += t.states
                if n > 14 or t.mn in ('s_branch', 's_endpgm'): break
        return bad
    def text(self):
        out = []
        for k, t in self.lines:
            if k == 'raw': out.append(t)
            elif k == 'label': out.append(t + ':')
            else: out.append('    ' + t.text)
        return '\n'.join(out) + '\n'

class Regs:
    def __init__(self, kind, lo, hi):
        self.kind = kind; self.n = lo; self.hi = hi; self.names = {}
    def alloc(self, name, cnt=1, align=None):
        if align is None: align = 1 if cnt == 1 else 2
        self.n = (self.n + align - 1) // align * align
        r = self.n; self.n += cnt
        assert self.n <= self.hi, f'out of {self.kind} regs at {name}: {self.n} > {self.hi}'
        self.names[name] = r
        return r

def V(n, c=1): return f'v{n}' if c == 1 else f'v[{n}:{n+c-1}]'
def A(n, c=1): return f'a{n}' if c == 1 else f'a[{n}:{n+c-1}]'
def S(n, c=1): return f's{n}' if c == 1 else f's[{n}:{n+c-1}]'
```

```python
import sys, struct
sys.path.insert(0, 'gen')
from asmlib import *
from layout import *

KNAME = 'gated_mix__memory_aug_recurrent_mem_tr__glu_gated_bilinear__prompt_kernel'

def f2u(x): return struct.unpack('<I', struct.pack('<f', x))[0]

WS = 's[4:7]'; DBG = 's[8:11]'; T1 = 's[12:15]'; T2 = 's[48:51]'
pX, pMEM0, pWQ, pWK, pWV, pWO, pWG, pWU, pWD, pGW, pOUT, pDBG, pWS = 16, 18, 20, 22, 24, 26, 32, 34, 36, 38, 40, 42, 44
sWave, sX, sR, sH, sXr, sJ, sHas2, sLim, sStep, sImp = 52, 53, 54, 55, 56, 57, 58, 59, 60, 61
sT0, sT1, sT2, sT3, sT4, sT5 = 62, 63, 64, 65, 66, 67
sbL, sbR, sbO = 68, 69, 70
sCL, sCR, sCO, sPL, sPO, sNL, sNO = 71, 72, 73, 74, 75, 76, 77
sSeg = 78
sSeg2 = 79
sEx = 80
sEx2 = 82
sTm = 84
sC = 88
sSpin = 89
sFl0, sFl1 = 90, 91
sPar = 46

class Cfg:
    rx0 = 0; rx1 = 2
    ax = None; fx = None
    nc_qkx = 2; nc_vox = 2; nc_ff1 = 2; la = 1; early_pub = 1; km_sleep = 2
    roles = ('R', 'QKX', 'VOX', 'FF1', 'FIN')
    fake_xcc = None
    timing = False
    force_impure = False
    force_par = None
    rdelay1 = 0
    rdelay2 = 0
    nsteps = 64
    fine = 0
    h2cue2 = True
    vocue2 = True
    h2cue = False
    prio1 = True
    cdepth = 4
    cgap = 12
    cpos1 = 2
    cpos2 = 0
    w0ack = False
    rdelay1q = 3
    order = 0
    n0qk = 6
    b3b = False
    st3 = True
    um_early = 0
    n0vo = 6
    late_vo = False
    only = None
    n1qk = 8
    n1vo = 8
    trig1 = 0
    late_r = False
    no_ux = False
    ux_nt = ''

COUNT_RETRY = [False]

def srd(a, q, p, nbytes):
    a(f's_mov_b32 s{q}, s{p}\ns_and_b32 s{q+1}, s{p+1}, 0xffff\ns_mov_b32 s{q+2}, {nbytes}\ns_mov_b32 s{q+3}, 0x00020000')

def maxtree(a, dst, regs):
    regs = list(regs)
    if len(regs) % 2 == 0:
        a(f'v_max_u32 v{dst}, v{regs[0]}, v{regs[1]}'); rest = regs[2:]
    else:
        a(f'v_max3_u32 v{dst}, v{regs[0]}, v{regs[1]}, v{regs[2]}'); rest = regs[3:]
    for i in range(0, len(rest), 2):
        a(f'v_max3_u32 v{dst}, v{dst}, v{rest[i]}, v{rest[i+1]}')

def poll(a, loads, regs, tmp, first_issued=False, spec=None, specwait=False, first_wait=0, sleep=0):
    top = a.newlabel('poll'); chk = a.newlabel('chk'); done = a.newlabel('pdone')
    a(f's_mov_b32 s{sSpin}, s{sLim}')
    if first_issued:
        a(f's_waitcnt vmcnt({first_wait})')
        a(f's_branch {chk}')
    a(f'{top}:')
    if specwait: a('s_waitcnt lgkmcnt(0)')
    for l in loads: a(l)
    a('s_waitcnt vmcnt(0)')
    a(f'{chk}:')
    if spec: spec()
    maxtree(a, tmp, regs)
    a(f'v_cmp_eq_u32 vcc, -1, v{tmp}')
    a(f's_cbranch_vccz {done}')
    if COUNT_RETRY[0] and first_issued: a('s_add_u32 s101, s101, 1')
    if sleep: a(f's_sleep {sleep}')
    a(f's_sub_u32 s{sSpin}, s{sSpin}, 1')
    a(f's_cbranch_scc0 {top}')
    a(f's_mov_b32 s{sLim}, 0')
    a(f'{done}:')

def lstore(a, insts):
    l1 = a.newlabel('ls'); l2 = a.newlabel('le')
    a(f's_cmp_lg_u32 s{sImp}, 0')
    a(f's_cbranch_scc1 {l1}')
    for i in insts: a(i)
    a(f's_branch {l2}')
    a(f'{l1}:')
    for i in insts: a(i + (' sc1' if i.startswith('buffer_') else ''))
    a(f'{l2}:')

def wait_init(a, vt, vo):
    top = a.newlabel('wi'); done = a.newlabel('wid')
    a(f'v_and_b32 v{vo}, 3, v0\nv_lshlrev_b32 v{vo}, 5, v{vo}\nv_add_u32 v{vo}, 4, v{vo}')
    a(f's_mov_b32 s{sSpin}, s{sLim}')
    a(f'{top}:')
    a(f'buffer_load_dword v{vt}, v{vo}, {DBG}, 0 offen sc1')
    a('s_waitcnt vmcnt(0)')
    a(f'v_readfirstlane_b32 s{sT0}, v{vt}')
    a(f's_cmp_ge_u32 s{sT0}, 256')
    a(f's_cbranch_scc1 {done}')
    a('s_sleep 2')
    a(f's_sub_u32 s{sSpin}, s{sSpin}, 1')
    a(f's_cbranch_scc0 {top}')
    a(f's_mov_b32 s{sLim}, 0')
    a(f'{done}:')
    a(f'buffer_load_dword v{vt}, v{vo}, {DBG}, 0 offen sc1')
    a('s_waitcnt vmcnt(0)')
    a(f'v_readlane_b32 s{sT0}, v{vt}, 1\nv_readlane_b32 s{sT1}, v{vt}, 2\nv_readlane_b32 s{sImp}, v{vt}, 3')

def init_done(a, vt, vo):
    l = a.newlabel('idn')
    a(f's_cmp_lg_u32 s{sWave}, 0\ns_cbranch_scc1 {l}')
    a(f'v_mov_b32 v{vt}, 1\nv_mov_b32 v{vo}, {D_INIT}')
    a('s_mov_b64 exec, 1')
    a(f'buffer_atomic_add v{vt}, v{vo}, {DBG}, 0 offen')
    a('s_mov_b64 exec, -1')
    a(f'{l}:')

def loader(a, chunks, vA, vB, vRd, vRd2, vt, vo, nslots=5):
    n = len(chunks)
    def issue(i):
        c = chunks[i]
        if c.get('pre'): c['pre'](a)
        c['soff'](a)
        a(f's_lshl_b32 s{sT1}, s{sWave}, 12')
        a(f's_add_u32 s{sT1}, s{sT1}, {(i % nslots) * 32768}')
        for ii in range(4):
            a(f's_mov_b32 m0, s{sT1}')
            a(f'buffer_load_dwordx4 v{vB if c.get("var", lambda i: i >> 1)(ii) else vA}, {T1}, s{sT0} offen lds')
            if ii < 3:
                a(f's_add_u32 s{sT0}, s{sT0}, {4 * c["stride"]}\ns_add_u32 s{sT1}, s{sT1}, 1024')
    for i in range(min(nslots, n)): issue(i)
    for i in range(n):
        a(f's_waitcnt vmcnt({4 * (min(i + nslots - 1, n - 1) - i)})')
        a('s_barrier')
        if i == 0: init_done(a, vt, vo)
        a(f'v_add_u32 v{vRd2}, {(i % nslots) * 32768}, v{chunks[i].get("vrd", vRd)}')
        chunks[i]['reads'](a, vRd2)
        a('s_waitcnt lgkmcnt(0)')
        a('s_barrier')
        if i + nslots < n: issue(i + nslots)

def src_offsets(a, vA, vB, vt, stride, colmap=None):
    for var, vd in ((0, vA), (1, vB)):
        a(f'v_lshrrev_b32 v{vt}, 4, v0')
        if var: a(f'v_or_b32 v{vt}, 4, v{vt}')
        a(f'v_bfe_u32 v{vd}, v0, 1, 3')
        a(f'v_xor_b32 v{vd}, v{vd}, v{vt}')
        if colmap is None:
            a(f'v_lshlrev_b32 v{vd}, 5, v{vd}')
        else:
            colmap(a, vd, vt)
        a(f'v_and_b32 v{vt}, 1, v0\nv_lshl_add_u32 v{vd}, v{vt}, 4, v{vd}')
        a(f'v_lshrrev_b32 v{vt}, 4, v0\nv_mul_u32_u24 v{vt}, {stride}, v{vt}\nv_add_u32 v{vd}, v{vd}, v{vt}')

def tr_base(a, vd, vt, unit_sreg):
    a(f'v_bfe_u32 v{vd}, v0, 2, 3')
    a(f'v_xor_b32 v{vd}, s{unit_sreg}, v{vd}')
    a(f'v_lshlrev_b32 v{vd}, 5, v{vd}')
    a(f'v_and_b32 v{vt}, 3, v0\nv_lshl_add_u32 v{vd}, v{vt}, 3, v{vd}')
    a(f'v_bfe_u32 v{vt}, v0, 2, 2\nv_lshl_add_u32 v{vd}, v{vt}, 8, v{vd}')
    a(f'v_lshrrev_b32 v{vt}, 4, v0\nv_lshl_add_u32 v{vd}, v{vt}, 11, v{vd}')

def std_reads(base):
    def f(a, va):
        for kk in range(4):
            for h in range(2):
                a(f'ds_read_b64_tr_b16 {A(base + kk * 4 + h * 2, 2)}, v{va} offset:{kk * 8192 + h * 1024}')
    return f

def tstamp(a, cfg, slot, vt, vo):
    if not cfg.timing: return
    a(f's_memrealtime s[{sTm}:{sTm+1}]\ns_waitcnt lgkmcnt(0)')
    a(f's_lshl_b32 s{sTm+2}, s{sX}, 5\ns_add_u32 s{sTm+2}, s{sTm+2}, s{sR}\ns_lshl_b32 s{sTm+2}, s{sTm+2}, 3\ns_add_u32 s{sTm+2}, s{sTm+2}, s{sWave}\ns_lshl_b32 s{sTm+2}, s{sTm+2}, 4')
    a(f's_add_u32 s{sTm+2}, s{sTm+2}, {TIM + slot * 4}')
    a(f'v_mov_b32 v{vt}, s{sTm}\nv_mov_b32 v{vo}, s{sTm+2}')
    a(f's_mov_b64 exec, 1\nbuffer_store_dword v{vt}, v{vo}, {WS}, 0 offen\ns_mov_b64 exec, -1')

def fstamp(a, cfg, k):
    if not cfg.fine: return
    if cfg.fine < 0:
        if cfg.only is not None and k not in cfg.only: return
        a(f's_memtime s[{sTm}:{sTm+1}]\ns_waitcnt lgkmcnt(0)\ns_sub_u32 s{sTm+1}, s{sTm}, s47\ns_mov_b32 s47, s{sTm}')
        a(f's_add_u32 s{sTm+1}, s{sTm+1}, s{92+k}\ns_cmp_ge_u32 s{sStep}, 4\ns_cselect_b32 s{92+k}, s{sTm+1}, 0')
        return
    if cfg.only is not None and k not in cfg.only: return
    a(f's_memtime s[{sTm}:{sTm+1}]\ns_waitcnt lgkmcnt(0)\ns_cmp_eq_u32 s{sStep}, {cfg.fine}\ns_cselect_b32 s{92+k}, s{sTm}, s{92+k}')
def fdump(a, cfg, vt, vo):
    if not cfg.fine: return
    a(f's_lshl_b32 s{sTm+2}, s{sXr}, 5\ns_add_u32 s{sTm+2}, s{sTm+2}, s{sR}\ns_lshl_b32 s{sTm+2}, s{sTm+2}, 3\ns_add_u32 s{sTm+2}, s{sTm+2}, s{sWave}\ns_lshl_b32 s{sTm+2}, s{sTm+2}, 6')
    a(f's_add_u32 s{sTm+2}, s{sTm+2}, {FTIM}\nv_mov_b32 v{vo}, s{sTm+2}\ns_mov_b64 exec, 1')
    for k in range(10):
        a(f'v_mov_b32 v{vt}, s{92+k}\nbuffer_store_dword v{vt}, v{vo}, {WS}, 0 offen offset:{4*k}')
    a('s_mov_b64 exec, -1')

def prologue(a, cfg):
    COUNT_RETRY[0] = cfg.fine < 0
    if cfg.fine < 0: a('s_mov_b32 s101, 0')
    a('s_cmp_ge_u32 s2, 256\ns_cbranch_scc1 L_end')
    a('s_load_dwordx16 s[16:31], s[0:1], 0\ns_load_dwordx8 s[32:39], s[0:1], 64\ns_load_dwordx4 s[40:43], s[0:1], 96\ns_load_dwordx2 s[44:45], s[0:1], 112')
    a(f'v_lshrrev_b32 v1, 6, v0\nv_and_b32 v0, 63, v0\nv_readfirstlane_b32 s{sWave}, v1')
    if cfg.fake_xcc is None:
        a(f's_getreg_b32 s{sX}, hwreg(HW_REG_XCC_ID)\ns_and_b32 s{sX}, s{sX}, 7')
    else:
        a(f's_mov_b32 s{sX}, {cfg.fake_xcc}')
    a(f's_mov_b32 s{sLim}, 0x80000')
    a('s_waitcnt lgkmcnt(0)')
    srd(a, 4, pWS, WS_BYTES); srd(a, 8, pDBG, 256)
    srd(a, 12, pWS, WS_BYTES); srd(a, 48, pWS, WS_BYTES)
    a(f's_cmp_eq_u32 s{sWave}, 0\ns_cbranch_scc1 L_claim')
    a(f's_cmp_lg_u32 s{sWave}, 7\ns_cbranch_scc1 L_pro_join')
    a(f's_cmp_lg_u32 s{sX}, {cfg.rx0}\ns_cbranch_scc1 L_pro_join')
    a(f's_lshr_b32 s{sT0}, s2, 6\ns_lshl_b32 s{sT0}, s{sT0}, 14\ns_and_b32 s{sT1}, s2, 63\ns_lshl_b32 s{sT1}, s{sT1}, 7')
    a(f's_add_u32 s{sT0}, s{sT0}, s{sT1}\ns_add_u32 s{sT0}, s{sT0}, {CAL}')
    a(f'v_mov_b32 v2, s{sT0}\nv_add_u32 v3, 0x2000, v2\nv_mov_b32 v4, 0')
    a(f's_mov_b64 exec, 1\ns_mov_b32 s{sT2}, -1\ns_mov_b32 s{sT3}, -1')
    for rep in range(2):
        a(f'buffer_store_dword v4, v2, {WS}, 0 offen sc1\nbuffer_store_dword v4, v3, {WS}, 0 offen sc1\ns_waitcnt vmcnt(0)')
        for vv, sd in ((2, sT2), (3, sT3)):
            a(f's_memtime s[{sTm}:{sTm+1}]\ns_waitcnt lgkmcnt(0)')
            a(f'buffer_load_dword v5, v{vv}, {WS}, 0 offen sc1\ns_waitcnt vmcnt(0)')
            a(f's_memtime s[{sTm+2}:{sTm+3}]\ns_waitcnt lgkmcnt(0)')
            a(f's_sub_u32 s{sT0}, s{sTm+2}, s{sTm}\ns_min_u32 s{sd}, s{sd}, s{sT0}')
    a(f's_cmp_lt_u32 s{sT2}, s{sT3}\ns_cselect_b32 s{sT0}, {D_VOTE0}, {D_VOTE1}')
    a(f'v_mov_b32 v2, s{sT0}\nv_mov_b32 v4, 1')
    a(f'buffer_atomic_add v4, v2, {DBG}, 0 offen\ns_waitcnt vmcnt(0)\ns_mov_b64 exec, -1')
    a('s_branch L_pro_join')
    a('L_claim:')
    a(f's_lshr_b32 s{sR}, s2, 3\ns_mov_b32 s{sImp}, 0\ns_mov_b64 exec, 1')
    a('L_claim_loop:')
    a(f's_lshl_b32 s{sT0}, 1, s{sR}\ns_lshl_b32 s{sT1}, s{sX}, 5')
    a(f'v_mov_b32 v2, s{sT0}\nv_mov_b32 v3, s{sT1}')
    a(f'buffer_atomic_or v2, v3, {DBG}, 0 offen sc0\ns_waitcnt vmcnt(0)')
    a(f'v_readfirstlane_b32 s{sT1}, v2')
    a(f's_and_b32 s{sT2}, s{sT1}, s{sT0}\ns_cbranch_scc0 L_claim_ok')
    a(f's_cmp_eq_u32 s{sT1}, -1\ns_cbranch_scc1 L_claim_next')
    a(f's_ff0_i32_b32 s{sR}, s{sT1}\ns_branch L_claim_loop')
    a('L_claim_next:')
    a(f's_add_u32 s{sX}, s{sX}, 1\ns_and_b32 s{sX}, s{sX}, 7\ns_mov_b32 s{sImp}, 1\ns_mov_b32 s{sR}, 0\ns_branch L_claim_loop')
    a('L_claim_ok:')
    if cfg.force_impure: a(f's_mov_b32 s{sImp}, 1')
    a(f's_cmp_eq_u32 s{sImp}, 0\ns_cbranch_scc1 L_claim_pub')
    a(f'v_mov_b32 v2, 1\nv_mov_b32 v3, {D_IMPURE}\nbuffer_atomic_or v2, v3, {DBG}, 0 offen\ns_waitcnt vmcnt(0)')
    a('L_claim_pub:')
    a(f's_lshl_b32 s{sT0}, s{sX}, 5\ns_or_b32 s{sT0}, s{sT0}, s{sR}')
    a(f'v_mov_b32 v2, s{sT0}\nv_mov_b32 v3, 0\nds_write_b32 v3, v2\ns_waitcnt lgkmcnt(0)\ns_mov_b64 exec, -1')
    a('L_pro_join:')
    a('s_barrier')
    a('v_mov_b32 v3, 0\nds_read_b32 v2, v3\ns_waitcnt lgkmcnt(0)')
    a(f'v_readfirstlane_b32 s{sT0}, v2')
    a(f's_lshr_b32 s{sX}, s{sT0}, 5\ns_and_b32 s{sX}, s{sX}, 7\ns_and_b32 s{sR}, s{sT0}, 31')
    a('s_barrier')
    tstamp(a, cfg, 0, 2, 3)
    if 'R' in cfg.roles:
        a(f's_mov_b32 s{sXr}, 0\ns_cmp_eq_u32 s{sX}, {cfg.rx0}\ns_cbranch_scc1 L_R')
        a(f's_mov_b32 s{sXr}, 1\ns_cmp_eq_u32 s{sX}, {cfg.rx1}\ns_cbranch_scc1 L_R')
    others = [x for x in range(8) if x not in (cfg.rx0, cfg.rx1)]
    ax, fx = cfg.ax or others[2:], cfg.fx or others[:2]
    for i, x in enumerate(ax):
        a(f's_mov_b32 s{sT0}, {8 * i}\ns_cmp_eq_u32 s{sX}, {x}\ns_cbranch_scc1 L_Atype')
    for i, x in enumerate(fx):
        a(f's_mov_b32 s{sT0}, {i}\ns_cmp_eq_u32 s{sX}, {x}\ns_cbranch_scc1 L_Ftype')
    a('L_idle:')
    init_done(a, 2, 3)
    a('s_branch L_end')
    a('L_Atype:')
    a(f's_bfe_u32 s{sH}, s{sR}, 0x30001\ns_add_u32 s{sH}, s{sH}, s{sT0}\ns_and_b32 s{sXr}, s{sR}, 1')
    a(f's_cmp_ge_u32 s{sR}, 16\ns_cbranch_scc1 L_A2')
    a(f's_cmp_ge_u32 s{sXr}, {cfg.nc_qkx}\ns_cbranch_scc1 L_idle')
    a('s_branch ' + ('L_QKX' if 'QKX' in cfg.roles else 'L_idle'))
    a('L_A2:')
    a(f's_cmp_ge_u32 s{sXr}, {cfg.nc_vox}\ns_cbranch_scc1 L_idle')
    a('s_branch ' + ('L_VOX' if 'VOX' in cfg.roles else 'L_idle'))
    a('L_Ftype:')
    a(f's_cmp_ge_u32 s{sR}, 16\ns_cbranch_scc1 L_F2')
    a(f's_and_b32 s{sH}, s{sR}, 7\ns_lshr_b32 s{sXr}, s{sR}, 3\ns_lshl_b32 s{sT0}, s{sT0}, 1\ns_add_u32 s{sXr}, s{sXr}, s{sT0}')
    a('s_branch ' + ('L_FIN' if 'FIN' in cfg.roles else 'L_idle'))
    a('L_F2:')
    a(f's_cmp_ge_u32 s{sR}, 30\ns_cbranch_scc1 L_idle')
    a(f's_bfe_u32 s{sH}, s{sR}, 0x30001\ns_mul_i32 s{sT0}, s{sT0}, 7\ns_add_u32 s{sH}, s{sH}, s{sT0}\ns_and_b32 s{sXr}, s{sR}, 1')
    a(f's_cmp_ge_u32 s{sXr}, {cfg.nc_ff1}\ns_cbranch_scc1 L_idle')
    a('s_branch ' + ('L_FF1' if 'FF1' in cfg.roles else 'L_idle'))
```

```python
import sys
sys.path.insert(0, 'gen')
from core import *
import role_r2, role_r3
from role_b import *

def build(cfg, header):
    a = Asm()
    prologue(a, cfg)
    if 'R' in cfg.roles: (role_r3 if cfg.r3 else role_r2).role_R(a, cfg)
    if 'QKX' in cfg.roles: role_QKX(a, cfg)
    if 'VOX' in cfg.roles: role_VOX(a, cfg)
    if 'FF1' in cfg.roles: role_FF1(a, cfg)
    if 'FIN' in cfg.roles: role_FIN(a, cfg)
    a('L_end:')
    a('s_endpgm')
    bad = a.check_branches()
    assert bad == 0
    txt = header + f'''; @launch grid=(256,1,1) block=(512,1,1) lds=163840
.amdgcn_target "amdgcn-amd-amdhsa--gfx950"
.text
.globl {KNAME}
.p2align 8
.type {KNAME},@function
{KNAME}:
''' + a.text() + f'''.section .rodata,"a"
.p2align 6
.amdhsa_kernel {KNAME}
  .amdhsa_next_free_vgpr 256
  .amdhsa_next_free_sgpr 102
  .amdhsa_accum_offset 96
  .amdhsa_group_segment_fixed_size 0
  .amdhsa_kernarg_size 120
  .amdhsa_user_sgpr_count 2
  .amdhsa_user_sgpr_kernarg_segment_ptr 1
  .amdhsa_system_sgpr_workgroup_id_x 1
.end_amdhsa_kernel
'''
    return txt

if __name__ == '__main__':
    cfg = Cfg()
    print(build(cfg, ''))
```

```python
MB = 1 << 20
SL = 32768
XS = 4 * MB
CTL = 2 * MB
F_KX = CTL + 0x000
F_UX = CTL + 0x200
F_PX = CTL + 0x400
F_H  = CTL + 0x800
F_G  = CTL + 0xA00
TIM  = CTL + 0x2000
FTIM = CTL + 0x10000
GATE = CTL + 0x20000
PXM = 6 * MB
CAL = 8 * MB
KX = 10 * MB
KM = 26 * MB
PXX = 30 * MB
UM = 36 * MB
UX = 80 * MB
HB = 160 * MB
WS_BYTES = 256 * MB
D_INIT = 4
D_VOTE0 = 36
D_VOTE1 = 68
D_IMPURE = 100
```

```python
from core import *

XB = 0
XBS = 40960
sCp = sXr
sI = sStep
sXo, sXm = sCL, sCR
WB = 640 * 4096 * 2

def zero_flag(a, sval_addr, nwords=1):
    l = a.newlabel('zf')
    a(f's_cmp_lg_u32 s{sWave}, 1\ns_cbranch_scc1 {l}')
    a(f'v_mov_b32 v8, 0\nv_lshlrev_b32 v9, 2, v0\nv_add_u32 v9, s{sval_addr}, v9\ns_mov_b64 exec, {(1 << nwords) - 1}\nbuffer_store_dword v8, v9, {WS}, 0 offen sc1\ns_mov_b64 exec, -1')
    a(f'{l}:')

def near_par(a, cfg):
    a(f's_cmp_gt_u32 s{sT1}, s{sT0}\ns_cselect_b32 s{sPar}, ' + ('0x2000, 0' if cfg.force_par is None else '0, 0x2000'))

def x_setup(a, vXo, vt, nc):
    srd(a, 48, pX, 2048 * 1280)
    a(f'v_and_b32 v{vXo}, 15, v0\nv_mul_u32_u24 v{vXo}, 1280, v{vXo}\nv_lshrrev_b32 v{vt}, 4, v0\nv_lshl_add_u32 v{vXo}, v{vt}, 4, v{vXo}')
    a(f's_lshr_b32 s{sT0}, s{sWave}, 2\ns_mul_i32 s{sT0}, s{sT0}, 20480\ns_and_b32 s{sT1}, s{sWave}, 3\ns_mul_i32 s{sT1}, s{sT1}, 320\ns_add_u32 s{sXo}, s{sT0}, s{sT1}')
    a(f's_mul_i32 s{sT0}, s{sCp}, {XBS}\ns_add_u32 s{sXo}, s{sXo}, s{sT0}')
    a(f's_mul_i32 s{sXm}, s{sWave}, 5120\ns_add_u32 s{sXm}, s{sXm}, {XB}')

def x_dma(a, vXo, nc):
    a(f's_mov_b32 s{sT0}, s{sXm}')
    for i in range(5):
        a(f's_mov_b32 m0, s{sT0}')
        a(f'buffer_load_dwordx4 v{vXo}, {T2}, s{sXo} offen offset:{64 * i} lds')
        if i < 4: a(f's_add_u32 s{sT0}, s{sT0}, 960')
    a(f's_add_u32 s{sXo}, s{sXo}, {nc * XBS}')
    a(f's_add_u32 s{sT0}, s{sXm}, {XBS}\ns_sub_u32 s{sT1}, s{sXm}, {XBS}\ns_cmp_lt_u32 s{sXm}, {XB + XBS}\ns_cselect_b32 s{sXm}, s{sT0}, s{sT1}')

def project(a, vXr, buf, nbuf, accs, ntile):
    def rd(kk):
        b = buf + 8 * (kk % nbuf)
        a(f'ds_read_b128 {V(b, 4)}, v{vXr} offset:{kk * 1024}\nds_read_b128 {V(b + 4, 4)}, v{vXr} offset:{20480 + kk * 1024}')
    for kk in range(nbuf - 1): rd(kk)
    for kk in range(20):
        if kk + nbuf - 1 < 20: rd(kk + nbuf - 1)
        left = min(19, kk + nbuf - 1) - kk
        a(f's_waitcnt lgkmcnt({2 * left})')
        b = buf + 8 * (kk % nbuf)
        for tt in range(2):
            for t in range(ntile):
                d = accs[t][tt]
                a(f'v_mfma_f32_16x16x32_bf16 {V(d, 4)}, {A(80 * t + 4 * kk, 4)}, {V(b + 4 * tt, 4)}, {"0" if kk == 0 else V(d, 4)}')

def toggle_xr(a, vXr, vt):
    a(f'v_add_u32 v{vt}, {XBS}, v{vXr}\nv_subrev_u32 v{vXr}, {XBS}, v{vXr}\nv_min_u32 v{vXr}, v{vXr}, v{vt}')

def flag_store(a, vaddr, vval, sval, wave):
    l = a.newlabel('fs')
    a(f's_cmp_lg_u32 s{sWave}, {wave}\ns_cbranch_scc1 {l}')
    a(f'v_mov_b32 v{vval}, s{sval}\ns_mov_b64 exec, 1\nbuffer_store_dword v{vval}, v{vaddr}, {WS}, 0 offen sc1\ns_mov_b64 exec, -1')
    a(f'{l}:')

def spin_ge(a, vaddr, vF, sneed, sleep=4):
    top = a.newlabel('sp'); done = a.newlabel('spd')
    a(f's_mov_b32 s{sSpin}, s{sLim}')
    a(f'{top}:')
    a(f'buffer_load_dword v{vF}, v{vaddr}, {WS}, 0 offen sc1\ns_waitcnt vmcnt(0)')
    a(f'v_cmp_gt_u32 vcc, s{sneed}, v{vF}')
    a(f's_cbranch_vccz {done}')
    a(f's_sleep {sleep}')
    a(f's_sub_u32 s{sSpin}, s{sSpin}, 1\ns_cbranch_scc0 {top}\ns_mov_b32 s{sLim}, 0')
    a(f'{done}:')

def col_soff(stride, colmul, scol):
    def g(n):
        return lambda a: a(f's_lshl_b32 s{sT0}, s{sWave}, 4\ns_add_u32 s{sT0}, s{sT0}, {128 * n}\ns_mul_i32 s{sT0}, s{sT0}, {stride}\ns_mul_i32 s{sT1}, s{scol}, {colmul}\ns_add_u32 s{sT0}, s{sT0}, s{sT1}')
    return g

vA, vB, vRd, vRd2, vt, vo = 10, 11, 12, 13, 14, 15

def role_VOX(a, cfg):
    nc = cfg.nc_vox; nit = 64 // nc
    VBUF = 2 * XBS
    a('L_VOX:')
    a(f's_lshl_b32 s{sT0}, s{sH}, 1\ns_add_u32 s{sT0}, s{sT0}, s{sCp}\ns_lshl_b32 s{sT0}, s{sT0}, 2\ns_add_u32 s{sFl0}, s{sT0}, {F_UX}')
    zero_flag(a, sFl0)
    src_offsets(a, vA, vB, vt, 8192); tr_base(a, vRd, vt, sWave)
    chunks = [dict(pre=(lambda a: srd(a, 12, pWV, WB)) if n == 0 else None, soff=col_soff(8192, 256, sH)(n), stride=8192, reads=std_reads(16 * n)) for n in range(5)]
    def pre(a):
        srd(a, 12, pWO, WB); src_offsets(a, vA, vB, vt, 1280)
    so = lambda c: (lambda a: a(f's_lshl_b32 s{sT0}, s{sH}, 7\ns_lshl_b32 s{sT1}, s{sWave}, 4\ns_add_u32 s{sT0}, s{sT0}, s{sT1}\ns_mul_i32 s{sT0}, s{sT0}, 1280\ns_add_u32 s{sT0}, s{sT0}, {256 * c}'))
    chunks += [dict(pre=pre if c == 0 else None, soff=so(c), stride=1280, reads=std_reads(80 + 16 * c)) for c in range(5)]
    loader(a, chunks, vA, vB, vRd, vRd2, vt, vo)
    vXo, vXr, vL16, vNeg, vVw, vFa, vP1, vP2, vTmp = 2, 3, 1, 4, 8, 9, 10, 11, 12
    vBuf = 16; vAcc = 48
    x_setup(a, vXo, vTmp, nc)
    x_dma(a, vXo, nc)
    tstamp(a, cfg, 1, vt, vo)
    wait_init(a, vt, vo); near_par(a, cfg)
    a(f'v_lshlrev_b32 v{vL16}, 4, v0\nv_add_u32 v{vXr}, {XB}, v{vL16}')
    for i in range(4): a(f'v_mov_b32 v{vNeg + i}, -1')
    a(f'v_and_b32 v{vVw}, 15, v0\nv_lshlrev_b32 v{vVw}, 4, v{vVw}\nv_bfe_u32 v{vTmp}, v0, 4, 1\nv_lshl_add_u32 v{vVw}, v{vTmp}, 3, v{vVw}\nv_lshrrev_b32 v{vTmp}, 5, v0\nv_lshl_add_u32 v{vVw}, v{vTmp}, 8, v{vVw}')
    a(f's_lshl_b32 s{sT0}, s{sWave}, 9\ns_add_u32 s{sT0}, s{sT0}, {VBUF}\nv_add_u32 v{vVw}, s{sT0}, v{vVw}')
    a(f'v_mov_b32 v{vFa}, s{sFl0}')
    a(f'v_and_b32 v{vP2}, 15, v0\nv_lshlrev_b32 v{vP2}, 4, v{vP2}\ns_lshl_b32 s{sT0}, s{sH}, 8\nv_add_u32 v{vP2}, s{sT0}, v{vP2}')
    a(f'v_lshrrev_b32 v{vTmp}, 4, v0\nv_lshl_add_u32 v{vP1}, v{vTmp}, 20, v{vP2}\nv_lshrrev_b32 v{vTmp}, 5, v0\nv_lshlrev_b32 v{vTmp}, 13, v{vTmp}\nv_xor_b32 v{vTmp}, s{sPar}, v{vTmp}\nv_add_u32 v{vP1}, v{vP1}, v{vTmp}')
    a(f's_lshl_b32 s{sT0}, s{sWave}, 22\nv_add_u32 v{vP1}, s{sT0}, v{vP1}')
    a(f's_add_u32 s{sT0}, s{sWave}, 32\ns_lshl_b32 s{sT0}, s{sT0}, 20\ns_bfe_u32 s{sT1}, s{sWave}, 0x10001\ns_lshl_b32 s{sT1}, s{sT1}, 13\ns_xor_b32 s{sT1}, s{sT1}, s{sPar}\ns_add_u32 s{sT0}, s{sT0}, s{sT1}\nv_add_u32 v{vP2}, s{sT0}, v{vP2}')
    a(f's_lshl_b32 s{sSeg2}, s{sCp}, 14\ns_add_u32 s{sSeg2}, s{sSeg2}, {UM}')
    a(f's_lshl_b32 s{sSeg}, s{sWave}, 21\ns_lshl_b32 s{sT0}, s{sCp}, 15\ns_add_u32 s{sSeg}, s{sSeg}, s{sT0}\ns_lshl_b32 s{sT0}, s{sH}, 10\ns_add_u32 s{sSeg}, s{sSeg}, s{sT0}\ns_add_u32 s{sSeg}, s{sSeg}, {UX}')
    a(f's_mov_b32 s{sI}, 0')
    a('L_VOX_loop:')
    a('s_waitcnt vmcnt(5)\ns_barrier')
    x_dma(a, vXo, nc)
    a(f'buffer_store_dwordx4 {V(vNeg, 4)}, v{vP1}, {WS}, s{sSeg2} offen sc1\ns_mov_b64 exec, 0xffff\nbuffer_store_dwordx4 {V(vNeg, 4)}, v{vP2}, {WS}, s{sSeg2} offen sc1\ns_mov_b64 exec, -1')
    a(f's_add_u32 s{sSeg2}, s{sSeg2}, {nc * 16384}')
    project(a, vXr, vBuf, 4, [[vAcc, vAcc + 4]], 1)
    toggle_xr(a, vXr, vTmp)
    for tt in range(2):
        b = vAcc + 4 * tt
        a(f'v_cvt_pk_bf16_f32 v{b}, v{b}, v{b + 1}\nv_cvt_pk_bf16_f32 v{b + 1}, v{b + 2}, v{b + 3}\nds_write_b64 v{vVw}, {V(b, 2)} offset:{4096 * tt}')
    a('s_waitcnt vmcnt(7) lgkmcnt(0)\ns_barrier')
    a(f'v_add_u32 v{vTmp}, {VBUF}, v{vL16}')
    for i in range(8): a(f'ds_read_b128 {V(vBuf + 4 * i, 4)}, v{vTmp} offset:{1024 * i}')
    flag_store(a, vFa, vTmp + 1, sI, 0)
    a(f's_mov_b32 s{sT2}, s{sSeg}')
    def ep(c):
        o = 88 + 4 * (c & 1); b = vAcc + 8 * c
        for q in range(4): a(f'v_cvt_pk_bf16_f32 v{o + q}, v{b + 2 * q}, v{b + 2 * q + 1}')
        a(f'buffer_store_dwordx4 {V(o, 4)}, v{vL16}, {WS}, s{sT2} offen sc1')
        if c < 4: a(f's_add_u32 s{sT2}, s{sT2}, {16 * MB}')
    for c in range(5):
        if c == 0: a('s_waitcnt lgkmcnt(0)')
        for ks in range(4):
            for tt in range(2):
                d = vAcc + 8 * c + 4 * tt
                a(f'v_mfma_f32_16x16x32_bf16 {V(d, 4)}, {V(vBuf + 16 * tt + 4 * ks, 4)}, {A(80 + 16 * c + 4 * ks, 4)}, {"0" if ks == 0 else V(d, 4)}')
        if c > 0: ep(c - 1)
    ep(4)
    a(f's_add_u32 s{sSeg}, s{sSeg}, {nc * 32768}\ns_add_u32 s{sI}, s{sI}, 1')
    l = a.newlabel('vf')
    a(f's_cmp_gt_u32 s{sI}, {cfg.early_pub}\ns_cbranch_scc1 {l}')
    a('s_waitcnt vmcnt(0)\ns_barrier')
    flag_store(a, vFa, vTmp + 1, sI, 0)
    a(f'{l}:')
    a(f's_cmp_lt_u32 s{sI}, {nit}\ns_cbranch_scc1 L_VOX_loop')
    a('s_waitcnt vmcnt(0)\ns_barrier')
    flag_store(a, vFa, vTmp + 1, sI, 0)
    tstamp(a, cfg, 3, vt, vo)
    a('s_branch L_end')

def gate_wait(a, vaddr, vF):
    a(f'v_and_b32 v{vaddr}, 31, v0\nv_lshlrev_b32 v{vaddr}, 2, v{vaddr}\nv_add_u32 v{vaddr}, {F_G}, v{vaddr}\ns_mov_b32 s{sT2}, 1')
    spin_ge(a, vaddr, vF, sT2)

def role_FF1(a, cfg):
    nc = cfg.nc_ff1; nit = 64 // nc
    FB = 640 * 1728 * 2
    a('L_FF1:')
    a(f's_lshl_b32 s{sT0}, s{sH}, 1\ns_add_u32 s{sT0}, s{sT0}, s{sCp}\ns_lshl_b32 s{sT0}, s{sT0}, 2\ns_add_u32 s{sFl0}, s{sT0}, {F_H}')
    zero_flag(a, sFl0)
    src_offsets(a, vA, vB, vt, 3456); tr_base(a, vRd, vt, sWave)
    chunks = []
    for m, p in enumerate((pWG, pWU)):
        chunks += [dict(pre=(lambda a, p=p: srd(a, 12, p, FB)) if n == 0 else None, soff=col_soff(3456, 256, sH)(n), stride=3456, reads=std_reads(80 * m + 16 * n)) for n in range(5)]
    loader(a, chunks, vA, vB, vRd, vRd2, vt, vo)
    vXo, vXr, vL16, vFa, vGa, vG, vTmp = 2, 3, 1, 9, 8, 4, 12
    vBuf = 16; vAcc = 48; vO = 64
    x_setup(a, vXo, vTmp, nc)
    x_dma(a, vXo, nc)
    tstamp(a, cfg, 1, vt, vo)
    wait_init(a, vt, vo)
    gate_wait(a, vGa, vTmp)
    a(f'v_lshlrev_b32 v{vL16}, 4, v0\nv_add_u32 v{vXr}, {XB}, v{vL16}\nv_mov_b32 v{vFa}, s{sFl0}')
    a(f'v_and_b32 v{vGa}, 15, v0\nv_lshlrev_b32 v{vGa}, 2, v{vGa}')
    a(f's_lshl_b32 s{sSeg2}, s{sCp}, 7\ns_add_u32 s{sSeg2}, s{sSeg2}, {GATE}')
    a(f's_lshl_b32 s{sT0}, s{sH}, 3\ns_add_u32 s{sT0}, s{sT0}, s{sWave}\ns_lshl_b32 s{sSeg}, s{sT0}, 10\ns_mul_i32 s{sT1}, s{sCp}, {112 * 1024}\ns_add_u32 s{sSeg}, s{sSeg}, s{sT1}\ns_add_u32 s{sSeg}, s{sSeg}, {HB}')
    a(f's_mov_b32 s{sI}, 0')
    a('L_FF1_loop:')
    a('s_waitcnt vmcnt(0)\ns_barrier')
    flag_store(a, vFa, vTmp + 1, sI, 0)
    a(f'buffer_load_dword v{vG}, v{vGa}, {WS}, s{sSeg2} offen sc1\nbuffer_load_dword v{vG + 1}, v{vGa}, {WS}, s{sSeg2} offen offset:64 sc1')
    x_dma(a, vXo, nc)
    a(f's_add_u32 s{sSeg2}, s{sSeg2}, {nc * 128}')
    project(a, vXr, vBuf, 4, [[vAcc, vAcc + 4], [vAcc + 8, vAcc + 12]], 2)
    toggle_xr(a, vXr, vTmp)
    a(f's_waitcnt vmcnt(5)\nv_sub_f32 v{vG}, 1.0, v{vG}\nv_sub_f32 v{vG + 1}, 1.0, v{vG + 1}')
    for tt in range(2):
        for i in range(4): a(f'v_mul_f32 v{vAcc + 4 * tt + i}, v{vAcc + 4 * tt + i}, v{vG + tt}')
    for q in range(8): a(f'v_mul_f32 v{vAcc + q}, v{vAcc + q}, v{vAcc + 8 + q}')
    for q in range(4): a(f'v_cvt_pk_bf16_f32 v{vO + q}, v{vAcc + 2 * q}, v{vAcc + 2 * q + 1}')
    a(f'buffer_store_dwordx4 {V(vO, 4)}, v{vL16}, {WS}, s{sSeg} offen sc1')
    a(f's_add_u32 s{sSeg}, s{sSeg}, {nc * 112 * 1024}\ns_add_u32 s{sI}, s{sI}, 1')
    a(f's_cmp_lt_u32 s{sI}, {nit}\ns_cbranch_scc1 L_FF1_loop')
    a('s_waitcnt vmcnt(0)\ns_barrier')
    flag_store(a, vFa, vTmp + 1, sI, 0)
    tstamp(a, cfg, 3, vt, vo)
    a('s_branch L_end')

def role_QKX(a, cfg):
    nc = cfg.nc_qkx; nit = 64 // nc; LA = cfg.la; NS = LA + 1
    QB = 2 * XBS
    assert QB + NS * 16384 <= 163840
    a('L_QKX:')
    a(f's_lshl_b32 s{sT0}, s{sH}, 1\ns_add_u32 s{sT0}, s{sT0}, s{sCp}\ns_lshl_b32 s{sFl1}, s{sT0}, 3\ns_add_u32 s{sFl1}, s{sFl1}, {F_PX}\ns_lshl_b32 s{sT0}, s{sT0}, 2\ns_add_u32 s{sFl0}, s{sT0}, {F_KX}')
    zero_flag(a, sFl0); zero_flag(a, sFl1, 2)
    src_offsets(a, vA, vB, vt, 8192)
    a(f's_and_b32 s{sT2}, s{sWave}, 3\ns_lshl_b32 s{sT2}, s{sT2}, 1')
    tr_base(a, vRd, vt, sT2)
    def rd(m, n):
        def f(a, va):
            l = a.newlabel('qk')
            a(f's_cmp_ge_u32 s{sWave}, 4\ns_cbranch_scc{1 if m == 0 else 0} {l}')
            std_reads(16 * n)(a, va)
            a(f'v_xor_b32 v{va}, 32, v{va}')
            std_reads(80 + 16 * n)(a, va)
            a(f'{l}:')
        return f
    chunks = []
    for m, p in enumerate((pWK, pWQ)):
        chunks += [dict(pre=(lambda a, p=p: srd(a, 12, p, WB)) if n == 0 else None, soff=col_soff(8192, 256, sH)(n), stride=8192, reads=rd(m, n)) for n in range(5)]
    loader(a, chunks, vA, vB, vRd, vRd2, vt, vo)
    vXo, vXr, vL16, vNeg, vFa, vQw, vTmp, vTmp2 = 2, 3, 1, 4, 8, 9, 12, 13
    vKm, vGa, vPm, vPf = 10, 11, 14, 15
    vBuf = 16; vAcc = 48; vO = 64; vMask = 72
    vS = 84
    x_setup(a, vXo, vTmp, nc)
    x_dma(a, vXo, nc)
    tstamp(a, cfg, 1, vt, vo)
    wait_init(a, vt, vo)
    a(f'v_lshlrev_b32 v{vL16}, 4, v0\nv_add_u32 v{vXr}, {XB}, v{vL16}\nv_mov_b32 v{vFa}, s{sFl0}')
    for i in range(4): a(f'v_mov_b32 v{vNeg + i}, -1')
    sQw, sQr, sKmP, sAt = sbL, sbR, sbO, sCO
    a(f's_lshr_b32 s{sT0}, s{sWave}, 2\ns_lshl_b32 s{sT0}, s{sT0}, 13\ns_and_b32 s{sT1}, s{sWave}, 3\ns_lshl_b32 s{sT1}, s{sT1}, 10\ns_add_u32 s{sT0}, s{sT0}, s{sT1}\ns_add_u32 s{sT0}, s{sT0}, {QB}\nv_add_u32 v{vQw}, s{sT0}, v{vL16}')
    a(f's_mov_b32 s{sQw}, 0\ns_mov_b32 s{sQr}, 0')
    a(f's_lshl_b32 s{sSeg}, s{sH}, 19\ns_lshl_b32 s{sT0}, s{sCp}, 13\ns_add_u32 s{sSeg}, s{sSeg}, s{sT0}\ns_add_u32 s{sSeg}, s{sSeg}, s{sT1}\ns_add_u32 s{sSeg}, s{sSeg}, {KX}')
    a(f's_lshl_b32 s{sKmP}, s{sH}, 11\ns_lshl_b32 s{sT0}, s{sCp}, 16\ns_add_u32 s{sKmP}, s{sKmP}, s{sT0}\ns_add_u32 s{sKmP}, s{sKmP}, {KM}')
    a(f's_mov_b32 s{sAt}, s{sCp}')
    a(f'v_and_b32 v{vKm}, 7, v0\nv_lshlrev_b32 v{vKm}, 4, v{vKm}\nv_lshrrev_b32 v{vTmp}, 4, v0\nv_lshl_add_u32 v{vKm}, v{vTmp}, 7, v{vKm}\ns_lshl_b32 s{sT0}, s{sH}, 11\ns_add_u32 s{sT0}, s{sT0}, {KM}\nv_add_u32 v{vKm}, s{sT0}, v{vKm}')
    a(f's_lshl_b32 s{sT0}, s{sWave}, 2\ns_add_u32 s{sT0}, s{sT0}, s{sFl1}\nv_mov_b32 v{vPf}, s{sT0}')
    a(f'v_and_b32 v{vPm}, 15, v0\nv_lshlrev_b32 v{vPm}, 4, v{vPm}\ns_lshr_b32 s{sT0}, s{sH}, 2\ns_lshl_b32 s{sT0}, s{sT0}, 11\ns_and_b32 s{sT1}, s{sH}, 3\ns_lshl_b32 s{sT1}, s{sT1}, 8\ns_add_u32 s{sT0}, s{sT0}, s{sT1}')
    a(f's_lshl_b32 s{sT1}, s{sWave}, 10\ns_add_u32 s{sT0}, s{sT0}, s{sT1}\ns_add_u32 s{sT0}, s{sT0}, {PXM}\nv_add_u32 v{vPm}, s{sT0}, v{vPm}')
    a(f's_lshl_b32 s{sT0}, s{sWave}, 4\nv_and_b32 v{vTmp}, 15, v0\nv_add_u32 v{vTmp}, s{sT0}, v{vTmp}\nv_lshrrev_b32 v{vTmp2}, 4, v0\nv_lshlrev_b32 v{vTmp2}, 2, v{vTmp2}\nv_sub_u32 v{vTmp}, v{vTmp}, v{vTmp2}')
    a(f'v_mov_b32 v{vS}, 0xff7fffff\nv_mov_b32 v{vS + 1}, 0')
    for t in range(2):
        for i in range(4):
            a(f'v_cmp_le_i32 vcc, {16 * t + i}, v{vTmp}\nv_cndmask_b32 v{vMask + 4 * t + i}, v{vS}, v{vS + 1}, vcc')
    a(f'v_cmp_le_u32 vcc, 32, v0')
    for i in range(4): a(f'v_cndmask_b32 v{vMask + 8 + i}, v{vS}, v{vS + 1}, vcc')
    a(f's_mov_b32 s{sC}, {f2u(128 ** -0.5 * 1.4426950408889634)}')
    a(f's_mov_b32 s{sEx}, 0\ns_mov_b32 s{sEx + 1}, 0xffff')
    a(f's_mov_b32 s{sI}, 0')
    a('L_QKX_loop:')
    a(f's_cmp_ge_u32 s{sI}, {nit}\ns_cbranch_scc1 L_QKX_att')
    a('s_waitcnt vmcnt(0)\ns_barrier')
    x_dma(a, vXo, nc)
    l = a.newlabel('kp')
    a(f's_cmp_lg_u32 s{sWave}, 4\ns_cbranch_scc1 {l}')
    a(f'buffer_store_dwordx4 {V(vNeg, 4)}, v{vL16}, {WS}, s{sKmP} offen sc1\nbuffer_store_dwordx4 {V(vNeg, 4)}, v{vL16}, {WS}, s{sKmP} offen offset:1024 sc1')
    a(f'{l}:')
    a(f's_add_u32 s{sKmP}, s{sKmP}, {nc * 65536}')
    project(a, vXr, vBuf, 4, [[vAcc, vAcc + 8], [vAcc + 4, vAcc + 12]], 2)
    toggle_xr(a, vXr, vTmp)
    a(f'v_add_u32 v{vTmp}, s{sQw}, v{vQw}')
    for q in range(8): a(f'v_cvt_pk_bf16_f32 v{vO + q}, v{vAcc + 2 * q}, v{vAcc + 2 * q + 1}')
    a(f'ds_write_b128 v{vTmp}, {V(vO, 4)}\nds_write_b128 v{vTmp}, {V(vO + 4, 4)} offset:4096')
    l = a.newlabel('ks')
    a(f's_cmp_ge_u32 s{sWave}, 4\ns_cbranch_scc1 {l}')
    a(f's_add_u32 s{sT0}, s{sSeg}, 4096\nbuffer_store_dwordx4 {V(vO, 4)}, v{vL16}, {WS}, s{sSeg} offen sc1\nbuffer_store_dwordx4 {V(vO + 4, 4)}, v{vL16}, {WS}, s{sT0} offen sc1')
    a(f'{l}:')
    a(f's_add_u32 s{sSeg}, s{sSeg}, {nc * 8192}')
    a(f's_add_u32 s{sQw}, s{sQw}, 16384\ns_cmp_ge_u32 s{sQw}, {NS * 16384}\ns_cselect_b32 s{sQw}, 0, s{sQw}')
    a(f's_add_u32 s{sT3}, s{sI}, 1')
    a('s_waitcnt vmcnt(0) lgkmcnt(0)\ns_barrier')
    flag_store(a, vFa, vTmp + 1, sT3, 7)
    a('L_QKX_att:')
    a(f's_cmp_lt_u32 s{sI}, {LA}\ns_cbranch_scc1 L_QKX_next')
    a(f's_cmp_ge_u32 s{sWave}, 2\ns_cbranch_scc1 L_QKX_next')
    l = a.newlabel('gw')
    a(f's_cmp_lg_u32 s{sI}, {LA}\ns_cbranch_scc1 {l}')
    gate_wait(a, vGa, vTmp)
    a(f'v_and_b32 v{vGa}, 15, v0\nv_lshlrev_b32 v{vGa}, 2, v{vGa}\ns_lshl_b32 s{sT0}, s{sWave}, 6\ns_add_u32 s{sT0}, s{sT0}, {GATE}\nv_add_u32 v{vGa}, s{sT0}, v{vGa}')
    a(f'{l}:')
    vQ, vK0, vK1, vKM, vG = vBuf, vBuf + 16, vAcc, vBuf + 16, vO
    T0, T1_, M_ = vS, vS + 4, vS + 8
    a(f's_lshl_b32 s{sT0}, s{sAt}, 7\nbuffer_load_dword v{vG}, v{vGa}, {WS}, s{sT0} offen sc1')
    a(f's_add_u32 s{sT0}, s{sQr}, {QB}\nv_add_u32 v{vTmp}, s{sT0}, v{vL16}\ns_lshl_b32 s{sT1}, s{sWave}, 12\nv_add_u32 v{vTmp2}, s{sT1}, v{vTmp}')
    for ks in range(4):
        a(f'ds_read_b128 {V(vQ + 4 * ks, 4)}, v{vTmp2} offset:{8192 + 1024 * ks}\nds_read_b128 {V(vK0 + 4 * ks, 4)}, v{vTmp} offset:{1024 * ks}\nds_read_b128 {V(vK1 + 4 * ks, 4)}, v{vTmp} offset:{4096 + 1024 * ks}')
    for ks in range(4):
        a(f's_waitcnt lgkmcnt({9 - 3 * ks})')
        a(f'v_mfma_f32_16x16x32_bf16 {V(T0, 4)}, {V(vK0 + 4 * ks, 4)}, {V(vQ + 4 * ks, 4)}, {V(vMask, 4) if ks == 0 else V(T0, 4)}')
        a(f'v_mfma_f32_16x16x32_bf16 {V(T1_, 4)}, {V(vK1 + 4 * ks, 4)}, {V(vQ + 4 * ks, 4)}, {V(vMask + 4, 4) if ks == 0 else V(T1_, 4)}')
    a(f's_lshl_b32 s{sT2}, s{sAt}, 16\ns_nop 7')
    poll(a, [f'buffer_load_dwordx4 {V(vKM + 4 * ks, 4)}, v{vKm}, {WS}, s{sT2} offen offset:{512 * ks} sc1' for ks in range(4)], range(vKM, vKM + 16), vTmp, sleep=cfg.km_sleep)
    for ks in range(4):
        a(f'v_mfma_f32_16x16x32_bf16 {V(M_, 4)}, {V(vKM + 4 * ks, 4)}, {V(vQ + 4 * ks, 4)}, {V(vMask + 8, 4) if ks == 0 else V(M_, 4)}')
    mx, t2 = vTmp, vTmp2
    def allred(op):
        a(f'v_mov_b32 v{t2}, v{mx}\nv_permlane32_swap_b32 v{mx}, v{t2}\n{op} v{mx}, v{mx}, v{t2}')
        a(f'v_mov_b32 v{t2}, v{mx}\nv_permlane16_swap_b32 v{mx}, v{t2}\n{op} v{mx}, v{mx}, v{t2}')
    a(f'v_max_f32 v{mx}, v{vS}, v{vS + 1}')
    for i in range(2, 12, 2): a(f'v_max3_f32 v{mx}, v{mx}, v{vS + i}, v{vS + i + 1}')
    allred('v_max_f32')
    a(f'v_mul_f32 v{mx}, s{sC}, v{mx}')
    for i in range(12): a(f'v_fma_f32 v{vS + i}, v{vS + i}, s{sC}, -v{mx}')
    for i in range(12): a(f'v_exp_f32 v{vS + i}, v{vS + i}')
    a(f'v_add_f32 v{mx}, v{vS}, v{vS + 1}')
    for i in range(2, 12): a(f'v_add_f32 v{mx}, v{mx}, v{vS + i}')
    allred('v_add_f32')
    a(f'v_rcp_f32 v{mx}, v{mx}\nv_mul_f32 v{mx}, v{mx}, v{vG}')
    for i in range(12): a(f'v_mul_f32 v{vS + i}, v{vS + i}, v{mx}')
    for q in range(6): a(f'v_cvt_pk_bf16_f32 v{vS + q}, v{vS + 2 * q}, v{vS + 2 * q + 1}')
    a(f'v_permlane16_swap_b32 v{vS + 4}, v{vS + 6}\nv_permlane16_swap_b32 v{vS + 5}, v{vS + 7}')
    a(f's_lshl_b32 s{sT0}, s{sH}, 1\ns_add_u32 s{sT0}, s{sT0}, s{sWave}\ns_lshl_b32 s{sT0}, s{sT0}, 10\ns_add_u32 s{sT0}, s{sT0}, s{sT2}\ns_add_u32 s{sT0}, s{sT0}, {PXX}\ns_lshl_b32 s{sT1}, s{sAt}, 14')
    a(f'buffer_store_dwordx4 {V(vS, 4)}, v{vL16}, {WS}, s{sT0} offen sc1')
    a(f's_mov_b64 exec, s[{sEx}:{sEx + 1}]\nbuffer_store_dwordx4 {V(vS + 4, 4)}, v{vPm}, {WS}, s{sT1} offen sc1')
    a(f's_sub_u32 s{sT0}, s{sI}, {LA - 1}\ns_mov_b64 exec, 1\nv_mov_b32 v{vTmp}, s{sT0}\ns_waitcnt vmcnt(0)\nbuffer_store_dword v{vTmp}, v{vPf}, {WS}, 0 offen sc1\ns_mov_b64 exec, -1')
    a(f's_add_u32 s{sAt}, s{sAt}, {nc}')
    a(f's_add_u32 s{sQr}, s{sQr}, 16384\ns_cmp_ge_u32 s{sQr}, {NS * 16384}\ns_cselect_b32 s{sQr}, 0, s{sQr}')
    a('L_QKX_next:')
    a(f's_add_u32 s{sI}, s{sI}, 1\ns_cmp_lt_u32 s{sI}, {nit + LA}\ns_cbranch_scc1 L_QKX_loop')
    tstamp(a, cfg, 3, vt, vo)
    a('s_branch L_end')

def role_FIN(a, cfg):
    NG = 4
    a('L_FIN:')
    a(f's_lshl_b32 s{sJ}, s{sCp}, 3\ns_add_u32 s{sJ}, s{sJ}, s{sH}\ns_lshl_b32 s{sT0}, s{sJ}, 2\ns_add_u32 s{sFl0}, s{sT0}, {F_G}')
    zero_flag(a, sFl0)
    srd(a, 48, pX, 2048 * 1280); srd(a, 12, pGW, 1280)
    a(f'v_and_b32 v2, 7, v0\nv_lshlrev_b32 v2, 4, v2\nv_lshrrev_b32 v3, 3, v0\nv_mul_u32_u24 v4, 1280, v3\nv_add_u32 v4, v4, v2')
    a(f's_lshl_b32 s{sT2}, s{sJ}, 3\ns_add_u32 s{sT2}, s{sT2}, s{sWave}\ns_mul_i32 s{sT0}, s{sT2}, 10240')
    for i in range(10):
        a(f'buffer_load_dwordx4 {V(16 + 4 * i, 4)}, v4, {T2}, s{sT0} offen offset:{128 * i}\nbuffer_load_dwordx4 {V(56 + 4 * i, 4)}, v2, {T1}, 0 offen offset:{128 * i}')
    a('v_mov_b32 v5, 0\ns_waitcnt vmcnt(0)')
    for i in range(40): a(f'v_dot2_f32_bf16 v5, v{16 + i}, v{56 + i}, v5')
    a('s_nop 2')
    a('v_add_f32_dpp v5, v5, v5 quad_perm:[1,0,3,2] row_mask:0xf bank_mask:0xf\nv_add_f32_dpp v5, v5, v5 quad_perm:[2,3,0,1] row_mask:0xf bank_mask:0xf\nv_add_f32_dpp v5, v5, v5 row_half_mirror row_mask:0xf bank_mask:0xf')
    a(f'v_mul_f32 v5, {hex(f2u(-1.4426950408889634))}, v5\nv_exp_f32 v5, v5\nv_add_f32 v5, 1.0, v5\nv_rcp_f32 v5, v5')
    a(f'v_lshlrev_b32 v3, 2, v3\ns_lshl_b32 s{sT2}, s{sT2}, 5\ns_add_u32 s{sT2}, s{sT2}, {GATE}')
    a(f's_mov_b32 exec_lo, 0x01010101\ns_mov_b32 exec_hi, 0x01010101\nbuffer_store_dword v5, v3, {WS}, s{sT2} offen sc1\ns_mov_b64 exec, -1')
    a(f's_waitcnt vmcnt(0)\ns_barrier\nv_mov_b32 v6, s{sFl0}\ns_mov_b32 s{sT2}, 1')
    flag_store(a, 6, 7, sT2, 1)
    src_offsets(a, vA, vB, vt, 1280)
    a(f'v_bfe_u32 v{vRd}, v0, 2, 3\nv_lshlrev_b32 v{vRd}, 5, v{vRd}\nv_and_b32 v{vt}, 3, v0\nv_lshl_add_u32 v{vRd}, v{vt}, 3, v{vRd}\nv_lshrrev_b32 v{vt}, 2, v0\nv_lshl_add_u32 v{vRd}, v{vt}, 8, v{vRd}')
    a(f's_and_b32 s{sT0}, s{sWave}, 3\ns_lshl_b32 s{sT0}, s{sT0}, 13\nv_add_u32 v{vRd}, s{sT0}, v{vRd}')
    def rd(n):
        def f(a, va):
            l = a.newlabel('wd')
            a(f's_cmp_ge_u32 s{sWave}, 4\ns_cbranch_scc{1 if n % 2 == 0 else 0} {l}')
            for t in range(5):
                a(f'v_xor_b32 v{vo}, {32 * t}, v{va}')
                for h in range(2): a(f'ds_read_b64_tr_b16 {A(20 * (n // 2) + 4 * t + 2 * h, 2)}, v{vo} offset:{4096 * h}')
            a(f'{l}:')
        return f
    chunks = [dict(pre=(lambda a: srd(a, 12, pWD, 1728 * 1280)) if n == 0 else None, soff=col_soff(1280, 160, sH)(n), stride=1280, reads=rd(n), var=lambda i: i & 1) for n in range(14)]
    loader(a, chunks, vA, vB, vRd, vRd2, vt, vo)
    tstamp(a, cfg, 1, vt, vo)
    wait_init(a, vt, vo); near_par(a, cfg)
    srd(a, 12, pOUT, 2048 * 1280)
    vL16, vFh, vFu, vFp, vUm, vUm2, vRr, vOo, vTmp, vRw = 1, 2, 3, 4, 5, 6, 7, 8, 9, 10
    vAcc = 12; vBuf = 32
    acc = lambda t, tt: V(vAcc + 4 * t, 4) if tt == 0 else A(140 + 4 * t, 4)
    sS = sI
    a(f'v_lshlrev_b32 v{vL16}, 4, v0')
    cpar = lambda nc: f's_and_b32 s{sT1}, s{sCp}, {nc - 1}'
    a(cpar(cfg.nc_ff1)); a(f's_lshl_b32 s{sT1}, s{sT1}, 2\ns_add_u32 s{sT1}, s{sT1}, {F_H}\nv_min_u32 v{vFh}, 13, v0\nv_lshlrev_b32 v{vFh}, 3, v{vFh}\nv_add_u32 v{vFh}, s{sT1}, v{vFh}')
    a(cpar(cfg.nc_vox)); a(f's_lshl_b32 s{sT1}, s{sT1}, 2\ns_lshl_b32 s{sT0}, s{sWave}, 5\ns_add_u32 s{sT1}, s{sT1}, s{sT0}\ns_add_u32 s{sT1}, s{sT1}, {F_UX}\nv_and_b32 v{vFu}, 3, v0\nv_lshlrev_b32 v{vFu}, 3, v{vFu}\nv_add_u32 v{vFu}, s{sT1}, v{vFu}')
    a(cpar(cfg.nc_qkx)); a(f's_lshl_b32 s{sT1}, s{sT1}, 3\ns_lshl_b32 s{sT0}, s{sWave}, 6\ns_add_u32 s{sT1}, s{sT1}, s{sT0}\ns_add_u32 s{sT1}, s{sT1}, {F_PX}')
    a(f'v_bfe_u32 v{vFp}, v0, 1, 2\nv_lshlrev_b32 v{vFp}, 4, v{vFp}\nv_and_b32 v{vTmp}, 1, v0\nv_lshl_add_u32 v{vFp}, v{vTmp}, 2, v{vFp}\nv_add_u32 v{vFp}, s{sT1}, v{vFp}')
    a(f's_lshl_b32 s{sT0}, s{sWave}, 10\nv_add_u32 v{vUm}, s{sT0}, v{vL16}')
    a(f's_mul_i32 s{sT0}, s{sWave}, 10240\nv_add_u32 v{vRw}, s{sT0}, v{vL16}')
    a(f's_lshl_b32 s{sT0}, s{sWave}, 6\nv_add_u32 v{vTmp}, s{sT0}, v0\nv_mul_u32_u24 v{vRr}, 6554, v{vTmp}\nv_lshrrev_b32 v{vRr}, 16, v{vRr}')
    a(f'v_mul_u32_u24 v{vOo}, 10, v{vRr}\nv_sub_u32 v{vTmp}, v{vTmp}, v{vOo}')
    a(f'v_mul_u32_u24 v{vOo}, 1280, v{vRr}\nv_lshl_add_u32 v{vOo}, v{vTmp}, 4, v{vOo}\ns_mul_i32 s{sT0}, s{sH}, 160\nv_add_u32 v{vOo}, s{sT0}, v{vOo}')
    a(f'v_lshrrev_b32 v{vUm2}, 4, v{vRr}\nv_and_b32 v{vRr}, 15, v{vRr}\nv_lshlrev_b32 v{vRr}, 4, v{vRr}\nv_lshl_add_u32 v{vRr}, v{vUm2}, 10, v{vRr}')
    a(f'v_lshrrev_b32 v{vUm2}, 1, v{vTmp}\nv_lshl_add_u32 v{vRr}, v{vUm2}, 11, v{vRr}\nv_and_b32 v{vUm2}, 1, v{vTmp}\nv_lshl_add_u32 v{vRr}, v{vUm2}, 9, v{vRr}')
    sU = [sbL, sbR, sbO, sCL, sCR]
    sM = [sCO, sPL, sPO, sNL, sNO]
    for t in range(5):
        a(f's_mul_i32 s{sT0}, s{sH}, 5\ns_add_u32 s{sT0}, s{sT0}, {t}')
        a(f's_lshl_b32 s{sU[t]}, s{sT0}, 21\ns_lshl_b32 s{sT1}, s{sWave}, 12\ns_add_u32 s{sU[t]}, s{sU[t]}, s{sT1}\ns_lshl_b32 s{sT1}, s{sCp}, 15\ns_add_u32 s{sU[t]}, s{sU[t]}, s{sT1}\ns_add_u32 s{sU[t]}, s{sU[t]}, {UX}')
        a(f's_lshl_b32 s{sM[t]}, s{sT0}, 20\ns_bfe_u32 s{sT1}, s{sT0}, 0x10001\ns_lshl_b32 s{sT1}, s{sT1}, 13\ns_xor_b32 s{sT1}, s{sT1}, s{sPar}\ns_add_u32 s{sM[t]}, s{sM[t]}, s{sT1}\ns_lshl_b32 s{sT1}, s{sCp}, 14\ns_add_u32 s{sM[t]}, s{sM[t]}, s{sT1}\ns_add_u32 s{sM[t]}, s{sM[t]}, {UM}')
    a(f's_mov_b32 s{sS}, s{sCp}')
    sh = lambda nc: nc - 1
    a('L_FIN_loop:')
    a(f's_lshr_b32 s{sT2}, s{sS}, {sh(cfg.nc_ff1)}\ns_add_u32 s{sT2}, s{sT2}, 1')
    spin_ge(a, vFh, vTmp, sT2, 8)
    a(f's_mul_i32 s{sT2}, s{sS}, {112 * 1024}\ns_lshl_b32 s{sT0}, s{sWave}, 11\ns_add_u32 s{sT2}, s{sT2}, s{sT0}\ns_add_u32 s{sT2}, s{sT2}, {HB}')
    for n in range(7):
        if n == 6:
            a(f's_cmp_ge_u32 s{sWave}, 6\ns_cselect_b32 s{sT0}, 0, 16384\ns_add_u32 s{sT2}, s{sT2}, s{sT0}')
        a(f'buffer_load_dwordx4 {V(vBuf + 8 * n, 4)}, v{vL16}, {WS}, s{sT2} offen sc1\nbuffer_load_dwordx4 {V(vBuf + 8 * n + 4, 4)}, v{vL16}, {WS}, s{sT2} offen offset:1024 sc1')
        if n < 5: a(f's_add_u32 s{sT2}, s{sT2}, 16384')
    for n in range(7):
        b = vBuf + 8 * n
        a(f's_waitcnt vmcnt({12 - 2 * n})')
        a(f'v_swap_b32 v{b + 2}, v{b + 4}\nv_swap_b32 v{b + 3}, v{b + 5}')
        for t in range(5):
            for tt in range(2):
                a(f'v_mfma_f32_16x16x32_bf16 {acc(t, tt)}, {A(20 * n + 4 * t, 4)}, {V(b + 4 * tt, 4)}, {"0" if n == 0 else acc(t, tt)}')
    a(f's_lshr_b32 s{sT2}, s{sS}, {sh(cfg.nc_vox)}\ns_add_u32 s{sT2}, s{sT2}, 1')
    spin_ge(a, vFu, vTmp, sT2, 8)
    ub = lambda k: vBuf + 28 * (k & 1)
    def ldU(k):
        for t in range(5): a(f'buffer_load_dwordx4 {V(ub(k) + 4 * t, 4)}, v{vL16}, {WS}, s{sU[t]} offen offset:{1024 * k} sc1')
    sP = sT3
    def ldP(k):
        for tt in range(2): a(f'buffer_load_dwordx4 {V(ub(k) + 20 + 4 * tt, 4)}, v{vL16}, {WS}, s{sP} offen offset:{2048 * (k & 1) + 1024 * tt} sc1')
        if k & 1: a(f's_add_u32 s{sP}, s{sP}, 4096')
    def mm(k):
        for t in range(5):
            for tt in range(2):
                a(f'v_mfma_f32_16x16x32_bf16 {acc(t, tt)}, {V(ub(k) + 4 * t, 4)}, {V(ub(k) + 20 + 4 * tt, 4)}, {acc(t, tt)}')
    ldU(0); ldU(1)
    a(f's_lshr_b32 s{sT2}, s{sS}, {sh(cfg.nc_qkx)}\ns_add_u32 s{sT2}, s{sT2}, 1')
    spin_ge(a, vFp, vTmp, sT2, 2)
    a(f's_lshl_b32 s{sP}, s{sS}, 16\ns_lshl_b32 s{sT0}, s{sWave}, 13\ns_add_u32 s{sP}, s{sP}, s{sT0}\ns_add_u32 s{sP}, s{sP}, {PXX}')
    a(f's_lshl_b32 s{sT4}, s{sS}, 14\ns_lshl_b32 s{sT0}, s{sWave}, 11\ns_add_u32 s{sT4}, s{sT4}, s{sT0}\ns_add_u32 s{sT4}, s{sT4}, {PXM}')
    ldP(0); ldP(1)
    a('s_waitcnt vmcnt(2)'); mm(0); ldU(2); ldP(2)
    a('s_waitcnt vmcnt(7)'); mm(1); ldU(3); ldP(3)
    a('s_waitcnt vmcnt(7)'); mm(2)
    ldM = [f'buffer_load_dwordx4 {V(ub(0) + 4 * t, 4)}, v{vUm}, {WS}, s{sM[t]} offen sc1' for t in range(5)]
    for tt in range(2): a(f'buffer_load_dwordx4 {V(ub(0) + 20 + 4 * tt, 4)}, v{vL16}, {WS}, s{sT4} offen offset:{1024 * tt} sc1')
    for l in ldM: a(l)
    a('s_waitcnt vmcnt(7)'); mm(3)
    poll(a, ldM, range(ub(0), ub(0) + 20), vTmp, first_issued=True)
    mm(0)
    for t in range(5): a(f's_add_u32 s{sU[t]}, s{sU[t]}, {NG * 32768}\ns_add_u32 s{sM[t]}, s{sM[t]}, {NG * 16384}')
    a('s_barrier')
    for t in range(5):
        for tt in range(2): a(f'ds_write_b128 v{vRw}, {acc(t, tt)} offset:{(2 * t + tt) * 1024}')
    a('s_waitcnt lgkmcnt(0)\ns_barrier')
    l = a.newlabel('fr')
    a(f's_cmp_ge_u32 s{sWave}, 5\ns_cbranch_scc1 {l}')
    a(f'v_add_u32 v{vTmp}, {4 * 10240}, v{vRr}')
    for w in range(8):
        for h in range(2): a(f'ds_read_b128 {V(vBuf + 8 * w + 4 * h, 4)}, v{vRr if w < 4 else vTmp} offset:{(w & 3) * 10240 + 256 * h}')
    for w in range(1, 8):
        a(f's_waitcnt lgkmcnt({min(15, 14 - 2 * w)})')
        for i in range(8): a(f'v_add_f32 v{vBuf + i}, v{vBuf + i}, v{vBuf + 8 * w + i}')
    for q in range(4): a(f'v_cvt_pk_bf16_f32 v{vBuf + q}, v{vBuf + 2 * q}, v{vBuf + 2 * q + 1}')
    a(f's_mul_i32 s{sT0}, s{sS}, {XBS}\nbuffer_store_dwordx4 {V(vBuf, 4)}, v{vOo}, {T1}, s{sT0} offen')
    a(f'{l}:')
    a(f's_add_u32 s{sS}, s{sS}, {NG}\ns_cmp_lt_u32 s{sS}, 64\ns_cbranch_scc1 L_FIN_loop')
    tstamp(a, cfg, 3, vt, vo)
    a('s_branch L_end')
```

```python
from core import *

MEMBUF = 0; XBUF = 10240; KBUF = 16384; RED = 32768

def role_R(a, cfg):
    a('L_R:')
    a(f's_mul_i32 s{sT0}, s{sXr}, {XS}\ns_lshl_b32 s{sT1}, s{sR}, 16\ns_add_u32 s{sT0}, s{sT0}, s{sT1}\ns_lshl_b32 s{sT1}, s{sWave}, 13\ns_add_u32 s{sT0}, s{sT0}, s{sT1}')
    a('v_lshlrev_b32 v1, 4, v0\nv_mov_b32 v4, -1\nv_mov_b32 v5, -1\nv_mov_b32 v6, -1\nv_mov_b32 v7, -1')
    for k in range(8):
        if k == 4: a(f's_add_u32 s{sT0}, s{sT0}, 4096')
        a(f'buffer_store_dwordx4 v[4:7], v1, {WS}, s{sT0} offen offset:{(k & 3) * 1024} sc1')
    a(f's_and_b32 s{sH}, s{sR}, 15\ns_lshl_b32 s{sT0}, s{sXr}, 4\ns_add_u32 s{sH}, s{sH}, s{sT0}')
    a(f's_xor_b32 s{sJ}, s{sR}, 16')
    a(f's_cmp_lt_u32 s{sJ}, 20\ns_cselect_b32 s{sHas2}, 1, 0')
    a(f's_cmp_ge_u32 s{sR}, 16\ns_cbranch_scc1 L_RVO')
    role_R_kind(a, cfg, 'QK')
    a('L_RVO:')
    role_R_kind(a, cfg, 'VO')

def rot_soff(n):
    def f(a):
        a(f's_mul_i32 s{sT0}, s{sXr}, 320\ns_lshl_b32 s{sT1}, s{sWave}, 4\ns_add_u32 s{sT0}, s{sT0}, s{sT1}\ns_add_u32 s{sT0}, s{sT0}, {128 * n}')
        a(f's_cmp_ge_u32 s{sT0}, 640\ns_cselect_b32 s{sT1}, 640, 0\ns_sub_u32 s{sT0}, s{sT0}, s{sT1}')
        a(f's_lshl_b32 s{sT0}, s{sT0}, 13\ns_lshl_b32 s{sT1}, s{sH}, 8\ns_add_u32 s{sT0}, s{sT0}, s{sT1}')
    return f

def role_R_kind(a, cfg, kind):
    QK = kind == 'QK'
    WB = 640 * 4096 * 2
    vL16, vIdx, vXw, vNeg, vTmp, vTmp2 = 1, 2, 3, 4, 8, 9
    vAcc = 16
    vZ = 24
    vU = 56
    vM = 88
    vA, vB, vRd, vRd2, vt, vo = 10, 11, 12, 13, 14, 15
    src_offsets(a, vA, vB, vt, 8192)
    tr_base(a, vRd, vt, sWave)
    chunks = []
    for n in range(5):
        chunks.append(dict(pre=(lambda a: srd(a, 12, pWQ if QK else pWV, WB)) if n == 0 else None, soff=rot_soff(n), stride=8192, reads=std_reads(16 * n)))
    if QK:
        for n in range(5):
            chunks.append(dict(pre=(lambda a: srd(a, 12, pWK, WB)) if n == 0 else None, soff=rot_soff(n), stride=8192, reads=std_reads(80 + 16 * n)))
    else:
        vRdP = 16
        a(f's_and_b32 s{sT0}, s{sWave}, 3\ns_lshl_b32 s{sT0}, s{sT0}, 1')
        a(f'v_bfe_u32 v{vRdP}, v0, 3, 1\nv_or_b32 v{vRdP}, s{sT0}, v{vRdP}')
        a(f'v_bfe_u32 v{vt}, v0, 2, 1\nv_lshlrev_b32 v{vt}, 1, v{vt}\nv_xor_b32 v{vRdP}, v{vRdP}, v{vt}')
        a(f'v_bfe_u32 v{vt}, v0, 4, 1\nv_lshlrev_b32 v{vt}, 2, v{vt}\nv_xor_b32 v{vRdP}, v{vRdP}, v{vt}\nv_lshlrev_b32 v{vRdP}, 5, v{vRdP}')
        a(f'v_and_b32 v{vt}, 3, v0\nv_lshl_add_u32 v{vRdP}, v{vt}, 3, v{vRdP}')
        a(f'v_bfe_u32 v{vt}, v0, 2, 1\nv_lshl_add_u32 v{vRdP}, v{vt}, 8, v{vRdP}')
        a(f'v_lshrrev_b32 v{vt}, 4, v0\nv_lshl_add_u32 v{vRdP}, v{vt}, 10, v{vRdP}')
        def pre(a):
            srd(a, 12, pWO, WB)
            for var, vd in ((0, vA), (1, vB)):
                a(f'v_bfe_u32 v{vt}, v0, 4, 1\nv_lshlrev_b32 v{vt}, 1, v{vt}')
                if var: a(f'v_or_b32 v{vt}, 4, v{vt}')
                a(f'v_bfe_u32 v{vd}, v0, 1, 3\nv_xor_b32 v{vd}, v{vd}, v{vt}\nv_lshlrev_b32 v{vd}, 5, v{vd}')
                a(f'v_and_b32 v{vt}, 1, v0\nv_lshl_add_u32 v{vd}, v{vt}, 4, v{vd}')
                a(f'v_lshrrev_b32 v{vt}, 4, v0\nv_mul_u32_u24 v{vt}, 1280, v{vt}\nv_add_u32 v{vd}, v{vd}, v{vt}')
        def so(c):
            return lambda a: a(f's_lshl_b32 s{sT0}, s{sH}, 7\ns_lshl_b32 s{sT1}, s{sWave}, 4\ns_add_u32 s{sT0}, s{sT0}, s{sT1}\ns_mul_i32 s{sT0}, s{sT0}, 1280\ns_add_u32 s{sT0}, s{sT0}, {256 * c}')
        def rd(c):
            def f(a, va):
                l = a.newlabel('wo')
                a(f's_cmp_ge_u32 s{sWave}, 4\ns_cbranch_scc{1 if c < 3 else 0} {l}')
                for k in range(4):
                    for hb in range(2):
                        for al in range(2):
                            o = 8 * k + 4 * hb + 2 * al
                            dst = V(vU + o, 2) if c == 2 else A(80 + 32 * (c % 3) + o, 2)
                            a(f'ds_read_b64_tr_b16 {dst}, v{va} offset:{(32 * k + 16 * hb + 2 * al) * 256}')
                a(f'{l}:')
            return f
        for c in range(5):
            chunks.append(dict(pre=pre if c == 0 else None, soff=so(c), stride=1280, reads=rd(c), var=lambda i: i & 1, vrd=vRdP))
    loader(a, chunks, vA, vB, vRd, vRd2, vt, vo)
    tstamp(a, cfg, 1, vt, vo)
    wait_init(a, vt, vo)
    if cfg.force_par is None:
        a(f's_cmp_gt_u32 s{sT1}, s{sT0}\ns_cselect_b32 s{sT2}, 0x2000, 0')
    else:
        a(f's_cmp_gt_u32 s{sT1}, s{sT0}\ns_cselect_b32 s{sT2}, 0, 0x2000')
    a(f's_mov_b32 s{sPar}, s{sT2}')
    a(f's_mul_i32 s{sT3}, s{sXr}, {XS}\ns_add_u32 s{sbR}, s{sT3}, s{sT2}\ns_xor_b32 s{sbL}, s{sbR}, 0x2000')
    a(f's_sub_u32 s{sT3}, {XS}, s{sT3}\ns_add_u32 s{sbO}, s{sT3}, s{sT2}')
    a(f's_mov_b32 s{sStep}, 0')
    a(f's_mov_b32 s{sCL}, s{sbL}\ns_mov_b32 s{sCR}, s{sbR}\ns_mov_b32 s{sCO}, s{sbO}')
    a(f'v_lshlrev_b32 v{vL16}, 4, v0')
    a(f'v_mov_b32 v{vIdx}, 0x4444\nv_mov_b32 v{vTmp}, 0xeeee\nv_and_b32 v{vTmp2}, 8, v0\nv_cmp_ne_u32 vcc, 0, v{vTmp2}')
    a(f'v_cndmask_b32 v{vIdx}, v{vIdx}, v{vTmp}, vcc')
    vXr = 10
    if QK:
        a(f'v_and_b32 v{vXw}, 15, v0\nv_lshlrev_b32 v{vXw}, 5, v{vXw}\nv_lshrrev_b32 v{vTmp}, 4, v0\nv_lshl_add_u32 v{vXw}, v{vTmp}, 3, v{vXw}')
        a(f's_lshl_b32 s{sT0}, s{sWave}, 9\ns_add_u32 s{sT0}, s{sT0}, {XBUF}\nv_add_u32 v{vXw}, s{sT0}, v{vXw}')
        a(f'v_lshlrev_b32 v{vXr}, 3, v0')
    else:
        a(f'v_and_b32 v{vXw}, 15, v0\nv_lshlrev_b32 v{vXw}, 4, v{vXw}')
        a(f'v_bfe_u32 v{vTmp}, v0, 4, 1\nv_lshl_add_u32 v{vXw}, v{vTmp}, 3, v{vXw}')
        a(f'v_lshrrev_b32 v{vTmp}, 5, v0\nv_lshl_add_u32 v{vXw}, v{vTmp}, 2, v{vXw}')
        a(f's_lshl_b32 s{sT0}, s{sWave}, 8\ns_add_u32 s{sT0}, s{sT0}, {XBUF}\nv_add_u32 v{vXw}, s{sT0}, v{vXw}')
        a(f'v_and_b32 v{vXr}, 1, v0\nv_lshlrev_b32 v{vXr}, 3, v{vXr}\nv_bfe_u32 v{vTmp}, v0, 2, 2\nv_lshl_add_u32 v{vXr}, v{vTmp}, 4, v{vXr}')
        a(f'v_lshrrev_b32 v{vTmp}, 4, v0\nv_lshl_add_u32 v{vXr}, v{vTmp}, 7, v{vXr}')
    vUg = 11
    def um_offs(vglob, spair, two):
        a(f'v_and_b32 v{vglob}, 15, v0\nv_lshlrev_b32 v{vglob}, 4, v{vglob}')
        if two: a(f'v_bfe_u32 v{vTmp}, v0, 4, 1\nv_lshl_add_u32 v{vglob}, v{vTmp}, 23, v{vglob}')
        a(f'v_lshrrev_b32 v{vTmp}, 5, v0\nv_lshl_add_u32 v{vglob}, v{vTmp}, 20, v{vglob}')
        a(f's_lshl_b32 s{sT0}, s{spair}, 21\ns_and_b32 s{sT1}, s{spair}, 1\ns_lshl_b32 s{sT1}, s{sT1}, 13\ns_xor_b32 s{sT1}, s{sT1}, s{sPar}\ns_add_u32 s{sT0}, s{sT0}, s{sT1}')
        a(f's_lshl_b32 s{sT1}, s{sH}, 8\ns_add_u32 s{sT0}, s{sT0}, s{sT1}\nv_add_u32 v{vglob}, s{sT0}, v{vglob}')
    assert UM % (4 * MB) == 0

    nacc = 8 if QK else 4
    def zero_acc():
        for i in range(nacc): a(f'v_mov_b32 v{vAcc + i}, 0')
    def half(t0, mid=None):
        for i in range(5): a(f'ds_read_b128 {V(vZ + 4 * i, 4)}, v{vL16} offset:{MEMBUF + (t0 + i) * 1024}')
        if mid: mid()
        for i in range(5):
            a(f's_waitcnt lgkmcnt({4 - i})')
            a(f'v_smfmac_f32_16x16x64_bf16 {V(vAcc, 4)}, {V(vZ + 4 * i, 4)}, {A((t0 + i) * 8, 8)}, v{vIdx}')
            if QK: a(f'v_smfmac_f32_16x16x64_bf16 {V(vAcc + 4, 4)}, {V(vZ + 4 * i, 4)}, {A(80 + (t0 + i) * 8, 8)}, v{vIdx}')
    def epilogue1(npairs=0, hook=None):
        if QK:
            b = vAcc
            for i in range(4): a(f'v_permlane32_swap_b32 v{b + i}, v{b + 4 + i}')
            for i in range(4): a(f'v_add_f32 v{b + i}, v{b + i}, v{b + 4 + i}')
            a(f'v_cvt_pk_bf16_f32 v{b}, v{b}, v{b + 1}\nv_cvt_pk_bf16_f32 v{b + 1}, v{b + 2}, v{b + 3}')
            a(f'ds_write_b64 v{vXw}, {V(vAcc, 2)}')
        else:
            for i in range(8): a(f'v_mov_b32 v{vZ + i}, 0')
            a(f'v_permlane32_swap_b32 v{vAcc}, v{vAcc + 2}\nv_permlane32_swap_b32 v{vAcc + 1}, v{vAcc + 3}')
            a(f'v_add_f32 v{vAcc}, v{vAcc}, v{vAcc + 2}\nv_add_f32 v{vAcc + 1}, v{vAcc + 1}, v{vAcc + 3}')
            a(f'v_cvt_pk_bf16_f32 v{vAcc}, v{vAcc}, v{vAcc + 1}')
            a(f'ds_write_b32 v{vXw}, v{vAcc}')
            for i in range(8, 4 * npairs): a(f'v_mov_b32 v{vZ + i}, 0')
        if hook: hook()
        a('s_waitcnt lgkmcnt(0)\ns_barrier')
    def sc1(lst):
        for i in lst: a(i + (' sc1' if i.startswith('buffer_') else ''))
    def um_compute(npairs):
        vV = vZ + 12
        for k in range(4):
            for al in range(2): a(f'ds_read_b64_tr_b16 {V(vV + 4 * k + 2 * al, 2)}, v{vXr} offset:{XBUF + k * 512 + al * 64}')
        for k in range(4):
            a(f's_waitcnt lgkmcnt({6 - 2 * k})')
            for p in range(npairs):
                w = V(vU + 8 * k, 8) if p == 2 else A(80 + 32 * p + 8 * k, 8)
                a(f'v_smfmac_f32_16x16x64_bf16 {V(vZ + 4 * p, 4)}, {V(vV + 4 * k, 4)}, {w}, v{vIdx}')
        o = vAcc
        for p in range(npairs):
            a(f'v_cvt_pk_bf16_f32 v{o + 2 * p}, v{vZ + 4 * p}, v{vZ + 4 * p + 1}\nv_cvt_pk_bf16_f32 v{o + 2 * p + 1}, v{vZ + 4 * p + 2}, v{vZ + 4 * p + 3}')
        a(f'v_permlane16_swap_b32 v{o}, v{o + 2}\nv_permlane16_swap_b32 v{o + 1}, v{o + 3}')
        if npairs == 3: a(f'v_permlane16_swap_b32 v{o + 4}, v{o + 6}\nv_permlane16_swap_b32 v{o + 5}, v{o + 7}')
    def advance(lab):
        a(f's_add_u32 s{sStep}, s{sStep}, 1\ns_add_u32 s{sCL}, s{sCL}, {SL}\ns_add_u32 s{sCR}, s{sCR}, {SL}\ns_add_u32 s{sCO}, s{sCO}, {SL}')
        if lab: a(f's_cmp_lt_u32 s{sStep}, {cfg.nsteps}\ns_cbranch_scc1 {lab}')
    def quad_base(sd, sq):
        a(f's_mul_i32 s{sd}, s{sq}, 2560\ns_add_u32 s{sd}, s{sd}, 16384\ns_cmp_eq_u32 s{sq}, 3\ns_cselect_b32 s{sd}, 5120, s{sd}')
    def flag_wait(vF, ld):
        top = a.newlabel('fw'); done = a.newlabel('fwd')
        a(f's_mov_b32 s{sSpin}, s{sLim}\ns_lshr_b32 s{sT5}, s{sT4}, 1')
        a(f'{top}:')
        a(f's_bitcmp1_b32 s{sT4}, 0\ns_cselect_b64 vcc, -1, 0')
        a(f'v_cndmask_b32 v{vTmp}, v{vF}, v{vF + 1}, vcc')
        a(f'v_cmp_ge_u32 vcc, s{sT5}, v{vTmp}')
        a(f's_cbranch_vccz {done}')
        a(ld)
        a('s_waitcnt vmcnt(0)')
        a(f's_sub_u32 s{sSpin}, s{sSpin}, 1\ns_cbranch_scc0 {top}\ns_mov_b32 s{sLim}, 0')
        a(f'{done}:')

    FL1, FL2 = 7680, 7936
    def cue_wait(vaddr, regs, sval):
        top = a.newlabel('cue'); done = a.newlabel('cued')
        D = len(regs)
        ld = lambda r: a(f'buffer_load_dword v{r}, v{vaddr}, {WS}, s{sbL} offen sc1')
        a(f's_mov_b32 s{sSpin}, s{sLim}')
        for r in regs:
            ld(r)
            if r != regs[-1]: a(f's_nop {cfg.cgap}')
        a(f'{top}:')
        for r in regs:
            a(f's_waitcnt vmcnt({D - 1})')
            a(f'v_cmp_gt_i32 vcc, s{sval}, v{r}')
            a(f's_cbranch_vccz {done}')
            ld(r)
        a(f's_sub_u32 s{sSpin}, s{sSpin}, 1\ns_cbranch_scc0 {top}\ns_mov_b32 s{sLim}, 0')
        a(f'{done}:')
    def cue_send(vaddr, vval):
        a('s_mov_b64 exec, 1')
        lstore(a, [f'buffer_store_dword v{vval}, v{vaddr}, {WS}, s{sbL} offen'])
        a('s_mov_b64 exec, -1')

    tg = kind
    a(f's_cmp_ge_u32 s{sWave}, 4\ns_cbranch_scc1 L_{tg}_hi')
    vM16, vM4, vKf, vMp = vM, vM + 1, vM + 4, vM + 7
    vPL = vZ + 20
    vPR = vZ + 26
    a(f's_mul_i32 s{sT0}, s{sWave}, 1280\nv_add_u32 v{vM16}, s{sT0}, v{vL16}\ns_add_u32 s{sT0}, s{sT0}, 1024\nv_lshlrev_b32 v{vM4}, 2, v0\nv_add_u32 v{vM4}, s{sT0}, v{vM4}')
    vC1, vC2, vCs, vCv = 13, 14, 15, 11
    vCr = [vAcc + 4 + i for i in range(4)] if not QK else [vU + i for i in range(4)]
    vCr = vCr[:cfg.cdepth]
    if QK:
        vPs, vKr, vKs, vMask = vM + 2, vM + 3, vM + 5, 12
        a(f's_bfe_u32 s{sT1}, s{sH}, 0x20002')
        quad_base(sT0, sT1)
        a(f's_and_b32 s{sT1}, s{sH}, 3\ns_mul_i32 s{sT1}, s{sT1}, 640\ns_add_u32 s{sT0}, s{sT0}, s{sT1}')
        a(f'v_and_b32 v{vKs}, 7, v0\nv_lshlrev_b32 v{vKs}, 4, v{vKs}\nv_lshrrev_b32 v{vTmp}, 4, v0\nv_lshl_add_u32 v{vKs}, v{vTmp}, 7, v{vKs}')
        a(f'v_bfe_u32 v{vTmp}, v0, 3, 1\nv_lshl_add_u32 v{vPs}, v{vTmp}, 8, v{vKs}\nv_add_u32 v{vPs}, s{sT0}, v{vPs}')
        a(f's_mov_b32 s{sEx}, 0\ns_mov_b32 s{sEx + 1}, 0x00ff00ff')
        a(f'v_mov_b32 v{vTmp}, 0xff7fffff\nv_mov_b32 v{vTmp2}, 0')
        for i in range(4): a(f'v_cndmask_b32 v{vMask + i}, v{vTmp}, v{vTmp2}, s[{sEx}:{sEx + 1}]')
        a(f's_mov_b32 s{sEx}, 0x00ff00ff\ns_mov_b32 s{sEx + 1}, 0x00ffffff')
        a(f's_mov_b32 s{sEx2}, 0xff00ff00\ns_mov_b32 s{sEx2 + 1}, 0xff00ff00')
        a(f's_mov_b32 s{sC}, {f2u(128 ** -0.5 * 1.4426950408889634)}')
        a(f's_lshl_b32 s{sT1}, s{sH}, 3\ns_add_u32 s{sT1}, s{sT1}, {F_KX}\nv_mov_b32 v{vKf}, s{sT1}')
        a(f's_lshl_b32 s{sSeg2}, s{sH}, 11\ns_add_u32 s{sSeg2}, s{sSeg2}, {KM}')
        a(f'v_add_u32 v{vKr}, {KBUF}, v{vL16}')
        vKF = vU
        sK, sKm = sFl0, sFl1
        a(f's_lshl_b32 s{sK}, s{sH}, 19\ns_add_u32 s{sK}, s{sK}, {KX}\ns_mov_b32 s{sKm}, {KBUF}')
        ldK = f'buffer_load_dwordx2 {V(vKF, 2)}, v{vKf}, {WS}, 0 offen sc1'
        def kx_dma():
            flag_wait(vKF, ldK)
            for hh in range(2):
                a(f's_mov_b32 m0, s{sKm}')
                for i in range(4): a(f'buffer_load_dwordx4 v{vL16}, {WS}, s{sK} offen offset:{1024 * i} sc1 lds')
                a(f's_add_u32 s{sK}, s{sK}, 4096\ns_add_u32 s{sKm}, s{sKm}, 4096')
            a(ldK)
            a(f's_and_b32 s{sKm}, s{sKm}, 0x3fff\ns_or_b32 s{sKm}, s{sKm}, {KBUF}')
        a(f's_cmp_lg_u32 s{sWave}, 3\ns_cbranch_scc1 L_QK_lo_go')
        a(f'v_mov_b32 v{vKF}, 0\nv_mov_b32 v{vKF + 1}, 0\ns_mov_b32 s{sT4}, 0')
        kx_dma()
        a('L_QK_lo_go:')
    else:
        vUg3 = vM + 3
        um_offs(vUg, sWave, True)
        a(f's_add_u32 s{sT3}, s{sWave}, 8')
        um_offs(vUg3, sT3, False)
        a(f's_mov_b32 s{sEx}, 0xffff\ns_mov_b32 s{sEx + 1}, 0xffff')
        a(f's_mov_b32 s{sSeg2}, {UM}')
    lc = a.newlabel('cs')
    a(f's_cmp_lg_u32 s{sWave}, 2\ns_cbranch_scc1 {lc}')
    a(f'v_and_b32 v{vC1}, 15, v0\nv_lshlrev_b32 v{vC1}, 2, v{vC1}\nv_add_u32 v{vC1}, {FL1}, v{vC1}')
    a(f'v_min_u32 v{vC2}, 19, v0\nv_lshlrev_b32 v{vC2}, 2, v{vC2}\nv_add_u32 v{vC2}, {FL2}, v{vC2}')
    if QK:
        a(f's_cmp_lg_u32 s{sHas2}, 0\ns_cbranch_scc1 {lc}')
        a(f's_and_b32 s{sT0}, s{sR}, 1\ns_lshl_b32 s{sT0}, s{sT0}, 14\nv_lshlrev_b32 v{vC1}, 7, v0\nv_add_u32 v{vC1}, s{sT0}, v{vC1}')
        a(f'buffer_load_dword v{vU + 4}, v{vC1}, {WS}, s{sCL} offen sc1\nv_add_u32 v{vC1}, {SL}, v{vC1}\nbuffer_load_dword v{vU + 4}, v{vC1}, {WS}, s{sCL} offen sc1\nv_add_u32 v{vC1}, {SL}, v{vC1}')
    a(f'{lc}:')
    if QK:
        vCs = vM + 6
        a(f's_and_b32 s{sT0}, s{sH}, 15\ns_lshl_b32 s{sT0}, s{sT0}, 2\ns_add_u32 s{sT0}, s{sT0}, {FL1}\nv_mov_b32 v{vCs}, s{sT0}')
    tstamp(a, cfg, 2, vTmp, vTmp2)
    a(f'L_{tg}_lo_loop:')
    fstamp(a, cfg, 0)
    zero_acc()
    ldL = [f'buffer_load_dwordx4 {V(vPL, 4)}, v{vM16}, {WS}, s{sCL} offen sc1', f'buffer_load_dword v{vPL + 4}, v{vM4}, {WS}, s{sCL} offen sc1']
    ldR = [f'buffer_load_dwordx4 {V(vPR, 4)}, v{vM16}, {WS}, s{sCR} offen sc1', f'buffer_load_dword v{vPR + 4}, v{vM4}, {WS}, s{sCR} offen sc1']
    lc = a.newlabel('c2')
    a(f's_cmp_lg_u32 s{sWave}, 2\ns_cbranch_scc1 {lc}')
    use2 = cfg.h2cue2 if QK else cfg.vocue2
    if not use2:
        a(f's_cmp_eq_u32 s{sStep}, 0\ns_cselect_b32 s{sT0}, 0, s{sHas2}\ns_cmp_lg_u32 s{sT0}, 0\ns_cbranch_scc1 {lc}')
    cue_wait(vC2, vCr, sStep)
    a(f'{lc}:')
    a('s_setprio 3\ns_barrier')
    fstamp(a, cfg, 1)
    for l in ldL: a(l)
    a('s_setprio 0')
    for l in ldR: a(l)
    if QK: a(f'v_mov_b32 v{vCv}, s{sStep}')
    poll(a, ldL, range(vPL, vPL + 5), vTmp, first_issued=True, first_wait=2,
         spec=lambda: a(f'ds_write_b128 v{vM16}, {V(vPL, 4)} offset:{MEMBUF}\nds_write_b32 v{vM4}, v{vPL + 4} offset:{MEMBUF}'), specwait=True)
    a('s_waitcnt lgkmcnt(0)\ns_barrier')
    fstamp(a, cfg, 2)
    half(0)
    nbg = 0
    if QK:
        def km_store(b):
            a(f's_mov_b64 exec, s[{sEx2}:{sEx2 + 1}]')
            for ks in range(4): a(f'buffer_store_dwordx4 {V(b + 4 * ks, 4)}, v{vKs}, {WS}, s{sSeg2} offen offset:{512 * ks} sc1')
            a(f's_mov_b64 exec, -1\ns_add_u32 s{sSeg2}, s{sSeg2}, {32 * 2048}')
        lk = a.newlabel('kr')
        a(f's_cmp_lg_u32 s{sWave}, 0\ns_cbranch_scc1 {lk}')
        for i in range(8): a(f'ds_read_b128 {V(vU + 4 * i, 4)}, v{vKr} offset:{1024 * i}')
        a(f'v_xor_b32 v{vKr}, 0x2000, v{vKr}')
        a(f'{lk}:')
    fstamp(a, cfg, 3)
    poll(a, ldR, range(vPR, vPR + 5), vTmp, first_issued=True,
         spec=lambda: a(f'ds_write_b128 v{vM16}, {V(vPR, 4)} offset:{MEMBUF + 5120}\nds_write_b32 v{vM4}, v{vPR + 4} offset:{MEMBUF + 5120}'), specwait=True)
    fstamp(a, cfg, 4)
    a('s_waitcnt lgkmcnt(0)\ns_barrier')
    fstamp(a, cfg, 5)
    half(5)
    epilogue1(3)
    fstamp(a, cfg, 6)
    if QK:
        a(f's_cmp_lg_u32 s{sWave}, 0\ns_cbranch_scc1 L_QK_w123')
        vX = vZ
        for ks in range(4):
            for h in range(2): a(f'ds_read_b64_tr_b16 {V(vX + 4 * ks + 2 * h, 2)}, v{vXr} offset:{XBUF + ks * 1024 + h * 512}')
        a('s_setprio 3')
        T0, T1_, M_ = vZ + 16, vZ + 20, vZ + 24
        for ks in range(4):
            a(f's_waitcnt lgkmcnt({6 - 2 * ks})')
            a(f'v_mfma_f32_16x16x32_bf16 {V(M_, 4)}, {V(vX + 4 * ks, 4)}, {V(vX + 4 * ks, 4)}, {V(vMask, 4) if ks == 0 else V(M_, 4)}')
            a(f'v_mfma_f32_16x16x32_bf16 {V(T1_, 4)}, {V(vU + 16 + 4 * ks, 4)}, {V(vX + 4 * ks, 4)}, {"0" if ks == 0 else V(T1_, 4)}')
            a(f'v_mfma_f32_16x16x32_bf16 {V(T0, 4)}, {V(vU + 4 * ks, 4)}, {V(vX + 4 * ks, 4)}, {"0" if ks == 0 else V(T0, 4)}')
        mx, t2 = vTmp, vTmp2
        if cfg.cpos1 == 0:
            cue_send(vCs, vCv); a('s_nop 3')
        a(f'v_max3_f32 v{mx}, v{M_}, v{M_ + 1}, v{M_ + 2}\nv_max_f32 v{mx}, v{mx}, v{M_ + 3}')
        for i in range(4): a(f'v_mov_b32_dpp v{T0 + i}, v{T1_ + i} row_shr:8 row_mask:0xf bank_mask:0xc')
        def allred(op):
            a(f'{op}_dpp v{mx}, v{mx}, v{mx} row_ror:8 row_mask:0xf bank_mask:0xf')
            a(f'v_mov_b32 v{t2}, v{mx}\nv_permlane32_swap_b32 v{mx}, v{t2}\n{op} v{mx}, v{mx}, v{t2}')
            a(f'v_mov_b32 v{t2}, v{mx}\nv_permlane16_swap_b32 v{mx}, v{t2}\n{op} v{mx}, v{mx}, v{t2}')
        a(f'v_max3_f32 v{mx}, v{mx}, v{T0}, v{T0 + 1}\nv_max3_f32 v{mx}, v{mx}, v{T0 + 2}, v{T0 + 3}')
        allred('v_max_f32')
        if cfg.cpos1 == 1: cue_send(vCs, vCv)
        a(f'v_mul_f32 v{mx}, s{sC}, v{mx}')
        E = [T0 + i for i in range(4)] + [M_ + i for i in range(4)]
        for r in E: a(f'v_fma_f32 v{r}, v{r}, s{sC}, -v{mx}')
        for r in E: a(f'v_exp_f32 v{r}, v{r}')
        a(f'v_add_f32 v{mx}, v{E[0]}, v{E[1]}\nv_add_f32 v{t2}, v{E[2]}, v{E[3]}\nv_add_f32 v{mx}, v{mx}, v{E[4]}\nv_add_f32 v{t2}, v{t2}, v{E[5]}')
        a(f'v_add_f32 v{mx}, v{mx}, v{E[6]}\nv_add_f32 v{t2}, v{t2}, v{E[7]}\nv_add_f32 v{mx}, v{mx}, v{t2}')
        if cfg.cpos1 == 2: cue_send(vCs, vCv)
        allred('v_add_f32')
        if cfg.cpos1 == 3: cue_send(vCs, vCv)
        a(f'v_rcp_f32 v{mx}, v{mx}')
        for r in reversed(E): a(f'v_mul_f32 v{r}, v{r}, v{mx}')
        a(f'v_cvt_pk_bf16_f32 v{M_}, v{M_}, v{M_ + 1}\nv_cvt_pk_bf16_f32 v{M_ + 1}, v{M_ + 2}, v{M_ + 3}')
        a(f'v_cvt_pk_bf16_f32 v{T0}, v{T0}, v{T0 + 1}\nv_cvt_pk_bf16_f32 v{T0 + 1}, v{T0 + 2}, v{T0 + 3}')
        a(f'v_permlane16_swap_b32 v{M_}, v{M_ + 2}\nv_permlane16_swap_b32 v{M_ + 1}, v{M_ + 3}')
        a(f'v_mov_b32_dpp v{T0 + 2}, v{T0} row_shl:8 row_mask:0xf bank_mask:0x3\nv_mov_b32_dpp v{T0 + 3}, v{T0 + 1} row_shl:8 row_mask:0xf bank_mask:0x3')
        for i in range(4): a(f'v_mov_b32_dpp v{T0 + i}, v{M_ + i} row_shr:8 row_mask:0x4 bank_mask:0xc')
        fstamp(a, cfg, 7)
        a(f's_mov_b64 exec, s[{sEx}:{sEx + 1}]')
        a(f'buffer_store_dwordx4 {V(T0, 4)}, v{vPs}, {WS}, s{sCO} offen sc1')
        lstore(a, [f'buffer_store_dwordx4 {V(T0, 4)}, v{vPs}, {WS}, s{sCL} offen'])
        a('s_mov_b64 exec, -1')
        if cfg.cpos1 == 4: cue_send(vCs, vCv)
        a('s_setprio 0')
        a('s_branch L_QK_lo_tail')
        a('L_QK_w123:')
        a(f's_cmp_eq_u32 s{sWave}, 1\ns_cbranch_scc1 L_QK_w1')
        a(f's_cmp_eq_u32 s{sWave}, 3\ns_cbranch_scc1 L_QK_w3')
        a(f's_cmp_eq_u32 s{sHas2}, 0\ns_cbranch_scc1 L_QK_w2p')
        if cfg.h2cue: cue_wait(vC1, vCr, sStep)
        a('s_branch L_QK_lo_tail')
        a('L_QK_w2p:')
        a(f's_cmp_ge_u32 s{sR}, 6\ns_cbranch_scc1 L_QK_lo_tail\ns_cmp_ge_u32 s{sStep}, 62\ns_cbranch_scc1 L_QK_lo_tail')
        a(f'buffer_load_dword v{vU + 4}, v{vC1}, {WS}, s{sCL} offen sc1')
        a('s_branch L_QK_lo_tail')
        a('L_QK_w3:')
        a(f's_add_u32 s{sT4}, s{sStep}, 1\ns_cmp_ge_u32 s{sT4}, 64\ns_cbranch_scc1 L_QK_lo_tail')
        kx_dma()
        a('s_branch L_QK_lo_tail')
        a('L_QK_w1:')
        for ks in range(4):
            for h in range(2): a(f'ds_read_b64_tr_b16 {V(vU + 4 * ks + 2 * h, 2)}, v{vXr} offset:{XBUF + ks * 1024 + h * 512}')
        a('s_waitcnt lgkmcnt(0)')
        km_store(vU)
        a('L_QK_lo_tail:')
        a(f's_cmp_eq_u32 s{sHas2}, 0\ns_cbranch_scc1 L_QK_lo_adv')
        a('s_barrier')
        a('s_barrier\nL_QK_lo_adv:')
        fstamp(a, cfg, 8)
        advance(None)
    else:
        um_compute(3)
        o = vAcc
        a(f'buffer_store_dwordx4 {V(o, 4)}, v{vUg}, {WS}, s{sSeg2} offen sc1')
        a(f's_mov_b64 exec, s[{sEx}:{sEx + 1}]')
        a(f'buffer_store_dwordx4 {V(o + 4, 4)}, v{vUg3}, {WS}, s{sSeg2} offen sc1\ns_mov_b64 exec, -1')
        fstamp(a, cfg, 7)
        a(f's_add_u32 s{sSeg2}, s{sSeg2}, 16384')
        lc = a.newlabel('c1')
        a(f's_cmp_lg_u32 s{sWave}, 2\ns_cbranch_scc1 {lc}')
        cue_wait(vC1, vCr, sStep)
        a(f'{lc}:')
        a('s_barrier')
        fstamp(a, cfg, 8)
        advance(None)
        a('s_barrier')
    a(f's_cmp_lt_u32 s{sStep}, {cfg.nsteps}\ns_cbranch_scc1 L_{tg}_lo_loop')
    tstamp(a, cfg, 3, vTmp, vTmp2)
    fdump(a, cfg, vTmp, vTmp2)
    a('s_branch L_end')

    a(f'L_{tg}_hi:')
    su = sT3
    if QK:
        a(f's_cmp_lg_u32 s{sHas2}, 0\ns_cbranch_scc1 L_QK_hi2')
        a('L_QK_hi_plain:')
        zero_acc()
        a('s_barrier\ns_barrier'); half(0)
        a('s_barrier'); half(5); epilogue1()
        a(f's_add_u32 s{sStep}, s{sStep}, 1\ns_cmp_lt_u32 s{sStep}, {cfg.nsteps}\ns_cbranch_scc1 L_QK_hi_plain')
        a('s_branch L_end')
        a('L_QK_hi2:')
    else:
        a(f's_add_u32 s{su}, s{sWave}, 8')
        um_offs(vUg, su, True)
    a(f's_mov_b32 s{sSeg2}, {UM}')
    a(f's_sub_u32 s{su}, s{sWave}, 4')
    vP0, vPm, vUm, vRw, vRr, vMs, vFl = vM, vM + 1, vM + 2, vM + 3, vM + 4, vM + 5, vM + 6
    vFa = 14
    quad_base(sT0, su)
    a(f'v_and_b32 v{vTmp}, 7, v0\nv_lshlrev_b32 v{vTmp}, 4, v{vTmp}\nv_add_u32 v{vTmp}, s{sT0}, v{vTmp}\nv_lshrrev_b32 v{vTmp2}, 4, v0')
    a(f'v_lshl_add_u32 v{vP0}, v{vTmp2}, 7, v{vTmp}\nv_mul_u32_u24 v{vTmp2}, 640, v{vTmp2}\nv_add_u32 v{vPm}, v{vTmp}, v{vTmp2}\nv_add_u32 v{vPm}, 512, v{vPm}')
    a(f'v_bfe_u32 v{vTmp2}, v0, 3, 1\nv_mul_u32_u24 v{vTmp2}, 640, v{vTmp2}\nv_add_u32 v{vP0}, v{vP0}, v{vTmp2}')
    a(f's_lshl_b32 s{sT1}, s{su}, 10\ns_add_u32 s{sT1}, s{sT1}, {RED}\nv_add_u32 v{vRw}, s{sT1}, v{vL16}')
    vPm2 = 13
    a(f'v_and_b32 v{vTmp}, 8, v0\nv_lshlrev_b32 v{vTmp}, 10, v{vTmp}\nv_xor_b32 v{vTmp}, s{sPar}, v{vTmp}\nv_xor_b32 v{vTmp}, 0x2000, v{vTmp}\nv_add_u32 v{vPm2}, v{vPm}, v{vTmp}')
    vCs2, vCv2 = vPm, 12
    a(f's_lshl_b32 s{sT0}, s{sJ}, 2\ns_add_u32 s{sT0}, s{sT0}, {FL2}\nv_mov_b32 v{vCs2}, s{sT0}\nv_mov_b32 v{vCv2}, 0')
    a(f'v_and_b32 v{vRr}, 3, v0\nv_lshlrev_b32 v{vRr}, 8, v{vRr}\nv_bfe_u32 v{vTmp}, v0, 2, 3\nv_lshl_add_u32 v{vRr}, v{vTmp}, 4, v{vRr}\nv_lshrrev_b32 v{vTmp}, 5, v0\nv_lshl_add_u32 v{vRr}, v{vTmp}, 3, v{vRr}\nv_add_u32 v{vRr}, {RED}, v{vRr}')
    a(f's_lshl_b32 s{sT0}, s{sJ}, 8\nv_lshlrev_b32 v{vMs}, 2, v0\nv_add_u32 v{vMs}, s{sT0}, v{vMs}')
    a(f's_mov_b32 s{sEx}, 0x11111111\ns_mov_b32 s{sEx + 1}, 0x11111111')
    a(f's_mul_i32 s{sT2}, s{sXr}, 20\ns_add_u32 s{sT2}, s{sT2}, s{sJ}')
    vUm2 = 15
    a(f's_lshl_b32 s{sT0}, s{sT2}, 20\ns_bfe_u32 s{sT1}, s{sT2}, 0x10001\ns_lshl_b32 s{sT1}, s{sT1}, 13\ns_xor_b32 s{sT1}, s{sT1}, s{sPar}\ns_add_u32 s{sT0}, s{sT0}, s{sT1}')
    a(f's_lshl_b32 s{sT1}, s{su}, 10\ns_add_u32 s{sT0}, s{sT0}, s{sT1}\ns_lshl_b32 s{sT1}, s{sXr}, 12\ns_add_u32 s{sT0}, s{sT0}, s{sT1}')
    a(f'v_add_u32 v{vUm}, s{sT0}, v{vL16}\nv_xor_b32 v{vUm2}, 0x1000, v{vUm}')
    a(f's_lshl_b32 s{sSeg}, s{sT2}, 21\ns_lshl_b32 s{sT0}, s{su}, 12\ns_add_u32 s{sSeg}, s{sSeg}, s{sT0}\ns_lshl_b32 s{sT0}, s{sXr}, 14\ns_add_u32 s{sSeg}, s{sSeg}, s{sT0}\ns_add_u32 s{sSeg}, s{sSeg}, {UX}')
    a(f'v_and_b32 v{vFa}, 3, v0\nv_bfe_u32 v{vTmp}, v0, 2, 1\nv_lshl_add_u32 v{vFa}, v{vTmp}, 4, v{vFa}\nv_lshlrev_b32 v{vFa}, 3, v{vFa}')
    a(f's_lshl_b32 s{sT0}, s{su}, 5\ns_add_u32 s{sT0}, s{sT0}, {F_UX}\nv_add_u32 v{vFa}, s{sT0}, v{vFa}')
    a(f'v_mov_b32 v{vFl}, 0\nv_mov_b32 v{vFl + 1}, 0')
    ldU = f'buffer_load_dwordx2 {V(vFl, 2)}, v{vFa}, {WS}, 0 offen sc1'
    PL0, PL1, PLm, PR0, PR1, PRm, UmL, UmR = [vZ + 4 * i for i in range(8)]
    aa, ab = vAcc, vAcc + 4
    def ux_loads(lo, hi):
        if cfg.no_ux: return
        a(f's_xor_b32 s{sT0}, s{sSeg}, 0x4000')
        for i in range(lo, hi):
            a(f'buffer_load_dwordx4 {V(vU + 4 * i, 4)}, v{vL16}, {WS}, s{sSeg if i < 4 else sT0} offen offset:{(i & 3) * 1024} sc1{cfg.ux_nt}')
        if hi == 8:
            a(ldU)
            a(f's_add_u32 s{sSeg}, s{sSeg}, 32768')
    def quad_gather(r):
        for p in range(1, 4): a(f'v_mov_b32_dpp v{r + p}, v{r} quad_perm:[{p},{p},{p},{p}] row_mask:0xf bank_mask:0xf')
    def mem_pub(r, so, sl):
        a(f's_mov_b64 exec, s[{sEx}:{sEx + 1}]')
        a(f'buffer_store_dwordx4 {V(r, 4)}, v{vMs}, {WS}, s{so} offen sc1')
        lstore(a, [f'buffer_store_dwordx4 {V(r, 4)}, v{vMs}, {WS}, s{sl} offen'])
        a('s_mov_b64 exec, -1')
    l0 = a.newlabel('m0')
    a(f's_cmp_lg_u32 s{sWave}, 4\ns_cbranch_scc1 {l0}')
    srd(a, 12, pMEM0, 10240)
    a(f'v_bfe_u32 v{vTmp}, v0, 2, 3\nv_mul_u32_u24 v{vTmp}, 1280, v{vTmp}\nv_and_b32 v{vTmp2}, 3, v0\nv_lshl_add_u32 v{vTmp}, v{vTmp2}, 3, v{vTmp}\nv_lshrrev_b32 v{vTmp2}, 5, v0\nv_lshl_add_u32 v{vTmp}, v{vTmp2}, 2, v{vTmp}')
    a(f's_lshl_b32 s{sT0}, s{sT2}, 5')
    a(f'buffer_load_dword v{aa}, v{vTmp}, {T1}, s{sT0} offen\ns_waitcnt vmcnt(0)\nv_min_u32 v{aa}, -2, v{aa}')
    quad_gather(aa)
    mem_pub(aa, sCO, sCL)
    cue_send(vCs2, vCv2)
    a(f's_nop 1\n{l0}:')
    a(f'L_{tg}_hi_loop:')
    fstamp(a, cfg, 0)
    zero_acc()
    a(f's_mov_b32 s{sT4}, s{sStep}')
    flag_wait(vFl, ldU)
    n0 = cfg.n0qk if QK else cfg.n0vo
    n1 = cfg.n1qk if QK else cfg.n1vo
    a('s_barrier\ns_barrier'); half(0)
    if n0: ux_loads(0, n0)
    a('s_barrier')
    half(5, (lambda: ux_loads(n0, n1)) if n1 > n0 else None)
    epilogue1(2)
    fstamp(a, cfg, 1)
    if not QK:
        um_compute(2)
        a(f'buffer_store_dwordx4 {V(vAcc, 4)}, v{vUg}, {WS}, s{sSeg2} offen sc1')
    if n1 < 8: ux_loads(n1, 8)
    fstamp(a, cfg, 2)
    ldum = [f'buffer_load_dwordx4 {V(UmL, 4)}, v{vUm}, {WS}, s{sSeg2} offen sc1', f'buffer_load_dwordx4 {V(UmR, 4)}, v{vUm2}, {WS}, s{sSeg2} offen sc1']
    ldp = lambda b, so: [f'buffer_load_dwordx4 {V(b, 4)}, v{vP0}, {WS}, s{so} offen sc1', f'buffer_load_dwordx4 {V(b + 4, 4)}, v{vP0}, {WS}, s{so} offen offset:1280 sc1']
    R4 = lambda b, n=4: list(range(b, b + n))
    def s2(b, u0, da, db, ca, cb):
        a(f'v_mfma_f32_16x16x32_bf16 {V(da, 4)}, {V(u0, 4)}, {V(b, 4)}, {ca}')
        a(f'v_mfma_f32_16x16x32_bf16 {V(db, 4)}, {V(u0 + 4, 4)}, {V(b, 4)}, {cb}')
        a(f'v_mfma_f32_16x16x32_bf16 {V(da, 4)}, {V(u0 + 8, 4)}, {V(b + 4, 4)}, {V(da, 4)}')
        a(f'v_mfma_f32_16x16x32_bf16 {V(db, 4)}, {V(u0 + 12, 4)}, {V(b + 4, 4)}, {V(db, 4)}')
    ac, ad = PL0, PL1
    a(f's_andn2_b32 s{sT1}, s{sCL}, 0x2000\ns_add_u32 s{sT2}, s{sStep}, 1\nv_mov_b32 v{vCv2}, s{sT2}')
    ldm = [f'buffer_load_dwordx4 {V(PLm, 4)}, v{vPm2}, {WS}, s{sT1} offen sc1']
    if cfg.order == 0:
        first = ldum + ldp(PL0, sCL); second = ldp(PR0, sCR) + ldm
        c1 = R4(PL0, 8) + R4(UmL, 8); c2 = R4(PR0, 8) + R4(PLm)
    else:
        first = ldp(PL0, sCL); second = ldum + ldp(PR0, sCR) + ldm
        c1 = R4(PL0, 8); c2 = R4(PR0, 8) + R4(PLm) + R4(UmL, 8)
    a(f's_add_u32 s{sNL}, s{sCL}, {SL}\ns_add_u32 s{sNO}, s{sCO}, {SL}')
    if cfg.prio1: a('s_setprio 3')
    a('s_barrier')
    fstamp(a, cfg, 3)
    for i in range(cfg.rdelay1q if QK else cfg.rdelay1): a('s_nop 15')
    for i, l in enumerate(first + second):
        a(l)
        if cfg.prio1 and i == 1: a('s_setprio 2')
        if cfg.prio1 and i == 3: a('s_setprio 0')
    poll(a, first, c1, vTmp, first_issued=True, first_wait=len(second), spec=lambda: s2(PL0, vU, aa, ab, '0', '0'))
    fstamp(a, cfg, 4)
    def part2():
        s2(PR0, vU + 16, ac, ad, V(aa, 4), V(ab, 4))
        a(f'v_mfma_f32_16x16x32_bf16 {V(ac, 4)}, {V(UmL, 4)}, {V(PLm, 4)}, {V(ac, 4)}')
        a(f'v_mfma_f32_16x16x32_bf16 {V(ad, 4)}, {V(UmR, 4)}, {V(PLm, 4)}, {V(ad, 4)}')
    poll(a, second, c2, vTmp, first_issued=True, spec=part2)
    fstamp(a, cfg, 5)
    for i in range(4): a(f'v_add_f32_dpp v{ac + i}, v{ad + i}, v{ac + i} row_shl:8 row_mask:0xf bank_mask:0xf')
    a(f'ds_write_b128 v{vRw}, {V(ac, 4)}\ns_waitcnt lgkmcnt(0)\ns_barrier')
    fstamp(a, cfg, 6)
    l1 = a.newlabel('red'); l2 = a.newlabel('red')
    if cfg.cpos2 == 0:
        a(f's_cmp_lg_u32 s{sWave}, 5\ns_cbranch_scc1 {l2}')
        cue_send(vCs2, vCv2)
        a(f'{l2}:')
    a(f's_cmp_lg_u32 s{sWave}, 4\ns_cbranch_scc1 {l1}\ns_cmp_ge_u32 s{sStep}, 63\ns_cbranch_scc1 {l1}')
    a(f'ds_read2st64_b64 {V(aa, 4)}, v{vRr} offset0:0 offset1:2\nds_read2st64_b64 {V(ab, 4)}, v{vRr} offset0:4 offset1:6\ns_waitcnt lgkmcnt(1)')
    a(f'v_add_f32 v{aa}, v{aa}, v{aa + 2}\nv_add_f32 v{aa + 1}, v{aa + 1}, v{aa + 3}\ns_waitcnt lgkmcnt(0)')
    a(f'v_add_f32 v{ab}, v{ab}, v{ab + 2}\nv_add_f32 v{ab + 1}, v{ab + 1}, v{ab + 3}\nv_add_f32 v{aa}, v{aa}, v{ab}\nv_add_f32 v{aa + 1}, v{aa + 1}, v{ab + 1}')
    a(f'v_cvt_pk_bf16_f32 v{aa}, v{aa}, v{aa + 1}')
    quad_gather(aa)
    fstamp(a, cfg, 7)
    mem_pub(aa, sNO, sNL)
    if cfg.cpos2 == 1: cue_send(vCs2, vCv2)
    if not (cfg.h2cue2 if QK else cfg.vocue2):
        for i in range(cfg.rdelay2): a('s_nop 15')
    a(f'{l1}:')
    a(f's_add_u32 s{sSeg2}, s{sSeg2}, 16384')
    fstamp(a, cfg, 8)
    advance(f'L_{tg}_hi_loop')
    fdump(a, cfg, vTmp, vTmp2)
    a('s_branch L_end')
```

```python
import sys
sys.path.insert(0, 'gen')
import gen
base = 'gated_mix__memory_aug_recurrent_mem_tr__glu_gated_bilinear__prompt'
hdr = ''
for l in open(base + '.s.ref'):
    if l.startswith('; @launch'): break
    hdr += l
cfg = gen.Cfg()
out = base + '.s'
for a in sys.argv[1:]:
    k, v = a.split('=')
    if k == 'out': out = v
    else: setattr(cfg, k, eval(v))
open(out, 'w').write(gen.build(cfg, hdr))
print('wrote', out)
```

```python
import sys, struct
sys.path.insert(0, 'gen')
from asmlib import *
from layout import *

KNAME = 'gated_mix__memory_aug_recurrent_mem_tr__glu_gated_bilinear__prompt_kernel'

def f2u(x): return struct.unpack('<I', struct.pack('<f', x))[0]

WS = 's[4:7]'; DBG = 's[8:11]'; T1 = 's[12:15]'; T2 = 's[48:51]'
pX, pMEM0, pWQ, pWK, pWV, pWO, pWG, pWU, pWD, pGW, pOUT, pDBG, pWS = 16, 18, 20, 22, 24, 26, 32, 34, 36, 38, 40, 42, 44
sWave, sX, sR, sH, sXr, sJ, sHas2, sLim, sStep, sImp = 52, 53, 54, 55, 56, 57, 58, 59, 60, 61
sT0, sT1, sT2, sT3, sT4, sT5 = 62, 63, 64, 65, 66, 67
sbL, sbR, sbO = 68, 69, 70
sCL, sCR, sCO, sPL, sPO, sNL, sNO = 71, 72, 73, 74, 75, 76, 77
sSeg = 78
sSeg2 = 79
sEx = 80
sEx2 = 82
sTm = 84
sC = 88
sSpin = 89
sFl0, sFl1 = 90, 91
sPar = 46

class Cfg:
    rx0 = 0; rx1 = 2; rx2 = 1; r2 = True
    qcue = True; scue = True; vo_sleep = 0; pf_ahead = 2; no_pf = True; pf64 = False
    ax = None; fx = None
    nc_qkx = 2; nc_vox = 1; nc_ff1 = 2; la = 1; early_pub = 6; km_sleep = 2
    roles = ('R', 'QKX', 'VOX', 'FF1', 'FIN')
    fake_xcc = None
    timing = False
    force_impure = False
    force_par = None
    rdelay1 = 0
    rdelay2 = 0
    nsteps = 64
    fine = 0
    vox_prio = True
    ux_st = ''
    vcue = False
    cpos3 = 2
    cwave3 = 0
    cdel3 = 0
    sorder = 0
    bg_late = True
    pubord = 'LOV'
    cdel2 = 0
    h2cue2 = True
    vocue2 = True
    h2cue = False
    prio1 = True
    cdepth = 4
    cgap = 12
    cpos1 = 4
    cpos2 = 3
    w0ack = False
    rdelay1q = 3
    order = 0
    n0qk = 6
    b3b = False
    st3 = True
    um_early = 0
    n0vo = 6
    late_vo = False
    only = None
    n1qk = 8
    n1vo = 8
    trig1 = 0
    late_r = False
    no_ux = False
    ux_nt = ''

COUNT_RETRY = [False]

def srd(a, q, p, nbytes):
    a(f's_mov_b32 s{q}, s{p}\ns_and_b32 s{q+1}, s{p+1}, 0xffff\ns_mov_b32 s{q+2}, {nbytes}\ns_mov_b32 s{q+3}, 0x00020000')

def maxtree(a, dst, regs):
    regs = list(regs)
    if len(regs) % 2 == 0:
        a(f'v_max_u32 v{dst}, v{regs[0]}, v{regs[1]}'); rest = regs[2:]
    else:
        a(f'v_max3_u32 v{dst}, v{regs[0]}, v{regs[1]}, v{regs[2]}'); rest = regs[3:]
    for i in range(0, len(rest), 2):
        a(f'v_max3_u32 v{dst}, v{dst}, v{rest[i]}, v{rest[i+1]}')

def poll(a, loads, regs, tmp, first_issued=False, spec=None, specwait=False, first_wait=0, sleep=0):
    top = a.newlabel('poll'); chk = a.newlabel('chk'); done = a.newlabel('pdone')
    a(f's_mov_b32 s{sSpin}, s{sLim}')
    if first_issued:
        a(f's_waitcnt vmcnt({first_wait})')
        a(f's_branch {chk}')
    a(f'{top}:')
    if specwait: a('s_waitcnt lgkmcnt(0)')
    for l in loads: a(l)
    a('s_waitcnt vmcnt(0)')
    a(f'{chk}:')
    if spec: spec()
    maxtree(a, tmp, regs)
    a(f'v_cmp_eq_u32 vcc, -1, v{tmp}')
    a(f's_cbranch_vccz {done}')
    if COUNT_RETRY[0] and first_issued: a('s_add_u32 s101, s101, 1')
    if sleep: a(f's_sleep {sleep}')
    a(f's_sub_u32 s{sSpin}, s{sSpin}, 1')
    a(f's_cbranch_scc0 {top}')
    a(f's_mov_b32 s{sLim}, 0')
    a(f'{done}:')

def lstore(a, insts):
    l1 = a.newlabel('ls'); l2 = a.newlabel('le')
    a(f's_cmp_lg_u32 s{sImp}, 0')
    a(f's_cbranch_scc1 {l1}')
    for i in insts: a(i)
    a(f's_branch {l2}')
    a(f'{l1}:')
    for i in insts: a(i + (' sc1' if i.startswith('buffer_') else ''))
    a(f'{l2}:')

def wait_init(a, vt, vo, presleep=0):
    top = a.newlabel('wi'); done = a.newlabel('wid')
    a(f'v_and_b32 v{vo}, 3, v0\nv_lshlrev_b32 v{vo}, 5, v{vo}\nv_add_u32 v{vo}, 4, v{vo}')
    a(f's_cmp_lg_u32 s{sWave}, 0\ns_cbranch_scc1 {done}')
    a(f's_mov_b32 s{sSpin}, s{sLim}')
    a(f'{top}:')
    if presleep: a(f's_sleep {presleep}')
    a(f'buffer_load_dword v{vt}, v{vo}, {DBG}, 0 offen sc1')
    a('s_waitcnt vmcnt(0)')
    a(f'v_readfirstlane_b32 s{sT0}, v{vt}')
    a(f's_cmp_ge_u32 s{sT0}, 256')
    a(f's_cbranch_scc1 {done}')
    if not presleep: a('s_sleep 16')
    a(f's_sub_u32 s{sSpin}, s{sSpin}, 16')
    a(f's_cbranch_scc0 {top}')
    a(f's_mov_b32 s{sLim}, 0')
    a(f'{done}:')
    a('s_barrier')
    a(f'buffer_load_dword v{vt}, v{vo}, {DBG}, 0 offen sc1')
    a('s_waitcnt vmcnt(0)')
    a(f'v_readlane_b32 s{sT0}, v{vt}, 1\nv_readlane_b32 s{sT1}, v{vt}, 2\nv_readlane_b32 s{sImp}, v{vt}, 3')

def init_done(a, vt, vo):
    l = a.newlabel('idn')
    a(f's_cmp_lg_u32 s{sWave}, 0\ns_cbranch_scc1 {l}')
    a(f'v_mov_b32 v{vt}, 1\nv_mov_b32 v{vo}, {D_INIT}')
    a('s_mov_b64 exec, 1')
    a(f'buffer_atomic_add v{vt}, v{vo}, {DBG}, 0 offen')
    a('s_mov_b64 exec, -1')
    a(f'{l}:')

def loader(a, chunks, vA, vB, vRd, vRd2, vt, vo, nslots=5):
    n = len(chunks)
    def issue(i):
        c = chunks[i]
        if c.get('pre'): c['pre'](a)
        c['soff'](a)
        a(f's_lshl_b32 s{sT1}, s{sWave}, 12')
        a(f's_add_u32 s{sT1}, s{sT1}, {(i % nslots) * 32768}')
        for ii in range(4):
            a(f's_mov_b32 m0, s{sT1}')
            a(f'buffer_load_dwordx4 v{vB if c.get("var", lambda i: i >> 1)(ii) else vA}, {T1}, s{sT0} offen lds')
            if ii < 3:
                a(f's_add_u32 s{sT0}, s{sT0}, {4 * c["stride"]}\ns_add_u32 s{sT1}, s{sT1}, 1024')
    for i in range(min(nslots, n)): issue(i)
    for i in range(n):
        a(f's_waitcnt vmcnt({4 * (min(i + nslots - 1, n - 1) - i)})')
        a('s_barrier')
        if i == 0: init_done(a, vt, vo)
        a(f'v_add_u32 v{vRd2}, {(i % nslots) * 32768}, v{chunks[i].get("vrd", vRd)}')
        chunks[i]['reads'](a, vRd2)
        a('s_waitcnt lgkmcnt(0)')
        a('s_barrier')
        if i + nslots < n: issue(i + nslots)

def src_offsets(a, vA, vB, vt, stride, colmap=None):
    for var, vd in ((0, vA), (1, vB)):
        a(f'v_lshrrev_b32 v{vt}, 4, v0')
        if var: a(f'v_or_b32 v{vt}, 4, v{vt}')
        a(f'v_bfe_u32 v{vd}, v0, 1, 3')
        a(f'v_xor_b32 v{vd}, v{vd}, v{vt}')
        if colmap is None:
            a(f'v_lshlrev_b32 v{vd}, 5, v{vd}')
        else:
            colmap(a, vd, vt)
        a(f'v_and_b32 v{vt}, 1, v0\nv_lshl_add_u32 v{vd}, v{vt}, 4, v{vd}')
        a(f'v_lshrrev_b32 v{vt}, 4, v0\nv_mul_u32_u24 v{vt}, {stride}, v{vt}\nv_add_u32 v{vd}, v{vd}, v{vt}')

def tr_base(a, vd, vt, unit_sreg):
    a(f'v_bfe_u32 v{vd}, v0, 2, 3')
    a(f'v_xor_b32 v{vd}, s{unit_sreg}, v{vd}')
    a(f'v_lshlrev_b32 v{vd}, 5, v{vd}')
    a(f'v_and_b32 v{vt}, 3, v0\nv_lshl_add_u32 v{vd}, v{vt}, 3, v{vd}')
    a(f'v_bfe_u32 v{vt}, v0, 2, 2\nv_lshl_add_u32 v{vd}, v{vt}, 8, v{vd}')
    a(f'v_lshrrev_b32 v{vt}, 4, v0\nv_lshl_add_u32 v{vd}, v{vt}, 11, v{vd}')

def std_reads(base):
    def f(a, va):
        for kk in range(4):
            for h in range(2):
                a(f'ds_read_b64_tr_b16 {A(base + kk * 4 + h * 2, 2)}, v{va} offset:{kk * 8192 + h * 1024}')
    return f

def tstamp(a, cfg, slot, vt, vo):
    if not cfg.timing: return
    a(f's_memrealtime s[{sTm}:{sTm+1}]\ns_waitcnt lgkmcnt(0)')
    a(f's_lshl_b32 s{sTm+2}, s{sX}, 5\ns_add_u32 s{sTm+2}, s{sTm+2}, s{sR}\ns_lshl_b32 s{sTm+2}, s{sTm+2}, 3\ns_add_u32 s{sTm+2}, s{sTm+2}, s{sWave}\ns_lshl_b32 s{sTm+2}, s{sTm+2}, 4')
    a(f's_add_u32 s{sTm+2}, s{sTm+2}, {TIM + slot * 4}')
    a(f'v_mov_b32 v{vt}, s{sTm}\nv_mov_b32 v{vo}, s{sTm+2}')
    a(f's_mov_b64 exec, 1\nbuffer_store_dword v{vt}, v{vo}, {WS}, 0 offen\ns_mov_b64 exec, -1')

def fstamp(a, cfg, k):
    if not cfg.fine: return
    if cfg.fine == -2:
        if cfg.only is not None and k not in cfg.only: return
        a(f's_memrealtime s[{sTm}:{sTm+1}]\ns_waitcnt lgkmcnt(0)\ns_cmp_lt_u32 s{sStep}, 60\ns_cselect_b32 s{sTm}, s{sTm}, 0')
        a(f's_add_u32 s{sTm+1}, s{sTm}, s{92+k}\ns_cmp_ge_u32 s{sStep}, 4\ns_cselect_b32 s{92+k}, s{sTm+1}, 0')
        return
    if cfg.fine < 0:
        if cfg.only is not None and k not in cfg.only: return
        a(f's_memtime s[{sTm}:{sTm+1}]\ns_waitcnt lgkmcnt(0)\ns_sub_u32 s{sTm+1}, s{sTm}, s47\ns_mov_b32 s47, s{sTm}')
        a(f's_add_u32 s{sTm+1}, s{sTm+1}, s{92+k}\ns_cmp_ge_u32 s{sStep}, 4\ns_cselect_b32 s{92+k}, s{sTm+1}, 0')
        return
    if cfg.only is not None and k not in cfg.only: return
    a(f's_memtime s[{sTm}:{sTm+1}]\ns_waitcnt lgkmcnt(0)\ns_cmp_eq_u32 s{sStep}, {cfg.fine}\ns_cselect_b32 s{92+k}, s{sTm}, s{92+k}')
def fdump(a, cfg, vt, vo):
    if not cfg.fine: return
    a(f's_lshl_b32 s{sTm+2}, s{sX}, 5\ns_add_u32 s{sTm+2}, s{sTm+2}, s{sR}\ns_lshl_b32 s{sTm+2}, s{sTm+2}, 3\ns_add_u32 s{sTm+2}, s{sTm+2}, s{sWave}\ns_lshl_b32 s{sTm+2}, s{sTm+2}, 6')
    a(f's_add_u32 s{sTm+2}, s{sTm+2}, {FTIM}\nv_mov_b32 v{vo}, s{sTm+2}\ns_mov_b64 exec, 1')
    for k in range(10):
        a(f'v_mov_b32 v{vt}, s{92+k}\nbuffer_store_dword v{vt}, v{vo}, {WS}, 0 offen offset:{4*k}')
    a('s_mov_b64 exec, -1')

def prologue(a, cfg):
    COUNT_RETRY[0] = cfg.fine < 0
    if cfg.fine < 0: a('s_mov_b32 s101, 0')
    a('s_cmp_ge_u32 s2, 256\ns_cbranch_scc1 L_end')
    a('s_load_dwordx16 s[16:31], s[0:1], 0\ns_load_dwordx8 s[32:39], s[0:1], 64\ns_load_dwordx4 s[40:43], s[0:1], 96\ns_load_dwordx2 s[44:45], s[0:1], 112')
    a(f'v_lshrrev_b32 v1, 6, v0\nv_and_b32 v0, 63, v0\nv_readfirstlane_b32 s{sWave}, v1')
    if cfg.fake_xcc is None:
        a(f's_getreg_b32 s{sX}, hwreg(HW_REG_XCC_ID)\ns_and_b32 s{sX}, s{sX}, 7')
    else:
        a(f's_mov_b32 s{sX}, {cfg.fake_xcc}')
    a(f's_mov_b32 s{sLim}, 0x80000')
    a('s_waitcnt lgkmcnt(0)')
    srd(a, 4, pWS, WS_BYTES); srd(a, 8, pDBG, 256)
    srd(a, 12, pWS, WS_BYTES); srd(a, 48, pWS, WS_BYTES)
    a(f's_cmp_eq_u32 s{sWave}, 0\ns_cbranch_scc1 L_claim')
    a(f's_cmp_lg_u32 s{sWave}, 7\ns_cbranch_scc1 L_pro_join')
    a(f's_cmp_lg_u32 s{sX}, {cfg.rx0}\ns_cbranch_scc1 L_pro_join')
    a(f's_lshr_b32 s{sT0}, s2, 6\ns_lshl_b32 s{sT0}, s{sT0}, 14\ns_and_b32 s{sT1}, s2, 63\ns_lshl_b32 s{sT1}, s{sT1}, 7')
    a(f's_add_u32 s{sT0}, s{sT0}, s{sT1}\ns_add_u32 s{sT0}, s{sT0}, {CAL}')
    a(f'v_mov_b32 v2, s{sT0}\nv_add_u32 v3, 0x2000, v2\nv_mov_b32 v4, 0')
    a(f's_mov_b64 exec, 1\ns_mov_b32 s{sT2}, -1\ns_mov_b32 s{sT3}, -1')
    for rep in range(2):
        a(f'buffer_store_dword v4, v2, {WS}, 0 offen sc1\nbuffer_store_dword v4, v3, {WS}, 0 offen sc1\ns_waitcnt vmcnt(0)')
        for vv, sd in ((2, sT2), (3, sT3)):
            a(f's_memtime s[{sTm}:{sTm+1}]\ns_waitcnt lgkmcnt(0)')
            a(f'buffer_load_dword v5, v{vv}, {WS}, 0 offen sc1\ns_waitcnt vmcnt(0)')
            a(f's_memtime s[{sTm+2}:{sTm+3}]\ns_waitcnt lgkmcnt(0)')
            a(f's_sub_u32 s{sT0}, s{sTm+2}, s{sTm}\ns_min_u32 s{sd}, s{sd}, s{sT0}')
    a(f's_cmp_lt_u32 s{sT2}, s{sT3}\ns_cselect_b32 s{sT0}, {D_VOTE0}, {D_VOTE1}')
    a(f'v_mov_b32 v2, s{sT0}\nv_mov_b32 v4, 1')
    a(f'buffer_atomic_add v4, v2, {DBG}, 0 offen\ns_waitcnt vmcnt(0)\ns_mov_b64 exec, -1')
    a('s_branch L_pro_join')
    a('L_claim:')
    a(f's_lshr_b32 s{sR}, s2, 3\ns_mov_b32 s{sImp}, 0\ns_mov_b64 exec, 1')
    a('L_claim_loop:')
    a(f's_lshl_b32 s{sT0}, 1, s{sR}\ns_lshl_b32 s{sT1}, s{sX}, 5')
    a(f'v_mov_b32 v2, s{sT0}\nv_mov_b32 v3, s{sT1}')
    a(f'buffer_atomic_or v2, v3, {DBG}, 0 offen sc0\ns_waitcnt vmcnt(0)')
    a(f'v_readfirstlane_b32 s{sT1}, v2')
    a(f's_and_b32 s{sT2}, s{sT1}, s{sT0}\ns_cbranch_scc0 L_claim_ok')
    a(f's_cmp_eq_u32 s{sT1}, -1\ns_cbranch_scc1 L_claim_next')
    a(f's_ff0_i32_b32 s{sR}, s{sT1}\ns_branch L_claim_loop')
    a('L_claim_next:')
    a(f's_add_u32 s{sX}, s{sX}, 1\ns_and_b32 s{sX}, s{sX}, 7\ns_mov_b32 s{sImp}, 1\ns_mov_b32 s{sR}, 0\ns_branch L_claim_loop')
    a('L_claim_ok:')
    if cfg.force_impure: a(f's_mov_b32 s{sImp}, 1')
    a(f's_cmp_eq_u32 s{sImp}, 0\ns_cbranch_scc1 L_claim_pub')
    a(f'v_mov_b32 v2, 1\nv_mov_b32 v3, {D_IMPURE}\nbuffer_atomic_or v2, v3, {DBG}, 0 offen\ns_waitcnt vmcnt(0)')
    a('L_claim_pub:')
    a(f's_lshl_b32 s{sT0}, s{sX}, 5\ns_or_b32 s{sT0}, s{sT0}, s{sR}')
    a(f'v_mov_b32 v2, s{sT0}\nv_mov_b32 v3, 0\nds_write_b32 v3, v2\ns_waitcnt lgkmcnt(0)\ns_mov_b64 exec, -1')
    a('L_pro_join:')
    a('s_barrier')
    a('v_mov_b32 v3, 0\nds_read_b32 v2, v3\ns_waitcnt lgkmcnt(0)')
    a(f'v_readfirstlane_b32 s{sT0}, v2')
    a(f's_lshr_b32 s{sX}, s{sT0}, 5\ns_and_b32 s{sX}, s{sX}, 7\ns_and_b32 s{sR}, s{sT0}, 31')
    a('s_barrier')
    tstamp(a, cfg, 0, 2, 3)
    a(f'v_lshlrev_b32 v1, 4, v0\nv_mov_b32 v4, -1\nv_mov_b32 v5, -1\nv_mov_b32 v6, -1\nv_mov_b32 v7, -1\ns_lshl_b32 s{sT0}, s2, 13\ns_lshl_b32 s{sT1}, s{sWave}, 10\ns_add_u32 s{sT0}, s{sT0}, s{sT1}')
    for k in range(3):
        a(f'buffer_store_dwordx4 v[4:7], v1, {WS}, s{sT0} offen sc1')
        if k < 2: a(f's_add_u32 s{sT0}, s{sT0}, {XS}')
    if 'R' in cfg.roles:
        a(f's_mov_b32 s{sXr}, 0\ns_cmp_eq_u32 s{sX}, {cfg.rx0}\ns_cbranch_scc1 L_R')
        a(f's_mov_b32 s{sXr}, 1\ns_cmp_eq_u32 s{sX}, {cfg.rx1}\ns_cbranch_scc1 L_R')
        if cfg.r2: a(f's_mov_b32 s{sXr}, 2\ns_cmp_eq_u32 s{sX}, {cfg.rx2}\ns_cbranch_scc1 L_RVO')
    if cfg.r2:
        others = [x for x in range(8) if x not in (cfg.rx0, cfg.rx1, cfg.rx2)]
        ax, fx = cfg.ax or others[1:], cfg.fx or others[:1]
        R = lambda n: 'L_' + n if n in cfg.roles else 'L_idle'
        for i, x in enumerate(ax):
            a(f's_mov_b32 s{sT0}, {i}\ns_cmp_eq_u32 s{sX}, {x}\ns_cbranch_scc1 L_Atype')
        a(f's_cmp_lg_u32 s{sX}, {fx[0]}\ns_cbranch_scc1 L_idle')
        a(f's_lshr_b32 s{sH}, s{sR}, 1\ns_and_b32 s{sXr}, s{sR}, 1\ns_cmp_lt_u32 s{sR}, 28\ns_cbranch_scc1 {R("FF1")}')
        a('L_idle:')
        a('s_waitcnt vmcnt(0)\ns_barrier')
        init_done(a, 2, 3)
        a('s_branch L_end')
        a('L_Atype:')
        a(f's_and_b32 s{sH}, s{sR}, 7\ns_mov_b32 s{sXr}, s{sT0}\ns_cmp_ge_u32 s{sR}, 24\ns_cbranch_scc1 {R("FIN")}')
        a(f's_lshl_b32 s{sT0}, s{sT0}, 3\ns_add_u32 s{sH}, s{sH}, s{sT0}\ns_mov_b32 s{sXr}, 0\ns_cmp_ge_u32 s{sR}, 16\ns_cbranch_scc1 {R("VOX")}')
        a(f's_lshr_b32 s{sXr}, s{sR}, 3\ns_branch {R("QKX")}')
        assert cfg.nc_vox == 1 and cfg.nc_qkx == 2 and cfg.nc_ff1 == 2
        return
    others = [x for x in range(8) if x not in (cfg.rx0, cfg.rx1)]
    ax, fx = cfg.ax or others[2:], cfg.fx or others[:2]
    for i, x in enumerate(ax):
        a(f's_mov_b32 s{sT0}, {8 * i}\ns_cmp_eq_u32 s{sX}, {x}\ns_cbranch_scc1 L_Atype')
    for i, x in enumerate(fx):
        a(f's_mov_b32 s{sT0}, {i}\ns_cmp_eq_u32 s{sX}, {x}\ns_cbranch_scc1 L_Ftype')
    a('L_idle:')
    init_done(a, 2, 3)
    a('s_branch L_end')
    a('L_Atype:')
    a(f's_bfe_u32 s{sH}, s{sR}, 0x30001\ns_add_u32 s{sH}, s{sH}, s{sT0}\ns_and_b32 s{sXr}, s{sR}, 1')
    a(f's_cmp_ge_u32 s{sR}, 16\ns_cbranch_scc1 L_A2')
    a(f's_cmp_ge_u32 s{sXr}, {cfg.nc_qkx}\ns_cbranch_scc1 L_idle')
    a('s_branch ' + ('L_QKX' if 'QKX' in cfg.roles else 'L_idle'))
    a('L_A2:')
    a(f's_cmp_ge_u32 s{sXr}, {cfg.nc_vox}\ns_cbranch_scc1 L_idle')
    a('s_branch ' + ('L_VOX' if 'VOX' in cfg.roles else 'L_idle'))
    a('L_Ftype:')
    a(f's_cmp_ge_u32 s{sR}, 16\ns_cbranch_scc1 L_F2')
    a(f's_and_b32 s{sH}, s{sR}, 7\ns_lshr_b32 s{sXr}, s{sR}, 3\ns_lshl_b32 s{sT0}, s{sT0}, 1\ns_add_u32 s{sXr}, s{sXr}, s{sT0}')
    a('s_branch ' + ('L_FIN' if 'FIN' in cfg.roles else 'L_idle'))
    a('L_F2:')
    a(f's_cmp_ge_u32 s{sR}, 30\ns_cbranch_scc1 L_idle')
    a(f's_bfe_u32 s{sH}, s{sR}, 0x30001\ns_mul_i32 s{sT0}, s{sT0}, 7\ns_add_u32 s{sH}, s{sH}, s{sT0}\ns_and_b32 s{sXr}, s{sR}, 1')
    a(f's_cmp_ge_u32 s{sXr}, {cfg.nc_ff1}\ns_cbranch_scc1 L_idle')
    a('s_branch ' + ('L_FF1' if 'FF1' in cfg.roles else 'L_idle'))
```

```python
MB = 1 << 20
SL = 32768
XS = 4 * MB
CTL = 2 * MB
F_KX = CTL + 0x40000
F_UX = CTL + 0x42000
F_PX = CTL + 0x44000
F_H  = CTL + 0x46000
F_G  = CTL + 0x48000
TIM  = CTL + 0x2000
FTIM = CTL + 0x10000
GATE = CTL + 0x30000
PXM = 6 * MB
CAL = 76 * MB
KX = 10 * MB
KM = 26 * MB
PXX = 30 * MB
UM = 36 * MB
UX = 80 * MB
HB = 160 * MB
WS_BYTES = 256 * MB
D_INIT = 4
D_VOTE0 = 36
D_VOTE1 = 68
D_IMPURE = 100
```

```python
from core import *

XB = 0
XBS = 40960
sCp = sXr
sI = sStep
sXo, sXm = sCL, sCR
WB = 640 * 4096 * 2

def zero_flag(a, sval_addr, nwords=1):
    l = a.newlabel('zf')
    a(f's_cmp_lg_u32 s{sWave}, 1\ns_cbranch_scc1 {l}')
    a(f'v_mov_b32 v8, 0\nv_lshlrev_b32 v9, 2, v0\nv_add_u32 v9, s{sval_addr}, v9\ns_mov_b64 exec, {(1 << nwords) - 1}\nbuffer_store_dword v8, v9, {WS}, 0 offen sc1\ns_mov_b64 exec, -1')
    a(f'{l}:')

def near_par(a, cfg):
    a(f's_cmp_gt_u32 s{sT1}, s{sT0}\ns_cselect_b32 s{sPar}, ' + ('0x2000, 0' if cfg.force_par is None else '0, 0x2000'))

def x_setup(a, vXo, vt, nc, vXr):
    srd(a, 48, pX, 2048 * 1280)
    a(f'v_lshrrev_b32 v{vt}, 3, v0\nv_and_b32 v{vXo}, 7, v0\nv_xor_b32 v{vXo}, v{vXo}, v{vt}\nv_lshlrev_b32 v{vXo}, 4, v{vXo}\nv_mul_u32_u24 v{vt}, 1280, v{vt}\nv_add_u32 v{vXo}, v{vXo}, v{vt}')
    a(f's_lshr_b32 s{sT0}, s{sWave}, 1\ns_mul_i32 s{sT0}, s{sT0}, 10240\ns_and_b32 s{sT1}, s{sWave}, 1\ns_mul_i32 s{sT1}, s{sT1}, 640\ns_add_u32 s{sXo}, s{sT0}, s{sT1}')
    a(f's_mul_i32 s{sT0}, s{sCp}, {XBS}\ns_add_u32 s{sXo}, s{sXo}, s{sT0}')
    a(f's_mul_i32 s{sXm}, s{sWave}, 5120\ns_add_u32 s{sXm}, s{sXm}, {XB}')
    a(f'v_lshrrev_b32 v{vXr}, 4, v0\nv_and_b32 v{vt}, 7, v0\nv_xor_b32 v{vXr}, v{vXr}, v{vt}\nv_lshlrev_b32 v{vXr}, 4, v{vXr}\nv_lshl_add_u32 v{vXr}, v{vt}, 7, v{vXr}')
    a(f'v_bfe_u32 v{vt}, v0, 3, 1\nv_mul_u32_u24 v{vt}, 10240, v{vt}\nv_add_u32 v{vXr}, v{vXr}, v{vt}\nv_add_u32 v{vXr}, {XB}, v{vXr}\nv_xor_b32 v{vXr + 1}, 64, v{vXr}')

def x_dma1(a, vXo, nc, i):
    a(f's_add_u32 m0, s{sXm}, {896 * i}')
    a(f'buffer_load_dwordx4 v{vXo}, {T2}, s{sXo} offen offset:{128 * i} lds')
    if i == 4:
        a(f's_add_u32 s{sXo}, s{sXo}, {nc * XBS}')
        a(f's_add_u32 s{sT0}, s{sXm}, {XBS}\ns_sub_u32 s{sT1}, s{sXm}, {XBS}\ns_cmp_lt_u32 s{sXm}, {XB + XBS}\ns_cselect_b32 s{sXm}, s{sT0}, s{sT1}')

def x_dma(a, vXo, nc):
    for i in range(5): x_dma1(a, vXo, nc, i)

def project(a, vXr, buf, nbuf, accs, ntile, hooks={}):
    def rd(kk):
        b = buf + 8 * (kk % nbuf)
        a(f'ds_read_b128 {V(b, 4)}, v{vXr + (kk & 1)} offset:{(kk >> 1) * 1024}\nds_read_b128 {V(b + 4, 4)}, v{vXr + (kk & 1)} offset:{20480 + (kk >> 1) * 1024}')
    for kk in range(nbuf - 1): rd(kk)
    for kk in range(20):
        if kk + nbuf - 1 < 20: rd(kk + nbuf - 1)
        left = min(19, kk + nbuf - 1) - kk
        a(f's_waitcnt lgkmcnt({2 * left})')
        b = buf + 8 * (kk % nbuf)
        for tt in range(2):
            for t in range(ntile):
                d = accs[t][tt]
                a(f'v_mfma_f32_16x16x32_bf16 {V(d, 4)}, {A(80 * t + 4 * kk, 4)}, {V(b + 4 * tt, 4)}, {"0" if kk == 0 else V(d, 4)}')
        if kk in hooks: hooks[kk]()

def dma_hooks(a, vXo, nc, at=(1, 4, 7, 10, 13)):
    return {kk: (lambda i=i: x_dma1(a, vXo, nc, i)) for i, kk in enumerate(at)}

def toggle_xr(a, vXr, vt):
    a(f'v_add_u32 v{vt}, {XBS}, v{vXr}\nv_subrev_u32 v{vXr}, {XBS}, v{vXr}\nv_min_u32 v{vXr}, v{vXr}, v{vt}\nv_xor_b32 v{vXr + 1}, 64, v{vXr}')

def flag_store(a, vaddr, vval, sval, wave):
    l = a.newlabel('fs')
    a(f's_cmp_lg_u32 s{sWave}, {wave}\ns_cbranch_scc1 {l}')
    a(f'v_mov_b32 v{vval}, s{sval}\ns_mov_b64 exec, 1\nbuffer_store_dword v{vval}, v{vaddr}, {WS}, 0 offen sc1\ns_mov_b64 exec, -1')
    a(f'{l}:')

def spin_ge(a, vaddr, vF, sneed, sleep=4):
    top = a.newlabel('sp'); done = a.newlabel('spd')
    a(f's_mov_b32 s{sSpin}, s{sLim}')
    a(f'{top}:')
    a(f'buffer_load_dword v{vF}, v{vaddr}, {WS}, 0 offen sc1\ns_waitcnt vmcnt(0)')
    a(f'v_cmp_gt_u32 vcc, s{sneed}, v{vF}')
    a(f's_cbranch_vccz {done}')
    a(f's_sleep {sleep}')
    a(f's_sub_u32 s{sSpin}, s{sSpin}, 1\ns_cbranch_scc0 {top}\ns_mov_b32 s{sLim}, 0')
    a(f'{done}:')

def col_soff(stride, colmul, scol):
    def g(n):
        return lambda a: a(f's_lshl_b32 s{sT0}, s{sWave}, 4\ns_add_u32 s{sT0}, s{sT0}, {128 * n}\ns_mul_i32 s{sT0}, s{sT0}, {stride}\ns_mul_i32 s{sT1}, s{scol}, {colmul}\ns_add_u32 s{sT0}, s{sT0}, s{sT1}')
    return g

vA, vB, vRd, vRd2, vt, vo = 10, 11, 12, 13, 14, 15

def role_VOX(a, cfg):
    nc = cfg.nc_vox; nit = 64 // nc
    VBUF = 2 * XBS
    a('L_VOX:')
    a(f's_lshl_b32 s{sT0}, s{sH}, 1\ns_add_u32 s{sT0}, s{sT0}, s{sCp}\ns_lshl_b32 s{sT0}, s{sT0}, 7\ns_add_u32 s{sFl0}, s{sT0}, {F_UX}')
    zero_flag(a, sFl0)
    src_offsets(a, vA, vB, vt, 8192)
    a(f's_and_b32 s{sT2}, s{sWave}, 3\ns_lshl_b32 s{sT2}, s{sT2}, 1')
    tr_base(a, vRd, vt, sT2)
    vRdO = 16
    a(f'v_lshrrev_b32 v{vt}, 4, v0\nv_lshlrev_b32 v{vt}, 10, v{vt}\nv_sub_u32 v{vRdO}, v{vRd}, v{vt}')
    def rdv(n):
        def f(a, va):
            l = a.newlabel('vv')
            a(f's_cmp_ge_u32 s{sWave}, 4\ns_cbranch_scc1 {l}')
            std_reads(16 * n)(a, va)
            a(f'v_xor_b32 v{va}, 32, v{va}')
            std_reads(80 + 16 * n)(a, va)
            a(f'{l}:')
        return f
    def rdo(c):
        def f(a, va):
            l = a.newlabel('vo')
            a(f's_cmp_ge_u32 s{sWave}, 4\ns_cbranch_scc0 {l}')
            for e in range(2):
                if e: a(f'v_xor_b32 v{va}, 32, v{va}')
                for kk in range(4):
                    for h in range(2): a(f'ds_read_b64_tr_b16 {A(32 * c + 16 * e + 4 * kk + 2 * h, 2)}, v{va} offset:{kk * 8192 + h * 4096}')
            a(f'{l}:')
        return f
    chunks = [dict(pre=(lambda a: srd(a, 12, pWV, WB)) if n == 0 else None, soff=col_soff(8192, 256, sH)(n), stride=8192, reads=rdv(n)) for n in range(5)]
    def pre(a):
        srd(a, 12, pWO, WB); src_offsets(a, vA, vB, vt, 1280)
    so = lambda c: (lambda a: a(f's_lshl_b32 s{sT0}, s{sH}, 7\ns_lshl_b32 s{sT1}, s{sWave}, 4\ns_add_u32 s{sT0}, s{sT0}, s{sT1}\ns_mul_i32 s{sT0}, s{sT0}, 1280\ns_add_u32 s{sT0}, s{sT0}, {256 * c}'))
    chunks += [dict(pre=pre if c == 0 else None, soff=so(c), stride=1280, reads=rdo(c), var=lambda i: i & 1, vrd=vRdO) for c in range(5)]
    loader(a, chunks, vA, vB, vRd, vRd2, vt, vo)
    vXr, vL16, vNeg, vVw, vFa, vP1, vTmp, vXo = 2, 1, 4, 8, 9, 10, 12, 14
    vBuf = 16; vAcc = 48; vO = 80
    x_setup(a, vXo, vTmp, nc, vXr)
    x_dma(a, vXo, nc)
    tstamp(a, cfg, 1, 16, 17)
    wait_init(a, 16, 17); near_par(a, cfg)
    a(f'v_lshlrev_b32 v{vL16}, 4, v0\nv_mov_b32 v{vFa}, s{sFl0}\ns_mov_b32 s{sI}, 0')
    a(f's_cmp_ge_u32 s{sWave}, 4\ns_cbranch_scc1 L_VOX_hi')
    for i in range(4): a(f'v_mov_b32 v{vNeg + i}, -1')
    a(f's_lshl_b32 s{sT0}, s{sWave}, 10\ns_add_u32 s{sT0}, s{sT0}, {VBUF}\nv_add_u32 v{vVw}, s{sT0}, v{vL16}')
    a(f'v_and_b32 v{vP1}, 15, v0\nv_lshlrev_b32 v{vP1}, 4, v{vP1}\ns_lshl_b32 s{sT0}, s{sH}, 8\ns_lshl_b32 s{sT1}, s{sWave}, 22\ns_add_u32 s{sT0}, s{sT0}, s{sT1}\nv_add_u32 v{vP1}, s{sT0}, v{vP1}')
    a(f'v_lshrrev_b32 v{vTmp}, 4, v0\nv_lshl_add_u32 v{vP1}, v{vTmp}, 20, v{vP1}\nv_lshrrev_b32 v{vTmp}, 5, v0\nv_lshlrev_b32 v{vTmp}, 13, v{vTmp}\nv_xor_b32 v{vTmp}, s{sPar}, v{vTmp}\nv_add_u32 v{vP1}, v{vP1}, v{vTmp}')
    a(f's_lshl_b32 s{sSeg2}, s{sCp}, 14\ns_add_u32 s{sSeg2}, s{sSeg2}, {UM}')
    a(f's_cmp_lt_u32 s{sWave}, 2\ns_cselect_b32 s{sFl1}, {32 * MB}, 0')
    a('L_VOX_lo:')
    fstamp(a, cfg, 0)
    a('s_waitcnt vmcnt(0) lgkmcnt(0)')
    fstamp(a, cfg, 1)
    a('s_barrier')
    fstamp(a, cfg, 2)
    a(f's_sub_u32 s{sT2}, s{sI}, 1\ns_sub_u32 s{sT3}, s{sI}, 2\ns_cmp_le_u32 s{sI}, {cfg.early_pub}\ns_cselect_b32 s{sT2}, s{sT2}, s{sT3}\ns_max_i32 s{sT2}, s{sT2}, 0')
    flag_store(a, vFa, vTmp + 1, sT2, 3)
    a(f's_cmp_ge_u32 s{sI}, {nit}\ns_cbranch_scc1 L_VOX_fin')
    hk = dma_hooks(a, vXo, nc, (4, 6, 8, 10, 12))
    hk[0] = lambda: a(f'buffer_store_dwordx4 {V(vNeg, 4)}, v{vP1}, {WS}, s{sSeg2} offen sc1\ns_add_u32 s{sT2}, s{sSeg2}, {16 * MB}')
    hk[1] = lambda: a(f'buffer_store_dwordx4 {V(vNeg, 4)}, v{vP1}, {WS}, s{sT2} offen sc1\ns_add_u32 s{sT2}, s{sSeg2}, s{sFl1}')
    hk[2] = lambda: a(f'buffer_store_dwordx4 {V(vNeg, 4)}, v{vP1}, {WS}, s{sT2} offen sc1\ns_add_u32 s{sSeg2}, s{sSeg2}, {nc * 16384}')
    project(a, vXr, vBuf, 4, [[vAcc, vAcc + 8], [vAcc + 4, vAcc + 12]], 2, hk)
    fstamp(a, cfg, 4)
    toggle_xr(a, vXr, vTmp)
    for q in range(8): a(f'v_cvt_pk_bf16_f32 v{vO + q}, v{vAcc + 2 * q}, v{vAcc + 2 * q + 1}')
    a(f'ds_write_b128 v{vVw}, {V(vO, 4)}\nds_write_b128 v{vVw}, {V(vO + 4, 4)} offset:4096')
    a(f'v_xor_b32 v{vVw}, 0x2000, v{vVw}')
    a(f's_add_u32 s{sI}, s{sI}, 1\ns_branch L_VOX_lo')
    a('L_VOX_fin:')
    a('s_barrier')
    flag_store(a, vFa, vTmp + 1, sI, 3)
    tstamp(a, cfg, 3, vt, vo)
    fdump(a, cfg, vt, vo)
    a('s_branch L_end')
    assert VBUF % 0x4000 == 0
    a('L_VOX_hi:')
    if cfg.vox_prio: a('s_setprio 1')
    a(f'v_add_u32 v{vVw}, {VBUF}, v{vL16}')
    a(f's_and_b32 s{sSeg}, s{sWave}, 3\ns_lshl_b32 s{sSeg}, s{sSeg}, 22\ns_lshl_b32 s{sT0}, s{sCp}, 15\ns_add_u32 s{sSeg}, s{sSeg}, s{sT0}\ns_lshl_b32 s{sT0}, s{sH}, 10\ns_add_u32 s{sSeg}, s{sSeg}, s{sT0}\ns_add_u32 s{sSeg}, s{sSeg}, {UX}')
    a('s_barrier')
    x_dma(a, vXo, nc)
    a(f's_mov_b32 s{sI}, 1\ns_waitcnt vmcnt(0)')
    a('L_VOX_hi_loop:')
    fstamp(a, cfg, 0)
    l = a.newlabel('ve')
    a(f's_waitcnt vmcnt(5)\ns_cmp_gt_u32 s{sI}, {cfg.early_pub}\ns_cbranch_scc1 {l}\ns_waitcnt vmcnt(0)\n{l}:')
    fstamp(a, cfg, 1)
    a('s_barrier')
    fstamp(a, cfg, 2)
    for i in range(8): a(f'ds_read_b128 {V(vBuf + 4 * i, 4)}, v{vVw} offset:{1024 * i}')
    a(f'v_xor_b32 v{vVw}, 0x2000, v{vVw}\ns_mov_b32 s{sT2}, s{sSeg}')
    def ep(t):
        o = vO + 4 * (t & 1); b = vAcc + 8 * (t % 3)
        for q in range(4): a(f'v_cvt_pk_bf16_f32 v{o + q}, v{b + 2 * q}, v{b + 2 * q + 1}')
        a(f'buffer_store_dwordx4 {V(o, 4)}, v{vL16}, {WS}, s{sT2} offen sc1{cfg.ux_st}')
        if t < 9: a(f's_add_u32 s{sT2}, s{sT2}, {2 * MB if t % 2 == 0 else 14 * MB}')
        if t < 5: x_dma1(a, vXo, nc, t)
    for t in range(10):
        if t == 0: a('s_waitcnt lgkmcnt(0)')
        for ks in range(4):
            for tt in range(2):
                d = vAcc + 8 * (t % 3) + 4 * tt
                a(f'v_mfma_f32_16x16x32_bf16 {V(d, 4)}, {V(vBuf + 16 * tt + 4 * ks, 4)}, {A(16 * t + 4 * ks, 4)}, {"0" if ks == 0 else V(d, 4)}')
        if t > 0: ep(t - 1)
    ep(9)
    fstamp(a, cfg, 4)
    a(f's_add_u32 s{sSeg}, s{sSeg}, {nc * 32768}\ns_add_u32 s{sI}, s{sI}, 1')
    a(f's_cmp_le_u32 s{sI}, {nit}\ns_cbranch_scc1 L_VOX_hi_loop')
    a('s_waitcnt vmcnt(0)\ns_barrier')
    fdump(a, cfg, vt, vo)
    a('s_branch L_end')

def gate_wait(a, vaddr, vF):
    a(f'v_and_b32 v{vaddr}, 31, v0\nv_lshlrev_b32 v{vaddr}, 7, v{vaddr}\nv_add_u32 v{vaddr}, {F_G}, v{vaddr}\ns_mov_b32 s{sT2}, 1')
    spin_ge(a, vaddr, vF, sT2)

def role_FF1(a, cfg):
    nc = cfg.nc_ff1; nit = 64 // nc
    FB = 640 * 1728 * 2
    a('L_FF1:')
    a(f's_lshl_b32 s{sT0}, s{sH}, 1\ns_add_u32 s{sT0}, s{sT0}, s{sCp}\ns_lshl_b32 s{sT0}, s{sT0}, 7\ns_add_u32 s{sFl0}, s{sT0}, {F_H}')
    zero_flag(a, sFl0)
    src_offsets(a, vA, vB, vt, 3456); tr_base(a, vRd, vt, sWave)
    chunks = []
    for m, p in enumerate((pWG, pWU)):
        chunks += [dict(pre=(lambda a, p=p: srd(a, 12, p, FB)) if n == 0 else None, soff=col_soff(3456, 256, sH)(n), stride=3456, reads=std_reads(80 * m + 16 * n)) for n in range(5)]
    loader(a, chunks, vA, vB, vRd, vRd2, vt, vo)
    vXr, vL16, vFa, vGa, vG, vTmp, vXo = 2, 1, 9, 8, 4, 12, 6
    vBuf = 16; vAcc = 48; vO = 64
    x_setup(a, vXo, vTmp, nc, vXr)
    x_dma(a, vXo, nc)
    tstamp(a, cfg, 1, vt, vo)
    wait_init(a, vt, vo)
    gate_wait(a, vGa, vTmp)
    a(f'v_lshlrev_b32 v{vL16}, 4, v0\nv_mov_b32 v{vFa}, s{sFl0}')
    a(f'v_and_b32 v{vGa}, 15, v0\nv_lshlrev_b32 v{vGa}, 2, v{vGa}')
    a(f's_lshl_b32 s{sSeg2}, s{sCp}, 7\ns_add_u32 s{sSeg2}, s{sSeg2}, {GATE}')
    a(f's_lshl_b32 s{sT0}, s{sH}, 3\ns_add_u32 s{sT0}, s{sT0}, s{sWave}\ns_lshl_b32 s{sSeg}, s{sT0}, 10\ns_mul_i32 s{sT1}, s{sCp}, {112 * 1024}\ns_add_u32 s{sSeg}, s{sSeg}, s{sT1}\ns_add_u32 s{sSeg}, s{sSeg}, {HB}')
    a(f's_mov_b32 s{sI}, 0')
    a('L_FF1_loop:')
    fstamp(a, cfg, 0)
    a('s_waitcnt vmcnt(1)')
    fstamp(a, cfg, 1)
    a('s_barrier')
    fstamp(a, cfg, 2)
    a(f's_max_u32 s{sT2}, s{sI}, 1\ns_sub_u32 s{sT2}, s{sT2}, 1')
    flag_store(a, vFa, vTmp + 1, sT2, 0)
    hk = dma_hooks(a, vXo, nc, (2, 5, 8, 11, 14))
    hk[0] = lambda: a(f'buffer_load_dword v{vG}, v{vGa}, {WS}, s{sSeg2} offen sc1\nbuffer_load_dword v{vG + 1}, v{vGa}, {WS}, s{sSeg2} offen offset:64 sc1\ns_add_u32 s{sSeg2}, s{sSeg2}, {nc * 128}')
    project(a, vXr, vBuf, 4, [[vAcc, vAcc + 4], [vAcc + 8, vAcc + 12]], 2, hk)
    fstamp(a, cfg, 4)
    toggle_xr(a, vXr, vTmp)
    a(f's_waitcnt vmcnt(5)\nv_sub_f32 v{vG}, 1.0, v{vG}\nv_sub_f32 v{vG + 1}, 1.0, v{vG + 1}')
    for tt in range(2):
        for i in range(4): a(f'v_mul_f32 v{vAcc + 4 * tt + i}, v{vAcc + 4 * tt + i}, v{vG + tt}')
    for q in range(8): a(f'v_mul_f32 v{vAcc + q}, v{vAcc + q}, v{vAcc + 8 + q}')
    for q in range(4): a(f'v_cvt_pk_bf16_f32 v{vO + q}, v{vAcc + 2 * q}, v{vAcc + 2 * q + 1}')
    a(f'buffer_store_dwordx4 {V(vO, 4)}, v{vL16}, {WS}, s{sSeg} offen sc1')
    a(f's_add_u32 s{sSeg}, s{sSeg}, {nc * 112 * 1024}\ns_add_u32 s{sI}, s{sI}, 1')
    a(f's_cmp_lt_u32 s{sI}, {nit}\ns_cbranch_scc1 L_FF1_loop')
    a('s_waitcnt vmcnt(0)\ns_barrier')
    flag_store(a, vFa, vTmp + 1, sI, 0)
    tstamp(a, cfg, 3, vt, vo)
    fdump(a, cfg, vt, vo)
    a('s_branch L_end')

def role_QKX(a, cfg):
    nc = cfg.nc_qkx; nit = 64 // nc; LA = cfg.la; NS = LA + 1
    QB = 2 * XBS
    assert QB + NS * 16384 <= 163840
    a('L_QKX:')
    a(f's_lshl_b32 s{sT0}, s{sH}, 1\ns_add_u32 s{sT0}, s{sT0}, s{sCp}\ns_lshl_b32 s{sT0}, s{sT0}, 7\ns_add_u32 s{sFl1}, s{sT0}, {F_PX}\ns_add_u32 s{sFl0}, s{sT0}, {F_KX}')
    zero_flag(a, sFl0); zero_flag(a, sFl1, 2)
    src_offsets(a, vA, vB, vt, 8192)
    a(f's_and_b32 s{sT2}, s{sWave}, 3\ns_lshl_b32 s{sT2}, s{sT2}, 1')
    tr_base(a, vRd, vt, sT2)
    def rd(m, n):
        def f(a, va):
            l = a.newlabel('qk')
            a(f's_cmp_ge_u32 s{sWave}, 4\ns_cbranch_scc{1 if m == 0 else 0} {l}')
            std_reads(16 * n)(a, va)
            a(f'v_xor_b32 v{va}, 32, v{va}')
            std_reads(80 + 16 * n)(a, va)
            a(f'{l}:')
        return f
    chunks = []
    for m, p in enumerate((pWK, pWQ)):
        chunks += [dict(pre=(lambda a, p=p: srd(a, 12, p, WB)) if n == 0 else None, soff=col_soff(8192, 256, sH)(n), stride=8192, reads=rd(m, n)) for n in range(5)]
    loader(a, chunks, vA, vB, vRd, vRd2, vt, vo)
    vXr, vL16, vNeg, vFa, vQw, vTmp, vTmp2, vXo = 2, 1, 4, 8, 9, 12, 13, 0
    vKm, vGa, vPm, vPf = 10, 11, 14, 15
    vBuf = 16; vAcc = 48; vO = 64; vMask = 72
    vS = 84
    x_setup(a, vO, vTmp, nc, vXr)
    x_dma(a, vO, nc)
    tstamp(a, cfg, 1, vt, vo)
    wait_init(a, vt, vo)
    a(f'v_lshlrev_b32 v{vL16}, 4, v0\nv_mov_b32 v{vFa}, s{sFl0}')
    for i in range(4): a(f'v_mov_b32 v{vNeg + i}, -1')
    sQw, sQr, sKmP, sAt = sbL, sbR, sbO, sCO
    a(f's_lshr_b32 s{sT0}, s{sWave}, 2\ns_lshl_b32 s{sT0}, s{sT0}, 13\ns_and_b32 s{sT1}, s{sWave}, 3\ns_lshl_b32 s{sT1}, s{sT1}, 10\ns_add_u32 s{sT0}, s{sT0}, s{sT1}\ns_add_u32 s{sT0}, s{sT0}, {QB}\nv_add_u32 v{vQw}, s{sT0}, v{vL16}')
    a(f's_mov_b32 s{sQw}, 0\ns_mov_b32 s{sQr}, 0')
    a(f's_lshl_b32 s{sSeg}, s{sH}, 19\ns_lshl_b32 s{sT0}, s{sCp}, 13\ns_add_u32 s{sSeg}, s{sSeg}, s{sT0}\ns_add_u32 s{sSeg}, s{sSeg}, s{sT1}\ns_add_u32 s{sSeg}, s{sSeg}, {KX}')
    a(f's_lshl_b32 s{sKmP}, s{sH}, 11\ns_lshl_b32 s{sT0}, s{sCp}, 16\ns_add_u32 s{sKmP}, s{sKmP}, s{sT0}\ns_add_u32 s{sKmP}, s{sKmP}, {KM}')
    a(f's_mov_b32 s{sAt}, s{sCp}')
    a(f'v_and_b32 v{vKm}, 7, v0\nv_lshlrev_b32 v{vKm}, 4, v{vKm}\nv_lshrrev_b32 v{vTmp}, 4, v0\nv_lshl_add_u32 v{vKm}, v{vTmp}, 7, v{vKm}\ns_lshl_b32 s{sT0}, s{sH}, 11\ns_add_u32 s{sT0}, s{sT0}, {KM}\nv_add_u32 v{vKm}, s{sT0}, v{vKm}')
    a(f's_lshl_b32 s{sT0}, s{sWave}, 2\ns_add_u32 s{sT0}, s{sT0}, s{sFl1}\nv_mov_b32 v{vPf}, s{sT0}')
    a(f'v_and_b32 v{vPm}, 15, v0\nv_lshlrev_b32 v{vPm}, 4, v{vPm}\ns_lshr_b32 s{sT0}, s{sH}, 2\ns_lshl_b32 s{sT0}, s{sT0}, 11\ns_and_b32 s{sT1}, s{sH}, 3\ns_lshl_b32 s{sT1}, s{sT1}, 8\ns_add_u32 s{sT0}, s{sT0}, s{sT1}')
    a(f's_lshl_b32 s{sT1}, s{sWave}, 10\ns_add_u32 s{sT0}, s{sT0}, s{sT1}\ns_add_u32 s{sT0}, s{sT0}, {PXM}\nv_add_u32 v{vPm}, s{sT0}, v{vPm}')
    a(f's_lshl_b32 s{sT0}, s{sWave}, 4\nv_and_b32 v{vTmp}, 15, v0\nv_add_u32 v{vTmp}, s{sT0}, v{vTmp}\nv_lshrrev_b32 v{vTmp2}, 4, v0\nv_lshlrev_b32 v{vTmp2}, 2, v{vTmp2}\nv_sub_u32 v{vTmp}, v{vTmp}, v{vTmp2}')
    a(f'v_mov_b32 v{vS}, 0xff7fffff\nv_mov_b32 v{vS + 1}, 0')
    for t in range(2):
        for i in range(4):
            a(f'v_cmp_le_i32 vcc, {16 * t + i}, v{vTmp}\nv_cndmask_b32 v{vMask + 4 * t + i}, v{vS}, v{vS + 1}, vcc')
    a(f'v_cmp_le_u32 vcc, 32, v0')
    for i in range(4): a(f'v_cndmask_b32 v{vMask + 8 + i}, v{vS}, v{vS + 1}, vcc')
    a(f's_mov_b32 s{sC}, {f2u(128 ** -0.5 * 1.4426950408889634)}')
    a(f's_mov_b32 s{sEx}, 0\ns_mov_b32 s{sEx + 1}, 0xffff')
    a(f'v_mov_b32 v{vXo}, v{vO}')
    a(f's_mov_b32 s{sI}, 0')
    a('L_QKX_loop:')
    a(f's_cmp_ge_u32 s{sI}, {nit}\ns_cbranch_scc1 L_QKX_att')
    a('s_waitcnt vmcnt(0)\ns_barrier')
    l = a.newlabel('kp')
    a(f's_cmp_lg_u32 s{sWave}, 4\ns_cbranch_scc1 {l}')
    a(f'buffer_store_dwordx4 {V(vNeg, 4)}, v{vL16}, {WS}, s{sKmP} offen sc1\nbuffer_store_dwordx4 {V(vNeg, 4)}, v{vL16}, {WS}, s{sKmP} offen offset:1024 sc1')
    a(f'{l}:')
    a(f's_add_u32 s{sKmP}, s{sKmP}, {nc * 65536}')
    project(a, vXr, vBuf, 4, [[vAcc, vAcc + 8], [vAcc + 4, vAcc + 12]], 2, dma_hooks(a, vXo, nc))
    toggle_xr(a, vXr, vTmp)
    a(f'v_add_u32 v{vTmp}, s{sQw}, v{vQw}')
    for q in range(8): a(f'v_cvt_pk_bf16_f32 v{vO + q}, v{vAcc + 2 * q}, v{vAcc + 2 * q + 1}')
    a(f'ds_write_b128 v{vTmp}, {V(vO, 4)}\nds_write_b128 v{vTmp}, {V(vO + 4, 4)} offset:4096')
    l = a.newlabel('ks')
    a(f's_cmp_ge_u32 s{sWave}, 4\ns_cbranch_scc1 {l}')
    a(f's_add_u32 s{sT0}, s{sSeg}, 4096\nbuffer_store_dwordx4 {V(vO, 4)}, v{vL16}, {WS}, s{sSeg} offen sc1\nbuffer_store_dwordx4 {V(vO + 4, 4)}, v{vL16}, {WS}, s{sT0} offen sc1')
    a(f'{l}:')
    a(f's_add_u32 s{sSeg}, s{sSeg}, {nc * 8192}')
    a(f's_add_u32 s{sQw}, s{sQw}, 16384\ns_cmp_ge_u32 s{sQw}, {NS * 16384}\ns_cselect_b32 s{sQw}, 0, s{sQw}')
    a(f's_add_u32 s{sT3}, s{sI}, 1')
    a('s_waitcnt vmcnt(0) lgkmcnt(0)\ns_barrier')
    flag_store(a, vFa, vTmp + 1, sT3, 7)
    a('L_QKX_att:')
    a(f's_cmp_lt_u32 s{sI}, {LA}\ns_cbranch_scc1 L_QKX_next')
    a(f's_cmp_ge_u32 s{sWave}, 2\ns_cbranch_scc1 L_QKX_next')
    l = a.newlabel('gw')
    a(f's_cmp_lg_u32 s{sI}, {LA}\ns_cbranch_scc1 {l}')
    a(f'v_bfe_u32 v{vGa}, v{vL16}, 4, 5\nv_lshlrev_b32 v{vGa}, 7, v{vGa}\nv_add_u32 v{vGa}, {F_G}, v{vGa}\ns_mov_b32 s{sT2}, 1')
    spin_ge(a, vGa, vTmp, sT2)
    a(f'v_bfe_u32 v{vGa}, v{vL16}, 4, 4\nv_lshlrev_b32 v{vGa}, 2, v{vGa}\ns_lshl_b32 s{sT0}, s{sWave}, 6\ns_add_u32 s{sT0}, s{sT0}, {GATE}\nv_add_u32 v{vGa}, s{sT0}, v{vGa}')
    a(f'{l}:')
    vQ, vK0, vK1, vKM, vG = vBuf, vBuf + 16, vAcc, vBuf + 16, vO
    T0, T1_, M_ = vS, vS + 4, vS + 8
    a(f's_lshl_b32 s{sT0}, s{sAt}, 7\nbuffer_load_dword v{vG}, v{vGa}, {WS}, s{sT0} offen sc1')
    a(f's_add_u32 s{sT0}, s{sQr}, {QB}\nv_add_u32 v{vTmp}, s{sT0}, v{vL16}\ns_lshl_b32 s{sT1}, s{sWave}, 12\nv_add_u32 v{vTmp2}, s{sT1}, v{vTmp}')
    for ks in range(4):
        a(f'ds_read_b128 {V(vQ + 4 * ks, 4)}, v{vTmp2} offset:{8192 + 1024 * ks}\nds_read_b128 {V(vK0 + 4 * ks, 4)}, v{vTmp} offset:{1024 * ks}\nds_read_b128 {V(vK1 + 4 * ks, 4)}, v{vTmp} offset:{4096 + 1024 * ks}')
    for ks in range(4):
        a(f's_waitcnt lgkmcnt({9 - 3 * ks})')
        a(f'v_mfma_f32_16x16x32_bf16 {V(T0, 4)}, {V(vK0 + 4 * ks, 4)}, {V(vQ + 4 * ks, 4)}, {V(vMask, 4) if ks == 0 else V(T0, 4)}')
        a(f'v_mfma_f32_16x16x32_bf16 {V(T1_, 4)}, {V(vK1 + 4 * ks, 4)}, {V(vQ + 4 * ks, 4)}, {V(vMask + 4, 4) if ks == 0 else V(T1_, 4)}')
    a(f's_lshl_b32 s{sT2}, s{sAt}, 16\ns_nop 7')
    poll(a, [f'buffer_load_dwordx4 {V(vKM + 4 * ks, 4)}, v{vKm}, {WS}, s{sT2} offen offset:{512 * ks} sc1' for ks in range(4)], range(vKM, vKM + 16), vTmp, sleep=cfg.km_sleep)
    for ks in range(4):
        a(f'v_mfma_f32_16x16x32_bf16 {V(M_, 4)}, {V(vKM + 4 * ks, 4)}, {V(vQ + 4 * ks, 4)}, {V(vMask + 8, 4) if ks == 0 else V(M_, 4)}')
    mx, t2 = vTmp, vTmp2
    def allred(op):
        a(f'v_mov_b32 v{t2}, v{mx}\nv_permlane32_swap_b32 v{mx}, v{t2}\n{op} v{mx}, v{mx}, v{t2}')
        a(f'v_mov_b32 v{t2}, v{mx}\nv_permlane16_swap_b32 v{mx}, v{t2}\n{op} v{mx}, v{mx}, v{t2}')
    a(f'v_max_f32 v{mx}, v{vS}, v{vS + 1}')
    for i in range(2, 12, 2): a(f'v_max3_f32 v{mx}, v{mx}, v{vS + i}, v{vS + i + 1}')
    allred('v_max_f32')
    a(f'v_mul_f32 v{mx}, s{sC}, v{mx}')
    for i in range(12): a(f'v_fma_f32 v{vS + i}, v{vS + i}, s{sC}, -v{mx}')
    for i in range(12): a(f'v_exp_f32 v{vS + i}, v{vS + i}')
    a(f'v_add_f32 v{mx}, v{vS}, v{vS + 1}')
    for i in range(2, 12): a(f'v_add_f32 v{mx}, v{mx}, v{vS + i}')
    allred('v_add_f32')
    a(f'v_rcp_f32 v{mx}, v{mx}\nv_mul_f32 v{mx}, v{mx}, v{vG}')
    for i in range(12): a(f'v_mul_f32 v{vS + i}, v{vS + i}, v{mx}')
    for q in range(6): a(f'v_cvt_pk_bf16_f32 v{vS + q}, v{vS + 2 * q}, v{vS + 2 * q + 1}')
    a(f'v_permlane16_swap_b32 v{vS + 4}, v{vS + 6}\nv_permlane16_swap_b32 v{vS + 5}, v{vS + 7}')
    a(f's_lshl_b32 s{sT0}, s{sH}, 1\ns_add_u32 s{sT0}, s{sT0}, s{sWave}\ns_lshl_b32 s{sT0}, s{sT0}, 10\ns_add_u32 s{sT0}, s{sT0}, s{sT2}\ns_add_u32 s{sT0}, s{sT0}, {PXX}\ns_lshl_b32 s{sT1}, s{sAt}, 14')
    a(f'buffer_store_dwordx4 {V(vS, 4)}, v{vL16}, {WS}, s{sT0} offen sc1')
    a(f's_mov_b64 exec, s[{sEx}:{sEx + 1}]\nbuffer_store_dwordx4 {V(vS + 4, 4)}, v{vPm}, {WS}, s{sT1} offen sc1')
    a(f's_sub_u32 s{sT0}, s{sI}, {LA - 1}\ns_mov_b64 exec, 1\nv_mov_b32 v{vTmp}, s{sT0}\ns_waitcnt vmcnt(0)\nbuffer_store_dword v{vTmp}, v{vPf}, {WS}, 0 offen sc1\ns_mov_b64 exec, -1')
    a(f's_add_u32 s{sAt}, s{sAt}, {nc}')
    a(f's_add_u32 s{sQr}, s{sQr}, 16384\ns_cmp_ge_u32 s{sQr}, {NS * 16384}\ns_cselect_b32 s{sQr}, 0, s{sQr}')
    a('L_QKX_next:')
    a(f's_add_u32 s{sI}, s{sI}, 1\ns_cmp_lt_u32 s{sI}, {nit + LA}\ns_cbranch_scc1 L_QKX_loop')
    tstamp(a, cfg, 3, vt, vo)
    a('s_branch L_end')

def role_FIN(a, cfg):
    NG = 4
    a('L_FIN:')
    a(f's_lshl_b32 s{sJ}, s{sCp}, 3\ns_add_u32 s{sJ}, s{sJ}, s{sH}\ns_lshl_b32 s{sT0}, s{sJ}, 7\ns_add_u32 s{sFl0}, s{sT0}, {F_G}')
    zero_flag(a, sFl0)
    srd(a, 48, pX, 2048 * 1280); srd(a, 12, pGW, 1280)
    a(f'v_and_b32 v2, 7, v0\nv_lshlrev_b32 v2, 4, v2\nv_lshrrev_b32 v3, 3, v0\nv_mul_u32_u24 v4, 1280, v3\nv_add_u32 v4, v4, v2')
    a(f's_lshl_b32 s{sT2}, s{sJ}, 3\ns_add_u32 s{sT2}, s{sT2}, s{sWave}\ns_mul_i32 s{sT0}, s{sT2}, 10240')
    for i in range(10):
        a(f'buffer_load_dwordx4 {V(16 + 4 * i, 4)}, v4, {T2}, s{sT0} offen offset:{128 * i}\nbuffer_load_dwordx4 {V(56 + 4 * i, 4)}, v2, {T1}, 0 offen offset:{128 * i}')
    a('v_mov_b32 v5, 0\ns_waitcnt vmcnt(0)')
    for i in range(40): a(f'v_dot2_f32_bf16 v5, v{16 + i}, v{56 + i}, v5')
    a('s_nop 2')
    a('v_add_f32_dpp v5, v5, v5 quad_perm:[1,0,3,2] row_mask:0xf bank_mask:0xf\nv_add_f32_dpp v5, v5, v5 quad_perm:[2,3,0,1] row_mask:0xf bank_mask:0xf\nv_add_f32_dpp v5, v5, v5 row_half_mirror row_mask:0xf bank_mask:0xf')
    a(f'v_mul_f32 v5, {hex(f2u(-1.4426950408889634))}, v5\nv_exp_f32 v5, v5\nv_add_f32 v5, 1.0, v5\nv_rcp_f32 v5, v5')
    a(f'v_lshlrev_b32 v3, 2, v3\ns_lshl_b32 s{sT2}, s{sT2}, 5\ns_add_u32 s{sT2}, s{sT2}, {GATE}')
    a(f's_mov_b32 exec_lo, 0x01010101\ns_mov_b32 exec_hi, 0x01010101\nbuffer_store_dword v5, v3, {WS}, s{sT2} offen sc1\ns_mov_b64 exec, -1')
    a(f's_waitcnt vmcnt(0)\ns_barrier\nv_mov_b32 v6, s{sFl0}\ns_mov_b32 s{sT2}, 1')
    flag_store(a, 6, 7, sT2, 1)
    src_offsets(a, vA, vB, vt, 1280)
    a(f'v_bfe_u32 v{vRd}, v0, 2, 3\nv_lshlrev_b32 v{vRd}, 5, v{vRd}\nv_and_b32 v{vt}, 3, v0\nv_lshl_add_u32 v{vRd}, v{vt}, 3, v{vRd}\nv_lshrrev_b32 v{vt}, 2, v0\nv_lshl_add_u32 v{vRd}, v{vt}, 8, v{vRd}')
    a(f's_and_b32 s{sT0}, s{sWave}, 3\ns_lshl_b32 s{sT0}, s{sT0}, 13\nv_add_u32 v{vRd}, s{sT0}, v{vRd}')
    def rd(n):
        def f(a, va):
            l = a.newlabel('wd')
            a(f's_cmp_ge_u32 s{sWave}, 4\ns_cbranch_scc{1 if n % 2 == 0 else 0} {l}')
            for t in range(5):
                a(f'v_xor_b32 v{vo}, {32 * t}, v{va}')
                for h in range(2): a(f'ds_read_b64_tr_b16 {A(20 * (n // 2) + 4 * t + 2 * h, 2)}, v{vo} offset:{4096 * h}')
            a(f'{l}:')
        return f
    chunks = [dict(pre=(lambda a: srd(a, 12, pWD, 1728 * 1280)) if n == 0 else None, soff=col_soff(1280, 160, sH)(n), stride=1280, reads=rd(n), var=lambda i: i & 1) for n in range(14)]
    loader(a, chunks, vA, vB, vRd, vRd2, vt, vo)
    tstamp(a, cfg, 1, vt, vo)
    wait_init(a, vt, vo); near_par(a, cfg)
    srd(a, 12, pOUT, 2048 * 1280)
    vL16, vFh, vFu, vFp, vUm, vUm2, vRr, vOo, vTmp, vRw = 1, 2, 3, 4, 5, 6, 7, 8, 9, 10
    vAcc = 12; vBuf = 32
    acc = lambda t, tt: V(vAcc + 4 * t, 4) if tt == 0 else A(140 + 4 * t, 4)
    sS = sI
    a(f'v_lshlrev_b32 v{vL16}, 4, v0')
    cpar = lambda nc: f's_and_b32 s{sT1}, s{sCp}, {nc - 1}'
    a(cpar(cfg.nc_ff1)); a(f's_lshl_b32 s{sT1}, s{sT1}, 7\ns_add_u32 s{sT1}, s{sT1}, {F_H}\nv_min_u32 v{vFh}, 13, v0\nv_lshlrev_b32 v{vFh}, 8, v{vFh}\nv_add_u32 v{vFh}, s{sT1}, v{vFh}')
    a(cpar(cfg.nc_vox)); a(f's_lshl_b32 s{sT1}, s{sT1}, 7\ns_lshl_b32 s{sT0}, s{sWave}, 10\ns_add_u32 s{sT1}, s{sT1}, s{sT0}\ns_add_u32 s{sT1}, s{sT1}, {F_UX}\nv_and_b32 v{vFu}, 3, v0\nv_lshlrev_b32 v{vFu}, 8, v{vFu}\nv_add_u32 v{vFu}, s{sT1}, v{vFu}')
    a(cpar(cfg.nc_qkx)); a(f's_lshl_b32 s{sT1}, s{sT1}, 7\ns_lshl_b32 s{sT0}, s{sWave}, 10\ns_add_u32 s{sT1}, s{sT1}, s{sT0}\ns_add_u32 s{sT1}, s{sT1}, {F_PX}')
    a(f'v_bfe_u32 v{vFp}, v0, 1, 2\nv_lshlrev_b32 v{vFp}, 8, v{vFp}\nv_and_b32 v{vTmp}, 1, v0\nv_lshl_add_u32 v{vFp}, v{vTmp}, 2, v{vFp}\nv_add_u32 v{vFp}, s{sT1}, v{vFp}')
    a(f's_lshl_b32 s{sT0}, s{sWave}, 10\nv_add_u32 v{vUm}, s{sT0}, v{vL16}')
    a(f's_mul_i32 s{sT0}, s{sWave}, 10240\nv_add_u32 v{vRw}, s{sT0}, v{vL16}')
    a(f's_lshl_b32 s{sT0}, s{sWave}, 6\nv_add_u32 v{vTmp}, s{sT0}, v0\nv_mul_u32_u24 v{vRr}, 6554, v{vTmp}\nv_lshrrev_b32 v{vRr}, 16, v{vRr}')
    a(f'v_mul_u32_u24 v{vOo}, 10, v{vRr}\nv_sub_u32 v{vTmp}, v{vTmp}, v{vOo}')
    a(f'v_mul_u32_u24 v{vOo}, 1280, v{vRr}\nv_lshl_add_u32 v{vOo}, v{vTmp}, 4, v{vOo}\ns_mul_i32 s{sT0}, s{sH}, 160\nv_add_u32 v{vOo}, s{sT0}, v{vOo}')
    a(f'v_lshrrev_b32 v{vUm2}, 4, v{vRr}\nv_and_b32 v{vRr}, 15, v{vRr}\nv_lshlrev_b32 v{vRr}, 4, v{vRr}\nv_lshl_add_u32 v{vRr}, v{vUm2}, 10, v{vRr}')
    a(f'v_lshrrev_b32 v{vUm2}, 1, v{vTmp}\nv_lshl_add_u32 v{vRr}, v{vUm2}, 11, v{vRr}\nv_and_b32 v{vUm2}, 1, v{vTmp}\nv_lshl_add_u32 v{vRr}, v{vUm2}, 9, v{vRr}')
    sU = [sbL, sbR, sbO, sCL, sCR]
    sM = [sCO, sPL, sPO, sNL, sNO]
    for t in range(5):
        a(f's_mul_i32 s{sT0}, s{sH}, 5\ns_add_u32 s{sT0}, s{sT0}, {t}')
        a(f's_lshl_b32 s{sU[t]}, s{sT0}, 21\ns_lshl_b32 s{sT1}, s{sWave}, 12\ns_add_u32 s{sU[t]}, s{sU[t]}, s{sT1}\ns_lshl_b32 s{sT1}, s{sCp}, 15\ns_add_u32 s{sU[t]}, s{sU[t]}, s{sT1}\ns_add_u32 s{sU[t]}, s{sU[t]}, {UX}')
        a(f's_lshl_b32 s{sM[t]}, s{sT0}, 20\ns_bfe_u32 s{sT1}, s{sT0}, 0x10001\ns_lshl_b32 s{sT1}, s{sT1}, 13\ns_xor_b32 s{sT1}, s{sT1}, s{sPar}\ns_add_u32 s{sM[t]}, s{sM[t]}, s{sT1}\ns_lshl_b32 s{sT1}, s{sCp}, 14\ns_add_u32 s{sM[t]}, s{sM[t]}, s{sT1}\ns_add_u32 s{sM[t]}, s{sM[t]}, {UM}')
    a(f's_mov_b32 s{sS}, s{sCp}')
    sh = lambda nc: nc - 1
    a('L_FIN_loop:')
    a(f's_lshr_b32 s{sT2}, s{sS}, {sh(cfg.nc_ff1)}\ns_add_u32 s{sT2}, s{sT2}, 1')
    spin_ge(a, vFh, vTmp, sT2, 8)
    a(f's_mul_i32 s{sT2}, s{sS}, {112 * 1024}\ns_lshl_b32 s{sT0}, s{sWave}, 11\ns_add_u32 s{sT2}, s{sT2}, s{sT0}\ns_add_u32 s{sT2}, s{sT2}, {HB}')
    for n in range(7):
        if n == 6:
            a(f's_cmp_ge_u32 s{sWave}, 6\ns_cselect_b32 s{sT0}, 0, 16384\ns_add_u32 s{sT2}, s{sT2}, s{sT0}')
        a(f'buffer_load_dwordx4 {V(vBuf + 8 * n, 4)}, v{vL16}, {WS}, s{sT2} offen sc1\nbuffer_load_dwordx4 {V(vBuf + 8 * n + 4, 4)}, v{vL16}, {WS}, s{sT2} offen offset:1024 sc1')
        if n < 5: a(f's_add_u32 s{sT2}, s{sT2}, 16384')
    for n in range(7):
        b = vBuf + 8 * n
        a(f's_waitcnt vmcnt({12 - 2 * n})')
        a(f'v_swap_b32 v{b + 2}, v{b + 4}\nv_swap_b32 v{b + 3}, v{b + 5}')
        for t in range(5):
            for tt in range(2):
                a(f'v_mfma_f32_16x16x32_bf16 {acc(t, tt)}, {A(20 * n + 4 * t, 4)}, {V(b + 4 * tt, 4)}, {"0" if n == 0 else acc(t, tt)}')
    a(f's_lshr_b32 s{sT2}, s{sS}, {sh(cfg.nc_vox)}\ns_add_u32 s{sT2}, s{sT2}, 1')
    spin_ge(a, vFu, vTmp, sT2, 8)
    ub = lambda k: vBuf + 28 * (k & 1)
    def ldU(k):
        for t in range(5): a(f'buffer_load_dwordx4 {V(ub(k) + 4 * t, 4)}, v{vL16}, {WS}, s{sU[t]} offen offset:{1024 * k} sc1')
    sP = sT3
    def ldP(k):
        for tt in range(2): a(f'buffer_load_dwordx4 {V(ub(k) + 20 + 4 * tt, 4)}, v{vL16}, {WS}, s{sP} offen offset:{2048 * (k & 1) + 1024 * tt} sc1')
        if k & 1: a(f's_add_u32 s{sP}, s{sP}, 4096')
    def mm(k):
        for t in range(5):
            for tt in range(2):
                a(f'v_mfma_f32_16x16x32_bf16 {acc(t, tt)}, {V(ub(k) + 4 * t, 4)}, {V(ub(k) + 20 + 4 * tt, 4)}, {acc(t, tt)}')
    ldU(0); ldU(1)
    a(f's_lshr_b32 s{sT2}, s{sS}, {sh(cfg.nc_qkx)}\ns_add_u32 s{sT2}, s{sT2}, 1')
    spin_ge(a, vFp, vTmp, sT2, 2)
    a(f's_lshl_b32 s{sP}, s{sS}, 16\ns_lshl_b32 s{sT0}, s{sWave}, 13\ns_add_u32 s{sP}, s{sP}, s{sT0}\ns_add_u32 s{sP}, s{sP}, {PXX}')
    a(f's_lshl_b32 s{sT4}, s{sS}, 14\ns_lshl_b32 s{sT0}, s{sWave}, 11\ns_add_u32 s{sT4}, s{sT4}, s{sT0}\ns_add_u32 s{sT4}, s{sT4}, {PXM}')
    ldP(0); ldP(1)
    a('s_waitcnt vmcnt(2)'); mm(0); ldU(2); ldP(2)
    a('s_waitcnt vmcnt(7)'); mm(1); ldU(3); ldP(3)
    a('s_waitcnt vmcnt(7)'); mm(2)
    ldM = [f'buffer_load_dwordx4 {V(ub(0) + 4 * t, 4)}, v{vUm}, {WS}, s{sM[t]} offen sc1' for t in range(5)]
    for tt in range(2): a(f'buffer_load_dwordx4 {V(ub(0) + 20 + 4 * tt, 4)}, v{vL16}, {WS}, s{sT4} offen offset:{1024 * tt} sc1')
    for l in ldM: a(l)
    a('s_waitcnt vmcnt(7)'); mm(3)
    poll(a, ldM, range(ub(0), ub(0) + 20), vTmp, first_issued=True)
    mm(0)
    for t in range(5): a(f's_add_u32 s{sU[t]}, s{sU[t]}, {NG * 32768}\ns_add_u32 s{sM[t]}, s{sM[t]}, {NG * 16384}')
    a('s_barrier')
    for t in range(5):
        for tt in range(2): a(f'ds_write_b128 v{vRw}, {acc(t, tt)} offset:{(2 * t + tt) * 1024}')
    a('s_waitcnt lgkmcnt(0)\ns_barrier')
    l = a.newlabel('fr')
    a(f's_cmp_ge_u32 s{sWave}, 5\ns_cbranch_scc1 {l}')
    a(f'v_add_u32 v{vTmp}, {4 * 10240}, v{vRr}')
    for w in range(8):
        for h in range(2): a(f'ds_read_b128 {V(vBuf + 8 * w + 4 * h, 4)}, v{vRr if w < 4 else vTmp} offset:{(w & 3) * 10240 + 256 * h}')
    for w in range(1, 8):
        a(f's_waitcnt lgkmcnt({min(15, 14 - 2 * w)})')
        for i in range(8): a(f'v_add_f32 v{vBuf + i}, v{vBuf + i}, v{vBuf + 8 * w + i}')
    for q in range(4): a(f'v_cvt_pk_bf16_f32 v{vBuf + q}, v{vBuf + 2 * q}, v{vBuf + 2 * q + 1}')
    a(f's_mul_i32 s{sT0}, s{sS}, {XBS}\nbuffer_store_dwordx4 {V(vBuf, 4)}, v{vOo}, {T1}, s{sT0} offen')
    a(f'{l}:')
    a(f's_add_u32 s{sS}, s{sS}, {NG}\ns_cmp_lt_u32 s{sS}, 64\ns_cbranch_scc1 L_FIN_loop')
    tstamp(a, cfg, 3, vt, vo)
    a('s_branch L_end')
```

```python
from core import *

MEMBUF = 0; XBUF = 10240; KBUF = 16384; RED = 32768
FL3 = 5120
FL1, FL2 = 7680, 7936
WB = 640 * 4096 * 2
vL16, vIdx, vXw, vNeg, vTmp, vTmp2 = 1, 2, 3, 4, 8, 9
vAcc = 16; vZ = 24; vU = 56; vM = 88
vA, vB, vRd, vRd2, vt, vo = 10, 11, 12, 13, 14, 15
R4 = lambda b, n=4: list(range(b, b + n))

def bases(a, cfg):
    a(f's_cmp_gt_u32 s{sT1}, s{sT0}\ns_cselect_b32 s{sPar}, ' + ('0x2000, 0' if cfg.force_par is None else '0, 0x2000'))
    a(f's_mul_i32 s{sT3}, s{sXr}, {XS}\ns_add_u32 s{sbR}, s{sT3}, s{sPar}\ns_xor_b32 s{sbL}, s{sbR}, 0x2000')
    a(f's_sub_u32 s{sT3}, {XS}, s{sT3}\ns_add_u32 s{sbO}, s{sT3}, s{sPar}')
    a(f's_mov_b32 s{sStep}, 0\ns_mov_b32 s{sCL}, s{sbL}\ns_mov_b32 s{sCR}, s{sbR}\ns_mov_b32 s{sCO}, s{sbO}')
    a(f'v_lshlrev_b32 v{vL16}, 4, v0')

def advance(a, cfg, lab):
    a(f's_add_u32 s{sStep}, s{sStep}, 1\ns_add_u32 s{sCL}, s{sCL}, {SL}\ns_add_u32 s{sCR}, s{sCR}, {SL}\ns_add_u32 s{sCO}, s{sCO}, {SL}')
    if lab: a(f's_cmp_lt_u32 s{sStep}, {cfg.nsteps}\ns_cbranch_scc1 {lab}')

def quad_base(a, sd, sq):
    a(f's_mul_i32 s{sd}, s{sq}, 2560\ns_add_u32 s{sd}, s{sd}, 16384\ns_cmp_eq_u32 s{sq}, 3\ns_cselect_b32 s{sd}, 5120, s{sd}')

def flag_ld(vF, va, nc):
    return '\n'.join(f'buffer_load_dword v{vF + c}, v{va}, {WS}, 0 offen offset:{128 * c} sc1' for c in range(nc))

def flag_wait(a, vF, ld, nc, sleep=0):
    top = a.newlabel('fw'); done = a.newlabel('fwd')
    a(f's_mov_b32 s{sSpin}, s{sLim}\ns_lshr_b32 s{sT5}, s{sT4}, {nc - 1}')
    a(f'{top}:')
    if nc == 2:
        a(f's_bitcmp1_b32 s{sT4}, 0\ns_cselect_b64 vcc, -1, 0')
        a(f'v_cndmask_b32 v{vTmp}, v{vF}, v{vF + 1}, vcc')
        a(f'v_cmp_ge_u32 vcc, s{sT5}, v{vTmp}')
    else:
        a(f'v_cmp_ge_u32 vcc, s{sT5}, v{vF}')
    a(f's_cbranch_vccz {done}')
    if sleep: a(f's_sleep {sleep}')
    a(ld)
    a('s_waitcnt vmcnt(0)')
    a(f's_sub_u32 s{sSpin}, s{sSpin}, 1\ns_cbranch_scc0 {top}\ns_mov_b32 s{sLim}, 0')
    a(f'{done}:')

def cue_wait(a, cfg, vaddr, regs, sval, sbase=sbL):
    top = a.newlabel('cue'); done = a.newlabel('cued')
    D = len(regs)
    ld = lambda r: a(f'buffer_load_dword v{r}, v{vaddr}, {WS}, s{sbase} offen sc1')
    a(f's_mov_b32 s{sSpin}, s{sLim}')
    for r in regs:
        ld(r)
        if r != regs[-1]: a(f's_nop {cfg.cgap}')
    a(f'{top}:')
    for r in regs:
        a(f's_waitcnt vmcnt({D - 1})')
        a(f'v_cmp_gt_i32 vcc, s{sval}, v{r}')
        a(f's_cbranch_vccz {done}')
        ld(r)
    a(f's_sub_u32 s{sSpin}, s{sSpin}, 1\ns_cbranch_scc0 {top}\ns_mov_b32 s{sLim}, 0')
    a(f'{done}:')

def cue_send(a, vaddr, vval):
    a('s_mov_b64 exec, 1')
    lstore(a, [f'buffer_store_dword v{vval}, v{vaddr}, {WS}, s{sbL} offen'])
    a('s_mov_b64 exec, -1')

def idx_setup(a):
    a(f'v_mov_b32 v{vIdx}, 0x4444\nv_mov_b32 v{vTmp}, 0xeeee\nv_and_b32 v{vTmp2}, 8, v0\nv_cmp_ne_u32 vcc, 0, v{vTmp2}')
    a(f'v_cndmask_b32 v{vIdx}, v{vIdx}, v{vTmp}, vcc')

def rot_soff(n, rot):
    def f(a):
        a(f's_lshl_b32 s{sT0}, s{sWave}, 4\ns_add_u32 s{sT0}, s{sT0}, {128 * n}')
        if rot:
            a(f's_mul_i32 s{sT1}, s{sXr}, 320\ns_add_u32 s{sT0}, s{sT0}, s{sT1}')
            a(f's_cmp_ge_u32 s{sT0}, 640\ns_cselect_b32 s{sT1}, 640, 0\ns_sub_u32 s{sT0}, s{sT0}, s{sT1}')
        a(f's_lshl_b32 s{sT0}, s{sT0}, 13\ns_lshl_b32 s{sT1}, s{sH}, 8\ns_add_u32 s{sT0}, s{sT0}, s{sT1}')
    return f

def role_R(a, cfg):
    a('L_R:')
    a(f's_cmp_lt_u32 s{sR}, 16\ns_cbranch_scc1 L_RQK')
    a(f's_sub_u32 s{sJ}, s{sR}, 16')
    a('s_waitcnt vmcnt(0)\ns_barrier')
    init_done(a, vt, vo)
    if cfg.no_pf: a(f's_cmp_gt_u32 s{sJ}, 14\ns_cbranch_scc1 L_end\ns_sub_u32 s{sT0}, s{sJ}, 10\ns_cmp_lt_u32 s{sT0}, 4\ns_cbranch_scc1 L_end')
    wait_init(a, vt, vo, 48)
    tstamp(a, cfg, 1, vt + 2, vo + 2)
    bases(a, cfg)
    a(f's_cmp_ge_u32 s{sJ}, 10\ns_cbranch_scc1 L_PF')
    role_S2(a, cfg)
    role_PF(a, cfg)
    role_QK(a, cfg)
    role_VO(a, cfg)

def role_QK(a, cfg):
    a('L_RQK:')
    a(f's_lshl_b32 s{sH}, s{sXr}, 4\ns_add_u32 s{sH}, s{sH}, s{sR}')
    src_offsets(a, vA, vB, vt, 8192)
    tr_base(a, vRd, vt, sWave)
    chunks = []
    for m, p in enumerate((pWQ, pWK)):
        chunks += [dict(pre=(lambda a, p=p: srd(a, 12, p, WB)) if n == 0 else None, soff=rot_soff(n, True), stride=8192, reads=std_reads(80 * m + 16 * n)) for n in range(5)]
    loader(a, chunks, vA, vB, vRd, vRd2, vt, vo)
    tstamp(a, cfg, 1, vt, vo)
    wait_init(a, vt, vo)
    bases(a, cfg); idx_setup(a)
    vXr = 10
    a(f'v_and_b32 v{vXw}, 15, v0\nv_lshlrev_b32 v{vXw}, 5, v{vXw}\nv_lshrrev_b32 v{vTmp}, 4, v0\nv_lshl_add_u32 v{vXw}, v{vTmp}, 3, v{vXw}')
    a(f's_lshl_b32 s{sT0}, s{sWave}, 9\ns_add_u32 s{sT0}, s{sT0}, {XBUF}\nv_add_u32 v{vXw}, s{sT0}, v{vXw}')
    a(f'v_lshlrev_b32 v{vXr}, 3, v0')
    def zero_acc():
        for i in range(8): a(f'v_mov_b32 v{vAcc + i}, 0')
    def half(t0):
        for i in range(5): a(f'ds_read_b128 {V(vZ + 4 * i, 4)}, v{vL16} offset:{MEMBUF + (t0 + i) * 1024}')
        for i in range(5):
            a(f's_waitcnt lgkmcnt({4 - i})')
            a(f'v_smfmac_f32_16x16x64_bf16 {V(vAcc, 4)}, {V(vZ + 4 * i, 4)}, {A((t0 + i) * 8, 8)}, v{vIdx}')
            a(f'v_smfmac_f32_16x16x64_bf16 {V(vAcc + 4, 4)}, {V(vZ + 4 * i, 4)}, {A(80 + (t0 + i) * 8, 8)}, v{vIdx}')
    def epilogue1():
        b = vAcc
        for i in range(4): a(f'v_permlane32_swap_b32 v{b + i}, v{b + 4 + i}')
        for i in range(4): a(f'v_add_f32 v{b + i}, v{b + i}, v{b + 4 + i}')
        a(f'v_cvt_pk_bf16_f32 v{b}, v{b}, v{b + 1}\nv_cvt_pk_bf16_f32 v{b + 1}, v{b + 2}, v{b + 3}')
        a(f'ds_write_b64 v{vXw}, {V(vAcc, 2)}')
        a('s_waitcnt lgkmcnt(0)\ns_barrier')
    a(f's_cmp_lt_u32 s{sWave}, 4\ns_cbranch_scc1 L_QK_lo')
    a('L_QK_hi:')
    zero_acc()
    if cfg.qcue: a('s_barrier')
    a('s_barrier'); half(0)
    a('s_barrier'); half(5); epilogue1()
    if cfg.bg_late: a('s_barrier')
    a(f's_add_u32 s{sStep}, s{sStep}, 1\ns_cmp_lt_u32 s{sStep}, {cfg.nsteps}\ns_cbranch_scc1 L_QK_hi')
    a('s_branch L_end')
    a('L_QK_lo:')
    vM16, vM4, vPs, vKr, vKf, vKs, vCs, vC2 = [vM + i for i in range(8)]
    vCv, vMask = 11, 12
    vPL = vZ + 20; vPR = vZ + 26
    vCr = [vU + i for i in range(cfg.cdepth)]
    a(f's_mul_i32 s{sT0}, s{sWave}, 1280\nv_add_u32 v{vM16}, s{sT0}, v{vL16}\ns_add_u32 s{sT0}, s{sT0}, 1024\nv_lshlrev_b32 v{vM4}, 2, v0\nv_add_u32 v{vM4}, s{sT0}, v{vM4}')
    a(f's_bfe_u32 s{sT1}, s{sH}, 0x20002')
    quad_base(a, sT0, sT1)
    a(f's_and_b32 s{sT1}, s{sH}, 3\ns_mul_i32 s{sT1}, s{sT1}, 640\ns_add_u32 s{sT0}, s{sT0}, s{sT1}')
    a(f'v_and_b32 v{vKs}, 7, v0\nv_lshlrev_b32 v{vKs}, 4, v{vKs}\nv_lshrrev_b32 v{vTmp}, 4, v0\nv_lshl_add_u32 v{vKs}, v{vTmp}, 7, v{vKs}')
    a(f'v_bfe_u32 v{vTmp}, v0, 3, 1\nv_lshl_add_u32 v{vPs}, v{vTmp}, 8, v{vKs}\nv_add_u32 v{vPs}, s{sT0}, v{vPs}')
    a(f's_mov_b32 s{sEx}, 0\ns_mov_b32 s{sEx + 1}, 0x00ff00ff')
    a(f'v_mov_b32 v{vTmp}, 0xff7fffff\nv_mov_b32 v{vTmp2}, 0')
    for i in range(4): a(f'v_cndmask_b32 v{vMask + i}, v{vTmp}, v{vTmp2}, s[{sEx}:{sEx + 1}]')
    a(f's_mov_b32 s{sEx}, 0x00ff00ff\ns_mov_b32 s{sEx + 1}, 0x00ffffff')
    a(f's_mov_b32 s{sEx2}, 0xff00ff00\ns_mov_b32 s{sEx2 + 1}, 0xff00ff00')
    a(f's_mov_b32 s{sC}, {f2u(128 ** -0.5 * 1.4426950408889634)}')
    a(f's_lshl_b32 s{sT1}, s{sH}, 8\ns_add_u32 s{sT1}, s{sT1}, {F_KX}\nv_mov_b32 v{vKf}, s{sT1}')
    a(f's_lshl_b32 s{sSeg2}, s{sH}, 11\ns_add_u32 s{sSeg2}, s{sSeg2}, {KM}')
    a(f'v_add_u32 v{vKr}, {KBUF}, v{vL16}')
    a(f'v_min_u32 v{vC2}, 9, v0\nv_lshlrev_b32 v{vC2}, 2, v{vC2}\nv_add_u32 v{vC2}, {FL2}, v{vC2}')
    a(f's_lshl_b32 s{sT0}, s{sR}, 2\ns_add_u32 s{sT0}, s{sT0}, {FL1}\nv_mov_b32 v{vCs}, s{sT0}')
    vKF = vU
    sK, sKm = sFl0, sFl1
    a(f's_lshl_b32 s{sK}, s{sH}, 19\ns_add_u32 s{sK}, s{sK}, {KX}\ns_mov_b32 s{sKm}, {KBUF}')
    ldK = flag_ld(vKF, vKf, cfg.nc_qkx)
    def kx_dma():
        flag_wait(a, vKF, ldK, cfg.nc_qkx)
        for hh in range(2):
            a(f's_mov_b32 m0, s{sKm}')
            for i in range(4): a(f'buffer_load_dwordx4 v{vL16}, {WS}, s{sK} offen offset:{1024 * i} sc1 lds')
            a(f's_add_u32 s{sK}, s{sK}, 4096\ns_add_u32 s{sKm}, s{sKm}, 4096')
        a(ldK)
        a(f's_and_b32 s{sKm}, s{sKm}, 0x3fff\ns_or_b32 s{sKm}, s{sKm}, {KBUF}')
    a(f's_cmp_lg_u32 s{sWave}, 3\ns_cbranch_scc1 L_QK_lo_go')
    a(f'v_mov_b32 v{vKF}, 0\nv_mov_b32 v{vKF + 1}, 0\ns_mov_b32 s{sT4}, 0')
    kx_dma()
    a('L_QK_lo_go:')
    tstamp(a, cfg, 2, vTmp, vTmp2)
    a('L_QK_lo_loop:')
    fstamp(a, cfg, 0)
    zero_acc()
    a(f'v_mov_b32 v{vCv}, s{sStep}')
    ldL = [f'buffer_load_dwordx4 {V(vPL, 4)}, v{vM16}, {WS}, s{sCL} offen sc1', f'buffer_load_dword v{vPL + 4}, v{vM4}, {WS}, s{sCL} offen sc1']
    ldR = [f'buffer_load_dwordx4 {V(vPR, 4)}, v{vM16}, {WS}, s{sCR} offen sc1', f'buffer_load_dword v{vPR + 4}, v{vM4}, {WS}, s{sCR} offen sc1']
    wrL = lambda: a(f'ds_write_b128 v{vM16}, {V(vPL, 4)} offset:{MEMBUF}\nds_write_b32 v{vM4}, v{vPL + 4} offset:{MEMBUF}')
    if cfg.qcue:
        lc = a.newlabel('c2')
        a(f's_cmp_lg_u32 s{sWave}, 2\ns_cbranch_scc1 {lc}')
        cue_wait(a, cfg, vC2, vCr, sStep)
        a(f'{lc}:')
        a('s_setprio 3\ns_barrier')
        fstamp(a, cfg, 1)
        for l in ldL: a(l)
        a('s_setprio 0')
        for l in ldR: a(l)
        poll(a, ldL, R4(vPL, 5), vTmp, first_issued=True, first_wait=2, spec=wrL, specwait=True)
        a('s_waitcnt lgkmcnt(0)\ns_barrier')
    else:
        poll(a, ldL, R4(vPL, 5), vTmp, spec=wrL, specwait=True)
        fstamp(a, cfg, 1)
        a('s_waitcnt lgkmcnt(0)\ns_barrier')
        for l in ldR: a(l)
    fstamp(a, cfg, 2)
    half(0)
    lk = a.newlabel('kr')
    a(f's_cmp_lg_u32 s{sWave}, 0\ns_cbranch_scc1 {lk}')
    for i in range(8): a(f'ds_read_b128 {V(vU + 4 * i, 4)}, v{vKr} offset:{1024 * i}')
    a(f'v_xor_b32 v{vKr}, 0x2000, v{vKr}')
    a(f'{lk}:')
    fstamp(a, cfg, 3)
    poll(a, ldR, R4(vPR, 5), vTmp, first_issued=True,
         spec=lambda: a(f'ds_write_b128 v{vM16}, {V(vPR, 4)} offset:{MEMBUF + 5120}\nds_write_b32 v{vM4}, v{vPR + 4} offset:{MEMBUF + 5120}'), specwait=True)
    fstamp(a, cfg, 4)
    a('s_waitcnt lgkmcnt(0)\ns_barrier')
    fstamp(a, cfg, 5)
    half(5)
    epilogue1()
    fstamp(a, cfg, 6)
    a(f's_cmp_lg_u32 s{sWave}, 0\ns_cbranch_scc1 L_QK_w123')
    vX = vZ
    for ks in range(4):
        for h in range(2): a(f'ds_read_b64_tr_b16 {V(vX + 4 * ks + 2 * h, 2)}, v{vXr} offset:{XBUF + ks * 1024 + h * 512}')
    a('s_setprio 3')
    T0, T1_, M_ = vZ + 16, vZ + 20, vZ + 24
    for ks in range(4):
        a(f's_waitcnt lgkmcnt({6 - 2 * ks})')
        a(f'v_mfma_f32_16x16x32_bf16 {V(M_, 4)}, {V(vX + 4 * ks, 4)}, {V(vX + 4 * ks, 4)}, {V(vMask, 4) if ks == 0 else V(M_, 4)}')
        a(f'v_mfma_f32_16x16x32_bf16 {V(T1_, 4)}, {V(vU + 16 + 4 * ks, 4)}, {V(vX + 4 * ks, 4)}, {"0" if ks == 0 else V(T1_, 4)}')
        a(f'v_mfma_f32_16x16x32_bf16 {V(T0, 4)}, {V(vU + 4 * ks, 4)}, {V(vX + 4 * ks, 4)}, {"0" if ks == 0 else V(T0, 4)}')
    mx, t2 = vTmp, vTmp2
    if cfg.cpos1 == 0:
        cue_send(a, vCs, vCv); a('s_nop 3')
    a(f'v_max3_f32 v{mx}, v{M_}, v{M_ + 1}, v{M_ + 2}\nv_max_f32 v{mx}, v{mx}, v{M_ + 3}')
    for i in range(4): a(f'v_mov_b32_dpp v{T0 + i}, v{T1_ + i} row_shr:8 row_mask:0xf bank_mask:0xc')
    def allred(op):
        a(f'{op}_dpp v{mx}, v{mx}, v{mx} row_ror:8 row_mask:0xf bank_mask:0xf')
        a(f'v_mov_b32 v{t2}, v{mx}\nv_permlane32_swap_b32 v{mx}, v{t2}\n{op} v{mx}, v{mx}, v{t2}')
        a(f'v_mov_b32 v{t2}, v{mx}\nv_permlane16_swap_b32 v{mx}, v{t2}\n{op} v{mx}, v{mx}, v{t2}')
    a(f'v_max3_f32 v{mx}, v{mx}, v{T0}, v{T0 + 1}\nv_max3_f32 v{mx}, v{mx}, v{T0 + 2}, v{T0 + 3}')
    allred('v_max_f32')
    if cfg.cpos1 == 1: cue_send(a, vCs, vCv)
    a(f'v_mul_f32 v{mx}, s{sC}, v{mx}')
    E = [T0 + i for i in range(4)] + [M_ + i for i in range(4)]
    for r in E: a(f'v_fma_f32 v{r}, v{r}, s{sC}, -v{mx}')
    for r in E: a(f'v_exp_f32 v{r}, v{r}')
    a(f'v_add_f32 v{mx}, v{E[0]}, v{E[1]}\nv_add_f32 v{t2}, v{E[2]}, v{E[3]}\nv_add_f32 v{mx}, v{mx}, v{E[4]}\nv_add_f32 v{t2}, v{t2}, v{E[5]}')
    a(f'v_add_f32 v{mx}, v{mx}, v{E[6]}\nv_add_f32 v{t2}, v{t2}, v{E[7]}\nv_add_f32 v{mx}, v{mx}, v{t2}')
    if cfg.cpos1 == 2: cue_send(a, vCs, vCv)
    allred('v_add_f32')
    if cfg.cpos1 == 3: cue_send(a, vCs, vCv)
    a(f'v_rcp_f32 v{mx}, v{mx}')
    for r in reversed(E): a(f'v_mul_f32 v{r}, v{r}, v{mx}')
    a(f'v_cvt_pk_bf16_f32 v{M_}, v{M_}, v{M_ + 1}\nv_cvt_pk_bf16_f32 v{M_ + 1}, v{M_ + 2}, v{M_ + 3}')
    a(f'v_cvt_pk_bf16_f32 v{T0}, v{T0}, v{T0 + 1}\nv_cvt_pk_bf16_f32 v{T0 + 1}, v{T0 + 2}, v{T0 + 3}')
    a(f'v_permlane16_swap_b32 v{M_}, v{M_ + 2}\nv_permlane16_swap_b32 v{M_ + 1}, v{M_ + 3}')
    a(f'v_mov_b32_dpp v{T0 + 2}, v{T0} row_shl:8 row_mask:0xf bank_mask:0x3\nv_mov_b32_dpp v{T0 + 3}, v{T0 + 1} row_shl:8 row_mask:0xf bank_mask:0x3')
    for i in range(4): a(f'v_mov_b32_dpp v{T0 + i}, v{M_ + i} row_shr:8 row_mask:0x4 bank_mask:0xc')
    fstamp(a, cfg, 7)
    a(f's_mov_b64 exec, s[{sEx}:{sEx + 1}]')
    lstore(a, [f'buffer_store_dwordx4 {V(T0, 4)}, v{vPs}, {WS}, s{sCL} offen'])
    a(f'buffer_store_dwordx4 {V(T0, 4)}, v{vPs}, {WS}, s{sCO} offen sc1')
    a('s_mov_b64 exec, -1')
    if cfg.cpos1 == 4: cue_send(a, vCs, vCv)
    a('s_setprio 0')
    if cfg.bg_late: a('s_barrier')
    a('s_branch L_QK_lo_tail')
    a('L_QK_w123:')
    if cfg.bg_late: a('s_barrier')
    a(f's_cmp_eq_u32 s{sWave}, 1\ns_cbranch_scc1 L_QK_w1')
    a(f's_cmp_eq_u32 s{sWave}, 2\ns_cbranch_scc1 L_QK_lo_tail')
    a(f's_add_u32 s{sT4}, s{sStep}, 1\ns_cmp_ge_u32 s{sT4}, 64\ns_cbranch_scc1 L_QK_lo_tail')
    kx_dma()
    a('s_branch L_QK_lo_tail')
    a('L_QK_w1:')
    for ks in range(4):
        for h in range(2): a(f'ds_read_b64_tr_b16 {V(vU + 4 * ks + 2 * h, 2)}, v{vXr} offset:{XBUF + ks * 1024 + h * 512}')
    a(f's_waitcnt lgkmcnt(0)\ns_mov_b64 exec, s[{sEx2}:{sEx2 + 1}]')
    for ks in range(4): a(f'buffer_store_dwordx4 {V(vU + 4 * ks, 4)}, v{vKs}, {WS}, s{sSeg2} offen offset:{512 * ks} sc1')
    a(f's_mov_b64 exec, -1\ns_add_u32 s{sSeg2}, s{sSeg2}, {32 * 2048}')
    a('L_QK_lo_tail:')
    fstamp(a, cfg, 8)
    advance(a, cfg, 'L_QK_lo_loop')
    tstamp(a, cfg, 3, vTmp, vTmp2)
    fdump(a, cfg, vTmp, vTmp2)
    a('s_branch L_end')

def role_VO(a, cfg):
    a('L_RVO:')
    a(f's_mov_b32 s{sH}, s{sR}')
    src_offsets(a, vA, vB, vt, 8192)
    tr_base(a, vRd, vt, sWave)
    chunks = [dict(pre=(lambda a: srd(a, 12, pWV, WB)) if n == 0 else None, soff=rot_soff(n, False), stride=8192, reads=std_reads(16 * n)) for n in range(5)]
    vW3 = 64
    vRdP = 16
    a(f's_and_b32 s{sT0}, s{sWave}, 3\ns_lshl_b32 s{sT0}, s{sT0}, 1')
    a(f'v_bfe_u32 v{vRdP}, v0, 3, 1\nv_or_b32 v{vRdP}, s{sT0}, v{vRdP}')
    a(f'v_bfe_u32 v{vt}, v0, 2, 1\nv_lshlrev_b32 v{vt}, 1, v{vt}\nv_xor_b32 v{vRdP}, v{vRdP}, v{vt}')
    a(f'v_bfe_u32 v{vt}, v0, 4, 1\nv_lshlrev_b32 v{vt}, 2, v{vt}\nv_xor_b32 v{vRdP}, v{vRdP}, v{vt}\nv_lshlrev_b32 v{vRdP}, 5, v{vRdP}')
    a(f'v_and_b32 v{vt}, 3, v0\nv_lshl_add_u32 v{vRdP}, v{vt}, 3, v{vRdP}')
    a(f'v_bfe_u32 v{vt}, v0, 2, 1\nv_lshl_add_u32 v{vRdP}, v{vt}, 8, v{vRdP}')
    a(f'v_lshrrev_b32 v{vt}, 4, v0\nv_lshl_add_u32 v{vRdP}, v{vt}, 10, v{vRdP}')
    def pre(a):
        srd(a, 12, pWO, WB)
        for var, vd in ((0, vA), (1, vB)):
            a(f'v_bfe_u32 v{vt}, v0, 4, 1\nv_lshlrev_b32 v{vt}, 1, v{vt}')
            if var: a(f'v_or_b32 v{vt}, 4, v{vt}')
            a(f'v_bfe_u32 v{vd}, v0, 1, 3\nv_xor_b32 v{vd}, v{vd}, v{vt}\nv_lshlrev_b32 v{vd}, 5, v{vd}')
            a(f'v_and_b32 v{vt}, 1, v0\nv_lshl_add_u32 v{vd}, v{vt}, 4, v{vd}')
            a(f'v_lshrrev_b32 v{vt}, 4, v0\nv_mul_u32_u24 v{vt}, 1280, v{vt}\nv_add_u32 v{vd}, v{vd}, v{vt}')
    so = lambda c: (lambda a: a(f's_lshl_b32 s{sT0}, s{sH}, 7\ns_lshl_b32 s{sT1}, s{sWave}, 4\ns_add_u32 s{sT0}, s{sT0}, s{sT1}\ns_mul_i32 s{sT0}, s{sT0}, 1280\ns_add_u32 s{sT0}, s{sT0}, {256 * c}'))
    def rd(c):
        def f(a, va):
            l = a.newlabel('wo')
            a(f's_cmp_ge_u32 s{sWave}, 4\ns_cbranch_scc{1 if c < 3 else 0} {l}')
            for k in range(4):
                for hb in range(2):
                    for al in range(2):
                        o = 8 * k + 4 * hb + 2 * al
                        dst = V(vW3 + o, 2) if c == 2 else A(80 + 32 * (c % 3) + o, 2)
                        a(f'ds_read_b64_tr_b16 {dst}, v{va} offset:{(32 * k + 16 * hb + 2 * al) * 256}')
            a(f'{l}:')
        return f
    chunks += [dict(pre=pre if c == 0 else None, soff=so(c), stride=1280, reads=rd(c), var=lambda i: i & 1, vrd=vRdP) for c in range(5)]
    loader(a, chunks, vA, vB, vRd, vRd2, vt, vo)
    tstamp(a, cfg, 1, vt, vo)
    wait_init(a, vt, vo)
    bases(a, cfg); idx_setup(a)
    vXr, vUg, vUg3, vG16, vG4, vM16, vM4 = 10, 11, 12, 13, 14, 15, 4
    a(f'v_and_b32 v{vXw}, 15, v0\nv_lshlrev_b32 v{vXw}, 4, v{vXw}')
    a(f'v_bfe_u32 v{vTmp}, v0, 4, 1\nv_lshl_add_u32 v{vXw}, v{vTmp}, 3, v{vXw}')
    a(f'v_lshrrev_b32 v{vTmp}, 5, v0\nv_lshl_add_u32 v{vXw}, v{vTmp}, 2, v{vXw}')
    a(f's_lshl_b32 s{sT0}, s{sWave}, 8\ns_add_u32 s{sT0}, s{sT0}, {XBUF}\nv_add_u32 v{vXw}, s{sT0}, v{vXw}')
    a(f'v_and_b32 v{vXr}, 1, v0\nv_lshlrev_b32 v{vXr}, 3, v{vXr}\nv_bfe_u32 v{vTmp}, v0, 2, 2\nv_lshl_add_u32 v{vXr}, v{vTmp}, 4, v{vXr}')
    a(f'v_lshrrev_b32 v{vTmp}, 4, v0\nv_lshl_add_u32 v{vXr}, v{vTmp}, 7, v{vXr}')
    def um_offs(vglob, spair, two):
        a(f'v_and_b32 v{vglob}, 15, v0\nv_lshlrev_b32 v{vglob}, 4, v{vglob}')
        if two: a(f'v_bfe_u32 v{vTmp}, v0, 4, 1\nv_lshl_add_u32 v{vglob}, v{vTmp}, 23, v{vglob}')
        a(f'v_lshrrev_b32 v{vTmp}, 5, v0\nv_lshl_add_u32 v{vglob}, v{vTmp}, 20, v{vglob}')
        a(f's_lshl_b32 s{sT0}, s{spair}, 21\ns_and_b32 s{sT1}, s{spair}, 1\ns_lshl_b32 s{sT1}, s{sT1}, 13\ns_xor_b32 s{sT1}, s{sT1}, s{sPar}\ns_add_u32 s{sT0}, s{sT0}, s{sT1}')
        a(f's_lshl_b32 s{sT1}, s{sH}, 8\ns_add_u32 s{sT0}, s{sT0}, s{sT1}\nv_add_u32 v{vglob}, s{sT0}, v{vglob}')
    assert UM % (4 * MB) == 0
    a(f's_add_u32 s{sT3}, s{sWave}, 8\ns_cmp_lt_u32 s{sWave}, 4\ns_cselect_b32 s{sT2}, s{sWave}, s{sT3}')
    um_offs(vUg, sT2, True)
    um_offs(vUg3, sT3, False)
    a(f's_mov_b32 s{sEx}, 0xffff\ns_mov_b32 s{sEx + 1}, 0xffff\ns_mov_b32 s{sSeg2}, {UM}')
    a(f's_mul_i32 s{sT0}, s{sWave}, 1280\nv_add_u32 v{vM16}, s{sT0}, v{vL16}\ns_add_u32 s{sT0}, s{sT0}, 1024\nv_lshlrev_b32 v{vM4}, 2, v0\nv_add_u32 v{vM4}, s{sT0}, v{vM4}')
    a(f's_lshr_b32 s{sT0}, s{sWave}, 2\ns_mul_i32 s{sT0}, s{sT0}, {16384 - 5120}\nv_add_u32 v{vG16}, s{sT0}, v{vM16}\nv_add_u32 v{vG4}, s{sT0}, v{vM4}')
    a(f'v_min_u32 v5, 19, v0\nv_lshlrev_b32 v5, 7, v5\nv_add_u32 v5, {FL3}, v5')
    tstamp(a, cfg, 2, vTmp, vTmp2)
    for np_, lab in ((3, 'L_VO_lo'), (2, 'L_VO_hi')):
        if np_ == 3: a(f's_cmp_ge_u32 s{sWave}, 4\ns_cbranch_scc1 L_VO_hi')
        a(f'{lab}:')
        fstamp(a, cfg, 0)
        for i in range(4): a(f'v_mov_b32 v{vAcc + i}, 0')
        vP = vZ
        ld = [f'buffer_load_dwordx4 {V(vP, 4)}, v{vG16}, {WS}, s{sCR} offen sc1', f'buffer_load_dword v{vP + 4}, v{vG4}, {WS}, s{sCR} offen sc1']
        if cfg.vcue:
            if np_ == 2:
                lc = a.newlabel('c3')
                a(f's_cmp_lg_u32 s{sWave}, 7\ns_cbranch_scc1 {lc}')
                cue_wait(a, cfg, 5, [64 + i for i in range(cfg.cdepth)], sStep, sbR)
                for i in range(cfg.cdel3): a('s_nop 7')
                a(f'{lc}:')
            a('s_barrier')
        poll(a, ld, R4(vP, 5), vTmp, spec=lambda: a(f'ds_write_b128 v{vM16}, {V(vP, 4)} offset:{MEMBUF}\nds_write_b32 v{vM4}, v{vP + 4} offset:{MEMBUF}'), specwait=True)
        fstamp(a, cfg, 1)
        a('s_waitcnt lgkmcnt(0)\ns_barrier')
        fstamp(a, cfg, 2)
        for i in range(10): a(f'ds_read_b128 {V(vZ + 4 * i, 4)}, v{vL16} offset:{MEMBUF + i * 1024}')
        for i in range(10):
            a(f's_waitcnt lgkmcnt({9 - i})')
            a(f'v_smfmac_f32_16x16x64_bf16 {V(vAcc, 4)}, {V(vZ + 4 * i, 4)}, {A(i * 8, 8)}, v{vIdx}')
        for i in range(8): a(f'v_mov_b32 v{vZ + i}, 0')
        a(f'v_permlane32_swap_b32 v{vAcc}, v{vAcc + 2}\nv_permlane32_swap_b32 v{vAcc + 1}, v{vAcc + 3}')
        a(f'v_add_f32 v{vAcc}, v{vAcc}, v{vAcc + 2}\nv_add_f32 v{vAcc + 1}, v{vAcc + 1}, v{vAcc + 3}')
        a(f'v_cvt_pk_bf16_f32 v{vAcc}, v{vAcc}, v{vAcc + 1}')
        a(f'ds_write_b32 v{vXw}, v{vAcc}')
        for i in range(8, 4 * np_): a(f'v_mov_b32 v{vZ + i}, 0')
        a('s_waitcnt lgkmcnt(0)\ns_barrier')
        fstamp(a, cfg, 6)
        vV = vZ + 12
        for k in range(4):
            for al in range(2): a(f'ds_read_b64_tr_b16 {V(vV + 4 * k + 2 * al, 2)}, v{vXr} offset:{XBUF + k * 512 + al * 64}')
        for k in range(4):
            a(f's_waitcnt lgkmcnt({6 - 2 * k})')
            for p in range(np_):
                w = V(vW3 + 8 * k, 8) if p == 2 else A(80 + 32 * p + 8 * k, 8)
                a(f'v_smfmac_f32_16x16x64_bf16 {V(vZ + 4 * p, 4)}, {V(vV + 4 * k, 4)}, {w}, v{vIdx}')
        o = vAcc
        for p in range(np_):
            a(f'v_cvt_pk_bf16_f32 v{o + 2 * p}, v{vZ + 4 * p}, v{vZ + 4 * p + 1}\nv_cvt_pk_bf16_f32 v{o + 2 * p + 1}, v{vZ + 4 * p + 2}, v{vZ + 4 * p + 3}')
        a(f'v_permlane16_swap_b32 v{o}, v{o + 2}\nv_permlane16_swap_b32 v{o + 1}, v{o + 3}')
        if np_ == 3: a(f'v_permlane16_swap_b32 v{o + 4}, v{o + 6}\nv_permlane16_swap_b32 v{o + 5}, v{o + 7}')
        a(f'buffer_store_dwordx4 {V(o, 4)}, v{vUg}, {WS}, s{sSeg2} offen sc1')
        if np_ == 3:
            a(f's_mov_b64 exec, s[{sEx}:{sEx + 1}]\nbuffer_store_dwordx4 {V(o + 4, 4)}, v{vUg3}, {WS}, s{sSeg2} offen sc1\ns_mov_b64 exec, -1')
        fstamp(a, cfg, 7)
        a(f's_add_u32 s{sSeg2}, s{sSeg2}, 16384')
        if cfg.vo_sleep: a(f's_sleep {cfg.vo_sleep}')
        advance(a, cfg, lab)
        tstamp(a, cfg, 3, vTmp, vTmp2)
        fdump(a, cfg, vTmp, vTmp2)
        a('s_branch L_end')

def role_S2(a, cfg):
    a('L_S2:')
    NST = cfg.nsteps - 1
    a(f's_cmp_eq_u32 s{sWave}, 4\ns_cbranch_scc1 L_S2_poll\ns_cmp_eq_u32 s{sWave}, 7\ns_cbranch_scc1 L_S2_cue\ns_cmp_gt_u32 s{sWave}, 4\ns_cbranch_scc1 L_S2_red')
    vP0, vPm, vUm, vUm2, vRw, vFa, vFl = 10, 11, 12, 13, 14, 15, 6
    PL0, PR0, Pm, Um = 16, 24, 32, 36
    A1, A2 = 52, 68
    quad_base(a, sT0, sWave)
    a(f'v_and_b32 v{vTmp}, 7, v0\nv_lshlrev_b32 v{vTmp}, 4, v{vTmp}\nv_add_u32 v{vTmp}, s{sT0}, v{vTmp}\nv_lshrrev_b32 v{vTmp2}, 4, v0')
    a(f'v_lshl_add_u32 v{vP0}, v{vTmp2}, 7, v{vTmp}\nv_mul_u32_u24 v{vTmp2}, 640, v{vTmp2}\nv_add_u32 v{vPm}, v{vTmp}, v{vTmp2}\nv_add_u32 v{vPm}, 512, v{vPm}')
    a(f'v_bfe_u32 v{vTmp2}, v0, 3, 1\nv_mul_u32_u24 v{vTmp2}, 640, v{vTmp2}\nv_add_u32 v{vP0}, v{vP0}, v{vTmp2}')
    a(f'v_and_b32 v{vTmp}, 8, v0\nv_lshlrev_b32 v{vTmp}, 10, v{vTmp}\nv_xor_b32 v{vTmp}, s{sPar}, v{vTmp}\nv_xor_b32 v{vTmp}, 0x2000, v{vTmp}\nv_add_u32 v{vPm}, v{vPm}, v{vTmp}')
    a(f's_lshl_b32 s{sT1}, s{sWave}, 10\ns_add_u32 s{sT1}, s{sT1}, {RED}\nv_add_u32 v{vRw}, s{sT1}, v{vL16}')
    a(f's_mul_i32 s{sT2}, s{sXr}, 10\ns_add_u32 s{sT2}, s{sT2}, s{sJ}')
    a(f's_lshl_b32 s{sT0}, s{sT2}, 21\ns_and_b32 s{sT1}, s{sT2}, 1\ns_lshl_b32 s{sT1}, s{sT1}, 13\ns_xor_b32 s{sT1}, s{sT1}, s{sPar}\ns_add_u32 s{sT0}, s{sT0}, s{sT1}')
    a(f's_lshl_b32 s{sT1}, s{sWave}, 10\ns_add_u32 s{sT0}, s{sT0}, s{sT1}\ns_lshl_b32 s{sT1}, s{sXr}, 12\ns_add_u32 s{sT0}, s{sT0}, s{sT1}')
    a(f'v_add_u32 v{vUm}, s{sT0}, v{vL16}\nv_xor_b32 v{vUm2}, 0x1000, v{vUm}\ns_mov_b32 s{sSeg2}, {UM}')
    a(f's_lshl_b32 s{sSeg}, s{sT2}, 22\ns_lshl_b32 s{sT0}, s{sWave}, 12\ns_add_u32 s{sSeg}, s{sSeg}, s{sT0}\ns_lshl_b32 s{sT0}, s{sXr}, 14\ns_add_u32 s{sSeg}, s{sSeg}, s{sT0}\ns_add_u32 s{sSeg}, s{sSeg}, {UX}')
    a(f'v_and_b32 v{vFa}, 3, v0\nv_bfe_u32 v{vTmp}, v0, 2, 1\nv_lshl_add_u32 v{vFa}, v{vTmp}, 4, v{vFa}\nv_lshlrev_b32 v{vFa}, 8, v{vFa}')
    a(f's_lshl_b32 s{sT0}, s{sWave}, 10\ns_add_u32 s{sT0}, s{sT0}, {F_UX}\nv_add_u32 v{vFa}, s{sT0}, v{vFa}')
    a(f'v_mov_b32 v{vFl}, 0\nv_mov_b32 v{vFl + 1}, 0')
    vC3, vC3v = 4, 5
    a(f's_lshl_b32 s{sT0}, s{sT2}, 7\ns_add_u32 s{sT0}, s{sT0}, s{sPar}\ns_add_u32 s{sT0}, s{sT0}, {2 * XS + FL3}\nv_mov_b32 v{vC3}, s{sT0}\nv_mov_b32 v{vC3v}, 0')
    def cue3(pos):
        if not cfg.vcue or (pos is not None and cfg.cpos3 != pos): return
        l = a.newlabel('c3')
        a(f's_cmp_lg_u32 s{sWave}, 0\ns_cbranch_scc1 {l}\ns_mov_b64 exec, 1\nbuffer_store_dword v{vC3v}, v{vC3}, {WS}, 0 offen sc1\ns_mov_b64 exec, -1\n{l}:')
    ldU = flag_ld(vFl, vFa, cfg.nc_vox)
    a(f's_mov_b32 s{sT4}, 0')
    flag_wait(a, vFl, ldU, cfg.nc_vox, 4)
    a('s_barrier\ns_barrier')
    cue3(None)
    tstamp(a, cfg, 2, vTmp, vTmp2)
    a('L_S2_loop:')
    fstamp(a, cfg, 0)
    if not cfg.no_ux:
        for t in range(2):
            for hf in range(2):
                if t or hf: a(f's_xor_b32 s{sT0}, s{sSeg}, {hf * 0x4000 + t * 2 * MB}')
                for i in range(4):
                    a(f'buffer_load_dwordx4 {A(32 * t + 16 * hf + 4 * i, 4)}, v{vL16}, {WS}, s{sT0 if (t or hf) else sSeg} offen offset:{1024 * i} sc1')
    a(ldU)
    a(f's_add_u32 s{sSeg}, s{sSeg}, 32768\ns_add_u32 s{sT4}, s{sStep}, 1\ns_waitcnt vmcnt(0)')
    fstamp(a, cfg, 1)
    flag_wait(a, vFl, ldU, cfg.nc_vox)
    a(f's_andn2_b32 s{sT1}, s{sCL}, 0x2000\ns_add_u32 s{sT2}, s{sSeg2}, {MB}')
    ldp = lambda b, so: [f'buffer_load_dwordx4 {V(b, 4)}, v{vP0}, {WS}, s{so} offen sc1', f'buffer_load_dwordx4 {V(b + 4, 4)}, v{vP0}, {WS}, s{so} offen offset:1280 sc1']
    g1 = ldp(PL0, sCL)
    g2 = ldp(PR0, sCR) + [f'buffer_load_dwordx4 {V(Pm, 4)}, v{vPm}, {WS}, s{sT1} offen sc1']
    g3 = [f'buffer_load_dwordx4 {V(Um + 8 * t + 4 * hf, 4)}, v{vUm2 if hf else vUm}, {WS}, s{sT2 if t else sSeg2} offen sc1' for t in range(2) for hf in range(2)]
    def s2(b, hf, d, c):
        for q in range(2):
            for t in range(2):
                for e in range(2):
                    r = d + 8 * t + 4 * e
                    cc = V(r, 4) if q else ('0' if c is None else V(c + 8 * t + 4 * e, 4))
                    a(f'v_mfma_f32_16x16x32_bf16 {V(r, 4)}, {A(32 * t + 16 * hf + 8 * q + 4 * e, 4)}, {V(b + 4 * q, 4)}, {cc}')
    def s3():
        for t in range(2):
            for e in range(2):
                a(f'v_mfma_f32_16x16x32_bf16 {V(A1 + 8 * t + 4 * e, 4)}, {V(Um + 8 * t + 4 * e, 4)}, {V(Pm, 4)}, {V(A2 + 8 * t + 4 * e, 4)}')
    a(f'v_add_u32 v{vC3v}, 1, v{vC3v}')
    a('s_setprio 3\ns_barrier')
    fstamp(a, cfg, 3)
    if cfg.sorder == 0:
        for l in g1: a(l)
        a('s_setprio 2')
        for l in g2: a(l)
        a('s_setprio 0')
        for l in g3: a(l)
        def c3(pos, n):
            if cfg.vcue and cfg.cpos3 == pos:
                l = a.newlabel('c3')
                a(f's_cmp_lg_u32 s{sWave}, {cfg.cwave3}\ns_cbranch_scc1 {l}\ns_mov_b64 exec, 1\nbuffer_store_dword v{vC3v}, v{vC3}, {WS}, 0 offen sc1\ns_mov_b64 exec, -1\n{l}:')
            if cfg.vcue and cfg.cpos3 <= pos:
                l = a.newlabel('c3')
                a(f's_cmp_eq_u32 s{sWave}, {cfg.cwave3}\ns_cbranch_scc1 {l}\ns_waitcnt vmcnt({n})\n{l}:')
                return n + 1
            return n
        poll(a, g1, R4(PL0, 8), vTmp, first_issued=True, first_wait=c3(0, 7), spec=lambda: s2(PL0, 0, A1, None))
        poll(a, g2, R4(PR0, 8) + R4(Pm), vTmp, first_issued=True, first_wait=c3(1, 4), spec=lambda: s2(PR0, 1, A2, A1))
        fstamp(a, cfg, 4)
        poll(a, g3, R4(Um, 16), vTmp, first_issued=True, first_wait=c3(2, 0), spec=s3)
    else:
        for l in g3: a(l)
        a('s_setprio 2')
        for l in g1: a(l)
        a('s_setprio 0')
        for l in g2: a(l)
        poll(a, g3 + g1, R4(Um, 16) + R4(PL0, 8), vTmp, first_issued=True, first_wait=3, spec=lambda: s2(PL0, 0, A1, None))
        fstamp(a, cfg, 4)
        if cfg.vcue:
            l = a.newlabel('c3'); l2 = a.newlabel('c3')
            a(f's_cmp_lg_u32 s{sWave}, 0\ns_cbranch_scc1 {l}\ns_mov_b64 exec, 1\nbuffer_store_dword v{vC3v}, v{vC3}, {WS}, 0 offen sc1\ns_mov_b64 exec, -1\ns_waitcnt vmcnt(1)\ns_branch {l2}\n{l}:\ns_waitcnt vmcnt(0)\n{l2}:')
        def p2():
            s2(PR0, 1, A2, A1)
            for t in range(2):
                for e in range(2):
                    a(f'v_mfma_f32_16x16x32_bf16 {V(A2 + 8 * t + 4 * e, 4)}, {V(Um + 8 * t + 4 * e, 4)}, {V(Pm, 4)}, {V(A2 + 8 * t + 4 * e, 4)}')
        poll(a, g2, R4(PR0, 8) + R4(Pm), vTmp, first_issued=True, first_wait=1 if cfg.vcue else 0, spec=p2)
        A1 = A2
    fstamp(a, cfg, 5)
    for t in range(2):
        for i in range(4): a(f'v_add_f32_dpp v{A1 + 8 * t + i}, v{A1 + 8 * t + 4 + i}, v{A1 + 8 * t + i} row_shl:8 row_mask:0xf bank_mask:0xf')
        a(f'ds_write_b128 v{vRw}, {V(A1 + 8 * t, 4)} offset:{4096 * t}')
    a('s_waitcnt lgkmcnt(0)\ns_barrier')
    fstamp(a, cfg, 6)
    a(f's_add_u32 s{sSeg2}, s{sSeg2}, 16384')
    advance(a, cfg, None)
    a('s_barrier')
    a(f's_cmp_lt_u32 s{sStep}, {NST}\ns_cbranch_scc1 L_S2_loop')
    tstamp(a, cfg, 3, vTmp, vTmp2)
    fdump(a, cfg, vTmp, vTmp2)
    a('s_branch L_end')
    a('L_S2_poll:')
    a(f'v_and_b32 v10, 15, v0\nv_lshlrev_b32 v10, 2, v10\nv_add_u32 v10, {FL1}, v10')
    a('s_barrier\ns_barrier')
    a('L_S2_poll_loop:')
    cue_wait(a, cfg, 10, [16 + i for i in range(cfg.cdepth)], sStep)
    a('s_barrier\ns_barrier\ns_barrier')
    a(f's_add_u32 s{sStep}, s{sStep}, 1\ns_cmp_lt_u32 s{sStep}, {NST}\ns_cbranch_scc1 L_S2_poll_loop')
    a('s_branch L_end')
    a('L_S2_cue:')
    a(f's_lshl_b32 s{sT0}, s{sJ}, 2\ns_add_u32 s{sT0}, s{sT0}, {FL2}\nv_mov_b32 v10, s{sT0}\nv_mov_b32 v11, 0')
    a('s_barrier\ns_barrier')
    cue_send(a, 10, 11)
    a('L_S2_cue_loop:')
    a(f's_add_u32 s{sStep}, s{sStep}, 1\nv_mov_b32 v11, s{sStep}')
    a('s_barrier\ns_barrier')
    if cfg.cpos2 == 0:
        for i in range(cfg.cdel2): a('s_nop 7')
        cue_send(a, 10, 11)
    a('s_barrier')
    if cfg.cpos2 == 1: cue_send(a, 10, 11)
    a(f's_cmp_lt_u32 s{sStep}, {NST}\ns_cbranch_scc1 L_S2_cue_loop')
    a('s_branch L_end')
    a('L_S2_red:')
    vRr, vMs, aa, ab = 10, 11, 16, 20
    sV3 = sNL
    a(f's_sub_u32 s{sT3}, s{sWave}, 5')
    a(f'v_and_b32 v{vRr}, 3, v0\nv_lshlrev_b32 v{vRr}, 8, v{vRr}\nv_bfe_u32 v{vTmp}, v0, 2, 3\nv_lshl_add_u32 v{vRr}, v{vTmp}, 4, v{vRr}\nv_lshrrev_b32 v{vTmp}, 5, v0\nv_lshl_add_u32 v{vRr}, v{vTmp}, 3, v{vRr}')
    a(f's_lshl_b32 s{sT0}, s{sT3}, 12\ns_add_u32 s{sT0}, s{sT0}, {RED}\nv_add_u32 v{vRr}, s{sT0}, v{vRr}')
    a(f's_lshl_b32 s{sT2}, s{sJ}, 1\ns_add_u32 s{sT2}, s{sT2}, s{sT3}\ns_lshl_b32 s{sT0}, s{sT2}, 8\nv_lshlrev_b32 v{vMs}, 2, v0\nv_add_u32 v{vMs}, s{sT0}, v{vMs}')
    a(f's_mov_b32 s{sEx}, 0x11111111\ns_mov_b32 s{sEx + 1}, 0x11111111')
    a(f's_lshl_b32 s{sV3}, s{sXr}, 14\ns_add_u32 s{sV3}, s{sV3}, s{sPar}\ns_add_u32 s{sV3}, s{sV3}, {2 * XS}')
    a(f's_lshl_b32 s{sT0}, s{sJ}, 2\ns_add_u32 s{sT0}, s{sT0}, {FL2}\nv_mov_b32 v12, s{sT0}\nv_mov_b32 v13, 0')
    def rcue(pos):
        if cfg.cpos2 != pos: return
        l = a.newlabel('rc')
        a(f's_cmp_lg_u32 s{sWave}, 6\ns_cbranch_scc1 {l}')
        cue_send(a, 12, 13)
        a(f'{l}:')
    def pub():
        for p in range(1, 4): a(f'v_mov_b32_dpp v{aa + p}, v{aa} quad_perm:[{p},{p},{p},{p}] row_mask:0xf bank_mask:0xf')
        fstamp(a, cfg, 7)
        rcue(3)
        a(f's_mov_b64 exec, s[{sEx}:{sEx + 1}]')
        st = {'V': lambda: a(f'buffer_store_dwordx4 {V(aa, 4)}, v{vMs}, {WS}, s{sV3} offen sc1'),
              'O': lambda: a(f'buffer_store_dwordx4 {V(aa, 4)}, v{vMs}, {WS}, s{sCO} offen sc1'),
              'L': lambda: lstore(a, [f'buffer_store_dwordx4 {V(aa, 4)}, v{vMs}, {WS}, s{sCL} offen'])}
        for c in cfg.pubord: st[c]()
        a('s_mov_b64 exec, -1')
        rcue(4)
        a('s_barrier')
    srd(a, 12, pMEM0, 10240)
    a(f'v_bfe_u32 v{vTmp}, v0, 2, 3\nv_mul_u32_u24 v{vTmp}, 1280, v{vTmp}\nv_and_b32 v{vTmp2}, 3, v0\nv_lshl_add_u32 v{vTmp}, v{vTmp2}, 3, v{vTmp}\nv_lshrrev_b32 v{vTmp2}, 5, v0\nv_lshl_add_u32 v{vTmp}, v{vTmp2}, 2, v{vTmp}')
    a(f's_mul_i32 s{sT0}, s{sXr}, 20\ns_add_u32 s{sT0}, s{sT0}, s{sT2}\ns_lshl_b32 s{sT0}, s{sT0}, 5')
    a(f'buffer_load_dword v{aa}, v{vTmp}, {T1}, s{sT0} offen\ns_waitcnt vmcnt(0)\nv_min_u32 v{aa}, -2, v{aa}')
    a('s_barrier')
    pub()
    a('L_S2_red_loop:')
    a(f's_add_u32 s{sCL}, s{sCL}, {SL}\ns_add_u32 s{sCO}, s{sCO}, {SL}\ns_add_u32 s{sV3}, s{sV3}, {SL}')
    a('v_add_u32 v13, 1, v13')
    a('s_setprio 3\ns_barrier\ns_barrier')
    a(f'ds_read2st64_b64 {V(aa, 4)}, v{vRr} offset0:0 offset1:2\nds_read2st64_b64 {V(ab, 4)}, v{vRr} offset0:4 offset1:6\ns_waitcnt lgkmcnt(1)')
    a(f'v_add_f32 v{aa}, v{aa}, v{aa + 2}\nv_add_f32 v{aa + 1}, v{aa + 1}, v{aa + 3}\ns_waitcnt lgkmcnt(0)')
    a(f'v_add_f32 v{ab}, v{ab}, v{ab + 2}\nv_add_f32 v{ab + 1}, v{ab + 1}, v{ab + 3}\nv_add_f32 v{aa}, v{aa}, v{ab}\nv_add_f32 v{aa + 1}, v{aa + 1}, v{ab + 1}')
    a(f'v_cvt_pk_bf16_f32 v{aa}, v{aa}, v{aa + 1}')
    pub()
    a(f's_add_u32 s{sStep}, s{sStep}, 1\ns_cmp_lt_u32 s{sStep}, {NST}\ns_cbranch_scc1 L_S2_red_loop')
    fdump(a, cfg, vTmp, vTmp2)
    a('s_branch L_end')

def role_PF(a, cfg):
    a('L_PF:')
    vSp, vFa, vFl, vC = 10, 11, 12, 14
    a(f's_sub_u32 s{sT2}, s{sJ}, 10\ns_lshl_b32 s{sT2}, s{sT2}, 3\ns_add_u32 s{sT2}, s{sT2}, s{sWave}')
    def unit(sd, su):
        a(f's_lshr_b32 s{sT0}, s{su}, 2\ns_mul_i32 s{sT1}, s{sXr}, 20\ns_add_u32 s{sT0}, s{sT0}, s{sT1}\ns_lshl_b32 s{sd}, s{sT0}, 21\ns_and_b32 s{sT0}, s{su}, 3\ns_lshl_b32 s{sT0}, s{sT0}, 13\ns_add_u32 s{sd}, s{sd}, s{sT0}\ns_add_u32 s{sd}, s{sd}, {UX}')
    unit(sSeg, sT2)
    a(f's_add_u32 s{sT3}, s{sT2}, 48')
    unit(sSeg2, sT3)
    a(f's_and_b32 s{sT0}, s{sT3}, 1\ns_lshl_b32 s{sT0}, s{sT0}, 14\ns_add_u32 s{sT0}, s{sT0}, s{sbL}')
    a(f's_cmp_ge_u32 s{sT3}, 80\ns_cselect_b32 s{sSeg2}, s{sT0}, s{sSeg2}\ns_cmp_ge_u32 s{sT3}, 82\ns_cselect_b32 s{sSeg2}, s{sSeg}, s{sSeg2}')
    if cfg.no_pf: a(f's_cmp_ge_u32 s{sSeg2}, {UX}\ns_cbranch_scc1 L_end')
    a(f'v_lshlrev_b32 v{vSp}, 7, v0')
    a(f'v_and_b32 v{vFa}, 31, v0\nv_lshlrev_b32 v{vFa}, 8, v{vFa}\nv_add_u32 v{vFa}, {F_UX}, v{vFa}\nv_mov_b32 v{vFl}, 0\nv_mov_b32 v{vFl + 1}, 0')
    a(f'v_mov_b32 v{vC}, {FL2}')
    ldU = flag_ld(vFl, vFa, cfg.nc_vox)
    a('L_PF_loop:')
    top = a.newlabel('pw'); done = a.newlabel('pwd')
    a(f's_sub_u32 s{sT4}, s{sStep}, {cfg.pf_ahead}\ns_cmp_lt_i32 s{sT4}, 0\ns_cbranch_scc1 {done}\ns_mov_b32 s{sSpin}, s{sLim}')
    a(f'{top}:')
    a(f'buffer_load_dword v{vTmp2}, v{vC}, {WS}, s{sbL} offen sc1\ns_waitcnt vmcnt(0)\nv_cmp_gt_i32 vcc, s{sT4}, v{vTmp2}\ns_cbranch_vccz {done}\ns_sleep 4')
    a(f's_sub_u32 s{sSpin}, s{sSpin}, 1\ns_cbranch_scc0 {top}\ns_mov_b32 s{sLim}, 0')
    a(f'{done}:')
    if not cfg.no_pf:
        a(f's_mov_b32 s{sT4}, s{sStep}')
        flag_wait(a, vFl, ldU, cfg.nc_vox, 4)
        for so in (sSeg, sSeg2):
            a(f'buffer_load_dword v16, v{vSp}, {WS}, s{so} offen sc1')
            if cfg.pf64: a(f'buffer_load_dword v17, v{vSp}, {WS}, s{so} offen offset:64 sc1')
    else:
        a(f'buffer_load_dword v16, v{vSp}, {WS}, s{sSeg2} offen sc1')
    a(f's_add_u32 s{sSeg}, s{sSeg}, 32768\ns_add_u32 s{sSeg2}, s{sSeg2}, 32768')
    a(f's_add_u32 s{sStep}, s{sStep}, 1\ns_cmp_lt_u32 s{sStep}, {cfg.nsteps}\ns_cbranch_scc1 L_PF_loop')
    a('s_branch L_end')
```

```python
import re

def regs_of(op):
    op = op.strip()
    neg = op.lstrip('-')
    if neg.startswith('abs(') or neg.startswith('|'):
        neg = neg.replace('abs(', '').replace(')', '').replace('|', '')
    m = re.fullmatch(r'([vas])(\d+)', neg)
    if m: return {(m.group(1), int(m.group(2)))}
    m = re.fullmatch(r'([vas])\[(\d+):(\d+)\]', neg)
    if m: return {(m.group(1), i) for i in range(int(m.group(2)), int(m.group(3)) + 1)}
    if neg in ('vcc', 'vcc_lo', 'vcc_hi'): return {('vcc', 0)}
    if neg in ('exec', 'exec_lo', 'exec_hi'): return {('exec', 0)}
    if neg == 'm0': return {('m0', 0)}
    return set()

TRANS = ('v_exp_f32', 'v_log_f32', 'v_rcp_f32', 'v_rsq_f32', 'v_sqrt_f32', 'v_sin_f32', 'v_cos_f32')

class Ins:
    def __init__(self, text):
        self.text = text
        t = text.split(';')[0].strip()
        parts = t.split(None, 1)
        self.mn = parts[0]
        rest = parts[1] if len(parts) > 1 else ''
        rest = re.sub(r'(\w+):\[[^\]]*\]', lambda m: m.group(0).replace(',', '_'), rest)
        ops = [o.strip() for o in rest.split(',')] if rest else []
        self.mods = ''
        if ops:
            lp = ops[-1].split(None, 1)
            ops[-1] = lp[0]
            self.mods = lp[1] if len(lp) > 1 else ''
        self.ops = ops
        mn = self.mn
        R = lambda i: regs_of(ops[i]) if i < len(ops) else set()
        allr = lambda a: set().union(*[R(i) for i in range(a, len(ops))]) if len(ops) > a else set()
        self.kind = 'other'; self.w = set(); self.r = set(); self.srcc = set(); self.ab = set(); self.passes = 0
        self.states = 1
        self.dpp = ('dpp' in mn) or ('row_' in self.mods) or ('quad_perm' in self.mods)
        if mn == 's_nop':
            self.states = int(ops[0], 0) + 1
        elif mn.startswith('v_mfma') or mn.startswith('v_smfmac'):
            self.kind = 'mfma'; self.w = R(0)
            self.passes = 8 if '32x32' in mn else 4
            if mn.startswith('v_mfma'):
                self.ab = R(1) | R(2); self.srcc = R(3)
            else:
                self.ab = R(1) | R(2) | R(3); self.srcc = R(0)
            self.r = self.ab | self.srcc
        elif mn.startswith('v_permlane') or mn.startswith('v_swap'):
            self.kind = 'valu'; self.w = R(0) | R(1); self.r = R(0) | R(1)
        elif mn.startswith('v_cmp'):
            self.kind = 'valu'; self.w = R(0); self.r = allr(1)
        elif mn.startswith('v_readfirstlane') or mn.startswith('v_readlane'):
            self.kind = 'valu'; self.w = R(0); self.r = allr(1)
        elif mn.startswith('v_'):
            self.kind = 'valu'; self.w = R(0); self.r = allr(1)
            if mn.startswith(('v_fmac', 'v_dot2c', 'v_writelane')) or self.dpp: self.r |= R(0)
            if '_co_' in mn: self.w |= R(1)
            if mn.startswith('v_cndmask') and len(ops) == 3: self.r |= {('vcc', 0)}
        elif mn.startswith('ds_'):
            self.kind = 'ds'
            if mn.startswith(('ds_read', 'ds_bpermute', 'ds_permute', 'ds_swizzle')) or '_rtn' in mn:
                self.w = R(0); self.r = allr(1)
            else:
                self.r = allr(0)
        elif mn.startswith(('buffer_', 'global_')):
            self.kind = 'vmem'
            lds = re.search(r'\blds\b', self.mods) is not None or '_lds_' in mn
            self.lds = lds
            if 'load' in mn and not lds:
                self.w = R(0); self.r = allr(1)
            elif 'atomic' in mn and 'sc0' in self.mods:
                self.w = R(0); self.r = allr(0)
            else:
                self.r = allr(0)
            if lds: self.r |= {('m0', 0)}
            self.wide_store = ('store' in mn and ('x3' in mn or 'x4' in mn))
            if self.wide_store:
                self.sdata = R(0) if mn.startswith('buffer_') else R(1)
        elif mn.startswith('s_'):
            self.kind = 'salu'
            if mn.startswith(('s_cmp', 's_bitcmp', 's_cbranch', 's_branch', 's_waitcnt', 's_barrier', 's_sleep', 's_setprio', 's_endpgm')):
                self.r = allr(0)
            else:
                self.w = R(0); self.r = allr(1)
                if 'saveexec' in mn: self.w |= {('exec', 0)}

def vec(s): return {x for x in s if x[0] in 'va'}
def sca(s): return {x for x in s if x[0] in ('s', 'vcc')}

def need(p, c):
    n = 0
    if p.kind == 'valu':
        pw = vec(p.w)
        if c.kind == 'mfma' and pw & c.r: n = max(n, 2)
        if c.kind == 'valu':
            if c.dpp and pw & c.r: n = max(n, 2)
            if c.mn.startswith('v_permlane') and pw & c.r: n = max(n, 2)
            if c.mn.startswith(('v_readfirstlane', 'v_readlane')) and pw & c.r: n = max(n, 1)
            if p.mn.startswith(TRANS) and pw & (c.r | c.w): n = max(n, 1)
            if sca(p.w) & c.r:
                n = max(n, 4 if c.mn.startswith(('v_readlane', 'v_writelane')) else 2)
        if c.kind == 'vmem' and sca(p.w) & c.r: n = max(n, 5)
        if c.kind == 'salu' and sca(p.w) & c.r: n = max(n, 1)
    if p.kind == 'mfma':
        big = {4: 8, 8: 12}[p.passes]
        if c.kind == 'mfma':
            if p.w & c.ab: n = max(n, big)
            if p.w & c.srcc:
                if not (p.w == c.srcc and p.passes == c.passes): n = max(n, big - 2)
            elif p.w & c.w: n = max(n, big)
        elif c.kind in ('valu', 'ds', 'vmem'):
            if p.w & (c.r | c.w): n = max(n, big)
            if c.kind == 'valu' and p.srcc & c.w: n = max(n, {4: 3, 8: 7}[p.passes])
    if p.kind == 'vmem' and getattr(p, 'wide_store', False):
        if p.sdata & c.w: n = max(n, 2)
    if p.kind == 'salu' and ('m0', 0) in p.w and ('m0', 0) in c.r and c.kind in ('vmem', 'ds'): n = max(n, 1)
    return n

class Asm:
    def __init__(self):
        self.lines = []
        self.hist = []
        self.branches = []
        self.nlab = 0
        self.pad_total = 0
        self.deferred = []
    def defer(self, fn): self.deferred.append(fn)
    def flush(self):
        while self.deferred:
            d, self.deferred = self.deferred, []
            for fn in d: fn()
    def raw(self, t): self.lines.append(('raw', t))
    def label(self, name): self.lines.append(('label', name))
    def newlabel(self, base):
        self.nlab += 1
        return f'L{base}_{self.nlab}'
    def _pad(self, hist, ins):
        d = 0; req = 0
        for p in reversed(hist):
            n = need(p, ins)
            if n - d > req: req = n - d
            d += p.states
            if d >= 20: break
        return req
    def __call__(self, text):
        for t in text.split('\n'):
            t = t.strip()
            if not t: continue
            if t.startswith(';'):
                self.raw('    ' + t); continue
            if t.endswith(':'):
                self.label(t[:-1]); continue
            ins = Ins(t)
            req = self._pad(self.hist, ins)
            while req > 0:
                k = min(req, 16)
                nop = Ins(f's_nop {k-1}')
                self.lines.append(('ins', nop)); self.hist.append(nop); req -= k; self.pad_total += k
            self.lines.append(('ins', ins)); self.hist.append(ins)
            self.hist = self.hist[-24:]
            if ins.mn.startswith(('s_cbranch', 's_branch')):
                self.branches.append((ins.ops[0], list(self.hist)))
            if ins.mn in ('s_branch', 's_endpgm'):
                self.hist = []
    def check_branches(self):
        idx = {t: i for i, (k, t) in enumerate(self.lines) if k == 'label'}
        bad = 0
        for lab, hist in self.branches:
            assert lab in idx, lab
            h = list(hist); n = 0
            for k, t in self.lines[idx[lab]:]:
                if k != 'ins': continue
                d = sum(x.states for x in h[len(hist):])
                dd = d
                for p in reversed(hist):
                    if need(p, t) > dd:
                        print(f'HAZARD across branch to {lab}: [{p.text}] -> [{t.text}] need {need(p,t)} have {dd}'); bad += 1
                    dd += p.states
                h.append(t); n += t.states
                if n > 14 or t.mn in ('s_branch', 's_endpgm'): break
        return bad
    def text(self):
        out = []
        for k, t in self.lines:
            if k == 'raw': out.append(t)
            elif k == 'label': out.append(t + ':')
            else: out.append('    ' + t.text)
        return '\n'.join(out) + '\n'

class Regs:
    def __init__(self, kind, lo, hi):
        self.kind = kind; self.n = lo; self.hi = hi; self.names = {}
    def alloc(self, name, cnt=1, align=None):
        if align is None: align = 1 if cnt == 1 else 2
        self.n = (self.n + align - 1) // align * align
        r = self.n; self.n += cnt
        assert self.n <= self.hi, f'out of {self.kind} regs at {name}: {self.n} > {self.hi}'
        self.names[name] = r
        return r

def V(n, c=1): return f'v{n}' if c == 1 else f'v[{n}:{n+c-1}]'
def A(n, c=1): return f'a{n}' if c == 1 else f'a[{n}:{n+c-1}]'
def S(n, c=1): return f's{n}' if c == 1 else f's[{n}:{n+c-1}]'
```

```python
import sys, struct
sys.path.insert(0, 'gen')
from asmlib import *
from layout import *

KNAME = 'gated_mix__memory_aug_recurrent_mem_tr__glu_gated_bilinear__prompt_kernel'

def f2u(x): return struct.unpack('<I', struct.pack('<f', x))[0]

WS = 's[4:7]'; DBG = 's[8:11]'; T1 = 's[12:15]'; T2 = 's[48:51]'
pX, pMEM0, pWQ, pWK, pWV, pWO, pWG, pWU, pWD, pGW, pOUT, pDBG, pWS = 16, 18, 20, 22, 24, 26, 32, 34, 36, 38, 40, 42, 44
sWave, sX, sR, sH, sXr, sJ, sHas2, sLim, sStep, sImp = 52, 53, 54, 55, 56, 57, 58, 59, 60, 61
sT0, sT1, sT2, sT3, sT4, sT5 = 62, 63, 64, 65, 66, 67
sbL, sbR, sbO = 68, 69, 70
sCL, sCR, sCO, sPL, sPO, sNL, sNO = 71, 72, 73, 74, 75, 76, 77
sSeg = 78
sSeg2 = 79
sEx = 80
sEx2 = 82
sTm = 84
sC = 88
sSpin = 89
sFl0, sFl1 = 90, 91
sPar = 46
sClm = 30

class Cfg:
    rx0 = 0; rx1 = 2; rx2 = 1; r2 = True
    qcue = True; scue = True; vo_sleep = 0; pf_ahead = 2; no_pf = True; pf64 = False
    ax = None; fx = None
    nc_qkx = 2; nc_vox = 1; nc_ff1 = 2; la = 1; early_pub = 6; km_sleep = 2
    roles = ('R', 'QKX', 'VOX', 'FF1', 'FIN')
    fake_xcc = None
    timing = False
    force_impure = False
    force_par = None
    rdelay1 = 0
    rdelay2 = 0
    nsteps = 64
    fine = 0
    rmode = 'hi'
    ldma = False
    uxack = True
    uxe = 0
    uxe2 = 0
    uxdel = 0
    cdel1 = 0
    g3del = 0
    gq = None
    gv = None
    vdepth = 1
    vgap = 15
    rdel = 0
    cdepth2 = 4
    npre0 = 0
    vfirst = True
    hidel = 8
    npre = 2
    r3 = True
    presleep = 64
    claim_at = 0
    keep_flags = False
    defer_ff = True
    dbgtime = None
    vox_prio = True
    ux_st = ''
    vcue = False
    cpos3 = 2
    cwave3 = 0
    cdel3 = 0
    sorder = 0
    bg_late = True
    pubord = 'LOV'
    cdel2 = 16
    h2cue2 = True
    vocue2 = True
    h2cue = False
    prio1 = True
    cdepth = 4
    cgap = 12
    cpos1 = 8
    cpos2 = 0
    w0ack = False
    rdelay1q = 3
    order = 0
    n0qk = 6
    b3b = False
    st3 = True
    um_early = 0
    n0vo = 6
    late_vo = False
    only = None
    n1qk = 8
    n1vo = 8
    trig1 = 0
    late_r = False
    no_ux = False
    ux_nt = ''

COUNT_RETRY = [False]
CLAIM_AT = [0]

def srd(a, q, p, nbytes):
    a(f's_mov_b32 s{q}, s{p}\ns_and_b32 s{q+1}, s{p+1}, 0xffff\ns_mov_b32 s{q+2}, {nbytes}\ns_mov_b32 s{q+3}, 0x00020000')

def maxtree(a, dst, regs):
    regs = list(regs)
    if len(regs) % 2 == 0:
        a(f'v_max_u32 v{dst}, v{regs[0]}, v{regs[1]}'); rest = regs[2:]
    else:
        a(f'v_max3_u32 v{dst}, v{regs[0]}, v{regs[1]}, v{regs[2]}'); rest = regs[3:]
    for i in range(0, len(rest), 2):
        a(f'v_max3_u32 v{dst}, v{dst}, v{rest[i]}, v{rest[i+1]}')

def poll(a, loads, regs, tmp, first_issued=False, spec=None, specwait=False, first_wait=0, sleep=0):
    top = a.newlabel('poll'); chk = a.newlabel('chk'); done = a.newlabel('pdone')
    a(f's_mov_b32 s{sSpin}, s{sLim}')
    if first_issued:
        a(f's_waitcnt vmcnt({first_wait})')
        a(f's_branch {chk}')
    a(f'{top}:')
    if specwait: a('s_waitcnt lgkmcnt(0)')
    for l in loads: a(l)
    a('s_waitcnt vmcnt(0)')
    a(f'{chk}:')
    if spec: spec()
    maxtree(a, tmp, regs)
    a(f'v_cmp_eq_u32 vcc, -1, v{tmp}')
    a(f's_cbranch_vccz {done}')
    if COUNT_RETRY[0] and first_issued: a('s_add_u32 s101, s101, 1')
    if sleep: a(f's_sleep {sleep}')
    a(f's_sub_u32 s{sSpin}, s{sSpin}, 1')
    a(f's_cbranch_scc0 {top}')
    a(f's_mov_b32 s{sLim}, 0')
    a(f'{done}:')

def check(a, loads, regs, tmp, wait, spec=None, specwait=False, post=None, cnt=None):
    back = a.newlabel('ck'); retry = a.newlabel('rt'); done = a.newlabel('ckd')
    a(f's_waitcnt vmcnt({wait})')
    a(f'{back}:')
    if spec: spec()
    maxtree(a, tmp, regs)
    a(f'v_cmp_eq_u32 vcc, -1, v{tmp}')
    if post: post()
    a(f's_cbranch_vccnz {retry}')
    a(f'{done}:')
    def ool():
        a(f'{retry}:')
        if COUNT_RETRY[0]: a('s_add_u32 s101, s101, 1')
        if COUNT_RETRY[0] == 2 and cnt: a(f's_add_u32 s{cnt}, s{cnt}, 1')
        a(f's_sub_u32 s{sLim}, s{sLim}, 1')
        l = a.newlabel('rg')
        a(f's_cbranch_scc0 {l}\ns_mov_b32 s{sLim}, 0\ns_branch {done}\n{l}:')
        if specwait: a('s_waitcnt lgkmcnt(0)')
        a('s_nop 7')
        for x in loads: a(x)
        a(f's_waitcnt vmcnt(0)\ns_branch {back}')
    a.defer(ool)

def lstore(a, insts):
    l1 = a.newlabel('ls'); l2 = a.newlabel('le')
    a(f's_cmp_lg_u32 s{sImp}, 0')
    a(f's_cbranch_scc1 {l1}')
    for i in insts: a(i)
    a(f's_branch {l2}')
    a(f'{l1}:')
    for i in insts: a(i + (' sc1' if i.startswith('buffer_') else ''))
    a(f'{l2}:')

LSTAT = 61440
LSLOT = 65536
vClaim = 20

def claim_issue(a, vt):
    l = a.newlabel('ci')
    a(f's_or_b32 s{sT0}, s{sWave}, s{sClm}\ns_cbranch_scc1 {l}')
    a(f's_lshl_b32 s{sT0}, 1, s{sR}\ns_lshl_b32 s{sT1}, s{sX}, 5\nv_mov_b32 v{vClaim}, s{sT0}\nv_mov_b32 v{vt}, s{sT1}')
    a(f's_mov_b64 exec, 1\nbuffer_atomic_or v{vClaim}, v{vt}, {DBG}, 0 offen sc0\ns_mov_b64 exec, -1')
    a(f'{l}:')

def wait_init(a, vt, vo, presleep=0, only_check=False):
    top = a.newlabel('wi'); done = a.newlabel('wid'); ok = a.newlabel('wok')
    a(f'v_min_u32 v{vo}, 7, v0\nv_lshlrev_b32 v{vo}, 5, v{vo}')
    a(f's_cmp_lg_u32 s{sWave}, 0\ns_cbranch_scc1 {done}')
    a(f's_mov_b32 s{sT2}, 0\ns_cmp_lg_u32 s{sClm}, 0\ns_cbranch_scc1 {ok}')
    a(f's_waitcnt vmcnt(0)\nv_readfirstlane_b32 s{sT0}, v{vClaim}\ns_lshr_b32 s{sT0}, s{sT0}, s{sR}\ns_and_b32 s{sT2}, s{sT0}, 1')
    a(f'{ok}:')
    a(f'v_mov_b32 v{vt}, {LSTAT}\nv_mov_b32 v{vClaim}, s{sT2}\nds_write_b32 v{vt}, v{vClaim}\ns_waitcnt lgkmcnt(0)')
    if not only_check:
        a(f's_cmp_lg_u32 s{sT2}, 0\ns_cbranch_scc1 {done}')
        a(f's_mov_b32 s{sSpin}, s{sLim}')
        a(f'{top}:')
        if presleep: a(f's_sleep {presleep}')
        a(f'buffer_load_dword v{vt}, v{vo}, {DBG}, 0 offen sc1')
        a('s_waitcnt vmcnt(0)')
        a(f'v_cmp_ne_u32 vcc, -1, v{vt}')
        a(f's_cbranch_vccz {done}')
        if not presleep: a('s_sleep 8')
        a(f's_sub_u32 s{sSpin}, s{sSpin}, 8')
        a(f's_cbranch_scc0 {top}')
        a(f's_mov_b32 s{sLim}, 0')
    a(f'{done}:')
    a('s_barrier')
    if not only_check: a(f'buffer_load_dword v{vt}, v{vo}, {DBG}, 0 offen offset:4 sc1')
    a(f'v_mov_b32 v{vo}, {LSTAT}\nds_read_b32 v{vo}, v{vo}\ns_waitcnt vmcnt(0) lgkmcnt(0)\nv_readfirstlane_b32 s{sT0}, v{vo}\ns_cmp_lg_u32 s{sT0}, 0\ns_cbranch_scc1 L_reclaim')
    if not only_check: a(f'v_readlane_b32 s{sT0}, v{vt}, 1\nv_readlane_b32 s{sT1}, v{vt}, 2\nv_readlane_b32 s{sImp}, v{vt}, 3')

def loader(a, chunks, vA, vB, vRd, vRd2, vt, vo, nslots=3, claim=True, early=None, nearly=0):
    n = len(chunks)
    def issue(i):
        c = chunks[i]
        if c.get('pre'): c['pre'](a)
        c['soff'](a)
        a(f's_lshl_b32 s{sT1}, s{sWave}, 12')
        a(f's_add_u32 s{sT1}, s{sT1}, {LSLOT + (i % nslots) * 32768}')
        for ii in range(4):
            a(f's_mov_b32 m0, s{sT1}')
            a(f'buffer_load_dwordx4 v{vB if c.get("var", lambda i: i >> 1)(ii) else vA}, {T1}, s{sT0} offen lds')
            if ii < 3:
                a(f's_add_u32 s{sT0}, s{sT0}, {4 * c["stride"]}\ns_add_u32 s{sT1}, s{sT1}, 1024')
    issue(0)
    if claim and CLAIM_AT[0] == 0:
        a('s_waitcnt vmcnt(4)\ns_barrier')
        claim_issue(a, vt)
    if early: early()
    for i in range(1, min(nslots, n)): issue(i)
    for i in range(n):
        a(f's_waitcnt vmcnt({4 * (min(i + nslots - 1, n - 1) - i)})')
        a('s_barrier')
        a(f'v_add_u32 v{vRd2}, {LSLOT + (i % nslots) * 32768}, v{chunks[i].get("vrd", vRd)}')
        chunks[i]['reads'](a, vRd2)
        a('s_waitcnt lgkmcnt(0)')
        if i + nslots < n:
            a('s_barrier')
            issue(i + nslots)
            if claim and CLAIM_AT[0] == i + 1: claim_issue(a, vt)

def src_offsets(a, vA, vB, vt, stride, colmap=None):
    for var, vd in ((0, vA), (1, vB)):
        a(f'v_lshrrev_b32 v{vt}, 4, v0')
        if var: a(f'v_or_b32 v{vt}, 4, v{vt}')
        a(f'v_bfe_u32 v{vd}, v0, 1, 3')
        a(f'v_xor_b32 v{vd}, v{vd}, v{vt}')
        if colmap is None:
            a(f'v_lshlrev_b32 v{vd}, 5, v{vd}')
        else:
            colmap(a, vd, vt)
        a(f'v_and_b32 v{vt}, 1, v0\nv_lshl_add_u32 v{vd}, v{vt}, 4, v{vd}')
        a(f'v_lshrrev_b32 v{vt}, 4, v0\nv_mul_u32_u24 v{vt}, {stride}, v{vt}\nv_add_u32 v{vd}, v{vd}, v{vt}')

def tr_base(a, vd, vt, unit_sreg):
    a(f'v_bfe_u32 v{vd}, v0, 2, 3')
    a(f'v_xor_b32 v{vd}, s{unit_sreg}, v{vd}')
    a(f'v_lshlrev_b32 v{vd}, 5, v{vd}')
    a(f'v_and_b32 v{vt}, 3, v0\nv_lshl_add_u32 v{vd}, v{vt}, 3, v{vd}')
    a(f'v_bfe_u32 v{vt}, v0, 2, 2\nv_lshl_add_u32 v{vd}, v{vt}, 8, v{vd}')
    a(f'v_lshrrev_b32 v{vt}, 4, v0\nv_lshl_add_u32 v{vd}, v{vt}, 11, v{vd}')

def std_reads(base):
    def f(a, va):
        for kk in range(4):
            for h in range(2):
                a(f'ds_read_b64_tr_b16 {A(base + kk * 4 + h * 2, 2)}, v{va} offset:{kk * 8192 + h * 1024}')
    return f

def tstamp(a, cfg, slot, vt, vo):
    if cfg.dbgtime:
        for (x, r, sl), word in cfg.dbgtime.items():
            if sl != slot: continue
            l = a.newlabel('dt')
            a(f's_cmp_lg_u32 s{sX}, {x}\ns_cbranch_scc1 {l}\ns_cmp_lg_u32 s{sR}, {r}\ns_cbranch_scc1 {l}\ns_cmp_lg_u32 s{sWave}, 0\ns_cbranch_scc1 {l}')
            a(f's_memrealtime s[{sTm}:{sTm+1}]\ns_waitcnt lgkmcnt(0)\ns_sub_u32 s{sTm}, s{sTm}, s3\nv_mov_b32 v{vt}, s{sTm}\nv_mov_b32 v{vo}, {4 * word}')
            a(f's_mov_b64 exec, 1\nbuffer_store_dword v{vt}, v{vo}, {DBG}, 0 offen sc1\ns_mov_b64 exec, -1\n{l}:')
        return
    if not cfg.timing: return
    a(f's_memrealtime s[{sTm}:{sTm+1}]\ns_waitcnt lgkmcnt(0)')
    a(f's_lshl_b32 s{sTm+2}, s{sX}, 5\ns_add_u32 s{sTm+2}, s{sTm+2}, s{sR}\ns_lshl_b32 s{sTm+2}, s{sTm+2}, 3\ns_add_u32 s{sTm+2}, s{sTm+2}, s{sWave}\ns_lshl_b32 s{sTm+2}, s{sTm+2}, 4')
    a(f's_add_u32 s{sTm+2}, s{sTm+2}, {TIM + slot * 4}')
    a(f'v_mov_b32 v{vt}, s{sTm}\nv_mov_b32 v{vo}, s{sTm+2}')
    a(f's_mov_b64 exec, 1\nbuffer_store_dword v{vt}, v{vo}, {WS}, 0 offen\ns_mov_b64 exec, -1')

def fstamp(a, cfg, k):
    if not cfg.fine: return
    if cfg.fine == -3:
        a(f's_memrealtime s[{12 + 2 * k}:{13 + 2 * k}]')
        return
    if cfg.fine == -2:
        if cfg.only is not None and k not in cfg.only: return
        a(f's_memrealtime s[{sTm}:{sTm+1}]\ns_waitcnt lgkmcnt(0)\ns_cmp_lt_u32 s{sStep}, 60\ns_cselect_b32 s{sTm}, s{sTm}, 0')
        a(f's_add_u32 s{sTm+1}, s{sTm}, s{92+k}\ns_cmp_ge_u32 s{sStep}, 4\ns_cselect_b32 s{92+k}, s{sTm+1}, 0')
        return
    if cfg.fine < 0:
        if cfg.only is not None and k not in cfg.only: return
        a(f's_memtime s[{sTm}:{sTm+1}]\ns_waitcnt lgkmcnt(0)\ns_sub_u32 s{sTm+1}, s{sTm}, s47\ns_mov_b32 s47, s{sTm}')
        a(f's_add_u32 s{sTm+1}, s{sTm+1}, s{92+k}\ns_cmp_ge_u32 s{sStep}, 4\ns_cselect_b32 s{92+k}, s{sTm+1}, 0')
        return
    if cfg.only is not None and k not in cfg.only: return
    a(f's_memtime s[{sTm}:{sTm+1}]\ns_waitcnt lgkmcnt(0)\ns_cmp_eq_u32 s{sStep}, {cfg.fine}\ns_cselect_b32 s{92+k}, s{sTm}, s{92+k}')
def facc(a, cfg):
    if cfg.fine != -3: return
    a('s_waitcnt lgkmcnt(0)')
    for k in range(9):
        a(f's_cmp_lt_u32 s{sStep}, 60\ns_cselect_b32 s{sTm}, s{12 + 2 * k}, 0\ns_add_u32 s{sTm}, s{sTm}, s{92 + k}\ns_cmp_ge_u32 s{sStep}, 4\ns_cselect_b32 s{92 + k}, s{sTm}, 0')

def fdump(a, cfg, vt, vo):
    if not cfg.fine: return
    a(f's_lshl_b32 s{sTm+2}, s{sX}, 5\ns_add_u32 s{sTm+2}, s{sTm+2}, s{sR}\ns_lshl_b32 s{sTm+2}, s{sTm+2}, 3\ns_add_u32 s{sTm+2}, s{sTm+2}, s{sWave}\ns_lshl_b32 s{sTm+2}, s{sTm+2}, 6')
    a(f's_add_u32 s{sTm+2}, s{sTm+2}, {FTIM}\nv_mov_b32 v{vo}, s{sTm+2}\ns_mov_b64 exec, 1')
    for k in range(10):
        a(f'v_mov_b32 v{vt}, s{92+k}\nbuffer_store_dword v{vt}, v{vo}, {WS}, 0 offen offset:{4*k}')
    a('s_mov_b64 exec, -1')

def prologue(a, cfg):
    COUNT_RETRY[0] = (2 if cfg.only == () else 1) if cfg.fine < 0 else 0
    if cfg.fine < 0: a('s_mov_b32 s98, 0\ns_mov_b32 s99, 0\ns_mov_b32 s100, 0')
    CLAIM_AT[0] = cfg.claim_at
    if cfg.fine < 0: a('s_mov_b32 s101, 0')
    a('s_cmp_ge_u32 s2, 256\ns_cbranch_scc1 L_end')
    if cfg.dbgtime: a(f's_memrealtime s[{sTm}:{sTm+1}]\ns_waitcnt lgkmcnt(0)\ns_mov_b32 s3, s{sTm}')
    a('s_load_dwordx16 s[16:31], s[0:1], 0\ns_load_dwordx8 s[32:39], s[0:1], 64\ns_load_dwordx4 s[40:43], s[0:1], 96\ns_load_dwordx2 s[44:45], s[0:1], 112')
    a(f'v_lshrrev_b32 v1, 6, v0\nv_and_b32 v0, 63, v0\nv_readfirstlane_b32 s{sWave}, v1')
    if cfg.fake_xcc is None:
        a(f's_getreg_b32 s{sX}, hwreg(HW_REG_XCC_ID)\ns_and_b32 s{sX}, s{sX}, 7')
    else:
        a(f's_mov_b32 s{sX}, {cfg.fake_xcc}')
    a(f's_mov_b32 s{sLim}, 0x80000')
    a('s_waitcnt lgkmcnt(0)')
    srd(a, 4, pWS, WS_BYTES); srd(a, 8, pDBG, 256)
    srd(a, 12, pWS, WS_BYTES); srd(a, 48, pWS, WS_BYTES)
    a(f's_lshr_b32 s{sR}, s2, 3\ns_mov_b32 s{sClm}, 0')
    tstamp(a, cfg, 0, 2, 3)
    a(f's_cmp_lg_u32 s{sX}, {cfg.rx0}\ns_cbranch_scc1 L_nocal\ns_cmp_lt_u32 s{sR}, 26\ns_cbranch_scc1 L_nocal')
    a(f's_cmp_lg_u32 s{sWave}, 7\ns_cbranch_scc1 L_caldone')
    a(f's_lshr_b32 s{sT0}, s2, 6\ns_lshl_b32 s{sT0}, s{sT0}, 14\ns_and_b32 s{sT1}, s2, 63\ns_lshl_b32 s{sT1}, s{sT1}, 7')
    a(f's_add_u32 s{sT0}, s{sT0}, s{sT1}\ns_add_u32 s{sT0}, s{sT0}, {CAL}')
    a(f'v_mov_b32 v2, s{sT0}\nv_add_u32 v3, 0x2000, v2\nv_mov_b32 v4, 0')
    a(f's_mov_b64 exec, 1\ns_mov_b32 s{sT2}, -1\ns_mov_b32 s{sT3}, -1')
    for rep in range(2):
        a(f'buffer_store_dword v4, v2, {WS}, 0 offen sc1\nbuffer_store_dword v4, v3, {WS}, 0 offen sc1\ns_waitcnt vmcnt(0)')
        for vv, sd in ((2, sT2), (3, sT3)):
            a(f's_memtime s[{sTm}:{sTm+1}]\ns_waitcnt lgkmcnt(0)')
            a(f'buffer_load_dword v5, v{vv}, {WS}, 0 offen sc1\ns_waitcnt vmcnt(0)')
            a(f's_memtime s[{sTm+2}:{sTm+3}]\ns_waitcnt lgkmcnt(0)')
            a(f's_sub_u32 s{sT0}, s{sTm+2}, s{sTm}\ns_min_u32 s{sd}, s{sd}, s{sT0}')
    a(f's_cmp_lt_u32 s{sT2}, s{sT3}\ns_cselect_b32 s{sT0}, {D_VOTE0}, {D_VOTE1}')
    a(f'v_mov_b32 v2, s{sT0}\nv_mov_b32 v4, 1')
    a(f'buffer_atomic_add v4, v2, {DBG}, 0 offen\ns_waitcnt vmcnt(0)\ns_mov_b64 exec, -1')
    a('L_caldone:')
    a('s_barrier')
    a('L_nocal:')
    if cfg.force_impure:
        a(f'v_mov_b32 v2, 1\nv_mov_b32 v3, {D_IMPURE}\ns_mov_b64 exec, 1\nbuffer_atomic_or v2, v3, {DBG}, 0 offen\ns_mov_b64 exec, -1')
    a('v_lshlrev_b32 v1, 4, v0\nv_mov_b32 v4, -1\nv_mov_b32 v5, -1\nv_mov_b32 v6, -1\nv_mov_b32 v7, -1')
    a(f's_cmp_ge_u32 s{sWave}, 6\ns_cbranch_scc1 L_ini67')
    assert NPRE * SL == 256 * 2048
    a(f's_lshr_b32 s{sT0}, s{sWave}, 1\ns_mul_i32 s{sT0}, s{sT0}, {XS}\ns_and_b32 s{sT1}, s{sWave}, 1\ns_lshl_b32 s{sT1}, s{sT1}, 10\ns_add_u32 s{sT0}, s{sT0}, s{sT1}\ns_lshl_b32 s{sT1}, s2, 11\ns_add_u32 s{sT0}, s{sT0}, s{sT1}')
    a(f'buffer_store_dwordx4 v[4:7], v1, {WS}, s{sT0} offen sc1\ns_branch L_dispatch')
    a('L_ini67:')
    def um0(su):
        a(f's_lshr_b32 s{sT0}, s{su}, 4\ns_lshl_b32 s{sT0}, s{sT0}, 20\ns_and_b32 s{sT1}, s{su}, 15\ns_lshl_b32 s{sT1}, s{sT1}, 10\ns_add_u32 s{sT0}, s{sT0}, s{sT1}\ns_add_u32 s{sT0}, s{sT0}, {UM}')
        a(f'buffer_store_dwordx4 v[4:7], v1, {WS}, s{sT0} offen sc1')
    a(f's_sub_u32 s{sT2}, s{sWave}, 6\ns_lshl_b32 s{sT2}, s{sT2}, 8\ns_add_u32 s{sT2}, s{sT2}, s2')
    um0(sT2)
    a(f's_cmp_eq_u32 s{sWave}, 6\ns_cbranch_scc1 L_ini6\ns_cmp_lt_u32 s2, 128\ns_cbranch_scc1 L_dispatch\ns_add_u32 s{sT2}, s2, 384')
    um0(sT2)
    a('s_branch L_dispatch')
    a('L_ini6:')
    if not cfg.keep_flags:
        a(f'v_mov_b32 v8, 0\nv_mov_b32 v9, 0\ns_lshl_b32 s{sT0}, s2, 7\ns_add_u32 s{sT0}, s{sT0}, {F_BASE}\ns_mov_b64 exec, 1\nbuffer_store_dwordx2 v[8:9], v8, {WS}, s{sT0} offen sc1\ns_mov_b64 exec, -1')
    a('s_branch L_dispatch')
    a('L_reclaim:')
    a(f's_waitcnt vmcnt(0) lgkmcnt(0)\ns_barrier\ns_mov_b32 s{sClm}, 1\ns_cmp_lg_u32 s{sWave}, 0\ns_cbranch_scc1 L_pro_join')
    a('s_mov_b64 exec, 1')
    a('L_claim_loop:')
    a(f's_lshl_b32 s{sT0}, 1, s{sR}\ns_lshl_b32 s{sT1}, s{sX}, 5')
    a(f'v_mov_b32 v2, s{sT0}\nv_mov_b32 v3, s{sT1}')
    a(f'buffer_atomic_or v2, v3, {DBG}, 0 offen sc0\ns_waitcnt vmcnt(0)')
    a(f'v_readfirstlane_b32 s{sT1}, v2')
    a(f's_and_b32 s{sT2}, s{sT1}, s{sT0}\ns_cbranch_scc0 L_claim_ok')
    a(f's_cmp_eq_u32 s{sT1}, -1\ns_cbranch_scc1 L_claim_next')
    a(f's_ff0_i32_b32 s{sR}, s{sT1}\ns_branch L_claim_loop')
    a('L_claim_next:')
    a(f'v_mov_b32 v2, 1\nv_mov_b32 v3, {D_IMPURE}\nbuffer_atomic_or v2, v3, {DBG}, 0 offen\ns_waitcnt vmcnt(0)')
    a(f's_add_u32 s{sX}, s{sX}, 1\ns_and_b32 s{sX}, s{sX}, 7\ns_mov_b32 s{sR}, 0\ns_branch L_claim_loop')
    a('L_claim_ok:')
    a(f's_lshl_b32 s{sT0}, s{sX}, 5\ns_or_b32 s{sT0}, s{sT0}, s{sR}')
    a(f'v_mov_b32 v2, s{sT0}\nv_mov_b32 v3, {LSTAT + 4}\nds_write_b32 v3, v2\ns_waitcnt lgkmcnt(0)\ns_mov_b64 exec, -1')
    a('L_pro_join:')
    a('s_barrier')
    a(f'v_mov_b32 v3, {LSTAT + 4}\nds_read_b32 v2, v3\ns_waitcnt lgkmcnt(0)')
    a(f'v_readfirstlane_b32 s{sT0}, v2')
    a(f's_lshr_b32 s{sX}, s{sT0}, 5\ns_and_b32 s{sX}, s{sX}, 7\ns_and_b32 s{sR}, s{sT0}, 31')
    a('L_dispatch:')
    if 'R' in cfg.roles:
        a(f's_mov_b32 s{sXr}, 0\ns_cmp_eq_u32 s{sX}, {cfg.rx0}\ns_cbranch_scc1 L_R')
        a(f's_mov_b32 s{sXr}, 1\ns_cmp_eq_u32 s{sX}, {cfg.rx1}\ns_cbranch_scc1 L_R')
        if cfg.r2: a(f's_mov_b32 s{sXr}, 2\ns_cmp_eq_u32 s{sX}, {cfg.rx2}\ns_cbranch_scc1 L_RVO')
    if cfg.r2:
        others = [x for x in range(8) if x not in (cfg.rx0, cfg.rx1, cfg.rx2)]
        ax, fx = cfg.ax or others[1:], cfg.fx or others[:1]
        R = lambda n: 'L_' + n if n in cfg.roles else 'L_idle'
        for i, x in enumerate(ax):
            a(f's_mov_b32 s{sT0}, {i}\ns_cmp_eq_u32 s{sX}, {x}\ns_cbranch_scc1 L_Atype')
        a(f's_cmp_lg_u32 s{sX}, {fx[0]}\ns_cbranch_scc1 L_idle')
        a(f's_lshr_b32 s{sH}, s{sR}, 1\ns_and_b32 s{sXr}, s{sR}, 1\ns_cmp_lt_u32 s{sR}, 28\ns_cbranch_scc1 {R("FF1")}')
        a('L_idle:')
        a('s_waitcnt vmcnt(0)\ns_barrier')
        claim_issue(a, 2)
        wait_init(a, 2, 3, only_check=True)
        a('s_branch L_end')
        a('L_Atype:')
        a(f's_and_b32 s{sH}, s{sR}, 7\ns_mov_b32 s{sXr}, s{sT0}\ns_cmp_ge_u32 s{sR}, 24\ns_cbranch_scc1 {R("FIN")}')
        a(f's_lshl_b32 s{sT0}, s{sT0}, 3\ns_add_u32 s{sH}, s{sH}, s{sT0}\ns_mov_b32 s{sXr}, 0\ns_cmp_ge_u32 s{sR}, 16\ns_cbranch_scc1 {R("VOX")}')
        a(f's_lshr_b32 s{sXr}, s{sR}, 3\ns_branch {R("QKX")}')
        assert cfg.nc_vox == 1 and cfg.nc_qkx == 2 and cfg.nc_ff1 == 2
        return
```

```python
MB = 1 << 20
SL = 32768
XS = 4 * MB
VOFF = 2048
CTL = 2 * MB
F_BASE = CTL + 0x40000
F_KX = F_BASE
F_PX = F_BASE + 64 * 128
F_UX = F_BASE + 128 * 128
F_H  = F_BASE + 192 * 128
F_G  = F_BASE + 224 * 128
F_PZ = F_UX + 128
NPRE = 16
TIM  = CTL + 0x2000
FTIM = CTL + 0x10000
GATE = CTL + 0x30000
PXM = 6 * MB
CAL = 248 * MB
KX = 10 * MB
KM = 26 * MB
PXX = 30 * MB
UM = 36 * MB
UX = 80 * MB
HB = 240 * MB
WS_BYTES = 256 * MB
D_VOTE0 = 36
D_VOTE1 = 68
D_IMPURE = 100
```

```python
from core import *

XB = 0
XBS = 40960
sCp = sXr
sI = sStep
sXo, sXm = sCL, sCR
WB = 640 * 4096 * 2

def zero_flag(a, sval_addr, nwords=1):
    l = a.newlabel('zf')
    a(f's_cmp_lg_u32 s{sWave}, 1\ns_cbranch_scc1 {l}')
    a(f'v_mov_b32 v8, 0\nv_lshlrev_b32 v9, 2, v0\nv_add_u32 v9, s{sval_addr}, v9\ns_mov_b64 exec, {(1 << nwords) - 1}\nbuffer_store_dword v8, v9, {WS}, 0 offen sc1\ns_mov_b64 exec, -1')
    a(f'{l}:')

def near_par(a, cfg):
    a(f's_cmp_gt_u32 s{sT1}, s{sT0}\ns_cselect_b32 s{sPar}, ' + ('0x2000, 0' if cfg.force_par is None else '0, 0x2000'))

def x_setup(a, vXo, vt, nc, vXr):
    srd(a, 48, pX, 2048 * 1280)
    a(f'v_lshrrev_b32 v{vt}, 3, v0\nv_and_b32 v{vXo}, 7, v0\nv_xor_b32 v{vXo}, v{vXo}, v{vt}\nv_lshlrev_b32 v{vXo}, 4, v{vXo}\nv_mul_u32_u24 v{vt}, 1280, v{vt}\nv_add_u32 v{vXo}, v{vXo}, v{vt}')
    a(f's_lshr_b32 s{sT0}, s{sWave}, 1\ns_mul_i32 s{sT0}, s{sT0}, 10240\ns_and_b32 s{sT1}, s{sWave}, 1\ns_mul_i32 s{sT1}, s{sT1}, 640\ns_add_u32 s{sXo}, s{sT0}, s{sT1}')
    a(f's_mul_i32 s{sT0}, s{sCp}, {XBS}\ns_add_u32 s{sXo}, s{sXo}, s{sT0}')
    a(f's_mul_i32 s{sXm}, s{sWave}, 5120\ns_add_u32 s{sXm}, s{sXm}, {XB}')
    a(f'v_lshrrev_b32 v{vXr}, 4, v0\nv_and_b32 v{vt}, 7, v0\nv_xor_b32 v{vXr}, v{vXr}, v{vt}\nv_lshlrev_b32 v{vXr}, 4, v{vXr}\nv_lshl_add_u32 v{vXr}, v{vt}, 7, v{vXr}')
    a(f'v_bfe_u32 v{vt}, v0, 3, 1\nv_mul_u32_u24 v{vt}, 10240, v{vt}\nv_add_u32 v{vXr}, v{vXr}, v{vt}\nv_add_u32 v{vXr}, {XB}, v{vXr}\nv_xor_b32 v{vXr + 1}, 64, v{vXr}')

def x_dma1(a, vXo, nc, i):
    a(f's_add_u32 m0, s{sXm}, {896 * i}')
    a(f'buffer_load_dwordx4 v{vXo}, {T2}, s{sXo} offen offset:{128 * i} lds')
    if i == 4:
        a(f's_add_u32 s{sXo}, s{sXo}, {nc * XBS}')
        a(f's_add_u32 s{sT0}, s{sXm}, {XBS}\ns_sub_u32 s{sT1}, s{sXm}, {XBS}\ns_cmp_lt_u32 s{sXm}, {XB + XBS}\ns_cselect_b32 s{sXm}, s{sT0}, s{sT1}')

def x_dma(a, vXo, nc):
    for i in range(5): x_dma1(a, vXo, nc, i)

def project(a, vXr, buf, nbuf, accs, ntile, hooks={}):
    def rd(kk):
        b = buf + 8 * (kk % nbuf)
        a(f'ds_read_b128 {V(b, 4)}, v{vXr + (kk & 1)} offset:{(kk >> 1) * 1024}\nds_read_b128 {V(b + 4, 4)}, v{vXr + (kk & 1)} offset:{20480 + (kk >> 1) * 1024}')
    for kk in range(nbuf - 1): rd(kk)
    for kk in range(20):
        if kk + nbuf - 1 < 20: rd(kk + nbuf - 1)
        left = min(19, kk + nbuf - 1) - kk
        a(f's_waitcnt lgkmcnt({2 * left})')
        b = buf + 8 * (kk % nbuf)
        for tt in range(2):
            for t in range(ntile):
                d = accs[t][tt]
                a(f'v_mfma_f32_16x16x32_bf16 {V(d, 4)}, {A(80 * t + 4 * kk, 4)}, {V(b + 4 * tt, 4)}, {"0" if kk == 0 else V(d, 4)}')
        if kk in hooks: hooks[kk]()

def dma_hooks(a, vXo, nc, at=(1, 4, 7, 10, 13)):
    return {kk: (lambda i=i: x_dma1(a, vXo, nc, i)) for i, kk in enumerate(at)}

def toggle_xr(a, vXr, vt):
    a(f'v_add_u32 v{vt}, {XBS}, v{vXr}\nv_subrev_u32 v{vXr}, {XBS}, v{vXr}\nv_min_u32 v{vXr}, v{vXr}, v{vt}\nv_xor_b32 v{vXr + 1}, 64, v{vXr}')

def flag_store(a, vaddr, vval, sval, wave):
    l = a.newlabel('fs')
    a(f's_cmp_lg_u32 s{sWave}, {wave}\ns_cbranch_scc1 {l}')
    a(f'v_mov_b32 v{vval}, s{sval}\ns_mov_b64 exec, 1\nbuffer_store_dword v{vval}, v{vaddr}, {WS}, 0 offen sc1\ns_mov_b64 exec, -1')
    a(f'{l}:')

def spin_ge(a, vaddr, vF, sneed, sleep=4):
    top = a.newlabel('sp'); done = a.newlabel('spd')
    a(f's_mov_b32 s{sSpin}, s{sLim}')
    a(f'{top}:')
    a(f'buffer_load_dword v{vF}, v{vaddr}, {WS}, 0 offen sc1\ns_waitcnt vmcnt(0)')
    a(f'v_cmp_gt_u32 vcc, s{sneed}, v{vF}')
    a(f's_cbranch_vccz {done}')
    a(f's_sleep {sleep}')
    a(f's_sub_u32 s{sSpin}, s{sSpin}, 1\ns_cbranch_scc0 {top}\ns_mov_b32 s{sLim}, 0')
    a(f'{done}:')

def col_soff(stride, colmul, scol):
    def g(n):
        return lambda a: a(f's_lshl_b32 s{sT0}, s{sWave}, 4\ns_add_u32 s{sT0}, s{sT0}, {128 * n}\ns_mul_i32 s{sT0}, s{sT0}, {stride}\ns_mul_i32 s{sT1}, s{scol}, {colmul}\ns_add_u32 s{sT0}, s{sT0}, s{sT1}')
    return g

vA, vB, vRd, vRd2, vt, vo = 10, 11, 12, 13, 14, 15

def role_VOX(a, cfg):
    nc = cfg.nc_vox; nit = 64 // nc
    VBUF = 2 * XBS
    a('L_VOX:')
    a(f's_lshl_b32 s{sT0}, s{sH}, 1\ns_add_u32 s{sT0}, s{sT0}, s{sCp}\ns_lshl_b32 s{sT0}, s{sT0}, 7\ns_add_u32 s{sFl0}, s{sT0}, {F_UX}')
    x_setup(a, 18, 19, nc, 2)
    src_offsets(a, vA, vB, vt, 8192)
    a(f's_and_b32 s{sT2}, s{sWave}, 3\ns_lshl_b32 s{sT2}, s{sT2}, 1')
    tr_base(a, vRd, vt, sT2)
    vRdO = 16
    a(f'v_lshrrev_b32 v{vt}, 4, v0\nv_lshlrev_b32 v{vt}, 10, v{vt}\nv_sub_u32 v{vRdO}, v{vRd}, v{vt}')
    def rdv(n):
        def f(a, va):
            l = a.newlabel('vv')
            a(f's_cmp_ge_u32 s{sWave}, 4\ns_cbranch_scc1 {l}')
            std_reads(16 * n)(a, va)
            a(f'v_xor_b32 v{va}, 32, v{va}')
            std_reads(80 + 16 * n)(a, va)
            a(f'{l}:')
        return f
    def rdo(c):
        def f(a, va):
            l = a.newlabel('vo')
            a(f's_cmp_ge_u32 s{sWave}, 4\ns_cbranch_scc0 {l}')
            for e in range(2):
                if e: a(f'v_xor_b32 v{va}, 32, v{va}')
                for kk in range(4):
                    for h in range(2): a(f'ds_read_b64_tr_b16 {A(32 * c + 16 * e + 4 * kk + 2 * h, 2)}, v{va} offset:{kk * 8192 + h * 4096}')
            a(f'{l}:')
        return f
    chunks = [dict(pre=(lambda a: srd(a, 12, pWV, WB)) if n == 0 else None, soff=col_soff(8192, 256, sH)(n), stride=8192, reads=rdv(n)) for n in range(5)]
    def pre(a):
        srd(a, 12, pWO, WB); src_offsets(a, vA, vB, vt, 1280)
    so = lambda c: (lambda a: a(f's_lshl_b32 s{sT0}, s{sH}, 7\ns_lshl_b32 s{sT1}, s{sWave}, 4\ns_add_u32 s{sT0}, s{sT0}, s{sT1}\ns_mul_i32 s{sT0}, s{sT0}, 1280\ns_add_u32 s{sT0}, s{sT0}, {256 * c}'))
    chunks += [dict(pre=pre if c == 0 else None, soff=so(c), stride=1280, reads=rdo(c), var=lambda i: i & 1, vrd=vRdO) for c in range(5)]
    loader(a, chunks, vA, vB, vRd, vRd2, vt, vo, early=lambda: x_dma(a, 18, nc))
    vXr, vL16, vNeg, vVw, vFa, vP1, vTmp, vXo = 2, 1, 4, 8, 9, 10, 12, 14
    vBuf = 16; vAcc = 48; vO = 80
    a(f'v_mov_b32 v{vXo}, v18')
    tstamp(a, cfg, 1, 16, 17)
    wait_init(a, 16, 17); near_par(a, cfg)
    a(f'v_lshlrev_b32 v{vL16}, 4, v0\nv_mov_b32 v{vFa}, s{sFl0}\ns_mov_b32 s{sI}, 0')
    a(f's_cmp_ge_u32 s{sWave}, 4\ns_cbranch_scc1 L_VOX_hi')
    for i in range(4): a(f'v_mov_b32 v{vNeg + i}, -1')
    a(f's_lshl_b32 s{sT0}, s{sWave}, 10\ns_add_u32 s{sT0}, s{sT0}, {VBUF}\nv_add_u32 v{vVw}, s{sT0}, v{vL16}')
    a(f'v_and_b32 v{vP1}, 15, v0\nv_lshlrev_b32 v{vP1}, 4, v{vP1}\ns_lshl_b32 s{sT0}, s{sH}, 8\ns_lshl_b32 s{sT1}, s{sWave}, 22\ns_add_u32 s{sT0}, s{sT0}, s{sT1}\nv_add_u32 v{vP1}, s{sT0}, v{vP1}')
    a(f'v_lshrrev_b32 v{vTmp}, 4, v0\nv_lshl_add_u32 v{vP1}, v{vTmp}, 20, v{vP1}\nv_lshrrev_b32 v{vTmp}, 5, v0\nv_lshlrev_b32 v{vTmp}, 13, v{vTmp}\nv_xor_b32 v{vTmp}, s{sPar}, v{vTmp}\nv_add_u32 v{vP1}, v{vP1}, v{vTmp}')
    assert nc == 1
    a(f's_mov_b32 s{sSeg2}, {UM + 16384}')
    a(f's_cmp_lt_u32 s{sWave}, 2\ns_cselect_b32 s{sFl1}, {32 * MB}, 0')
    a('L_VOX_lo:')
    fstamp(a, cfg, 0)
    a('s_waitcnt vmcnt(0) lgkmcnt(0)')
    fstamp(a, cfg, 1)
    a('s_barrier')
    fstamp(a, cfg, 2)
    a(f's_sub_u32 s{sT2}, s{sI}, 1\ns_sub_u32 s{sT3}, s{sI}, 2\ns_cmp_le_u32 s{sI}, {cfg.early_pub}\ns_cselect_b32 s{sT2}, s{sT2}, s{sT3}\ns_max_i32 s{sT2}, s{sT2}, 0')
    flag_store(a, vFa, vTmp + 1, sT2, 3)
    a(f's_cmp_ge_u32 s{sI}, {nit}\ns_cbranch_scc1 L_VOX_fin')
    hk = dma_hooks(a, vXo, nc, (4, 6, 8, 10, 12))
    hk[0] = lambda: a(f'buffer_store_dwordx4 {V(vNeg, 4)}, v{vP1}, {WS}, s{sSeg2} offen sc1\ns_add_u32 s{sT2}, s{sSeg2}, {16 * MB}')
    hk[1] = lambda: a(f'buffer_store_dwordx4 {V(vNeg, 4)}, v{vP1}, {WS}, s{sT2} offen sc1\ns_add_u32 s{sT2}, s{sSeg2}, s{sFl1}')
    hk[2] = lambda: a(f'buffer_store_dwordx4 {V(vNeg, 4)}, v{vP1}, {WS}, s{sT2} offen sc1\ns_cmp_eq_u32 s{sI}, 0\ns_cselect_b32 s{sT2}, 0, 16384\ns_add_u32 s{sSeg2}, s{sSeg2}, s{sT2}')
    project(a, vXr, vBuf, 4, [[vAcc, vAcc + 8], [vAcc + 4, vAcc + 12]], 2, hk)
    fstamp(a, cfg, 4)
    toggle_xr(a, vXr, vTmp)
    for q in range(8): a(f'v_cvt_pk_bf16_f32 v{vO + q}, v{vAcc + 2 * q}, v{vAcc + 2 * q + 1}')
    a(f'ds_write_b128 v{vVw}, {V(vO, 4)}\nds_write_b128 v{vVw}, {V(vO + 4, 4)} offset:4096')
    a(f'v_xor_b32 v{vVw}, 0x2000, v{vVw}')
    a(f's_add_u32 s{sI}, s{sI}, 1\ns_branch L_VOX_lo')
    a('L_VOX_fin:')
    a('s_barrier')
    flag_store(a, vFa, vTmp + 1, sI, 3)
    tstamp(a, cfg, 3, vt, vo)
    fdump(a, cfg, vt, vo)
    a('s_branch L_end')
    assert VBUF % 0x4000 == 0
    a('L_VOX_hi:')
    if cfg.vox_prio: a('s_setprio 1')
    a(f'v_add_u32 v{vVw}, {VBUF}, v{vL16}')
    a(f's_and_b32 s{sSeg}, s{sWave}, 3\ns_lshl_b32 s{sSeg}, s{sSeg}, 22\ns_lshl_b32 s{sT0}, s{sCp}, 15\ns_add_u32 s{sSeg}, s{sSeg}, s{sT0}\ns_lshl_b32 s{sT0}, s{sH}, 10\ns_add_u32 s{sSeg}, s{sSeg}, s{sT0}\ns_add_u32 s{sSeg}, s{sSeg}, {UX}')
    a('s_barrier')
    x_dma(a, vXo, nc)
    a(f's_mov_b32 s{sI}, 1\ns_waitcnt vmcnt(0)')
    a('L_VOX_hi_loop:')
    fstamp(a, cfg, 0)
    l = a.newlabel('ve')
    a(f's_waitcnt vmcnt(5)\ns_cmp_gt_u32 s{sI}, {cfg.early_pub}\ns_cbranch_scc1 {l}\ns_waitcnt vmcnt(0)\n{l}:')
    fstamp(a, cfg, 1)
    a('s_barrier')
    fstamp(a, cfg, 2)
    for i in range(8): a(f'ds_read_b128 {V(vBuf + 4 * i, 4)}, v{vVw} offset:{1024 * i}')
    a(f'v_xor_b32 v{vVw}, 0x2000, v{vVw}\ns_mov_b32 s{sT2}, s{sSeg}')
    def ep(t):
        o = vO + 4 * (t & 1); b = vAcc + 8 * (t % 3)
        for q in range(4): a(f'v_cvt_pk_bf16_f32 v{o + q}, v{b + 2 * q}, v{b + 2 * q + 1}')
        a(f'buffer_store_dwordx4 {V(o, 4)}, v{vL16}, {WS}, s{sT2} offen sc1{cfg.ux_st}')
        if t < 9: a(f's_add_u32 s{sT2}, s{sT2}, {2 * MB if t % 2 == 0 else 14 * MB}')
        if t < 5: x_dma1(a, vXo, nc, t)
    for t in range(10):
        if t == 0: a('s_waitcnt lgkmcnt(0)')
        for ks in range(4):
            for tt in range(2):
                d = vAcc + 8 * (t % 3) + 4 * tt
                a(f'v_mfma_f32_16x16x32_bf16 {V(d, 4)}, {V(vBuf + 16 * tt + 4 * ks, 4)}, {A(16 * t + 4 * ks, 4)}, {"0" if ks == 0 else V(d, 4)}')
        if t > 0: ep(t - 1)
    ep(9)
    fstamp(a, cfg, 4)
    a(f's_add_u32 s{sSeg}, s{sSeg}, {nc * 32768}\ns_add_u32 s{sI}, s{sI}, 1')
    a(f's_cmp_le_u32 s{sI}, {nit}\ns_cbranch_scc1 L_VOX_hi_loop')
    a('s_waitcnt vmcnt(0)\ns_barrier')
    fdump(a, cfg, vt, vo)
    a('s_branch L_end')

def gate_wait(a, vaddr, vF):
    a(f'v_and_b32 v{vaddr}, 31, v0\nv_lshlrev_b32 v{vaddr}, 7, v{vaddr}\nv_add_u32 v{vaddr}, {F_G}, v{vaddr}\ns_mov_b32 s{sT2}, 1')
    spin_ge(a, vaddr, vF, sT2)

def late_start(a, cfg, mid=None):
    a('s_waitcnt vmcnt(0)\ns_barrier')
    claim_issue(a, vt)
    wait_init(a, vt, vo, cfg.presleep); near_par(a, cfg)
    if mid: mid()
    if cfg.defer_ff and 'QKX' in cfg.roles:
        l = a.newlabel('ls')
        a(f's_cmp_lg_u32 s{sWave}, 0\ns_cbranch_scc1 {l}')
        a(f'v_mov_b32 v{vo}, {F_KX}\ns_mov_b32 s{sT2}, 1')
        spin_ge(a, vo, vt, sT2, 16)
        a(f'{l}:\ns_barrier')

def role_FF1(a, cfg):
    nc = cfg.nc_ff1; nit = 64 // nc
    FB = 640 * 1728 * 2
    a('L_FF1:')
    a(f's_lshl_b32 s{sT0}, s{sH}, 1\ns_add_u32 s{sT0}, s{sT0}, s{sCp}\ns_lshl_b32 s{sT0}, s{sT0}, 7\ns_add_u32 s{sFl0}, s{sT0}, {F_H}')
    late_start(a, cfg)
    src_offsets(a, vA, vB, vt, 3456); tr_base(a, vRd, vt, sWave)
    chunks = []
    for m, p in enumerate((pWG, pWU)):
        chunks += [dict(pre=(lambda a, p=p: srd(a, 12, p, FB)) if n == 0 else None, soff=col_soff(3456, 256, sH)(n), stride=3456, reads=std_reads(80 * m + 16 * n)) for n in range(5)]
    loader(a, chunks, vA, vB, vRd, vRd2, vt, vo, claim=False)
    vXr, vL16, vFa, vGa, vG, vTmp, vXo = 2, 1, 9, 8, 4, 12, 6
    vBuf = 16; vAcc = 48; vO = 64
    x_setup(a, vXo, vTmp, nc, vXr)
    x_dma(a, vXo, nc)
    tstamp(a, cfg, 1, vt, vo)
    gate_wait(a, vGa, vTmp)
    a(f'v_lshlrev_b32 v{vL16}, 4, v0\nv_mov_b32 v{vFa}, s{sFl0}')
    a(f'v_and_b32 v{vGa}, 15, v0\nv_lshlrev_b32 v{vGa}, 2, v{vGa}')
    a(f's_lshl_b32 s{sSeg2}, s{sCp}, 7\ns_add_u32 s{sSeg2}, s{sSeg2}, {GATE}')
    a(f's_lshl_b32 s{sT0}, s{sH}, 3\ns_add_u32 s{sT0}, s{sT0}, s{sWave}\ns_lshl_b32 s{sSeg}, s{sT0}, 10\ns_mul_i32 s{sT1}, s{sCp}, {112 * 1024}\ns_add_u32 s{sSeg}, s{sSeg}, s{sT1}\ns_add_u32 s{sSeg}, s{sSeg}, {HB}')
    a(f's_mov_b32 s{sI}, 0')
    a('L_FF1_loop:')
    fstamp(a, cfg, 0)
    a('s_waitcnt vmcnt(1)')
    fstamp(a, cfg, 1)
    a('s_barrier')
    fstamp(a, cfg, 2)
    a(f's_max_u32 s{sT2}, s{sI}, 1\ns_sub_u32 s{sT2}, s{sT2}, 1')
    flag_store(a, vFa, vTmp + 1, sT2, 0)
    hk = dma_hooks(a, vXo, nc, (2, 5, 8, 11, 14))
    hk[0] = lambda: a(f'buffer_load_dword v{vG}, v{vGa}, {WS}, s{sSeg2} offen sc1\nbuffer_load_dword v{vG + 1}, v{vGa}, {WS}, s{sSeg2} offen offset:64 sc1\ns_add_u32 s{sSeg2}, s{sSeg2}, {nc * 128}')
    project(a, vXr, vBuf, 4, [[vAcc, vAcc + 4], [vAcc + 8, vAcc + 12]], 2, hk)
    fstamp(a, cfg, 4)
    toggle_xr(a, vXr, vTmp)
    a(f's_waitcnt vmcnt(5)\nv_sub_f32 v{vG}, 1.0, v{vG}\nv_sub_f32 v{vG + 1}, 1.0, v{vG + 1}')
    for tt in range(2):
        for i in range(4): a(f'v_mul_f32 v{vAcc + 4 * tt + i}, v{vAcc + 4 * tt + i}, v{vG + tt}')
    for q in range(8): a(f'v_mul_f32 v{vAcc + q}, v{vAcc + q}, v{vAcc + 8 + q}')
    for q in range(4): a(f'v_cvt_pk_bf16_f32 v{vO + q}, v{vAcc + 2 * q}, v{vAcc + 2 * q + 1}')
    a(f'buffer_store_dwordx4 {V(vO, 4)}, v{vL16}, {WS}, s{sSeg} offen sc1')
    a(f's_add_u32 s{sSeg}, s{sSeg}, {nc * 112 * 1024}\ns_add_u32 s{sI}, s{sI}, 1')
    a(f's_cmp_lt_u32 s{sI}, {nit}\ns_cbranch_scc1 L_FF1_loop')
    a('s_waitcnt vmcnt(0)\ns_barrier')
    flag_store(a, vFa, vTmp + 1, sI, 0)
    tstamp(a, cfg, 3, vt, vo)
    fdump(a, cfg, vt, vo)
    a('s_branch L_end')

def role_QKX(a, cfg):
    nc = cfg.nc_qkx; nit = 64 // nc; LA = cfg.la; NS = LA + 1
    QB = 2 * XBS
    assert QB + NS * 16384 <= 163840
    a('L_QKX:')
    a(f's_lshl_b32 s{sT0}, s{sH}, 1\ns_add_u32 s{sT0}, s{sT0}, s{sCp}\ns_lshl_b32 s{sT0}, s{sT0}, 7\ns_add_u32 s{sFl1}, s{sT0}, {F_PX}\ns_add_u32 s{sFl0}, s{sT0}, {F_KX}')
    x_setup(a, 64, 19, nc, 2)
    src_offsets(a, vA, vB, vt, 8192)
    a(f's_and_b32 s{sT2}, s{sWave}, 3\ns_lshl_b32 s{sT2}, s{sT2}, 1')
    tr_base(a, vRd, vt, sT2)
    def rd(m, n):
        def f(a, va):
            l = a.newlabel('qk')
            a(f's_cmp_ge_u32 s{sWave}, 4\ns_cbranch_scc{1 if m == 0 else 0} {l}')
            std_reads(16 * n)(a, va)
            a(f'v_xor_b32 v{va}, 32, v{va}')
            std_reads(80 + 16 * n)(a, va)
            a(f'{l}:')
        return f
    chunks = []
    for m, p in enumerate((pWK, pWQ)):
        chunks += [dict(pre=(lambda a, p=p: srd(a, 12, p, WB)) if n == 0 else None, soff=col_soff(8192, 256, sH)(n), stride=8192, reads=rd(m, n)) for n in range(5)]
    loader(a, chunks, vA, vB, vRd, vRd2, vt, vo, early=lambda: x_dma(a, 64, nc))
    vXr, vL16, vNeg, vFa, vQw, vTmp, vTmp2, vXo = 2, 1, 4, 8, 9, 12, 13, 0
    vKm, vGa, vPm, vPf = 10, 11, 14, 15
    vBuf = 16; vAcc = 48; vO = 64; vMask = 72
    vS = 84
    tstamp(a, cfg, 1, vt, vo)
    wait_init(a, vt, vo)
    a(f'v_lshlrev_b32 v{vL16}, 4, v0\nv_mov_b32 v{vFa}, s{sFl0}')
    for i in range(4): a(f'v_mov_b32 v{vNeg + i}, -1')
    sQw, sQr, sKmP, sAt = sbL, sbR, sbO, sCO
    a(f's_lshr_b32 s{sT0}, s{sWave}, 2\ns_lshl_b32 s{sT0}, s{sT0}, 13\ns_and_b32 s{sT1}, s{sWave}, 3\ns_lshl_b32 s{sT1}, s{sT1}, 10\ns_add_u32 s{sT0}, s{sT0}, s{sT1}\ns_add_u32 s{sT0}, s{sT0}, {QB}\nv_add_u32 v{vQw}, s{sT0}, v{vL16}')
    a(f's_mov_b32 s{sQw}, 0\ns_mov_b32 s{sQr}, 0')
    a(f's_lshl_b32 s{sSeg}, s{sH}, 19\ns_lshl_b32 s{sT0}, s{sCp}, 13\ns_add_u32 s{sSeg}, s{sSeg}, s{sT0}\ns_add_u32 s{sSeg}, s{sSeg}, s{sT1}\ns_add_u32 s{sSeg}, s{sSeg}, {KX}')
    a(f's_lshl_b32 s{sKmP}, s{sH}, 11\ns_lshl_b32 s{sT0}, s{sCp}, 16\ns_add_u32 s{sKmP}, s{sKmP}, s{sT0}\ns_add_u32 s{sKmP}, s{sKmP}, {KM}')
    a(f's_mov_b32 s{sAt}, s{sCp}')
    a(f'v_and_b32 v{vKm}, 7, v0\nv_lshlrev_b32 v{vKm}, 4, v{vKm}\nv_lshrrev_b32 v{vTmp}, 4, v0\nv_lshl_add_u32 v{vKm}, v{vTmp}, 7, v{vKm}\ns_lshl_b32 s{sT0}, s{sH}, 11\ns_add_u32 s{sT0}, s{sT0}, {KM}\nv_add_u32 v{vKm}, s{sT0}, v{vKm}')
    a(f's_lshl_b32 s{sT0}, s{sWave}, 2\ns_add_u32 s{sT0}, s{sT0}, s{sFl1}\nv_mov_b32 v{vPf}, s{sT0}')
    a(f'v_and_b32 v{vPm}, 15, v0\nv_lshlrev_b32 v{vPm}, 4, v{vPm}\ns_lshr_b32 s{sT0}, s{sH}, 2\ns_lshl_b32 s{sT0}, s{sT0}, 11\ns_and_b32 s{sT1}, s{sH}, 3\ns_lshl_b32 s{sT1}, s{sT1}, 8\ns_add_u32 s{sT0}, s{sT0}, s{sT1}')
    a(f's_lshl_b32 s{sT1}, s{sWave}, 10\ns_add_u32 s{sT0}, s{sT0}, s{sT1}\ns_add_u32 s{sT0}, s{sT0}, {PXM}\nv_add_u32 v{vPm}, s{sT0}, v{vPm}')
    a(f's_lshl_b32 s{sT0}, s{sWave}, 4\nv_and_b32 v{vTmp}, 15, v0\nv_add_u32 v{vTmp}, s{sT0}, v{vTmp}\nv_lshrrev_b32 v{vTmp2}, 4, v0\nv_lshlrev_b32 v{vTmp2}, 2, v{vTmp2}\nv_sub_u32 v{vTmp}, v{vTmp}, v{vTmp2}')
    a(f'v_mov_b32 v{vS}, 0xff7fffff\nv_mov_b32 v{vS + 1}, 0')
    for t in range(2):
        for i in range(4):
            a(f'v_cmp_le_i32 vcc, {16 * t + i}, v{vTmp}\nv_cndmask_b32 v{vMask + 4 * t + i}, v{vS}, v{vS + 1}, vcc')
    a(f'v_cmp_le_u32 vcc, 32, v0')
    for i in range(4): a(f'v_cndmask_b32 v{vMask + 8 + i}, v{vS}, v{vS + 1}, vcc')
    a(f's_mov_b32 s{sC}, {f2u(128 ** -0.5 * 1.4426950408889634)}')
    a(f's_mov_b32 s{sEx}, 0\ns_mov_b32 s{sEx + 1}, 0xffff')
    a(f'v_mov_b32 v{vXo}, v{vO}')
    a(f's_mov_b32 s{sI}, 0')
    a('L_QKX_loop:')
    a(f's_cmp_ge_u32 s{sI}, {nit}\ns_cbranch_scc1 L_QKX_att')
    a('s_waitcnt vmcnt(0)\ns_barrier')
    l = a.newlabel('kp')
    a(f's_cmp_lg_u32 s{sWave}, 4\ns_cbranch_scc1 {l}')
    a(f'buffer_store_dwordx4 {V(vNeg, 4)}, v{vL16}, {WS}, s{sKmP} offen sc1\nbuffer_store_dwordx4 {V(vNeg, 4)}, v{vL16}, {WS}, s{sKmP} offen offset:1024 sc1')
    a(f'{l}:')
    a(f's_add_u32 s{sKmP}, s{sKmP}, {nc * 65536}')
    project(a, vXr, vBuf, 4, [[vAcc, vAcc + 8], [vAcc + 4, vAcc + 12]], 2, dma_hooks(a, vXo, nc))
    toggle_xr(a, vXr, vTmp)
    a(f'v_add_u32 v{vTmp}, s{sQw}, v{vQw}')
    for q in range(8): a(f'v_cvt_pk_bf16_f32 v{vO + q}, v{vAcc + 2 * q}, v{vAcc + 2 * q + 1}')
    a(f'ds_write_b128 v{vTmp}, {V(vO, 4)}\nds_write_b128 v{vTmp}, {V(vO + 4, 4)} offset:4096')
    l = a.newlabel('ks')
    a(f's_cmp_ge_u32 s{sWave}, 4\ns_cbranch_scc1 {l}')
    a(f's_add_u32 s{sT0}, s{sSeg}, 4096\nbuffer_store_dwordx4 {V(vO, 4)}, v{vL16}, {WS}, s{sSeg} offen sc1\nbuffer_store_dwordx4 {V(vO + 4, 4)}, v{vL16}, {WS}, s{sT0} offen sc1')
    a(f'{l}:')
    a(f's_add_u32 s{sSeg}, s{sSeg}, {nc * 8192}')
    a(f's_add_u32 s{sQw}, s{sQw}, 16384\ns_cmp_ge_u32 s{sQw}, {NS * 16384}\ns_cselect_b32 s{sQw}, 0, s{sQw}')
    a(f's_add_u32 s{sT3}, s{sI}, 1')
    a('s_waitcnt vmcnt(0) lgkmcnt(0)\ns_barrier')
    flag_store(a, vFa, vTmp + 1, sT3, 7)
    a('L_QKX_att:')
    a(f's_cmp_lt_u32 s{sI}, {LA}\ns_cbranch_scc1 L_QKX_next')
    a(f's_cmp_ge_u32 s{sWave}, 2\ns_cbranch_scc1 L_QKX_next')
    l = a.newlabel('gw')
    a(f's_cmp_lg_u32 s{sI}, {LA}\ns_cbranch_scc1 {l}')
    a(f'v_bfe_u32 v{vGa}, v{vL16}, 4, 5\nv_lshlrev_b32 v{vGa}, 7, v{vGa}\nv_add_u32 v{vGa}, {F_G}, v{vGa}\ns_mov_b32 s{sT2}, 1')
    spin_ge(a, vGa, vTmp, sT2)
    a(f'v_bfe_u32 v{vGa}, v{vL16}, 4, 4\nv_lshlrev_b32 v{vGa}, 2, v{vGa}\ns_lshl_b32 s{sT0}, s{sWave}, 6\ns_add_u32 s{sT0}, s{sT0}, {GATE}\nv_add_u32 v{vGa}, s{sT0}, v{vGa}')
    a(f'{l}:')
    vQ, vK0, vK1, vKM, vG = vBuf, vBuf + 16, vAcc, vBuf + 16, vO
    T0, T1_, M_ = vS, vS + 4, vS + 8
    a(f's_lshl_b32 s{sT0}, s{sAt}, 7\nbuffer_load_dword v{vG}, v{vGa}, {WS}, s{sT0} offen sc1')
    a(f's_add_u32 s{sT0}, s{sQr}, {QB}\nv_add_u32 v{vTmp}, s{sT0}, v{vL16}\ns_lshl_b32 s{sT1}, s{sWave}, 12\nv_add_u32 v{vTmp2}, s{sT1}, v{vTmp}')
    for ks in range(4):
        a(f'ds_read_b128 {V(vQ + 4 * ks, 4)}, v{vTmp2} offset:{8192 + 1024 * ks}\nds_read_b128 {V(vK0 + 4 * ks, 4)}, v{vTmp} offset:{1024 * ks}\nds_read_b128 {V(vK1 + 4 * ks, 4)}, v{vTmp} offset:{4096 + 1024 * ks}')
    for ks in range(4):
        a(f's_waitcnt lgkmcnt({9 - 3 * ks})')
        a(f'v_mfma_f32_16x16x32_bf16 {V(T0, 4)}, {V(vK0 + 4 * ks, 4)}, {V(vQ + 4 * ks, 4)}, {V(vMask, 4) if ks == 0 else V(T0, 4)}')
        a(f'v_mfma_f32_16x16x32_bf16 {V(T1_, 4)}, {V(vK1 + 4 * ks, 4)}, {V(vQ + 4 * ks, 4)}, {V(vMask + 4, 4) if ks == 0 else V(T1_, 4)}')
    a(f's_lshl_b32 s{sT2}, s{sAt}, 16\ns_nop 7')
    poll(a, [f'buffer_load_dwordx4 {V(vKM + 4 * ks, 4)}, v{vKm}, {WS}, s{sT2} offen offset:{512 * ks} sc1' for ks in range(4)], range(vKM, vKM + 16), vTmp, sleep=cfg.km_sleep)
    for ks in range(4):
        a(f'v_mfma_f32_16x16x32_bf16 {V(M_, 4)}, {V(vKM + 4 * ks, 4)}, {V(vQ + 4 * ks, 4)}, {V(vMask + 8, 4) if ks == 0 else V(M_, 4)}')
    mx, t2 = vTmp, vTmp2
    def allred(op):
        a(f'v_mov_b32 v{t2}, v{mx}\nv_permlane32_swap_b32 v{mx}, v{t2}\n{op} v{mx}, v{mx}, v{t2}')
        a(f'v_mov_b32 v{t2}, v{mx}\nv_permlane16_swap_b32 v{mx}, v{t2}\n{op} v{mx}, v{mx}, v{t2}')
    a(f'v_max_f32 v{mx}, v{vS}, v{vS + 1}')
    for i in range(2, 12, 2): a(f'v_max3_f32 v{mx}, v{mx}, v{vS + i}, v{vS + i + 1}')
    allred('v_max_f32')
    a(f'v_mul_f32 v{mx}, s{sC}, v{mx}')
    for i in range(12): a(f'v_fma_f32 v{vS + i}, v{vS + i}, s{sC}, -v{mx}')
    for i in range(12): a(f'v_exp_f32 v{vS + i}, v{vS + i}')
    a(f'v_add_f32 v{mx}, v{vS}, v{vS + 1}')
    for i in range(2, 12): a(f'v_add_f32 v{mx}, v{mx}, v{vS + i}')
    allred('v_add_f32')
    a(f'v_rcp_f32 v{mx}, v{mx}\nv_mul_f32 v{mx}, v{mx}, v{vG}')
    for i in range(12): a(f'v_mul_f32 v{vS + i}, v{vS + i}, v{mx}')
    for q in range(6): a(f'v_cvt_pk_bf16_f32 v{vS + q}, v{vS + 2 * q}, v{vS + 2 * q + 1}')
    a(f'v_permlane16_swap_b32 v{vS + 4}, v{vS + 6}\nv_permlane16_swap_b32 v{vS + 5}, v{vS + 7}')
    a(f's_lshl_b32 s{sT0}, s{sH}, 1\ns_add_u32 s{sT0}, s{sT0}, s{sWave}\ns_lshl_b32 s{sT0}, s{sT0}, 10\ns_add_u32 s{sT0}, s{sT0}, s{sT2}\ns_add_u32 s{sT0}, s{sT0}, {PXX}\ns_lshl_b32 s{sT1}, s{sAt}, 14')
    a(f'buffer_store_dwordx4 {V(vS, 4)}, v{vL16}, {WS}, s{sT0} offen sc1')
    a(f's_mov_b64 exec, s[{sEx}:{sEx + 1}]\nbuffer_store_dwordx4 {V(vS + 4, 4)}, v{vPm}, {WS}, s{sT1} offen sc1')
    a(f's_sub_u32 s{sT0}, s{sI}, {LA - 1}\ns_mov_b64 exec, 1\nv_mov_b32 v{vTmp}, s{sT0}\ns_waitcnt vmcnt(0)\nbuffer_store_dword v{vTmp}, v{vPf}, {WS}, 0 offen sc1\ns_mov_b64 exec, -1')
    a(f's_add_u32 s{sAt}, s{sAt}, {nc}')
    a(f's_add_u32 s{sQr}, s{sQr}, 16384\ns_cmp_ge_u32 s{sQr}, {NS * 16384}\ns_cselect_b32 s{sQr}, 0, s{sQr}')
    a('L_QKX_next:')
    a(f's_add_u32 s{sI}, s{sI}, 1\ns_cmp_lt_u32 s{sI}, {nit + LA}\ns_cbranch_scc1 L_QKX_loop')
    tstamp(a, cfg, 3, vt, vo)
    a('s_branch L_end')

def role_FIN(a, cfg):
    NG = 4
    a('L_FIN:')
    a(f's_lshl_b32 s{sJ}, s{sCp}, 3\ns_add_u32 s{sJ}, s{sJ}, s{sH}\ns_lshl_b32 s{sT0}, s{sJ}, 7\ns_add_u32 s{sFl0}, s{sT0}, {F_G}')
    def gates():
        srd(a, 48, pX, 2048 * 1280); srd(a, 12, pGW, 1280)
        a(f'v_and_b32 v2, 7, v0\nv_lshlrev_b32 v2, 4, v2\nv_lshrrev_b32 v3, 3, v0\nv_mul_u32_u24 v4, 1280, v3\nv_add_u32 v4, v4, v2')
        a(f's_lshl_b32 s{sT2}, s{sJ}, 3\ns_add_u32 s{sT2}, s{sT2}, s{sWave}\ns_mul_i32 s{sT0}, s{sT2}, 10240')
        for i in range(10):
            a(f'buffer_load_dwordx4 {V(16 + 4 * i, 4)}, v4, {T2}, s{sT0} offen offset:{128 * i}\nbuffer_load_dwordx4 {V(56 + 4 * i, 4)}, v2, {T1}, 0 offen offset:{128 * i}')
        a('v_mov_b32 v5, 0\ns_waitcnt vmcnt(0)')
        for i in range(40): a(f'v_dot2_f32_bf16 v5, v{16 + i}, v{56 + i}, v5')
        a('s_nop 2')
        a('v_add_f32_dpp v5, v5, v5 quad_perm:[1,0,3,2] row_mask:0xf bank_mask:0xf\nv_add_f32_dpp v5, v5, v5 quad_perm:[2,3,0,1] row_mask:0xf bank_mask:0xf\nv_add_f32_dpp v5, v5, v5 row_half_mirror row_mask:0xf bank_mask:0xf')
        a(f'v_mul_f32 v5, {hex(f2u(-1.4426950408889634))}, v5\nv_exp_f32 v5, v5\nv_add_f32 v5, 1.0, v5\nv_rcp_f32 v5, v5')
        a(f'v_lshlrev_b32 v3, 2, v3\ns_lshl_b32 s{sT2}, s{sT2}, 5\ns_add_u32 s{sT2}, s{sT2}, {GATE}')
        a(f's_mov_b32 exec_lo, 0x01010101\ns_mov_b32 exec_hi, 0x01010101\nbuffer_store_dword v5, v3, {WS}, s{sT2} offen sc1\ns_mov_b64 exec, -1')
        a(f's_waitcnt vmcnt(0)\ns_barrier\nv_mov_b32 v6, s{sFl0}\ns_mov_b32 s{sT2}, 1')
        flag_store(a, 6, 7, sT2, 1)
    late_start(a, cfg, gates)
    src_offsets(a, vA, vB, vt, 1280)
    a(f'v_bfe_u32 v{vRd}, v0, 2, 3\nv_lshlrev_b32 v{vRd}, 5, v{vRd}\nv_and_b32 v{vt}, 3, v0\nv_lshl_add_u32 v{vRd}, v{vt}, 3, v{vRd}\nv_lshrrev_b32 v{vt}, 2, v0\nv_lshl_add_u32 v{vRd}, v{vt}, 8, v{vRd}')
    a(f's_and_b32 s{sT0}, s{sWave}, 3\ns_lshl_b32 s{sT0}, s{sT0}, 13\nv_add_u32 v{vRd}, s{sT0}, v{vRd}')
    def rd(n):
        def f(a, va):
            l = a.newlabel('wd')
            a(f's_cmp_ge_u32 s{sWave}, 4\ns_cbranch_scc{1 if n % 2 == 0 else 0} {l}')
            for t in range(5):
                a(f'v_xor_b32 v{vo}, {32 * t}, v{va}')
                for h in range(2): a(f'ds_read_b64_tr_b16 {A(20 * (n // 2) + 4 * t + 2 * h, 2)}, v{vo} offset:{4096 * h}')
            a(f'{l}:')
        return f
    chunks = [dict(pre=(lambda a: srd(a, 12, pWD, 1728 * 1280)) if n == 0 else None, soff=col_soff(1280, 160, sH)(n), stride=1280, reads=rd(n), var=lambda i: i & 1) for n in range(14)]
    loader(a, chunks, vA, vB, vRd, vRd2, vt, vo, claim=False)
    tstamp(a, cfg, 1, vt, vo)
    srd(a, 12, pOUT, 2048 * 1280)
    vL16, vFh, vFu, vFp, vUm, vUm2, vRr, vOo, vTmp, vRw = 1, 2, 3, 4, 5, 6, 7, 8, 9, 10
    vAcc = 12; vBuf = 32
    acc = lambda t, tt: V(vAcc + 4 * t, 4) if tt == 0 else A(140 + 4 * t, 4)
    sS = sI
    a(f'v_lshlrev_b32 v{vL16}, 4, v0')
    cpar = lambda nc: f's_and_b32 s{sT1}, s{sCp}, {nc - 1}'
    a(cpar(cfg.nc_ff1)); a(f's_lshl_b32 s{sT1}, s{sT1}, 7\ns_add_u32 s{sT1}, s{sT1}, {F_H}\nv_min_u32 v{vFh}, 13, v0\nv_lshlrev_b32 v{vFh}, 8, v{vFh}\nv_add_u32 v{vFh}, s{sT1}, v{vFh}')
    a(cpar(cfg.nc_vox)); a(f's_lshl_b32 s{sT1}, s{sT1}, 7\ns_lshl_b32 s{sT0}, s{sWave}, 10\ns_add_u32 s{sT1}, s{sT1}, s{sT0}\ns_add_u32 s{sT1}, s{sT1}, {F_UX}\nv_and_b32 v{vFu}, 3, v0\nv_lshlrev_b32 v{vFu}, 8, v{vFu}\nv_add_u32 v{vFu}, s{sT1}, v{vFu}')
    a(cpar(cfg.nc_qkx)); a(f's_lshl_b32 s{sT1}, s{sT1}, 7\ns_lshl_b32 s{sT0}, s{sWave}, 10\ns_add_u32 s{sT1}, s{sT1}, s{sT0}\ns_add_u32 s{sT1}, s{sT1}, {F_PX}')
    a(f'v_bfe_u32 v{vFp}, v0, 1, 2\nv_lshlrev_b32 v{vFp}, 8, v{vFp}\nv_and_b32 v{vTmp}, 1, v0\nv_lshl_add_u32 v{vFp}, v{vTmp}, 2, v{vFp}\nv_add_u32 v{vFp}, s{sT1}, v{vFp}')
    a(f's_lshl_b32 s{sT0}, s{sWave}, 10\nv_add_u32 v{vUm}, s{sT0}, v{vL16}')
    a(f's_mul_i32 s{sT0}, s{sWave}, 10240\nv_add_u32 v{vRw}, s{sT0}, v{vL16}')
    a(f's_lshl_b32 s{sT0}, s{sWave}, 6\nv_add_u32 v{vTmp}, s{sT0}, v0\nv_mul_u32_u24 v{vRr}, 6554, v{vTmp}\nv_lshrrev_b32 v{vRr}, 16, v{vRr}')
    a(f'v_mul_u32_u24 v{vOo}, 10, v{vRr}\nv_sub_u32 v{vTmp}, v{vTmp}, v{vOo}')
    a(f'v_mul_u32_u24 v{vOo}, 1280, v{vRr}\nv_lshl_add_u32 v{vOo}, v{vTmp}, 4, v{vOo}\ns_mul_i32 s{sT0}, s{sH}, 160\nv_add_u32 v{vOo}, s{sT0}, v{vOo}')
    a(f'v_lshrrev_b32 v{vUm2}, 4, v{vRr}\nv_and_b32 v{vRr}, 15, v{vRr}\nv_lshlrev_b32 v{vRr}, 4, v{vRr}\nv_lshl_add_u32 v{vRr}, v{vUm2}, 10, v{vRr}')
    a(f'v_lshrrev_b32 v{vUm2}, 1, v{vTmp}\nv_lshl_add_u32 v{vRr}, v{vUm2}, 11, v{vRr}\nv_and_b32 v{vUm2}, 1, v{vTmp}\nv_lshl_add_u32 v{vRr}, v{vUm2}, 9, v{vRr}')
    sU = [sbL, sbR, sbO, sCL, sCR]
    sM = [sCO, sPL, sPO, sNL, sNO]
    for t in range(5):
        a(f's_mul_i32 s{sT0}, s{sH}, 5\ns_add_u32 s{sT0}, s{sT0}, {t}')
        a(f's_lshl_b32 s{sU[t]}, s{sT0}, 21\ns_lshl_b32 s{sT1}, s{sWave}, 12\ns_add_u32 s{sU[t]}, s{sU[t]}, s{sT1}\ns_lshl_b32 s{sT1}, s{sCp}, 15\ns_add_u32 s{sU[t]}, s{sU[t]}, s{sT1}\ns_add_u32 s{sU[t]}, s{sU[t]}, {UX}')
        a(f's_lshl_b32 s{sM[t]}, s{sT0}, 20\ns_bfe_u32 s{sT1}, s{sT0}, 0x10001\ns_lshl_b32 s{sT1}, s{sT1}, 13\ns_xor_b32 s{sT1}, s{sT1}, s{sPar}\ns_add_u32 s{sM[t]}, s{sM[t]}, s{sT1}\ns_lshl_b32 s{sT1}, s{sCp}, 14\ns_add_u32 s{sM[t]}, s{sM[t]}, s{sT1}\ns_add_u32 s{sM[t]}, s{sM[t]}, {UM}')
    a(f's_mov_b32 s{sS}, s{sCp}')
    sh = lambda nc: nc - 1
    a('L_FIN_loop:')
    a(f's_lshr_b32 s{sT2}, s{sS}, {sh(cfg.nc_ff1)}\ns_add_u32 s{sT2}, s{sT2}, 1')
    spin_ge(a, vFh, vTmp, sT2, 8)
    a(f's_mul_i32 s{sT2}, s{sS}, {112 * 1024}\ns_lshl_b32 s{sT0}, s{sWave}, 11\ns_add_u32 s{sT2}, s{sT2}, s{sT0}\ns_add_u32 s{sT2}, s{sT2}, {HB}')
    for n in range(7):
        if n == 6:
            a(f's_cmp_ge_u32 s{sWave}, 6\ns_cselect_b32 s{sT0}, 0, 16384\ns_add_u32 s{sT2}, s{sT2}, s{sT0}')
        a(f'buffer_load_dwordx4 {V(vBuf + 8 * n, 4)}, v{vL16}, {WS}, s{sT2} offen sc1\nbuffer_load_dwordx4 {V(vBuf + 8 * n + 4, 4)}, v{vL16}, {WS}, s{sT2} offen offset:1024 sc1')
        if n < 5: a(f's_add_u32 s{sT2}, s{sT2}, 16384')
    for n in range(7):
        b = vBuf + 8 * n
        a(f's_waitcnt vmcnt({12 - 2 * n})')
        a(f'v_swap_b32 v{b + 2}, v{b + 4}\nv_swap_b32 v{b + 3}, v{b + 5}')
        for t in range(5):
            for tt in range(2):
                a(f'v_mfma_f32_16x16x32_bf16 {acc(t, tt)}, {A(20 * n + 4 * t, 4)}, {V(b + 4 * tt, 4)}, {"0" if n == 0 else acc(t, tt)}')
    a(f's_lshr_b32 s{sT2}, s{sS}, {sh(cfg.nc_vox)}\ns_add_u32 s{sT2}, s{sT2}, 1')
    spin_ge(a, vFu, vTmp, sT2, 8)
    ub = lambda k: vBuf + 28 * (k & 1)
    def ldU(k):
        for t in range(5): a(f'buffer_load_dwordx4 {V(ub(k) + 4 * t, 4)}, v{vL16}, {WS}, s{sU[t]} offen offset:{1024 * k} sc1')
    sP = sT3
    def ldP(k):
        for tt in range(2): a(f'buffer_load_dwordx4 {V(ub(k) + 20 + 4 * tt, 4)}, v{vL16}, {WS}, s{sP} offen offset:{2048 * (k & 1) + 1024 * tt} sc1')
        if k & 1: a(f's_add_u32 s{sP}, s{sP}, 4096')
    def mm(k):
        for t in range(5):
            for tt in range(2):
                a(f'v_mfma_f32_16x16x32_bf16 {acc(t, tt)}, {V(ub(k) + 4 * t, 4)}, {V(ub(k) + 20 + 4 * tt, 4)}, {acc(t, tt)}')
    ldU(0); ldU(1)
    a(f's_lshr_b32 s{sT2}, s{sS}, {sh(cfg.nc_qkx)}\ns_add_u32 s{sT2}, s{sT2}, 1')
    spin_ge(a, vFp, vTmp, sT2, 2)
    a(f's_lshl_b32 s{sP}, s{sS}, 16\ns_lshl_b32 s{sT0}, s{sWave}, 13\ns_add_u32 s{sP}, s{sP}, s{sT0}\ns_add_u32 s{sP}, s{sP}, {PXX}')
    a(f's_lshl_b32 s{sT4}, s{sS}, 14\ns_lshl_b32 s{sT0}, s{sWave}, 11\ns_add_u32 s{sT4}, s{sT4}, s{sT0}\ns_add_u32 s{sT4}, s{sT4}, {PXM}')
    ldP(0); ldP(1)
    a('s_waitcnt vmcnt(2)'); mm(0); ldU(2); ldP(2)
    a('s_waitcnt vmcnt(7)'); mm(1); ldU(3); ldP(3)
    a('s_waitcnt vmcnt(7)'); mm(2)
    ldM = [f'buffer_load_dwordx4 {V(ub(0) + 4 * t, 4)}, v{vUm}, {WS}, s{sM[t]} offen sc1' for t in range(5)]
    for tt in range(2): a(f'buffer_load_dwordx4 {V(ub(0) + 20 + 4 * tt, 4)}, v{vL16}, {WS}, s{sT4} offen offset:{1024 * tt} sc1')
    for l in ldM: a(l)
    a('s_waitcnt vmcnt(7)'); mm(3)
    poll(a, ldM, range(ub(0), ub(0) + 20), vTmp, first_issued=True)
    mm(0)
    for t in range(5): a(f's_add_u32 s{sU[t]}, s{sU[t]}, {NG * 32768}\ns_add_u32 s{sM[t]}, s{sM[t]}, {NG * 16384}')
    a('s_barrier')
    for t in range(5):
        for tt in range(2): a(f'ds_write_b128 v{vRw}, {acc(t, tt)} offset:{(2 * t + tt) * 1024}')
    a('s_waitcnt lgkmcnt(0)\ns_barrier')
    l = a.newlabel('fr')
    a(f's_cmp_ge_u32 s{sWave}, 5\ns_cbranch_scc1 {l}')
    a(f'v_add_u32 v{vTmp}, {4 * 10240}, v{vRr}')
    for w in range(8):
        for h in range(2): a(f'ds_read_b128 {V(vBuf + 8 * w + 4 * h, 4)}, v{vRr if w < 4 else vTmp} offset:{(w & 3) * 10240 + 256 * h}')
    for w in range(1, 8):
        a(f's_waitcnt lgkmcnt({min(15, 14 - 2 * w)})')
        for i in range(8): a(f'v_add_f32 v{vBuf + i}, v{vBuf + i}, v{vBuf + 8 * w + i}')
    for q in range(4): a(f'v_cvt_pk_bf16_f32 v{vBuf + q}, v{vBuf + 2 * q}, v{vBuf + 2 * q + 1}')
    a(f's_mul_i32 s{sT0}, s{sS}, {XBS}\nbuffer_store_dwordx4 {V(vBuf, 4)}, v{vOo}, {T1}, s{sT0} offen')
    a(f'{l}:')
    a(f's_add_u32 s{sS}, s{sS}, {NG}\ns_cmp_lt_u32 s{sS}, 64\ns_cbranch_scc1 L_FIN_loop')
    tstamp(a, cfg, 3, vt, vo)
    a('s_branch L_end')
```

```python
from core import *

MEMBUF = 0; XBUF = 10240; KBUF = 16384; RED = 32768
FL3 = 5120
FL1, FL2 = 7680, 7936
WB = 640 * 4096 * 2
vL16, vIdx, vXw, vNeg, vTmp, vTmp2 = 1, 2, 3, 4, 8, 9
vAcc = 16; vZ = 24; vU = 56; vM = 88
vA, vB, vRd, vRd2, vt, vo = 10, 11, 12, 13, 14, 15
R4 = lambda b, n=4: list(range(b, b + n))

def bases(a, cfg):
    a(f's_cmp_gt_u32 s{sT1}, s{sT0}\ns_cselect_b32 s{sPar}, ' + ('0x2000, 0' if cfg.force_par is None else '0, 0x2000'))
    a(f's_mul_i32 s{sT3}, s{sXr}, {XS}\ns_add_u32 s{sbR}, s{sT3}, s{sPar}\ns_xor_b32 s{sbL}, s{sbR}, 0x2000')
    a(f's_sub_u32 s{sT3}, {XS}, s{sT3}\ns_add_u32 s{sbO}, s{sT3}, s{sPar}')
    a(f's_mov_b32 s{sStep}, 0\ns_mov_b32 s{sCL}, s{sbL}\ns_mov_b32 s{sCR}, s{sbR}\ns_mov_b32 s{sCO}, s{sbO}')
    a(f'v_lshlrev_b32 v{vL16}, 4, v0')

def advance(a, cfg, lab):
    a(f's_add_u32 s{sStep}, s{sStep}, 1\ns_add_u32 s{sCL}, s{sCL}, {SL}\ns_add_u32 s{sCR}, s{sCR}, {SL}\ns_add_u32 s{sCO}, s{sCO}, {SL}')
    if lab: a(f's_cmp_lt_u32 s{sStep}, {cfg.nsteps}\ns_cbranch_scc1 {lab}')

def quad_base(a, sd, sq):
    a(f's_mul_i32 s{sd}, s{sq}, 2560\ns_add_u32 s{sd}, s{sd}, 16384\ns_cmp_eq_u32 s{sq}, 3\ns_cselect_b32 s{sd}, 5120, s{sd}')

def flag_ld(vF, va, nc):
    return '\n'.join(f'buffer_load_dword v{vF + c}, v{va}, {WS}, 0 offen offset:{128 * c} sc1' for c in range(nc))

def flag_wait(a, vF, ld, nc, sleep=0):
    top = a.newlabel('fw'); done = a.newlabel('fwd')
    a(f's_mov_b32 s{sSpin}, s{sLim}\ns_lshr_b32 s{sT5}, s{sT4}, {nc - 1}')
    a(f'{top}:')
    if nc == 2:
        a(f's_bitcmp1_b32 s{sT4}, 0\ns_cselect_b64 vcc, -1, 0')
        a(f'v_cndmask_b32 v{vTmp}, v{vF}, v{vF + 1}, vcc')
        a(f'v_cmp_ge_u32 vcc, s{sT5}, v{vTmp}')
    else:
        a(f'v_cmp_ge_u32 vcc, s{sT5}, v{vF}')
    a(f's_cbranch_vccz {done}')
    if sleep: a(f's_sleep {sleep}')
    a(ld)
    a('s_waitcnt vmcnt(0)')
    a(f's_sub_u32 s{sSpin}, s{sSpin}, 1\ns_cbranch_scc0 {top}\ns_mov_b32 s{sLim}, 0')
    a(f'{done}:')

def cue_wait(a, cfg, vaddr, regs, sval, sbase=sbL):
    top = a.newlabel('cue'); done = a.newlabel('cued')
    D = len(regs)
    ld = lambda r: a(f'buffer_load_dword v{r}, v{vaddr}, {WS}, s{sbase} offen sc1')
    a(f's_mov_b32 s{sSpin}, s{sLim}')
    for r in regs:
        ld(r)
        if r != regs[-1]: a(f's_nop {cfg.cgap}')
    a(f'{top}:')
    for r in regs:
        a(f's_waitcnt vmcnt({D - 1})')
        a(f'v_cmp_gt_i32 vcc, s{sval}, v{r}')
        a(f's_cbranch_vccz {done}')
        ld(r)
    a(f's_sub_u32 s{sSpin}, s{sSpin}, 1\ns_cbranch_scc0 {top}\ns_mov_b32 s{sLim}, 0')
    a(f'{done}:')

def cue_send(a, vaddr, vval):
    a('s_mov_b64 exec, 1')
    lstore(a, [f'buffer_store_dword v{vval}, v{vaddr}, {WS}, s{sbL} offen'])
    a('s_mov_b64 exec, -1')

def idx_setup(a):
    a(f'v_mov_b32 v{vIdx}, 0x4444\nv_mov_b32 v{vTmp}, 0xeeee\nv_and_b32 v{vTmp2}, 8, v0\nv_cmp_ne_u32 vcc, 0, v{vTmp2}')
    a(f'v_cndmask_b32 v{vIdx}, v{vIdx}, v{vTmp}, vcc')

def rot_soff(n, rot):
    def f(a):
        a(f's_lshl_b32 s{sT0}, s{sWave}, 4\ns_add_u32 s{sT0}, s{sT0}, {128 * n}')
        if rot:
            a(f's_mul_i32 s{sT1}, s{sXr}, 320\ns_add_u32 s{sT0}, s{sT0}, s{sT1}')
            a(f's_cmp_ge_u32 s{sT0}, 640\ns_cselect_b32 s{sT1}, 640, 0\ns_sub_u32 s{sT0}, s{sT0}, s{sT1}')
        a(f's_lshl_b32 s{sT0}, s{sT0}, 13\ns_lshl_b32 s{sT1}, s{sH}, 8\ns_add_u32 s{sT0}, s{sT0}, s{sT1}')
    return f

def role_R(a, cfg):
    a('L_R:')
    a(f's_cmp_lt_u32 s{sR}, 16\ns_cbranch_scc1 L_RQK')
    a(f's_sub_u32 s{sJ}, s{sR}, 16')
    a(f's_cmp_eq_u32 s{sJ}, 15\ns_cbranch_scc1 L_idle')
    a('s_waitcnt vmcnt(0)\ns_barrier')
    claim_issue(a, vt)
    wait_init(a, vt, vo, cfg.presleep)
    tstamp(a, cfg, 1, vt + 2, vo + 2)
    bases(a, cfg)
    a(f's_cmp_eq_u32 s{sJ}, 14\ns_cbranch_scc1 L_PF\ns_cmp_ge_u32 s{sJ}, 10\ns_cbranch_scc1 L_PZ')
    role_S2(a, cfg)
    role_PF(a, cfg)
    role_QK(a, cfg)
    role_VO(a, cfg)

def role_QK(a, cfg):
    a('L_RQK:')
    a(f's_lshl_b32 s{sH}, s{sXr}, 4\ns_add_u32 s{sH}, s{sH}, s{sR}')
    src_offsets(a, vA, vB, vt, 8192)
    tr_base(a, vRd, vt, sWave)
    chunks = []
    for m, p in enumerate((pWQ, pWK)):
        chunks += [dict(pre=(lambda a, p=p: srd(a, 12, p, WB)) if n == 0 else None, soff=rot_soff(n, True), stride=8192, reads=std_reads(80 * m + 16 * n)) for n in range(5)]
    loader(a, chunks, vA, vB, vRd, vRd2, vt, vo)
    tstamp(a, cfg, 1, vt, vo)
    wait_init(a, vt, vo)
    bases(a, cfg); idx_setup(a)
    vXr = 10
    a(f'v_and_b32 v{vXw}, 15, v0\nv_lshlrev_b32 v{vXw}, 5, v{vXw}\nv_lshrrev_b32 v{vTmp}, 4, v0\nv_lshl_add_u32 v{vXw}, v{vTmp}, 3, v{vXw}')
    a(f's_lshl_b32 s{sT0}, s{sWave}, 9\ns_add_u32 s{sT0}, s{sT0}, {XBUF}\nv_add_u32 v{vXw}, s{sT0}, v{vXw}')
    a(f'v_lshlrev_b32 v{vXr}, 3, v0')
    def zero_acc():
        for i in range(8): a(f'v_mov_b32 v{vAcc + i}, 0')
    def half(t0):
        for i in range(5): a(f'ds_read_b128 {V(vZ + 4 * i, 4)}, v{vL16} offset:{MEMBUF + (t0 + i) * 1024}')
        for i in range(5):
            a(f's_waitcnt lgkmcnt({4 - i})')
            a(f'v_smfmac_f32_16x16x64_bf16 {V(vAcc, 4)}, {V(vZ + 4 * i, 4)}, {A((t0 + i) * 8, 8)}, v{vIdx}')
            a(f'v_smfmac_f32_16x16x64_bf16 {V(vAcc + 4, 4)}, {V(vZ + 4 * i, 4)}, {A(80 + (t0 + i) * 8, 8)}, v{vIdx}')
    def epilogue1():
        b = vAcc
        for i in range(4): a(f'v_permlane32_swap_b32 v{b + i}, v{b + 4 + i}')
        for i in range(4): a(f'v_add_f32 v{b + i}, v{b + i}, v{b + 4 + i}')
        a(f'v_cvt_pk_bf16_f32 v{b}, v{b}, v{b + 1}\nv_cvt_pk_bf16_f32 v{b + 1}, v{b + 2}, v{b + 3}')
        a(f'ds_write_b64 v{vXw}, {V(vAcc, 2)}')
        a('s_waitcnt lgkmcnt(0)\ns_barrier')
    a(f's_cmp_lt_u32 s{sWave}, 4\ns_cbranch_scc1 L_QK_lo')
    a('L_QK_hi:')
    zero_acc()
    if cfg.qcue: a('s_barrier')
    a('s_barrier'); half(0)
    a('s_barrier'); half(5); epilogue1()
    if cfg.bg_late: a('s_barrier')
    a(f's_add_u32 s{sStep}, s{sStep}, 1\ns_cmp_lt_u32 s{sStep}, {cfg.nsteps}\ns_cbranch_scc1 L_QK_hi')
    a('s_branch L_end')
    a('L_QK_lo:')
    vM16, vM4, vPs, vKr, vKf, vKs, vCs, vC2 = [vM + i for i in range(8)]
    vCv, vMask = 11, 12
    vPL = vZ + 20; vPR = vZ + 26
    vCr = [vU + i for i in range(cfg.cdepth)]
    a(f's_mul_i32 s{sT0}, s{sWave}, 1280\nv_add_u32 v{vM16}, s{sT0}, v{vL16}\ns_add_u32 s{sT0}, s{sT0}, 1024\nv_lshlrev_b32 v{vM4}, 2, v0\nv_add_u32 v{vM4}, s{sT0}, v{vM4}')
    a(f's_bfe_u32 s{sT1}, s{sH}, 0x20002')
    quad_base(a, sT0, sT1)
    a(f's_and_b32 s{sT1}, s{sH}, 3\ns_mul_i32 s{sT1}, s{sT1}, 640\ns_add_u32 s{sT0}, s{sT0}, s{sT1}')
    a(f'v_and_b32 v{vKs}, 7, v0\nv_lshlrev_b32 v{vKs}, 4, v{vKs}\nv_lshrrev_b32 v{vTmp}, 4, v0\nv_lshl_add_u32 v{vKs}, v{vTmp}, 7, v{vKs}')
    a(f'v_bfe_u32 v{vTmp}, v0, 3, 1\nv_lshl_add_u32 v{vPs}, v{vTmp}, 8, v{vKs}\nv_add_u32 v{vPs}, s{sT0}, v{vPs}')
    a(f's_mov_b32 s{sEx}, 0\ns_mov_b32 s{sEx + 1}, 0x00ff00ff')
    a(f'v_mov_b32 v{vTmp}, 0xff7fffff\nv_mov_b32 v{vTmp2}, 0')
    for i in range(4): a(f'v_cndmask_b32 v{vMask + i}, v{vTmp}, v{vTmp2}, s[{sEx}:{sEx + 1}]')
    a(f's_mov_b32 s{sEx}, 0x00ff00ff\ns_mov_b32 s{sEx + 1}, 0x00ffffff')
    a(f's_mov_b32 s{sEx2}, 0xff00ff00\ns_mov_b32 s{sEx2 + 1}, 0xff00ff00')
    a(f's_mov_b32 s{sC}, {f2u(128 ** -0.5 * 1.4426950408889634)}')
    a(f's_lshl_b32 s{sT1}, s{sH}, 8\ns_add_u32 s{sT1}, s{sT1}, {F_KX}\nv_mov_b32 v{vKf}, s{sT1}')
    a(f's_lshl_b32 s{sSeg2}, s{sH}, 11\ns_add_u32 s{sSeg2}, s{sSeg2}, {KM}')
    a(f'v_add_u32 v{vKr}, {KBUF}, v{vL16}')
    a(f'v_min_u32 v{vC2}, 9, v0\nv_lshlrev_b32 v{vC2}, 2, v{vC2}\nv_add_u32 v{vC2}, {FL2}, v{vC2}')
    a(f's_lshl_b32 s{sT0}, s{sR}, 2\ns_add_u32 s{sT0}, s{sT0}, {FL1}\nv_mov_b32 v{vCs}, s{sT0}')
    vKF = vU
    sK, sKm = sFl0, sFl1
    a(f's_lshl_b32 s{sK}, s{sH}, 19\ns_add_u32 s{sK}, s{sK}, {KX}\ns_mov_b32 s{sKm}, {KBUF}')
    ldK = flag_ld(vKF, vKf, cfg.nc_qkx)
    def kx_dma():
        flag_wait(a, vKF, ldK, cfg.nc_qkx)
        for hh in range(2):
            a(f's_mov_b32 m0, s{sKm}')
            for i in range(4): a(f'buffer_load_dwordx4 v{vL16}, {WS}, s{sK} offen offset:{1024 * i} sc1 lds')
            a(f's_add_u32 s{sK}, s{sK}, 4096\ns_add_u32 s{sKm}, s{sKm}, 4096')
        a(ldK)
        a(f's_and_b32 s{sKm}, s{sKm}, 0x3fff\ns_or_b32 s{sKm}, s{sKm}, {KBUF}')
    a(f's_cmp_lg_u32 s{sWave}, 3\ns_cbranch_scc1 L_QK_lo_go')
    a(f'v_mov_b32 v{vKF}, 0\nv_mov_b32 v{vKF + 1}, 0\ns_mov_b32 s{sT4}, 0')
    kx_dma()
    a('L_QK_lo_go:')
    tstamp(a, cfg, 2, vTmp, vTmp2)
    a('L_QK_lo_loop:')
    fstamp(a, cfg, 0)
    zero_acc()
    a(f'v_mov_b32 v{vCv}, s{sStep}')
    ldL = [f'buffer_load_dwordx4 {V(vPL, 4)}, v{vM16}, {WS}, s{sCL} offen sc1', f'buffer_load_dword v{vPL + 4}, v{vM4}, {WS}, s{sCL} offen sc1']
    ldR = [f'buffer_load_dwordx4 {V(vPR, 4)}, v{vM16}, {WS}, s{sCR} offen sc1', f'buffer_load_dword v{vPR + 4}, v{vM4}, {WS}, s{sCR} offen sc1']
    wrL = lambda: a(f'ds_write_b128 v{vM16}, {V(vPL, 4)} offset:{MEMBUF}\nds_write_b32 v{vM4}, v{vPL + 4} offset:{MEMBUF}')
    if cfg.qcue:
        lc = a.newlabel('c2')
        a(f's_cmp_lg_u32 s{sWave}, 2\ns_cbranch_scc1 {lc}')
        cue_wait(a, cfg, vC2, vCr, sStep)
        a(f'{lc}:')
        a('s_setprio 3\ns_barrier')
        fstamp(a, cfg, 1)
        for l in ldL: a(l)
        a('s_setprio 0')
        for l in ldR: a(l)
        poll(a, ldL, R4(vPL, 5), vTmp, first_issued=True, first_wait=2, spec=wrL, specwait=True)
        a('s_waitcnt lgkmcnt(0)\ns_barrier')
    else:
        poll(a, ldL, R4(vPL, 5), vTmp, spec=wrL, specwait=True)
        fstamp(a, cfg, 1)
        a('s_waitcnt lgkmcnt(0)\ns_barrier')
        for l in ldR: a(l)
    fstamp(a, cfg, 2)
    half(0)
    lk = a.newlabel('kr')
    a(f's_cmp_lg_u32 s{sWave}, 0\ns_cbranch_scc1 {lk}')
    for i in range(8): a(f'ds_read_b128 {V(vU + 4 * i, 4)}, v{vKr} offset:{1024 * i}')
    a(f'v_xor_b32 v{vKr}, 0x2000, v{vKr}')
    a(f'{lk}:')
    fstamp(a, cfg, 3)
    poll(a, ldR, R4(vPR, 5), vTmp, first_issued=True,
         spec=lambda: a(f'ds_write_b128 v{vM16}, {V(vPR, 4)} offset:{MEMBUF + 5120}\nds_write_b32 v{vM4}, v{vPR + 4} offset:{MEMBUF + 5120}'), specwait=True)
    fstamp(a, cfg, 4)
    a('s_waitcnt lgkmcnt(0)\ns_barrier')
    fstamp(a, cfg, 5)
    half(5)
    epilogue1()
    fstamp(a, cfg, 6)
    a(f's_cmp_lg_u32 s{sWave}, 0\ns_cbranch_scc1 L_QK_w123')
    vX = vZ
    for ks in range(4):
        for h in range(2): a(f'ds_read_b64_tr_b16 {V(vX + 4 * ks + 2 * h, 2)}, v{vXr} offset:{XBUF + ks * 1024 + h * 512}')
    a('s_setprio 3')
    T0, T1_, M_ = vZ + 16, vZ + 20, vZ + 24
    for ks in range(4):
        a(f's_waitcnt lgkmcnt({6 - 2 * ks})')
        a(f'v_mfma_f32_16x16x32_bf16 {V(M_, 4)}, {V(vX + 4 * ks, 4)}, {V(vX + 4 * ks, 4)}, {V(vMask, 4) if ks == 0 else V(M_, 4)}')
        a(f'v_mfma_f32_16x16x32_bf16 {V(T1_, 4)}, {V(vU + 16 + 4 * ks, 4)}, {V(vX + 4 * ks, 4)}, {"0" if ks == 0 else V(T1_, 4)}')
        a(f'v_mfma_f32_16x16x32_bf16 {V(T0, 4)}, {V(vU + 4 * ks, 4)}, {V(vX + 4 * ks, 4)}, {"0" if ks == 0 else V(T0, 4)}')
    mx, t2 = vTmp, vTmp2
    if cfg.cpos1 == 0:
        cue_send(a, vCs, vCv); a('s_nop 3')
    a(f'v_max3_f32 v{mx}, v{M_}, v{M_ + 1}, v{M_ + 2}\nv_max_f32 v{mx}, v{mx}, v{M_ + 3}')
    for i in range(4): a(f'v_mov_b32_dpp v{T0 + i}, v{T1_ + i} row_shr:8 row_mask:0xf bank_mask:0xc')
    def allred(op):
        a(f'{op}_dpp v{mx}, v{mx}, v{mx} row_ror:8 row_mask:0xf bank_mask:0xf')
        a(f'v_mov_b32 v{t2}, v{mx}\nv_permlane32_swap_b32 v{mx}, v{t2}\n{op} v{mx}, v{mx}, v{t2}')
        a(f'v_mov_b32 v{t2}, v{mx}\nv_permlane16_swap_b32 v{mx}, v{t2}\n{op} v{mx}, v{mx}, v{t2}')
    a(f'v_max3_f32 v{mx}, v{mx}, v{T0}, v{T0 + 1}\nv_max3_f32 v{mx}, v{mx}, v{T0 + 2}, v{T0 + 3}')
    allred('v_max_f32')
    if cfg.cpos1 == 1: cue_send(a, vCs, vCv)
    a(f'v_mul_f32 v{mx}, s{sC}, v{mx}')
    E = [T0 + i for i in range(4)] + [M_ + i for i in range(4)]
    for r in E: a(f'v_fma_f32 v{r}, v{r}, s{sC}, -v{mx}')
    for r in E: a(f'v_exp_f32 v{r}, v{r}')
    a(f'v_add_f32 v{mx}, v{E[0]}, v{E[1]}\nv_add_f32 v{t2}, v{E[2]}, v{E[3]}\nv_add_f32 v{mx}, v{mx}, v{E[4]}\nv_add_f32 v{t2}, v{t2}, v{E[5]}')
    a(f'v_add_f32 v{mx}, v{mx}, v{E[6]}\nv_add_f32 v{t2}, v{t2}, v{E[7]}\nv_add_f32 v{mx}, v{mx}, v{t2}')
    if cfg.cpos1 == 2: cue_send(a, vCs, vCv)
    allred('v_add_f32')
    if cfg.cpos1 == 3: cue_send(a, vCs, vCv)
    a(f'v_rcp_f32 v{mx}, v{mx}')
    for r in reversed(E): a(f'v_mul_f32 v{r}, v{r}, v{mx}')
    a(f'v_cvt_pk_bf16_f32 v{M_}, v{M_}, v{M_ + 1}\nv_cvt_pk_bf16_f32 v{M_ + 1}, v{M_ + 2}, v{M_ + 3}')
    a(f'v_cvt_pk_bf16_f32 v{T0}, v{T0}, v{T0 + 1}\nv_cvt_pk_bf16_f32 v{T0 + 1}, v{T0 + 2}, v{T0 + 3}')
    a(f'v_permlane16_swap_b32 v{M_}, v{M_ + 2}\nv_permlane16_swap_b32 v{M_ + 1}, v{M_ + 3}')
    a(f'v_mov_b32_dpp v{T0 + 2}, v{T0} row_shl:8 row_mask:0xf bank_mask:0x3\nv_mov_b32_dpp v{T0 + 3}, v{T0 + 1} row_shl:8 row_mask:0xf bank_mask:0x3')
    for i in range(4): a(f'v_mov_b32_dpp v{T0 + i}, v{M_ + i} row_shr:8 row_mask:0x4 bank_mask:0xc')
    fstamp(a, cfg, 7)
    a(f's_mov_b64 exec, s[{sEx}:{sEx + 1}]')
    lstore(a, [f'buffer_store_dwordx4 {V(T0, 4)}, v{vPs}, {WS}, s{sCL} offen'])
    a(f'buffer_store_dwordx4 {V(T0, 4)}, v{vPs}, {WS}, s{sCO} offen sc1')
    a('s_mov_b64 exec, -1')
    if cfg.cpos1 == 4: cue_send(a, vCs, vCv)
    a('s_setprio 0')
    if cfg.bg_late: a('s_barrier')
    a('s_branch L_QK_lo_tail')
    a('L_QK_w123:')
    if cfg.bg_late: a('s_barrier')
    a(f's_cmp_eq_u32 s{sWave}, 1\ns_cbranch_scc1 L_QK_w1')
    a(f's_cmp_eq_u32 s{sWave}, 2\ns_cbranch_scc1 L_QK_lo_tail')
    a(f's_add_u32 s{sT4}, s{sStep}, 1\ns_cmp_ge_u32 s{sT4}, 64\ns_cbranch_scc1 L_QK_lo_tail')
    kx_dma()
    a('s_branch L_QK_lo_tail')
    a('L_QK_w1:')
    for ks in range(4):
        for h in range(2): a(f'ds_read_b64_tr_b16 {V(vU + 4 * ks + 2 * h, 2)}, v{vXr} offset:{XBUF + ks * 1024 + h * 512}')
    a(f's_waitcnt lgkmcnt(0)\ns_mov_b64 exec, s[{sEx2}:{sEx2 + 1}]')
    for ks in range(4): a(f'buffer_store_dwordx4 {V(vU + 4 * ks, 4)}, v{vKs}, {WS}, s{sSeg2} offen offset:{512 * ks} sc1')
    a(f's_mov_b64 exec, -1\ns_add_u32 s{sSeg2}, s{sSeg2}, {32 * 2048}')
    a('L_QK_lo_tail:')
    fstamp(a, cfg, 8)
    advance(a, cfg, 'L_QK_lo_loop')
    tstamp(a, cfg, 3, vTmp, vTmp2)
    fdump(a, cfg, vTmp, vTmp2)
    a('s_branch L_end')

def role_VO(a, cfg):
    a('L_RVO:')
    a(f's_mov_b32 s{sH}, s{sR}')
    src_offsets(a, vA, vB, vt, 8192)
    tr_base(a, vRd, vt, sWave)
    chunks = [dict(pre=(lambda a: srd(a, 12, pWV, WB)) if n == 0 else None, soff=rot_soff(n, False), stride=8192, reads=std_reads(16 * n)) for n in range(5)]
    vW3 = 64
    vRdP = 16
    a(f's_and_b32 s{sT0}, s{sWave}, 3\ns_lshl_b32 s{sT0}, s{sT0}, 1')
    a(f'v_bfe_u32 v{vRdP}, v0, 3, 1\nv_or_b32 v{vRdP}, s{sT0}, v{vRdP}')
    a(f'v_bfe_u32 v{vt}, v0, 2, 1\nv_lshlrev_b32 v{vt}, 1, v{vt}\nv_xor_b32 v{vRdP}, v{vRdP}, v{vt}')
    a(f'v_bfe_u32 v{vt}, v0, 4, 1\nv_lshlrev_b32 v{vt}, 2, v{vt}\nv_xor_b32 v{vRdP}, v{vRdP}, v{vt}\nv_lshlrev_b32 v{vRdP}, 5, v{vRdP}')
    a(f'v_and_b32 v{vt}, 3, v0\nv_lshl_add_u32 v{vRdP}, v{vt}, 3, v{vRdP}')
    a(f'v_bfe_u32 v{vt}, v0, 2, 1\nv_lshl_add_u32 v{vRdP}, v{vt}, 8, v{vRdP}')
    a(f'v_lshrrev_b32 v{vt}, 4, v0\nv_lshl_add_u32 v{vRdP}, v{vt}, 10, v{vRdP}')
    def pre(a):
        srd(a, 12, pWO, WB)
        for var, vd in ((0, vA), (1, vB)):
            a(f'v_bfe_u32 v{vt}, v0, 4, 1\nv_lshlrev_b32 v{vt}, 1, v{vt}')
            if var: a(f'v_or_b32 v{vt}, 4, v{vt}')
            a(f'v_bfe_u32 v{vd}, v0, 1, 3\nv_xor_b32 v{vd}, v{vd}, v{vt}\nv_lshlrev_b32 v{vd}, 5, v{vd}')
            a(f'v_and_b32 v{vt}, 1, v0\nv_lshl_add_u32 v{vd}, v{vt}, 4, v{vd}')
            a(f'v_lshrrev_b32 v{vt}, 4, v0\nv_mul_u32_u24 v{vt}, 1280, v{vt}\nv_add_u32 v{vd}, v{vd}, v{vt}')
    so = lambda c: (lambda a: a(f's_lshl_b32 s{sT0}, s{sH}, 7\ns_lshl_b32 s{sT1}, s{sWave}, 4\ns_add_u32 s{sT0}, s{sT0}, s{sT1}\ns_mul_i32 s{sT0}, s{sT0}, 1280\ns_add_u32 s{sT0}, s{sT0}, {256 * c}'))
    def rd(c):
        def f(a, va):
            l = a.newlabel('wo')
            a(f's_cmp_ge_u32 s{sWave}, 4\ns_cbranch_scc{1 if c < 3 else 0} {l}')
            for k in range(4):
                for hb in range(2):
                    for al in range(2):
                        o = 8 * k + 4 * hb + 2 * al
                        dst = V(vW3 + o, 2) if c == 2 else A(80 + 32 * (c % 3) + o, 2)
                        a(f'ds_read_b64_tr_b16 {dst}, v{va} offset:{(32 * k + 16 * hb + 2 * al) * 256}')
            a(f'{l}:')
        return f
    chunks += [dict(pre=pre if c == 0 else None, soff=so(c), stride=1280, reads=rd(c), var=lambda i: i & 1, vrd=vRdP) for c in range(5)]
    loader(a, chunks, vA, vB, vRd, vRd2, vt, vo)
    tstamp(a, cfg, 1, vt, vo)
    wait_init(a, vt, vo)
    bases(a, cfg); idx_setup(a)
    vXr, vUg, vUg3, vG16, vG4, vM16, vM4 = 10, 11, 12, 13, 14, 15, 4
    a(f'v_and_b32 v{vXw}, 15, v0\nv_lshlrev_b32 v{vXw}, 4, v{vXw}')
    a(f'v_bfe_u32 v{vTmp}, v0, 4, 1\nv_lshl_add_u32 v{vXw}, v{vTmp}, 3, v{vXw}')
    a(f'v_lshrrev_b32 v{vTmp}, 5, v0\nv_lshl_add_u32 v{vXw}, v{vTmp}, 2, v{vXw}')
    a(f's_lshl_b32 s{sT0}, s{sWave}, 8\ns_add_u32 s{sT0}, s{sT0}, {XBUF}\nv_add_u32 v{vXw}, s{sT0}, v{vXw}')
    a(f'v_and_b32 v{vXr}, 1, v0\nv_lshlrev_b32 v{vXr}, 3, v{vXr}\nv_bfe_u32 v{vTmp}, v0, 2, 2\nv_lshl_add_u32 v{vXr}, v{vTmp}, 4, v{vXr}')
    a(f'v_lshrrev_b32 v{vTmp}, 4, v0\nv_lshl_add_u32 v{vXr}, v{vTmp}, 7, v{vXr}')
    def um_offs(vglob, spair, two):
        a(f'v_and_b32 v{vglob}, 15, v0\nv_lshlrev_b32 v{vglob}, 4, v{vglob}')
        if two: a(f'v_bfe_u32 v{vTmp}, v0, 4, 1\nv_lshl_add_u32 v{vglob}, v{vTmp}, 23, v{vglob}')
        a(f'v_lshrrev_b32 v{vTmp}, 5, v0\nv_lshl_add_u32 v{vglob}, v{vTmp}, 20, v{vglob}')
        a(f's_lshl_b32 s{sT0}, s{spair}, 21\ns_and_b32 s{sT1}, s{spair}, 1\ns_lshl_b32 s{sT1}, s{sT1}, 13\ns_xor_b32 s{sT1}, s{sT1}, s{sPar}\ns_add_u32 s{sT0}, s{sT0}, s{sT1}')
        a(f's_lshl_b32 s{sT1}, s{sH}, 8\ns_add_u32 s{sT0}, s{sT0}, s{sT1}\nv_add_u32 v{vglob}, s{sT0}, v{vglob}')
    assert UM % (4 * MB) == 0
    a(f's_add_u32 s{sT3}, s{sWave}, 8\ns_cmp_lt_u32 s{sWave}, 4\ns_cselect_b32 s{sT2}, s{sWave}, s{sT3}')
    um_offs(vUg, sT2, True)
    um_offs(vUg3, sT3, False)
    a(f's_mov_b32 s{sEx}, 0xffff\ns_mov_b32 s{sEx + 1}, 0xffff\ns_mov_b32 s{sSeg2}, {UM}')
    a(f's_mul_i32 s{sT0}, s{sWave}, 1280\nv_add_u32 v{vM16}, s{sT0}, v{vL16}\ns_add_u32 s{sT0}, s{sT0}, 1024\nv_lshlrev_b32 v{vM4}, 2, v0\nv_add_u32 v{vM4}, s{sT0}, v{vM4}')
    a(f's_lshr_b32 s{sT0}, s{sWave}, 2\ns_mul_i32 s{sT0}, s{sT0}, {16384 - 5120}\nv_add_u32 v{vG16}, s{sT0}, v{vM16}\nv_add_u32 v{vG4}, s{sT0}, v{vM4}')
    a(f'v_min_u32 v5, 19, v0\nv_lshlrev_b32 v5, 7, v5\nv_add_u32 v5, {FL3}, v5')
    tstamp(a, cfg, 2, vTmp, vTmp2)
    for np_, lab in ((3, 'L_VO_lo'), (2, 'L_VO_hi')):
        if np_ == 3: a(f's_cmp_ge_u32 s{sWave}, 4\ns_cbranch_scc1 L_VO_hi')
        a(f'{lab}:')
        fstamp(a, cfg, 0)
        for i in range(4): a(f'v_mov_b32 v{vAcc + i}, 0')
        vP = vZ
        ld = [f'buffer_load_dwordx4 {V(vP, 4)}, v{vG16}, {WS}, s{sCR} offen sc1', f'buffer_load_dword v{vP + 4}, v{vG4}, {WS}, s{sCR} offen sc1']
        if cfg.vcue:
            if np_ == 2:
                lc = a.newlabel('c3')
                a(f's_cmp_lg_u32 s{sWave}, 7\ns_cbranch_scc1 {lc}')
                cue_wait(a, cfg, 5, [64 + i for i in range(cfg.cdepth)], sStep, sbR)
                for i in range(cfg.cdel3): a('s_nop 7')
                a(f'{lc}:')
            a('s_barrier')
        poll(a, ld, R4(vP, 5), vTmp, spec=lambda: a(f'ds_write_b128 v{vM16}, {V(vP, 4)} offset:{MEMBUF}\nds_write_b32 v{vM4}, v{vP + 4} offset:{MEMBUF}'), specwait=True)
        fstamp(a, cfg, 1)
        a('s_waitcnt lgkmcnt(0)\ns_barrier')
        fstamp(a, cfg, 2)
        for i in range(10): a(f'ds_read_b128 {V(vZ + 4 * i, 4)}, v{vL16} offset:{MEMBUF + i * 1024}')
        for i in range(10):
            a(f's_waitcnt lgkmcnt({9 - i})')
            a(f'v_smfmac_f32_16x16x64_bf16 {V(vAcc, 4)}, {V(vZ + 4 * i, 4)}, {A(i * 8, 8)}, v{vIdx}')
        for i in range(8): a(f'v_mov_b32 v{vZ + i}, 0')
        a(f'v_permlane32_swap_b32 v{vAcc}, v{vAcc + 2}\nv_permlane32_swap_b32 v{vAcc + 1}, v{vAcc + 3}')
        a(f'v_add_f32 v{vAcc}, v{vAcc}, v{vAcc + 2}\nv_add_f32 v{vAcc + 1}, v{vAcc + 1}, v{vAcc + 3}')
        a(f'v_cvt_pk_bf16_f32 v{vAcc}, v{vAcc}, v{vAcc + 1}')
        a(f'ds_write_b32 v{vXw}, v{vAcc}')
        for i in range(8, 4 * np_): a(f'v_mov_b32 v{vZ + i}, 0')
        a('s_waitcnt lgkmcnt(0)\ns_barrier')
        fstamp(a, cfg, 6)
        vV = vZ + 12
        for k in range(4):
            for al in range(2): a(f'ds_read_b64_tr_b16 {V(vV + 4 * k + 2 * al, 2)}, v{vXr} offset:{XBUF + k * 512 + al * 64}')
        for k in range(4):
            a(f's_waitcnt lgkmcnt({6 - 2 * k})')
            for p in range(np_):
                w = V(vW3 + 8 * k, 8) if p == 2 else A(80 + 32 * p + 8 * k, 8)
                a(f'v_smfmac_f32_16x16x64_bf16 {V(vZ + 4 * p, 4)}, {V(vV + 4 * k, 4)}, {w}, v{vIdx}')
        o = vAcc
        for p in range(np_):
            a(f'v_cvt_pk_bf16_f32 v{o + 2 * p}, v{vZ + 4 * p}, v{vZ + 4 * p + 1}\nv_cvt_pk_bf16_f32 v{o + 2 * p + 1}, v{vZ + 4 * p + 2}, v{vZ + 4 * p + 3}')
        a(f'v_permlane16_swap_b32 v{o}, v{o + 2}\nv_permlane16_swap_b32 v{o + 1}, v{o + 3}')
        if np_ == 3: a(f'v_permlane16_swap_b32 v{o + 4}, v{o + 6}\nv_permlane16_swap_b32 v{o + 5}, v{o + 7}')
        a(f'buffer_store_dwordx4 {V(o, 4)}, v{vUg}, {WS}, s{sSeg2} offen sc1')
        if np_ == 3:
            a(f's_mov_b64 exec, s[{sEx}:{sEx + 1}]\nbuffer_store_dwordx4 {V(o + 4, 4)}, v{vUg3}, {WS}, s{sSeg2} offen sc1\ns_mov_b64 exec, -1')
        fstamp(a, cfg, 7)
        a(f's_add_u32 s{sSeg2}, s{sSeg2}, 16384')
        if cfg.vo_sleep: a(f's_sleep {cfg.vo_sleep}')
        advance(a, cfg, lab)
        tstamp(a, cfg, 3, vTmp, vTmp2)
        fdump(a, cfg, vTmp, vTmp2)
        a('s_branch L_end')

def role_S2(a, cfg):
    a('L_S2:')
    NST = cfg.nsteps - 1
    a(f's_cmp_eq_u32 s{sWave}, 4\ns_cbranch_scc1 L_S2_poll\ns_cmp_eq_u32 s{sWave}, 7\ns_cbranch_scc1 L_S2_cue\ns_cmp_gt_u32 s{sWave}, 4\ns_cbranch_scc1 L_S2_red')
    vP0, vPm, vUm, vUm2, vRw, vFa, vFl = 10, 11, 12, 13, 14, 15, 6
    PL0, PR0, Pm, Um = 16, 24, 32, 36
    A1, A2 = 52, 68
    quad_base(a, sT0, sWave)
    a(f'v_and_b32 v{vTmp}, 7, v0\nv_lshlrev_b32 v{vTmp}, 4, v{vTmp}\nv_add_u32 v{vTmp}, s{sT0}, v{vTmp}\nv_lshrrev_b32 v{vTmp2}, 4, v0')
    a(f'v_lshl_add_u32 v{vP0}, v{vTmp2}, 7, v{vTmp}\nv_mul_u32_u24 v{vTmp2}, 640, v{vTmp2}\nv_add_u32 v{vPm}, v{vTmp}, v{vTmp2}\nv_add_u32 v{vPm}, 512, v{vPm}')
    a(f'v_bfe_u32 v{vTmp2}, v0, 3, 1\nv_mul_u32_u24 v{vTmp2}, 640, v{vTmp2}\nv_add_u32 v{vP0}, v{vP0}, v{vTmp2}')
    a(f'v_and_b32 v{vTmp}, 8, v0\nv_lshlrev_b32 v{vTmp}, 10, v{vTmp}\nv_xor_b32 v{vTmp}, s{sPar}, v{vTmp}\nv_xor_b32 v{vTmp}, 0x2000, v{vTmp}\nv_add_u32 v{vPm}, v{vPm}, v{vTmp}')
    a(f's_lshl_b32 s{sT1}, s{sWave}, 10\ns_add_u32 s{sT1}, s{sT1}, {RED}\nv_add_u32 v{vRw}, s{sT1}, v{vL16}')
    a(f's_mul_i32 s{sT2}, s{sXr}, 10\ns_add_u32 s{sT2}, s{sT2}, s{sJ}')
    a(f's_lshl_b32 s{sT0}, s{sT2}, 21\ns_and_b32 s{sT1}, s{sT2}, 1\ns_lshl_b32 s{sT1}, s{sT1}, 13\ns_xor_b32 s{sT1}, s{sT1}, s{sPar}\ns_add_u32 s{sT0}, s{sT0}, s{sT1}')
    a(f's_lshl_b32 s{sT1}, s{sWave}, 10\ns_add_u32 s{sT0}, s{sT0}, s{sT1}\ns_lshl_b32 s{sT1}, s{sXr}, 12\ns_add_u32 s{sT0}, s{sT0}, s{sT1}')
    a(f'v_add_u32 v{vUm}, s{sT0}, v{vL16}\nv_xor_b32 v{vUm2}, 0x1000, v{vUm}\ns_mov_b32 s{sSeg2}, {UM}')
    a(f's_lshl_b32 s{sSeg}, s{sT2}, 22\ns_lshl_b32 s{sT0}, s{sWave}, 12\ns_add_u32 s{sSeg}, s{sSeg}, s{sT0}\ns_lshl_b32 s{sT0}, s{sXr}, 14\ns_add_u32 s{sSeg}, s{sSeg}, s{sT0}\ns_add_u32 s{sSeg}, s{sSeg}, {UX}')
    a(f'v_and_b32 v{vFa}, 3, v0\nv_bfe_u32 v{vTmp}, v0, 2, 1\nv_lshl_add_u32 v{vFa}, v{vTmp}, 4, v{vFa}\nv_lshlrev_b32 v{vFa}, 8, v{vFa}')
    a(f's_lshl_b32 s{sT0}, s{sWave}, 10\ns_add_u32 s{sT0}, s{sT0}, {F_UX}\nv_add_u32 v{vFa}, s{sT0}, v{vFa}')
    a(f'v_mov_b32 v{vFl}, 0\nv_mov_b32 v{vFl + 1}, 0')
    vC3, vC3v = 4, 5
    a(f's_lshl_b32 s{sT0}, s{sT2}, 7\ns_add_u32 s{sT0}, s{sT0}, s{sPar}\ns_add_u32 s{sT0}, s{sT0}, {2 * XS + FL3}\nv_mov_b32 v{vC3}, s{sT0}\nv_mov_b32 v{vC3v}, 0')
    def cue3(pos):
        if not cfg.vcue or (pos is not None and cfg.cpos3 != pos): return
        l = a.newlabel('c3')
        a(f's_cmp_lg_u32 s{sWave}, 0\ns_cbranch_scc1 {l}\ns_mov_b64 exec, 1\nbuffer_store_dword v{vC3v}, v{vC3}, {WS}, 0 offen sc1\ns_mov_b64 exec, -1\n{l}:')
    ldU = flag_ld(vFl, vFa, cfg.nc_vox)
    a('s_barrier\ns_barrier')
    cue3(None)
    a(f's_mov_b32 s{sT4}, 0')
    flag_wait(a, vFl, ldU, cfg.nc_vox, 2)
    tstamp(a, cfg, 2, vTmp, vTmp2)
    a('L_S2_loop:')
    fstamp(a, cfg, 0)
    if not cfg.no_ux:
        for t in range(2):
            for hf in range(2):
                if t or hf: a(f's_xor_b32 s{sT0}, s{sSeg}, {hf * 0x4000 + t * 2 * MB}')
                for i in range(4):
                    a(f'buffer_load_dwordx4 {A(32 * t + 16 * hf + 4 * i, 4)}, v{vL16}, {WS}, s{sT0 if (t or hf) else sSeg} offen offset:{1024 * i} sc1')
    a(ldU)
    a(f's_add_u32 s{sSeg}, s{sSeg}, 32768\ns_add_u32 s{sT4}, s{sStep}, 1\ns_waitcnt vmcnt(0)')
    fstamp(a, cfg, 1)
    flag_wait(a, vFl, ldU, cfg.nc_vox)
    l = a.newlabel('pz'); top = a.newlabel('pz')
    a(f's_cmp_lg_u32 s{sStep}, {NPRE - 4}\ns_cbranch_scc1 {l}')
    a(f'v_and_b32 v{vTmp2}, 7, v0\nv_lshlrev_b32 v{vTmp2}, 8, v{vTmp2}\nv_add_u32 v{vTmp2}, {F_PZ}, v{vTmp2}\ns_mov_b32 s{sSpin}, s{sLim}')
    a(f'{top}:\nbuffer_load_dword v{vTmp}, v{vTmp2}, {WS}, 0 offen sc1\ns_waitcnt vmcnt(0)\nv_cmp_eq_u32 vcc, 0, v{vTmp}\ns_cbranch_vccz {l}')
    a(f's_sub_u32 s{sSpin}, s{sSpin}, 1\ns_cbranch_scc0 {top}\ns_mov_b32 s{sLim}, 0\n{l}:')
    a(f's_andn2_b32 s{sT1}, s{sCL}, 0x2000\ns_add_u32 s{sT2}, s{sSeg2}, {MB}')
    ldp = lambda b, so: [f'buffer_load_dwordx4 {V(b, 4)}, v{vP0}, {WS}, s{so} offen sc1', f'buffer_load_dwordx4 {V(b + 4, 4)}, v{vP0}, {WS}, s{so} offen offset:1280 sc1']
    g1 = ldp(PL0, sCL)
    g2 = ldp(PR0, sCR) + [f'buffer_load_dwordx4 {V(Pm, 4)}, v{vPm}, {WS}, s{sT1} offen sc1']
    g3 = [f'buffer_load_dwordx4 {V(Um + 8 * t + 4 * hf, 4)}, v{vUm2 if hf else vUm}, {WS}, s{sT2 if t else sSeg2} offen sc1' for t in range(2) for hf in range(2)]
    def s2(b, hf, d, c):
        for q in range(2):
            for t in range(2):
                for e in range(2):
                    r = d + 8 * t + 4 * e
                    cc = V(r, 4) if q else ('0' if c is None else V(c + 8 * t + 4 * e, 4))
                    a(f'v_mfma_f32_16x16x32_bf16 {V(r, 4)}, {A(32 * t + 16 * hf + 8 * q + 4 * e, 4)}, {V(b + 4 * q, 4)}, {cc}')
    def s3():
        for t in range(2):
            for e in range(2):
                a(f'v_mfma_f32_16x16x32_bf16 {V(A1 + 8 * t + 4 * e, 4)}, {V(Um + 8 * t + 4 * e, 4)}, {V(Pm, 4)}, {V(A2 + 8 * t + 4 * e, 4)}')
    a(f'v_add_u32 v{vC3v}, 1, v{vC3v}')
    a('s_setprio 3\ns_barrier')
    fstamp(a, cfg, 3)
    if cfg.sorder == 0:
        for l in g1: a(l)
        a('s_setprio 2')
        for l in g2: a(l)
        a('s_setprio 0')
        for l in g3: a(l)
        def c3(pos, n):
            if cfg.vcue and cfg.cpos3 == pos:
                l = a.newlabel('c3')
                a(f's_cmp_lg_u32 s{sWave}, {cfg.cwave3}\ns_cbranch_scc1 {l}\ns_mov_b64 exec, 1\nbuffer_store_dword v{vC3v}, v{vC3}, {WS}, 0 offen sc1\ns_mov_b64 exec, -1\n{l}:')
            if cfg.vcue and cfg.cpos3 <= pos:
                l = a.newlabel('c3')
                a(f's_cmp_eq_u32 s{sWave}, {cfg.cwave3}\ns_cbranch_scc1 {l}\ns_waitcnt vmcnt({n})\n{l}:')
                return n + 1
            return n
        poll(a, g1, R4(PL0, 8), vTmp, first_issued=True, first_wait=c3(0, 7), spec=lambda: s2(PL0, 0, A1, None))
        poll(a, g2, R4(PR0, 8) + R4(Pm), vTmp, first_issued=True, first_wait=c3(1, 4), spec=lambda: s2(PR0, 1, A2, A1))
        fstamp(a, cfg, 4)
        poll(a, g3, R4(Um, 16), vTmp, first_issued=True, first_wait=c3(2, 0), spec=s3)
    else:
        for l in g3: a(l)
        a('s_setprio 2')
        for l in g1: a(l)
        a('s_setprio 0')
        for l in g2: a(l)
        poll(a, g3 + g1, R4(Um, 16) + R4(PL0, 8), vTmp, first_issued=True, first_wait=3, spec=lambda: s2(PL0, 0, A1, None))
        fstamp(a, cfg, 4)
        if cfg.vcue:
            l = a.newlabel('c3'); l2 = a.newlabel('c3')
            a(f's_cmp_lg_u32 s{sWave}, 0\ns_cbranch_scc1 {l}\ns_mov_b64 exec, 1\nbuffer_store_dword v{vC3v}, v{vC3}, {WS}, 0 offen sc1\ns_mov_b64 exec, -1\ns_waitcnt vmcnt(1)\ns_branch {l2}\n{l}:\ns_waitcnt vmcnt(0)\n{l2}:')
        def p2():
            s2(PR0, 1, A2, A1)
            for t in range(2):
                for e in range(2):
                    a(f'v_mfma_f32_16x16x32_bf16 {V(A2 + 8 * t + 4 * e, 4)}, {V(Um + 8 * t + 4 * e, 4)}, {V(Pm, 4)}, {V(A2 + 8 * t + 4 * e, 4)}')
        poll(a, g2, R4(PR0, 8) + R4(Pm), vTmp, first_issued=True, first_wait=1 if cfg.vcue else 0, spec=p2)
        A1 = A2
    fstamp(a, cfg, 5)
    for t in range(2):
        for i in range(4): a(f'v_add_f32_dpp v{A1 + 8 * t + i}, v{A1 + 8 * t + 4 + i}, v{A1 + 8 * t + i} row_shl:8 row_mask:0xf bank_mask:0xf')
        a(f'ds_write_b128 v{vRw}, {V(A1 + 8 * t, 4)} offset:{4096 * t}')
    a('s_waitcnt lgkmcnt(0)\ns_barrier')
    fstamp(a, cfg, 6)
    a(f's_add_u32 s{sSeg2}, s{sSeg2}, 16384')
    advance(a, cfg, None)
    a('s_barrier')
    a(f's_cmp_lt_u32 s{sStep}, {NST}\ns_cbranch_scc1 L_S2_loop')
    tstamp(a, cfg, 3, vTmp, vTmp2)
    fdump(a, cfg, vTmp, vTmp2)
    a('s_branch L_end')
    a('L_S2_poll:')
    a(f'v_and_b32 v10, 15, v0\nv_lshlrev_b32 v10, 2, v10\nv_add_u32 v10, {FL1}, v10')
    a('s_barrier\ns_barrier')
    a('L_S2_poll_loop:')
    cue_wait(a, cfg, 10, [16 + i for i in range(cfg.cdepth)], sStep)
    a('s_barrier\ns_barrier\ns_barrier')
    a(f's_add_u32 s{sStep}, s{sStep}, 1\ns_cmp_lt_u32 s{sStep}, {NST}\ns_cbranch_scc1 L_S2_poll_loop')
    a('s_branch L_end')
    a('L_S2_cue:')
    a(f's_lshl_b32 s{sT0}, s{sJ}, 2\ns_add_u32 s{sT0}, s{sT0}, {FL2}\nv_mov_b32 v10, s{sT0}\nv_mov_b32 v11, 0')
    a('s_barrier\ns_barrier')
    cue_send(a, 10, 11)
    a('L_S2_cue_loop:')
    a(f's_add_u32 s{sStep}, s{sStep}, 1\nv_mov_b32 v11, s{sStep}')
    a('s_barrier\ns_barrier')
    if cfg.cpos2 == 0:
        for i in range(cfg.cdel2): a('s_nop 7')
        cue_send(a, 10, 11)
    a('s_barrier')
    if cfg.cpos2 == 1: cue_send(a, 10, 11)
    a(f's_cmp_lt_u32 s{sStep}, {NST}\ns_cbranch_scc1 L_S2_cue_loop')
    a('s_branch L_end')
    a('L_S2_red:')
    vRr, vMs, aa, ab = 10, 11, 16, 20
    sV3 = sNL
    a(f's_sub_u32 s{sT3}, s{sWave}, 5')
    a(f'v_and_b32 v{vRr}, 3, v0\nv_lshlrev_b32 v{vRr}, 8, v{vRr}\nv_bfe_u32 v{vTmp}, v0, 2, 3\nv_lshl_add_u32 v{vRr}, v{vTmp}, 4, v{vRr}\nv_lshrrev_b32 v{vTmp}, 5, v0\nv_lshl_add_u32 v{vRr}, v{vTmp}, 3, v{vRr}')
    a(f's_lshl_b32 s{sT0}, s{sT3}, 12\ns_add_u32 s{sT0}, s{sT0}, {RED}\nv_add_u32 v{vRr}, s{sT0}, v{vRr}')
    a(f's_lshl_b32 s{sT2}, s{sJ}, 1\ns_add_u32 s{sT2}, s{sT2}, s{sT3}\ns_lshl_b32 s{sT0}, s{sT2}, 8\nv_lshlrev_b32 v{vMs}, 2, v0\nv_add_u32 v{vMs}, s{sT0}, v{vMs}')
    a(f's_mov_b32 s{sEx}, 0x11111111\ns_mov_b32 s{sEx + 1}, 0x11111111')
    a(f's_lshl_b32 s{sV3}, s{sXr}, 14\ns_add_u32 s{sV3}, s{sV3}, s{sPar}\ns_add_u32 s{sV3}, s{sV3}, {2 * XS}')
    a(f's_lshl_b32 s{sT0}, s{sJ}, 2\ns_add_u32 s{sT0}, s{sT0}, {FL2}\nv_mov_b32 v12, s{sT0}\nv_mov_b32 v13, 0')
    def rcue(pos):
        if cfg.cpos2 != pos: return
        l = a.newlabel('rc')
        a(f's_cmp_lg_u32 s{sWave}, 6\ns_cbranch_scc1 {l}')
        cue_send(a, 12, 13)
        a(f'{l}:')
    def pub():
        for p in range(1, 4): a(f'v_mov_b32_dpp v{aa + p}, v{aa} quad_perm:[{p},{p},{p},{p}] row_mask:0xf bank_mask:0xf')
        fstamp(a, cfg, 7)
        rcue(3)
        a(f's_mov_b64 exec, s[{sEx}:{sEx + 1}]')
        st = {'V': lambda: a(f'buffer_store_dwordx4 {V(aa, 4)}, v{vMs}, {WS}, s{sV3} offen sc1'),
              'O': lambda: a(f'buffer_store_dwordx4 {V(aa, 4)}, v{vMs}, {WS}, s{sCO} offen sc1'),
              'L': lambda: lstore(a, [f'buffer_store_dwordx4 {V(aa, 4)}, v{vMs}, {WS}, s{sCL} offen'])}
        for c in cfg.pubord: st[c]()
        a('s_mov_b64 exec, -1')
        rcue(4)
        a('s_barrier')
    srd(a, 12, pMEM0, 10240)
    a(f'v_bfe_u32 v{vTmp}, v0, 2, 3\nv_mul_u32_u24 v{vTmp}, 1280, v{vTmp}\nv_and_b32 v{vTmp2}, 3, v0\nv_lshl_add_u32 v{vTmp}, v{vTmp2}, 3, v{vTmp}\nv_lshrrev_b32 v{vTmp2}, 5, v0\nv_lshl_add_u32 v{vTmp}, v{vTmp2}, 2, v{vTmp}')
    a(f's_mul_i32 s{sT0}, s{sXr}, 20\ns_add_u32 s{sT0}, s{sT0}, s{sT2}\ns_lshl_b32 s{sT0}, s{sT0}, 5')
    a(f'buffer_load_dword v{aa}, v{vTmp}, {T1}, s{sT0} offen\ns_waitcnt vmcnt(0)\nv_min_u32 v{aa}, -2, v{aa}')
    a('s_barrier')
    pub()
    a('L_S2_red_loop:')
    a(f's_add_u32 s{sCL}, s{sCL}, {SL}\ns_add_u32 s{sCO}, s{sCO}, {SL}\ns_add_u32 s{sV3}, s{sV3}, {SL}')
    a('v_add_u32 v13, 1, v13')
    a('s_setprio 3\ns_barrier\ns_barrier')
    a(f'ds_read2st64_b64 {V(aa, 4)}, v{vRr} offset0:0 offset1:2\nds_read2st64_b64 {V(ab, 4)}, v{vRr} offset0:4 offset1:6\ns_waitcnt lgkmcnt(1)')
    a(f'v_add_f32 v{aa}, v{aa}, v{aa + 2}\nv_add_f32 v{aa + 1}, v{aa + 1}, v{aa + 3}\ns_waitcnt lgkmcnt(0)')
    a(f'v_add_f32 v{ab}, v{ab}, v{ab + 2}\nv_add_f32 v{ab + 1}, v{ab + 1}, v{ab + 3}\nv_add_f32 v{aa}, v{aa}, v{ab}\nv_add_f32 v{aa + 1}, v{aa + 1}, v{ab + 1}')
    a(f'v_cvt_pk_bf16_f32 v{aa}, v{aa}, v{aa + 1}')
    pub()
    a(f's_add_u32 s{sStep}, s{sStep}, 1\ns_cmp_lt_u32 s{sStep}, {NST}\ns_cbranch_scc1 L_S2_red_loop')
    fdump(a, cfg, vTmp, vTmp2)
    a('s_branch L_end')

def role_PF(a, cfg):
    a('L_PF:')
    vSp, vC = 10, 14
    a(f's_cmp_ge_u32 s{sWave}, 2\ns_cbranch_scc1 L_end')
    a(f's_lshl_b32 s{sSeg2}, s{sWave}, 14\ns_add_u32 s{sSeg2}, s{sSeg2}, s{sbL}')
    a(f'v_lshlrev_b32 v{vSp}, 7, v0\nv_mov_b32 v{vC}, {FL2}')
    a('L_PF_loop:')
    top = a.newlabel('pw'); done = a.newlabel('pwd')
    a(f's_sub_u32 s{sT4}, s{sStep}, {cfg.pf_ahead}\ns_cmp_lt_i32 s{sT4}, 0\ns_cbranch_scc1 {done}\ns_mov_b32 s{sSpin}, s{sLim}')
    a(f'{top}:')
    a(f'buffer_load_dword v{vTmp2}, v{vC}, {WS}, s{sbL} offen sc1\ns_waitcnt vmcnt(0)\nv_cmp_gt_i32 vcc, s{sT4}, v{vTmp2}\ns_cbranch_vccz {done}\ns_sleep 4')
    a(f's_sub_u32 s{sSpin}, s{sSpin}, 1\ns_cbranch_scc0 {top}\ns_mov_b32 s{sLim}, 0')
    a(f'{done}:')
    a(f'buffer_load_dword v16, v{vSp}, {WS}, s{sSeg2} offen sc1')
    a(f's_add_u32 s{sSeg2}, s{sSeg2}, {SL}')
    a(f's_add_u32 s{sStep}, s{sStep}, 1\ns_cmp_lt_u32 s{sStep}, {cfg.nsteps}\ns_cbranch_scc1 L_PF_loop')
    a('s_branch L_end')
    a('L_PZ:')
    for i in range(4): a(f'v_mov_b32 v{4 + i}, -1')
    a(f's_lshl_b32 s{sT2}, s{sXr}, 2\ns_add_u32 s{sT2}, s{sT2}, s{sJ}\ns_sub_u32 s{sT2}, s{sT2}, 10')
    a(f's_add_u32 s{sSeg}, s{sT2}, {NPRE}\ns_lshl_b32 s{sSeg}, s{sSeg}, 15')
    a(f's_lshl_b32 s{sT3}, s{sWave}, 12\ns_min_u32 s{sT4}, s{sWave}, 4\ns_lshl_b32 s{sT4}, s{sT4}, 10\ns_add_u32 s{sT4}, s{sT4}, s{sPar}\ns_add_u32 s{sT4}, s{sT4}, {2 * XS + VOFF}')
    a('L_PZ_loop:')
    a(f's_add_u32 s{sT0}, s{sSeg}, s{sT3}\ns_add_u32 s{sT1}, s{sT0}, {XS}')
    for so in (sT0, sT1):
        for i in range(4): a(f'buffer_store_dwordx4 v[4:7], v{vL16}, {WS}, s{so} offen offset:{1024 * i} sc1')
    a(f's_add_u32 s{sT0}, s{sSeg}, s{sT4}\ns_add_u32 s{sT1}, s{sT0}, 16384')
    for so in (sT0, sT1): a(f'buffer_store_dwordx4 v[4:7], v{vL16}, {WS}, s{so} offen sc1')
    a(f's_add_u32 s{sSeg}, s{sSeg}, {8 * SL}\ns_cmp_lt_u32 s{sSeg}, {64 * SL}\ns_cbranch_scc1 L_PZ_loop')
    a(f's_waitcnt vmcnt(0)\ns_barrier\ns_cmp_lg_u32 s{sWave}, 0\ns_cbranch_scc1 L_end')
    a(f's_lshl_b32 s{sT2}, s{sT2}, 8\ns_add_u32 s{sT2}, s{sT2}, {F_PZ}\nv_mov_b32 v8, 1\nv_mov_b32 v9, s{sT2}\ns_mov_b64 exec, 1\nbuffer_store_dword v8, v9, {WS}, 0 offen sc1')
    tstamp(a, cfg, 3, 10, 11)
    a('s_branch L_end')
```

```python
from core import *
from role_r2 import *
import role_r2

def role_R(a, cfg):
    a('L_R:')
    a(f's_cmp_lt_u32 s{sR}, 16\ns_cbranch_scc1 L_RQK')
    a(f's_sub_u32 s{sJ}, s{sR}, 16')
    a(f's_cmp_eq_u32 s{sJ}, 15\ns_cbranch_scc1 L_idle')
    a('s_waitcnt vmcnt(0)\ns_barrier')
    claim_issue(a, vt)
    wait_init(a, vt, vo, cfg.presleep)
    tstamp(a, cfg, 1, vt + 2, vo + 2)
    bases(a, cfg)
    a(f's_cmp_eq_u32 s{sJ}, 14\ns_cbranch_scc1 L_PF\ns_cmp_ge_u32 s{sJ}, 10\ns_cbranch_scc1 L_PZ')
    role_S2(a, cfg)
    role_PF(a, cfg)
    role_QK(a, cfg)
    role_VO(a, cfg)

def nops(a, n):
    while n > 0:
        a(f's_nop {min(n, 16) - 1}'); n -= 16

def both(a, name, fn):
    a(f's_cmp_lg_u32 s{sImp}, 0\ns_cbranch_scc1 {name}_i')
    fn('', name + '_p')
    a(f'{name}_i:')
    fn(' sc1', name + '_q')

def cue1l(a, vval, vaddr, fl):
    a(f's_mov_b64 exec, 1\nbuffer_store_dword v{vval}, v{vaddr}, {WS}, s{sbL} offen{fl}\ns_mov_b64 exec, -1')

def role_QK(a, cfg):
    a('L_RQK:')
    a(f's_lshl_b32 s{sH}, s{sXr}, 4\ns_add_u32 s{sH}, s{sH}, s{sR}')
    src_offsets(a, vA, vB, vt, 8192)
    tr_base(a, vRd, vt, sWave)
    chunks = []
    for m, p in enumerate((pWQ, pWK)):
        chunks += [dict(pre=(lambda a, p=p: srd(a, 12, p, WB)) if n == 0 else None, soff=rot_soff(n, True), stride=8192, reads=std_reads(80 * m + 16 * n)) for n in range(5)]
    loader(a, chunks, vA, vB, vRd, vRd2, vt, vo)
    tstamp(a, cfg, 1, vt, vo)
    wait_init(a, vt, vo)
    bases(a, cfg); idx_setup(a)
    vXr = 10
    vM16, vM4, vPs, vKr, vKf, vKs, vCs, vC2 = [vM + i for i in range(8)]
    vP = vZ + 20
    a(f'v_and_b32 v{vXw}, 15, v0\nv_lshlrev_b32 v{vXw}, 5, v{vXw}\nv_lshrrev_b32 v{vTmp}, 4, v0\nv_lshl_add_u32 v{vXw}, v{vTmp}, 3, v{vXw}')
    a(f's_lshl_b32 s{sT0}, s{sWave}, 9\ns_add_u32 s{sT0}, s{sT0}, {XBUF}\nv_add_u32 v{vXw}, s{sT0}, v{vXw}')
    a(f'v_lshlrev_b32 v{vXr}, 3, v0')
    a(f's_and_b32 s{sT0}, s{sWave}, 3\ns_mul_i32 s{sT0}, s{sT0}, 1280\nv_add_u32 v{vM16}, s{sT0}, v{vL16}\ns_add_u32 s{sT0}, s{sT0}, 1024\nv_lshlrev_b32 v{vM4}, 2, v0\nv_add_u32 v{vM4}, s{sT0}, v{vM4}')
    def zero_acc():
        for i in range(8): a(f'v_mov_b32 v{vAcc + i}, 0')
    def reads(b, t0):
        for i in range(5): a(f'ds_read_b128 {V(b + 4 * i, 4)}, v{vL16} offset:{MEMBUF + (t0 + i) * 1024}')
    def mm(b, t0, i):
        a(f'v_smfmac_f32_16x16x64_bf16 {V(vAcc, 4)}, {V(b + 4 * i, 4)}, {A((t0 + i) * 8, 8)}, v{vIdx}')
        a(f'v_smfmac_f32_16x16x64_bf16 {V(vAcc + 4, 4)}, {V(b + 4 * i, 4)}, {A(80 + (t0 + i) * 8, 8)}, v{vIdx}')
    def half(t0):
        reads(vZ, t0)
        for i in range(5):
            a(f's_waitcnt lgkmcnt({4 - i})'); mm(vZ, t0, i)
    def epilogue1():
        b = vAcc
        for i in range(4): a(f'v_permlane32_swap_b32 v{b + i}, v{b + 4 + i}')
        for i in (0, 2): a(f'v_pk_add_f32 {V(b + i, 2)}, {V(b + i, 2)}, {V(b + 4 + i, 2)}')
        a(f'v_cvt_pk_bf16_f32 v{b}, v{b}, v{b + 1}\nv_cvt_pk_bf16_f32 v{b + 1}, v{b + 2}, v{b + 3}')
        a(f'ds_write_b64 v{vXw}, {V(vAcc, 2)}')
        a('s_waitcnt lgkmcnt(0)\ns_barrier')
    ld = lambda so: [f'buffer_load_dwordx4 {V(vP, 4)}, v{vM16}, {WS}, s{so} offen sc1', f'buffer_load_dword v{vP + 4}, v{vM4}, {WS}, s{so} offen sc1']
    wr = lambda off: (lambda: a(f'ds_write_b128 v{vM16}, {V(vP, 4)} offset:{MEMBUF + off}\nds_write_b32 v{vM4}, v{vP + 4} offset:{MEMBUF + off}'))
    BAD = XBUF + 4096
    vBad, vBadA = 5, 6
    sM0 = sNL
    a(f's_mul_i32 s{sM0}, s{sWave}, 1280\nv_mov_b32 v{vBadA}, {BAD}')
    def dma(so):
        a(f'buffer_load_dwordx4 v{vM16}, {WS}, s{so} offen sc1 lds')
        a(f's_mov_b64 exec, 0xffff\nbuffer_load_dwordx4 v{vM16}, {WS}, s{so} offen offset:1024 sc1 lds\ns_mov_b64 exec, -1')
    def redo(so, off, back):
        lab = a.newlabel('redo')
        def ool():
            a(f'{lab}:')
            if COUNT_RETRY[0]: a('s_add_u32 s101, s101, 1')
            a('s_waitcnt lgkmcnt(0)\ns_nop 7')
            poll(a, ld(so), R4(vP, 5), vTmp)
            wr(off)()
            zero_acc()
            a('s_waitcnt lgkmcnt(0)\ns_barrier')
            a(f'ds_write_b32 v{vBadA}, v{vAcc}')
            half(0); half(5); epilogue1()
            a(f's_branch {back}')
        a.defer(ool)
        return lab
    def badcheck(lab):
        a(f'ds_read_b32 v{vBad}, v{vBadA}\ns_waitcnt lgkmcnt(0)\nv_cmp_ne_u32 vcc, 0, v{vBad}\ns_cbranch_vccnz {lab}')
    a(f's_cmp_lt_u32 s{sWave}, 4\ns_cbranch_scc1 L_QK_lo')
    a(f's_mov_b32 m0, s{sM0}')
    a('L_QK_hi:')
    a('s_barrier')
    zero_acc()
    anydma = cfg.rmode == 'dma' or cfg.ldma
    if cfg.rmode != 'lo': nops(a, cfg.hidel)
    if cfg.rmode == 'dma': dma(sCR)
    if cfg.rmode == 'hi':
        for l in ld(sCR): a(l)
    a('s_barrier')
    reads(vZ, 0)
    if cfg.rmode == 'hi':
        for i in range(cfg.npre0):
            a(f's_waitcnt lgkmcnt({4 - i})'); mm(vZ, 0, i)
        check(a, ld(sCR), R4(vP, 5), vTmp, 0, spec=wr(5120), specwait=True)
        a('s_waitcnt lgkmcnt(2)')
        for i in range(cfg.npre0, cfg.npre): mm(vZ, 0, i)
        a('s_waitcnt lgkmcnt(0)')
    else:
        for i in range(cfg.npre):
            a(f's_waitcnt lgkmcnt({4 - i})'); mm(vZ, 0, i)
        a('s_waitcnt vmcnt(0)')
    if cfg.fine == -3: fstamp(a, cfg, 4)
    a('s_barrier')
    reads(vU, 5)
    a('s_waitcnt lgkmcnt(5)')
    for i in range(cfg.npre, 5): mm(vZ, 0, i)
    for i in range(5):
        a(f's_waitcnt lgkmcnt({4 - i})'); mm(vU, 5, i)
    if cfg.fine == -3: fstamp(a, cfg, 8)
    epilogue1()
    a('L_QK_hi_b:')
    if anydma: badcheck(redo(sCR, 5120, 'L_QK_hi_b'))
    facc(a, cfg)
    a(f's_add_u32 s{sStep}, s{sStep}, 1\ns_add_u32 s{sCR}, s{sCR}, {SL}')
    a('s_barrier')
    a(f's_cmp_lt_u32 s{sStep}, {cfg.nsteps}\ns_cbranch_scc1 L_QK_hi')
    fdump(a, cfg, vTmp, vTmp2)
    a('s_branch L_end')
    a.flush()
    a('L_QK_lo:')
    a('s_setprio 1')
    def common(pre=None, mid=None, verify=False, own_check=False):
        fstamp(a, cfg, 0)
        zero_acc()
        a(f's_mov_b32 m0, s{sM0}')
        if pre: pre()
        a('s_barrier')
        fstamp(a, cfg, 1)
        if cfg.ldma:
            dma(sCL)
            if cfg.rmode == 'lo':
                nops(a, cfg.hidel)
                for l in ld(sCR): a(l)
            a(f's_waitcnt vmcnt({2 if cfg.rmode == "lo" else 0})')
        else:
            assert cfg.rmode != 'lo'
            for l in ld(sCL): a(l)
            check(a, ld(sCL), R4(vP, 5), vTmp, 0, spec=wr(0), specwait=True, post=lambda: a('s_waitcnt lgkmcnt(0)'))
        a('s_barrier')
        verify = verify and anydma
        fstamp(a, cfg, 2)
        half(0)
        if cfg.fine == -3: fstamp(a, cfg, 3)
        if verify: maxtree(a, vBad, R4(vZ, 20))
        if mid: mid()
        if cfg.rmode == 'lo':
            check(a, ld(sCR), R4(vP, 5), vTmp, 0, spec=wr(5120), specwait=True, post=lambda: a('s_waitcnt lgkmcnt(0)'))
        a('s_barrier')
        fstamp(a, cfg, 5)
        half(5)
        if cfg.fine == -3: fstamp(a, cfg, 8)
        if verify:
            if cfg.rmode == 'dma': maxtree(a, vBad, [vBad] + R4(vZ, 20))
            a(f'v_cmp_eq_u32 vcc, -1, v{vBad}\ns_cmp_lg_u64 vcc, 0\ns_cselect_b32 s{sT0}, s{sLim}, 0\nv_mov_b32 v{vBad}, s{sT0}\nds_write_b32 v{vBadA}, v{vBad}')
        epilogue1()
        fstamp(a, cfg, 6)
        back = a.newlabel('qb')
        a(f'{back}:')
        if not anydma: return None
        lab = redo(sCL, 0, back)
        if not own_check: badcheck(lab)
        return lab
    def fin(lab):
        facc(a, cfg)
        advance(a, cfg, lab)
        tstamp(a, cfg, 3, vTmp, vTmp2)
        fdump(a, cfg, vTmp, vTmp2)
        a('s_branch L_end')
        a.flush()
    a(f'v_and_b32 v{vKs}, 7, v0\nv_lshlrev_b32 v{vKs}, 4, v{vKs}\nv_lshrrev_b32 v{vTmp}, 4, v0\nv_lshl_add_u32 v{vKs}, v{vTmp}, 7, v{vKs}')
    a(f's_cmp_eq_u32 s{sWave}, 1\ns_cbranch_scc1 L_QK_w1\ns_cmp_eq_u32 s{sWave}, 2\ns_cbranch_scc1 L_QK_w2\ns_cmp_eq_u32 s{sWave}, 3\ns_cbranch_scc1 L_QK_w3')
    vCv, vMask = 11, 12
    a(f's_bfe_u32 s{sT1}, s{sH}, 0x20002')
    quad_base(a, sT0, sT1)
    a(f's_and_b32 s{sT1}, s{sH}, 3\ns_mul_i32 s{sT1}, s{sT1}, 640\ns_add_u32 s{sT0}, s{sT0}, s{sT1}')
    a(f'v_bfe_u32 v{vTmp}, v0, 3, 1\nv_lshl_add_u32 v{vPs}, v{vTmp}, 8, v{vKs}\nv_add_u32 v{vPs}, s{sT0}, v{vPs}')
    a(f's_mov_b32 s{sEx}, 0\ns_mov_b32 s{sEx + 1}, 0x00ff00ff')
    a(f'v_mov_b32 v{vTmp}, 0xff7fffff\nv_mov_b32 v{vTmp2}, 0')
    for i in range(4): a(f'v_cndmask_b32 v{vMask + i}, v{vTmp}, v{vTmp2}, s[{sEx}:{sEx + 1}]')
    a(f's_mov_b32 s{sEx}, 0x00ff00ff\ns_mov_b32 s{sEx + 1}, 0x00ffffff')
    sC = sEx2
    cc = 128 ** -0.5 * 1.4426950408889634
    a(f's_mov_b32 s{sC}, {f2u(cc)}\ns_mov_b32 s{sC + 1}, {f2u(cc)}\ns_mov_b32 s{sFl0}, {f2u(-cc)}')
    a(f'v_add_u32 v{vKr}, {KBUF}, v{vL16}')
    a(f's_lshl_b32 s{sT0}, s{sR}, 2\ns_add_u32 s{sT0}, s{sT0}, {FL1}\nv_mov_b32 v{vCs}, s{sT0}')
    tstamp(a, cfg, 2, vTmp, vTmp2)
    def w0(fl, lab):
        a(f'{lab}:')
        def pre():
            a(f'v_mov_b32 v{vCv}, s{sStep}')
        def mid():
            for i in range(8): a(f'ds_read_b128 {V(vU + 4 * i, 4)}, v{vKr} offset:{1024 * i}')
            a(f'v_xor_b32 v{vKr}, 0x2000, v{vKr}')
        rlab = common(pre, mid, own_check=True)
        if rlab: a(f'ds_read_b32 v{vBad}, v{vBadA}')
        vX = vZ
        for ks in range(4):
            for h in range(2): a(f'ds_read_b64_tr_b16 {V(vX + 4 * ks + 2 * h, 2)}, v{vXr} offset:{XBUF + ks * 1024 + h * 512}')
        T0, T1_, M_ = vZ + 16, vZ + 20, vZ + 24
        for ks in range(4):
            a(f's_waitcnt lgkmcnt({6 - 2 * ks})')
            a(f'v_mfma_f32_16x16x32_bf16 {V(M_, 4)}, {V(vX + 4 * ks, 4)}, {V(vX + 4 * ks, 4)}, {V(vMask, 4) if ks == 0 else V(M_, 4)}')
            a(f'v_mfma_f32_16x16x32_bf16 {V(T1_, 4)}, {V(vU + 16 + 4 * ks, 4)}, {V(vX + 4 * ks, 4)}, {"0" if ks == 0 else V(T1_, 4)}')
            a(f'v_mfma_f32_16x16x32_bf16 {V(T0, 4)}, {V(vU + 4 * ks, 4)}, {V(vX + 4 * ks, 4)}, {"0" if ks == 0 else V(T0, 4)}')
        mx, t2 = vTmp, vTmp2
        cue = lambda pos: cue1l(a, vCv, vCs, fl) if cfg.cpos1 == pos else None
        if rlab: a(f'v_cmp_ne_u32 vcc, 0, v{vBad}\ns_cbranch_vccnz {rlab}')
        cue(0)
        a(f'v_max3_f32 v{mx}, v{M_}, v{M_ + 1}, v{M_ + 2}\nv_max_f32 v{mx}, v{mx}, v{M_ + 3}')
        for i in range(4): a(f'v_mov_b32_dpp v{T0 + i}, v{T1_ + i} row_shr:8 row_mask:0xf bank_mask:0xc')
        def allred(op, p0):
            cue(p0)
            a(f'{op}_dpp v{t2}, v{mx}, v{mx} row_ror:8 row_mask:0xf bank_mask:0xf')
            a(f'{op}_dpp v{mx}, v{mx}, v{mx} row_ror:8 row_mask:0xf bank_mask:0xf')
            cue(p0 + 1)
            a(f'v_permlane32_swap_b32 v{mx}, v{t2}\n{op} v{T1_}, v{mx}, v{t2}\n{op} v{mx}, v{mx}, v{t2}')
            cue(p0 + 2)
            a(f'v_permlane16_swap_b32 v{mx}, v{T1_}\n{op} v{mx}, v{mx}, v{T1_}')
        a(f'v_max3_f32 v{mx}, v{mx}, v{T0}, v{T0 + 1}\nv_max3_f32 v{mx}, v{mx}, v{T0 + 2}, v{T0 + 3}')
        allred('v_max_f32', 1)
        a(f'v_mul_f32 v{mx}, s{sFl0}, v{mx}')
        E = [T0 + i for i in range(4)] + [M_ + i for i in range(4)]
        for r in E[::2]: a(f'v_pk_fma_f32 {V(r, 2)}, {V(r, 2)}, s[{sC}:{sC + 1}], {V(mx, 2)} op_sel_hi:[1,1,0]')
        for r in E: a(f'v_exp_f32 v{r}, v{r}')
        a(f'v_pk_add_f32 {V(mx, 2)}, {V(E[0], 2)}, {V(E[2], 2)}\nv_pk_add_f32 {V(T1_, 2)}, {V(E[4], 2)}, {V(E[6], 2)}\nv_pk_add_f32 {V(mx, 2)}, {V(mx, 2)}, {V(T1_, 2)}\nv_add_f32 v{mx}, v{mx}, v{t2}')
        allred('v_add_f32', 4)
        a(f'v_rcp_f32 v{mx}, v{mx}')
        cue(7)
        for r in reversed(E[::2]): a(f'v_pk_mul_f32 {V(r, 2)}, {V(r, 2)}, {V(mx, 2)} op_sel_hi:[1,0]')
        a(f'v_cvt_pk_bf16_f32 v{M_}, v{M_}, v{M_ + 1}\nv_cvt_pk_bf16_f32 v{M_ + 1}, v{M_ + 2}, v{M_ + 3}')
        a(f'v_cvt_pk_bf16_f32 v{T0}, v{T0}, v{T0 + 1}\nv_cvt_pk_bf16_f32 v{T0 + 1}, v{T0 + 2}, v{T0 + 3}')
        a(f'v_permlane16_swap_b32 v{M_}, v{M_ + 2}\nv_permlane16_swap_b32 v{M_ + 1}, v{M_ + 3}')
        a(f'v_mov_b32_dpp v{T0 + 2}, v{T0} row_shl:8 row_mask:0xf bank_mask:0x3\nv_mov_b32_dpp v{T0 + 3}, v{T0 + 1} row_shl:8 row_mask:0xf bank_mask:0x3')
        for i in range(4): a(f'v_mov_b32_dpp v{T0 + i}, v{M_ + i} row_shr:8 row_mask:0x4 bank_mask:0xc')
        fstamp(a, cfg, 7)
        cue(8)
        a(f's_mov_b64 exec, s[{sEx}:{sEx + 1}]')
        a(f'buffer_store_dwordx4 {V(T0, 4)}, v{vPs}, {WS}, s{sCL} offen{fl}')
        a(f'buffer_store_dwordx4 {V(T0, 4)}, v{vPs}, {WS}, s{sCO} offen sc1')
        a('s_mov_b64 exec, -1')
        cue(9)
        a('s_barrier')
        fin(lab)
    both(a, 'L_QK_w0', w0)
    a('L_QK_w1:')
    a(f's_mov_b32 s{sEx2}, 0xff00ff00\ns_mov_b32 s{sEx2 + 1}, 0xff00ff00')
    a(f's_lshl_b32 s{sSeg2}, s{sH}, 11\ns_add_u32 s{sSeg2}, s{sSeg2}, {KM}')
    a('L_QK_w1_loop:')
    common(verify=True)
    for ks in range(4):
        for h in range(2): a(f'ds_read_b64_tr_b16 {V(vU + 4 * ks + 2 * h, 2)}, v{vXr} offset:{XBUF + ks * 1024 + h * 512}')
    l = a.newlabel('kl')
    a(f's_cmp_eq_u32 s{sStep}, {cfg.nsteps - 1}\ns_cbranch_scc1 {l}\ns_barrier\n{l}:')
    a(f's_waitcnt lgkmcnt(0)\ns_mov_b64 exec, s[{sEx2}:{sEx2 + 1}]')
    for ks in range(4): a(f'buffer_store_dwordx4 {V(vU + 4 * ks, 4)}, v{vKs}, {WS}, s{sSeg2} offen offset:{512 * ks} sc1')
    a(f's_mov_b64 exec, -1\ns_add_u32 s{sSeg2}, s{sSeg2}, {32 * 2048}')
    fin('L_QK_w1_loop')
    a('L_QK_w2:')
    a(f'v_min_u32 v{vC2}, 9, v0\nv_lshlrev_b32 v{vC2}, 2, v{vC2}\nv_add_u32 v{vC2}, {FL2}, v{vC2}')
    a(f's_lshl_b32 s{sT0}, s{sXr}, 14\ns_lshl_b32 s{sT1}, s{sR}, 7\ns_add_u32 s{sT0}, s{sT0}, s{sT1}\ns_add_u32 s{sT0}, s{sT0}, s{sPar}\ns_add_u32 s{sT0}, s{sT0}, {2 * XS}\nv_mov_b32 v{vCs}, s{sT0}')
    a('L_QK_w2_loop:')
    common(lambda: cue_wait(a, cfg, vC2, [vU + i for i in range(cfg.cdepth2)], sStep))
    if cfg.gq is not None:
        a(f'v_mov_b32 v{vTmp}, s{sStep}')
        if cfg.gq: a(f's_nop {cfg.gq - 1}')
        a(f's_mov_b64 exec, 1\nbuffer_store_dword v{vTmp}, v{vCs}, {WS}, 0 offen sc1\ns_mov_b64 exec, -1')
    a('s_barrier')
    fin('L_QK_w2_loop')
    a('L_QK_w3:')
    vKF = vU
    sK, sKm = sFl0, sFl1
    a(f's_lshl_b32 s{sT1}, s{sH}, 8\ns_add_u32 s{sT1}, s{sT1}, {F_KX}\nv_mov_b32 v{vKf}, s{sT1}')
    a(f's_lshl_b32 s{sK}, s{sH}, 19\ns_add_u32 s{sK}, s{sK}, {KX}\ns_mov_b32 s{sKm}, {KBUF}')
    ldK = flag_ld(vKF, vKf, cfg.nc_qkx)
    def kx_dma():
        flag_wait(a, vKF, ldK, cfg.nc_qkx)
        for hh in range(2):
            a(f's_mov_b32 m0, s{sKm}')
            for i in range(4): a(f'buffer_load_dwordx4 v{vL16}, {WS}, s{sK} offen offset:{1024 * i} sc1 lds')
            a(f's_add_u32 s{sK}, s{sK}, 4096\ns_add_u32 s{sKm}, s{sKm}, 4096')
        a(ldK)
        a(f's_and_b32 s{sKm}, s{sKm}, 0x3fff\ns_or_b32 s{sKm}, s{sKm}, {KBUF}')
    a(f'v_mov_b32 v{vKF}, 0\nv_mov_b32 v{vKF + 1}, 0\ns_mov_b32 s{sT4}, 0')
    kx_dma()
    a('L_QK_w3_loop:')
    common()
    a('s_barrier')
    l = a.newlabel('k3')
    a(f's_add_u32 s{sT4}, s{sStep}, 1\ns_cmp_ge_u32 s{sT4}, 64\ns_cbranch_scc1 {l}')
    kx_dma()
    a(f'{l}:')
    fin('L_QK_w3_loop')

def role_VO(a, cfg):
    a('L_RVO:')
    a(f's_mov_b32 s{sH}, s{sR}')
    src_offsets(a, vA, vB, vt, 8192)
    a(f's_and_b32 s{sT2}, s{sWave}, 3\ns_lshl_b32 s{sT2}, s{sT2}, 1')
    tr_base(a, vRd, vt, sT2)
    def rdv(n):
        def f(a, va):
            l = a.newlabel('vv')
            a(f's_cmp_ge_u32 s{sWave}, 4\ns_cbranch_scc1 {l}')
            std_reads(16 * n)(a, va)
            a(f'v_xor_b32 v{va}, 32, v{va}')
            std_reads(80 + 16 * n)(a, va)
            a(f'{l}:')
        return f
    chunks = [dict(pre=(lambda a: srd(a, 12, pWV, WB)) if n == 0 else None, soff=rot_soff(n, False), stride=8192, reads=rdv(n)) for n in range(5)]
    vRdP = 16
    a(f'v_bfe_u32 v{vRdP}, v0, 3, 1\nv_or_b32 v{vRdP}, s{sT2}, v{vRdP}')
    a(f'v_bfe_u32 v{vt}, v0, 2, 1\nv_lshlrev_b32 v{vt}, 1, v{vt}\nv_xor_b32 v{vRdP}, v{vRdP}, v{vt}')
    a(f'v_bfe_u32 v{vt}, v0, 4, 1\nv_lshlrev_b32 v{vt}, 2, v{vt}\nv_xor_b32 v{vRdP}, v{vRdP}, v{vt}\nv_lshlrev_b32 v{vRdP}, 5, v{vRdP}')
    a(f'v_and_b32 v{vt}, 3, v0\nv_lshl_add_u32 v{vRdP}, v{vt}, 3, v{vRdP}')
    a(f'v_bfe_u32 v{vt}, v0, 2, 1\nv_lshl_add_u32 v{vRdP}, v{vt}, 8, v{vRdP}')
    a(f'v_lshrrev_b32 v{vt}, 4, v0\nv_lshl_add_u32 v{vRdP}, v{vt}, 10, v{vRdP}')
    def pre(a):
        srd(a, 12, pWO, WB)
        for var, vd in ((0, vA), (1, vB)):
            a(f'v_bfe_u32 v{vt}, v0, 4, 1\nv_lshlrev_b32 v{vt}, 1, v{vt}')
            if var: a(f'v_or_b32 v{vt}, 4, v{vt}')
            a(f'v_bfe_u32 v{vd}, v0, 1, 3\nv_xor_b32 v{vd}, v{vd}, v{vt}\nv_lshlrev_b32 v{vd}, 5, v{vd}')
            a(f'v_and_b32 v{vt}, 1, v0\nv_lshl_add_u32 v{vd}, v{vt}, 4, v{vd}')
            a(f'v_lshrrev_b32 v{vt}, 4, v0\nv_mul_u32_u24 v{vt}, 1280, v{vt}\nv_add_u32 v{vd}, v{vd}, v{vt}')
    so = lambda c: (lambda a: a(f's_lshl_b32 s{sT0}, s{sH}, 7\ns_lshl_b32 s{sT1}, s{sWave}, 4\ns_add_u32 s{sT0}, s{sT0}, s{sT1}\ns_mul_i32 s{sT0}, s{sT0}, 1280\ns_add_u32 s{sT0}, s{sT0}, {256 * c}'))
    def rd(c):
        def f(a, va):
            l = a.newlabel('wo')
            a(f's_cmp_ge_u32 s{sWave}, 4\ns_cbranch_scc0 {l}')
            for k in range(4):
                for hb in range(2):
                    for al in range(2):
                        a(f'ds_read_b64_tr_b16 {A(32 * c + 8 * k + 4 * hb + 2 * al, 2)}, v{va} offset:{(32 * k + 16 * hb + 2 * al) * 256}')
            a(f'{l}:')
        return f
    chunks += [dict(pre=pre if c == 0 else None, soff=so(c), stride=1280, reads=rd(c), var=lambda i: i & 1, vrd=vRdP) for c in range(5)]
    loader(a, chunks, vA, vB, vRd, vRd2, vt, vo)
    tstamp(a, cfg, 1, vt, vo)
    wait_init(a, vt, vo)
    bases(a, cfg); idx_setup(a)
    vXr, vUg, vG16, vG4, vM16, vM4 = 10, 11, 13, 14, 15, 4
    vP = 64
    a(f's_mul_i32 s{sT0}, s{sWave}, 1280\nv_add_u32 v{vM16}, s{sT0}, v{vL16}\ns_add_u32 s{sT0}, s{sT0}, 1024\nv_lshlrev_b32 v{vM4}, 2, v0\nv_add_u32 v{vM4}, s{sT0}, v{vM4}')
    a(f's_lshr_b32 s{sT0}, s{sWave}, 2\ns_mul_i32 s{sT0}, s{sT0}, {16384 - 5120}\ns_add_u32 s{sT0}, s{sT0}, {VOFF}\nv_add_u32 v{vG16}, s{sT0}, v{vM16}\nv_add_u32 v{vG4}, s{sT0}, v{vM4}')
    def fetch():
        top = a.newlabel('vp'); done = a.newlabel('vd')
        D = cfg.vdepth
        sets = [vP, 88, 56][:D]
        ldv = lambda r: a(f'buffer_load_dwordx4 {V(r, 4)}, v{vG16}, {WS}, s{sCR} offen sc1\nbuffer_load_dword v{r + 4}, v{vG4}, {WS}, s{sCR} offen sc1')
        wrv = lambda r: a(f'ds_write_b128 v{vM16}, {V(r, 4)} offset:{MEMBUF}\nds_write_b32 v{vM4}, v{r + 4} offset:{MEMBUF}')
        for r in sets[:-1]:
            ldv(r); a(f's_nop {cfg.vgap}')
        a(f'{top}:')
        ldv(sets[-1])
        for i, r in enumerate(sets):
            a(f's_waitcnt vmcnt({2 * (D - 1)})')
            maxtree(a, vTmp, R4(r, 5))
            a(f'v_cmp_eq_u32 vcc, -1, v{vTmp}')
            ok = a.newlabel('vk')
            a(f's_cbranch_vccz {ok}')
            if i < D - 1:
                ldv(r)
                a.defer(lambda ok=ok, r=r: (a(f'{ok}:'), wrv(r), a(f's_branch {done}')))
            else:
                a(f's_sub_u32 s{sLim}, s{sLim}, 1\ns_cbranch_scc0 {top}\ns_mov_b32 s{sLim}, 0\n{ok}:')
                wrv(r)
        a(f'{done}:')
        a('s_waitcnt lgkmcnt(0)')
        fstamp(a, cfg, 1)
        a('s_barrier')
        fstamp(a, cfg, 2)
    tstamp(a, cfg, 2, vTmp, vTmp2)
    a(f's_cmp_ge_u32 s{sWave}, 4\ns_cbranch_scc1 L_VO_hi')
    a(f'v_and_b32 v{vXw}, 15, v0\nv_lshlrev_b32 v{vXw}, 4, v{vXw}')
    a(f'v_bfe_u32 v{vTmp}, v0, 4, 1\nv_lshl_add_u32 v{vXw}, v{vTmp}, 3, v{vXw}')
    a(f'v_lshrrev_b32 v{vTmp}, 5, v0\nv_lshl_add_u32 v{vXw}, v{vTmp}, 8, v{vXw}')
    a(f's_lshl_b32 s{sT0}, s{sWave}, 9\ns_add_u32 s{sT0}, s{sT0}, {XBUF}\nv_add_u32 v{vXw}, s{sT0}, v{vXw}')
    a('L_VO_lo:')
    for i in range(8): a(f'v_mov_b32 v{vAcc + i}, 0')
    fetch()
    for i in range(10): a(f'ds_read_b128 {V(vZ + 4 * i, 4)}, v{vL16} offset:{MEMBUF + i * 1024}')
    for i in range(10):
        a(f's_waitcnt lgkmcnt({9 - i})')
        a(f'v_smfmac_f32_16x16x64_bf16 {V(vAcc, 4)}, {V(vZ + 4 * i, 4)}, {A(i * 8, 8)}, v{vIdx}')
        a(f'v_smfmac_f32_16x16x64_bf16 {V(vAcc + 4, 4)}, {V(vZ + 4 * i, 4)}, {A(80 + i * 8, 8)}, v{vIdx}')
    b = vAcc
    for i in range(4): a(f'v_permlane32_swap_b32 v{b + i}, v{b + 4 + i}')
    for i in (0, 2): a(f'v_pk_add_f32 {V(b + i, 2)}, {V(b + i, 2)}, {V(b + 4 + i, 2)}')
    a(f'v_cvt_pk_bf16_f32 v{b}, v{b}, v{b + 1}\nv_cvt_pk_bf16_f32 v{b + 1}, v{b + 2}, v{b + 3}')
    a(f'ds_write_b64 v{vXw}, {V(vAcc, 2)}\ns_waitcnt lgkmcnt(0)\ns_barrier')
    fstamp(a, cfg, 6)
    a('s_barrier')
    facc(a, cfg)
    advance(a, cfg, 'L_VO_lo')
    tstamp(a, cfg, 3, vTmp, vTmp2)
    fdump(a, cfg, vTmp, vTmp2)
    a('s_branch L_end')
    a.flush()
    a('L_VO_hi:')
    a(f'v_and_b32 v{vXr}, 1, v0\nv_lshlrev_b32 v{vXr}, 3, v{vXr}\nv_bfe_u32 v{vTmp}, v0, 2, 2\nv_lshl_add_u32 v{vXr}, v{vTmp}, 4, v{vXr}')
    a(f'v_lshrrev_b32 v{vTmp}, 4, v0\nv_lshl_add_u32 v{vXr}, v{vTmp}, 7, v{vXr}')
    assert UM % (4 * MB) == 0
    a(f's_and_b32 s{sT2}, s{sWave}, 3')
    a(f'v_and_b32 v{vUg}, 15, v0\nv_lshlrev_b32 v{vUg}, 4, v{vUg}\nv_bfe_u32 v{vTmp}, v0, 4, 1\nv_lshl_add_u32 v{vUg}, v{vTmp}, 23, v{vUg}')
    a(f'v_lshrrev_b32 v{vTmp}, 5, v0\nv_lshl_add_u32 v{vUg}, v{vTmp}, 20, v{vUg}')
    a(f's_lshl_b32 s{sT0}, s{sT2}, 21\ns_and_b32 s{sT1}, s{sT2}, 1\ns_lshl_b32 s{sT1}, s{sT1}, 13\ns_xor_b32 s{sT1}, s{sT1}, s{sPar}\ns_add_u32 s{sT0}, s{sT0}, s{sT1}')
    a(f's_lshl_b32 s{sT1}, s{sH}, 8\ns_add_u32 s{sT0}, s{sT0}, s{sT1}\nv_add_u32 v{vUg}, s{sT0}, v{vUg}')
    a(f's_mov_b32 s{sEx}, 0xffff\ns_mov_b32 s{sEx + 1}, 0xffff\ns_mov_b32 s{sSeg2}, {UM}')
    vV = 72; vO = 48
    a(f's_lshr_b32 s{sT0}, s{sH}, 4\ns_lshl_b32 s{sT0}, s{sT0}, 14\ns_and_b32 s{sT1}, s{sH}, 15\ns_lshl_b32 s{sT1}, s{sT1}, 7\ns_add_u32 s{sT0}, s{sT0}, s{sT1}\ns_add_u32 s{sT0}, s{sT0}, s{sPar}\ns_add_u32 s{sT0}, s{sT0}, {2 * XS + SL}\nv_mov_b32 v12, s{sT0}')
    a('L_VO_hi_loop:')
    fetch()
    for i in range(20): a(f'v_mov_b32 v{vZ + i}, 0')
    if cfg.gv is not None:
        l = a.newlabel('gv')
        a(f's_cmp_lg_u32 s{sWave}, 4\ns_cbranch_scc1 {l}\nv_mov_b32 v{vTmp}, s{sStep}')
        for i in range(cfg.gv): a('s_nop 7')
        a(f's_mov_b64 exec, 1\nbuffer_store_dword v{vTmp}, v12, {WS}, 0 offen sc1\ns_mov_b64 exec, -1\n{l}:')
    a(f's_add_u32 s{sT2}, s{sSeg2}, {16 * MB}\ns_add_u32 s{sT3}, s{sSeg2}, {32 * MB}')
    a('s_barrier')
    fstamp(a, cfg, 6)
    for k in range(4):
        for al in range(2): a(f'ds_read_b64_tr_b16 {V(vV + 4 * k + 2 * al, 2)}, v{vXr} offset:{XBUF + k * 512 + al * 64}')
    def sm(p, k): return f'v_smfmac_f32_16x16x64_bf16 {V(vZ + 4 * p, 4)}, {V(vV + 4 * k, 4)}, {A(32 * p + 8 * k, 8)}, v{vIdx}'
    def outl(ps, o, so):
        r = []
        for q, p in enumerate(ps):
            r += [f'v_cvt_pk_bf16_f32 v{o + 2 * q}, v{vZ + 4 * p}, v{vZ + 4 * p + 1}', f'v_cvt_pk_bf16_f32 v{o + 2 * q + 1}, v{vZ + 4 * p + 2}, v{vZ + 4 * p + 3}']
        r += [f'v_permlane16_swap_b32 v{o}, v{o + 2}', f'v_permlane16_swap_b32 v{o + 1}, v{o + 3}']
        st = f'buffer_store_dwordx4 {V(o, 4)}, v{vUg}, {WS}, s{so} offen sc1'
        if len(ps) == 1: st = f's_mov_b64 exec, s[{sEx}:{sEx + 1}]\n' + st + '\ns_mov_b64 exec, -1'
        return r + [st]
    for k in range(4):
        a(f's_waitcnt lgkmcnt({6 - 2 * k})'); a(sm(4, k))
    seq = [sm(p, k) for k in range(4) for p in (0, 1)] + [sm(p, k) for k in range(4) for p in (2, 3)]
    fill = {}
    for i, x in enumerate(outl((4,), vO + 8, sT3)): fill[3 + i] = x
    for i, x in enumerate(outl((0, 1), vO, sSeg2)): fill[min(11 + i, 15) if i < 5 else 100 + i] = x
    for i, x in enumerate(seq):
        a(x)
        if i in fill: a(fill[i])
    for i in sorted(k for k in fill if k >= 100): a(fill[i])
    for x in outl((2, 3), vO + 4, sT2): a(x)
    fstamp(a, cfg, 7)
    a('s_barrier')
    a(f's_add_u32 s{sSeg2}, s{sSeg2}, 16384')
    facc(a, cfg)
    advance(a, cfg, 'L_VO_hi_loop')
    fdump(a, cfg, vTmp, vTmp2)
    a('s_branch L_end')
    a.flush()

def role_S2(a, cfg):
    a('L_S2:')
    NST = cfg.nsteps - 1
    a(f's_cmp_ge_u32 s{sWave}, 4\ns_cbranch_scc1 L_S2_red')
    vP0, vPm, vUm, vUm2, vRw, vFa, vFl = 10, 11, 12, 13, 14, 15, 6
    PL0, PR0, Pm, Um = 16, 24, 32, 36
    A1, A2 = 52, 68
    quad_base(a, sT0, sWave)
    a(f'v_and_b32 v{vTmp}, 7, v0\nv_lshlrev_b32 v{vTmp}, 4, v{vTmp}\nv_add_u32 v{vTmp}, s{sT0}, v{vTmp}\nv_lshrrev_b32 v{vTmp2}, 4, v0')
    a(f'v_lshl_add_u32 v{vP0}, v{vTmp2}, 7, v{vTmp}\nv_mul_u32_u24 v{vTmp2}, 640, v{vTmp2}\nv_add_u32 v{vPm}, v{vTmp}, v{vTmp2}\nv_add_u32 v{vPm}, 512, v{vPm}')
    a(f'v_bfe_u32 v{vTmp2}, v0, 3, 1\nv_mul_u32_u24 v{vTmp2}, 640, v{vTmp2}\nv_add_u32 v{vP0}, v{vP0}, v{vTmp2}')
    a(f'v_and_b32 v{vTmp}, 8, v0\nv_lshlrev_b32 v{vTmp}, 10, v{vTmp}\nv_xor_b32 v{vTmp}, s{sPar}, v{vTmp}\nv_xor_b32 v{vTmp}, 0x2000, v{vTmp}\nv_add_u32 v{vPm}, v{vPm}, v{vTmp}')
    a(f'v_and_b32 v{vRw}, 15, v0\nv_lshlrev_b32 v{vRw}, 5, v{vRw}\nv_lshrrev_b32 v{vTmp}, 4, v0\nv_lshl_add_u32 v{vRw}, v{vTmp}, 3, v{vRw}')
    a(f's_lshl_b32 s{sT1}, s{sWave}, 11\ns_add_u32 s{sT1}, s{sT1}, {RED}\nv_add_u32 v{vRw}, s{sT1}, v{vRw}')
    a(f's_mul_i32 s{sT2}, s{sXr}, 10\ns_add_u32 s{sT2}, s{sT2}, s{sJ}')
    a(f's_lshl_b32 s{sT0}, s{sT2}, 21\ns_and_b32 s{sT1}, s{sT2}, 1\ns_lshl_b32 s{sT1}, s{sT1}, 13\ns_xor_b32 s{sT1}, s{sT1}, s{sPar}\ns_add_u32 s{sT0}, s{sT0}, s{sT1}')
    a(f's_lshl_b32 s{sT1}, s{sWave}, 10\ns_add_u32 s{sT0}, s{sT0}, s{sT1}\ns_lshl_b32 s{sT1}, s{sXr}, 12\ns_add_u32 s{sT0}, s{sT0}, s{sT1}')
    a(f'v_add_u32 v{vUm}, s{sT0}, v{vL16}\nv_xor_b32 v{vUm2}, 0x1000, v{vUm}\ns_mov_b32 s{sSeg2}, {UM}')
    a(f's_lshl_b32 s{sSeg}, s{sT2}, 22\ns_lshl_b32 s{sT0}, s{sWave}, 12\ns_add_u32 s{sSeg}, s{sSeg}, s{sT0}\ns_lshl_b32 s{sT0}, s{sXr}, 14\ns_add_u32 s{sSeg}, s{sSeg}, s{sT0}\ns_add_u32 s{sSeg}, s{sSeg}, {UX}')
    a(f'v_and_b32 v{vFa}, 3, v0\nv_bfe_u32 v{vTmp}, v0, 2, 1\nv_lshl_add_u32 v{vFa}, v{vTmp}, 4, v{vFa}\nv_lshlrev_b32 v{vFa}, 8, v{vFa}')
    a(f's_lshl_b32 s{sT0}, s{sWave}, 10\ns_add_u32 s{sT0}, s{sT0}, {F_UX}\nv_add_u32 v{vFa}, s{sT0}, v{vFa}')
    a(f'v_mov_b32 v{vFl}, 0\nv_mov_b32 v{vFl + 1}, 0')
    ldU = flag_ld(vFl, vFa, cfg.nc_vox)
    a('s_barrier')
    a(f's_mov_b32 s{sT4}, 0')
    flag_wait(a, vFl, ldU, cfg.nc_vox, 2)
    tstamp(a, cfg, 2, vTmp, vTmp2)
    def uxl(lo, hi):
        if cfg.no_ux: return
        for n in range(lo, hi):
            t, hf, i = n >> 3, (n >> 2) & 1, n & 3
            if i == 0 or n == lo: a(f's_xor_b32 s{sT0}, s{sSeg}, {hf * 0x4000 + t * 2 * MB}')
            a(f'buffer_load_dwordx4 {A(4 * n, 4)}, v{vL16}, {WS}, s{sT0} offen offset:{1024 * i} sc1{cfg.ux_nt}')
    uxl(0, cfg.uxe + cfg.uxe2)
    a('L_S2_loop:')
    fstamp(a, cfg, 0)
    uxl(cfg.uxe + cfg.uxe2, 16)
    a(ldU)
    a(f's_add_u32 s{sSeg}, s{sSeg}, 32768\ns_add_u32 s{sT4}, s{sStep}, 1\ns_waitcnt vmcnt(0)')
    fstamp(a, cfg, 1)
    flag_wait(a, vFl, ldU, cfg.nc_vox)
    l = a.newlabel('pz'); top = a.newlabel('pz')
    a(f's_cmp_lg_u32 s{sStep}, {NPRE - 4}\ns_cbranch_scc1 {l}')
    a(f'v_and_b32 v{vTmp2}, 7, v0\nv_lshlrev_b32 v{vTmp2}, 8, v{vTmp2}\nv_add_u32 v{vTmp2}, {F_PZ}, v{vTmp2}\ns_mov_b32 s{sSpin}, s{sLim}')
    a(f'{top}:\nbuffer_load_dword v{vTmp}, v{vTmp2}, {WS}, 0 offen sc1\ns_waitcnt vmcnt(0)\nv_cmp_eq_u32 vcc, 0, v{vTmp}\ns_cbranch_vccz {l}')
    a(f's_sub_u32 s{sSpin}, s{sSpin}, 1\ns_cbranch_scc0 {top}\ns_mov_b32 s{sLim}, 0\n{l}:')
    a(f's_andn2_b32 s{sT1}, s{sCL}, 0x2000\ns_add_u32 s{sT2}, s{sSeg2}, {MB}')
    ldp = lambda b, so: [f'buffer_load_dwordx4 {V(b, 4)}, v{vP0}, {WS}, s{so} offen sc1', f'buffer_load_dwordx4 {V(b + 4, 4)}, v{vP0}, {WS}, s{so} offen offset:1280 sc1']
    g1 = ldp(PL0, sCL)
    g2 = ldp(PR0, sCR) + [f'buffer_load_dwordx4 {V(Pm, 4)}, v{vPm}, {WS}, s{sT1} offen sc1']
    g3 = [f'buffer_load_dwordx4 {V(Um + 8 * t + 4 * hf, 4)}, v{vUm2 if hf else vUm}, {WS}, s{sT2 if t else sSeg2} offen sc1' for t in range(2) for hf in range(2)]
    def s2(b, hf, d, c):
        for q in range(2):
            for t in range(2):
                for e in range(2):
                    r = d + 8 * t + 4 * e
                    cc = V(r, 4) if q else ('0' if c is None else V(c + 8 * t + 4 * e, 4))
                    a(f'v_mfma_f32_16x16x32_bf16 {V(r, 4)}, {A(32 * t + 16 * hf + 8 * q + 4 * e, 4)}, {V(b + 4 * q, 4)}, {cc}')
    def s3(d, c):
        for t in range(2):
            for e in range(2):
                a(f'v_mfma_f32_16x16x32_bf16 {V(d + 8 * t + 4 * e, 4)}, {V(Um + 8 * t + 4 * e, 4)}, {V(Pm, 4)}, {V(c + 8 * t + 4 * e, 4)}')
    def dump(d):
        for t in range(2):
            for i in range(4): a(f'v_add_f32_dpp v{d + 8 * t + i}, v{d + 8 * t + 4 + i}, v{d + 8 * t + i} row_shl:8 row_mask:0xf bank_mask:0xf')
            a(f'ds_write2st64_b64 v{vRw}, {V(d + 8 * t, 2)}, {V(d + 8 * t + 2, 2)} offset0:{2 * t} offset1:{2 * t + 1}')
    a('s_setprio 3\ns_barrier')
    fstamp(a, cfg, 3)
    if cfg.sorder == 0:
        for l in g1: a(l)
        a('s_setprio 2')
        for l in g2: a(l)
        a('s_setprio 0')
        nops(a, cfg.g3del)
        for l in g3: a(l)
        check(a, g1, R4(PL0, 8), vTmp, 7, cnt=98, spec=lambda: s2(PL0, 0, A1, None))
        if cfg.fine == -3: fstamp(a, cfg, 2)
        check(a, g2, R4(PR0, 8) + R4(Pm), vTmp, 4, cnt=99, spec=lambda: s2(PR0, 1, A2, A1))
        fstamp(a, cfg, 4)
        check(a, g3, R4(Um, 16), vTmp, 0, cnt=100, spec=lambda: s3(A1, A2), specwait=True, post=lambda: dump(A1))
    elif cfg.sorder == 2:
        for l in g1: a(l)
        for l in g3: a(l)
        a('s_setprio 2'); a(g2[2])
        a('s_setprio 1'); a(g2[0])
        a('s_setprio 0'); a(g2[1])
        check(a, g1, R4(PL0, 8), vTmp, 7, cnt=98, spec=lambda: s2(PL0, 0, A1, None))
        if cfg.fine == -3: fstamp(a, cfg, 2)
        check(a, g3 + g2[2:], R4(Um, 16) + R4(Pm), vTmp, 2, cnt=100, spec=lambda: s3(A2, A1))
        fstamp(a, cfg, 4)
        def half_s2(q, d, c):
            for t in range(2):
                for e in range(2):
                    a(f'v_mfma_f32_16x16x32_bf16 {V(d + 8 * t + 4 * e, 4)}, {A(32 * t + 16 + 8 * q + 4 * e, 4)}, {V(PR0 + 4 * q, 4)}, {V(c + 8 * t + 4 * e, 4)}')
        check(a, g2[:1], R4(PR0), vTmp, 1, cnt=99, spec=lambda: half_s2(0, A1, A2))
        check(a, g2[1:2], R4(PR0 + 4), vTmp, 0, cnt=99, spec=lambda: half_s2(1, A2, A1), specwait=True, post=lambda: dump(A2))
    else:
        for l in g3: a(l)
        a('s_setprio 2')
        for l in g1: a(l)
        a('s_setprio 0')
        for l in g2: a(l)
        check(a, g3 + g1, R4(Um, 16) + R4(PL0, 8), vTmp, 3, spec=lambda: s2(PL0, 0, A1, None))
        fstamp(a, cfg, 4)
        check(a, g2, R4(PR0, 8) + R4(Pm), vTmp, 0, spec=lambda: (s2(PR0, 1, A2, A1), s3(A2, A2)), specwait=True, post=lambda: dump(A2))
    if cfg.fine == -3: fstamp(a, cfg, 5)
    uxl(0, cfg.uxe)
    a('s_waitcnt lgkmcnt(0)\ns_barrier')
    fstamp(a, cfg, 6)
    uxl(cfg.uxe, cfg.uxe + cfg.uxe2)
    a(f's_add_u32 s{sSeg2}, s{sSeg2}, 16384')
    a('s_barrier')
    facc(a, cfg)
    advance(a, cfg, None)
    a(f's_cmp_lt_u32 s{sStep}, {NST}\ns_cbranch_scc1 L_S2_loop')
    tstamp(a, cfg, 3, vTmp, vTmp2)
    fdump(a, cfg, vTmp, vTmp2)
    a('s_branch L_end')
    a.flush()
    a('L_S2_red:')
    vRr, vMs, vC1, vCs, vCv, aa = 10, 11, 12, 13, 14, 16
    sO = sNL
    a(f's_setprio 3\ns_cmp_lg_u32 s{sWave}, 4\ns_cbranch_scc1 L_S2_r567')
    a(f'v_and_b32 v{vC1}, 15, v0\nv_lshlrev_b32 v{vC1}, 2, v{vC1}\nv_add_u32 v{vC1}, {FL1}, v{vC1}')
    a(f's_add_u32 s{sT2}, s{sPar}, {2 * XS}\ns_sub_u32 s{sT2}, s{sT2}, s{sbL}\nv_and_b32 v{vTmp}, 15, v0\nv_lshlrev_b32 v{vTmp}, 7, v{vTmp}\nv_add_u32 v{vTmp}, s{sT2}, v{vTmp}')
    if cfg.gq is not None:
        a(f's_xor_b32 s{sT0}, s{sXr}, 1\ns_lshl_b32 s{sT0}, s{sT0}, 14\ns_mov_b32 exec_lo, 0xffff0000\ns_mov_b32 exec_hi, 0\nv_add_u32 v{vC1}, s{sT0}, v{vTmp}\ns_mov_b64 exec, -1')
    if cfg.gv is not None:
        a(f'v_bfe_u32 v{vTmp2}, v0, 4, 1\nv_lshl_add_u32 v{vTmp}, v{vTmp2}, 14, v{vTmp}\ns_mov_b32 exec_lo, 0\nv_add_u32 v{vC1}, {SL}, v{vTmp}\ns_mov_b64 exec, -1')
    a(f's_lshl_b32 s{sT0}, s{sJ}, 2\ns_add_u32 s{sT0}, s{sT0}, {FL2}\nv_mov_b32 v{vCs}, s{sT0}\nv_mov_b32 v{vCv}, 0')
    def w4(fl, lab):
        a('s_barrier')
        a(f'{lab}:')
        a(f'v_add_u32 v{vCv}, 1, v{vCv}')
        cue_wait(a, cfg, vC1, [28 + i for i in range(cfg.cdepth)], sStep)
        nops(a, cfg.cdel1)
        a('s_barrier\ns_barrier')
        if cfg.cpos2 == 0:
            nops(a, cfg.cdel2)
            cue1l(a, vCv, vCs, fl)
        a('s_barrier')
        a(f's_add_u32 s{sStep}, s{sStep}, 1\ns_cmp_lt_u32 s{sStep}, {NST}\ns_cbranch_scc1 {lab}')
        a('s_branch L_end')
    both(a, 'L_S2_w4', w4)
    a('L_S2_r567:')
    a(f'v_lshrrev_b32 v{vRr}, 4, v0\nv_lshlrev_b32 v{vRr}, 9, v{vRr}\nv_and_b32 v{vTmp}, 15, v0\nv_lshl_add_u32 v{vRr}, v{vTmp}, 4, v{vRr}')
    a(f's_lshl_b32 s{sT0}, s{sJ}, 9\nv_lshlrev_b32 v{vMs}, 3, v0\nv_add_u32 v{vMs}, s{sT0}, v{vMs}')
    a(f's_lshl_b32 s{sO}, s{sXr}, 14\ns_add_u32 s{sO}, s{sO}, s{sPar}\ns_add_u32 s{sO}, s{sO}, {2 * XS + VOFF}')
    a(f's_cmp_eq_u32 s{sWave}, 6\ns_cselect_b32 s{sO}, s{sCO}, s{sO}\ns_cmp_eq_u32 s{sWave}, 5\ns_cselect_b32 s{sO}, s{sCL}, s{sO}')
    srd(a, 12, pMEM0, 10240)
    a(f'v_bfe_u32 v{vTmp}, v0, 1, 3\nv_mul_u32_u24 v{vTmp}, 1280, v{vTmp}\nv_and_b32 v{vTmp2}, 1, v0\nv_lshl_add_u32 v{vTmp}, v{vTmp2}, 4, v{vTmp}\nv_bfe_u32 v{vTmp2}, v0, 4, 1\nv_lshl_add_u32 v{vTmp}, v{vTmp2}, 2, v{vTmp}')
    a(f'v_and_b32 v{vTmp2}, 32, v0\nv_add_u32 v{vTmp}, v{vTmp}, v{vTmp2}')
    a(f's_mul_i32 s{sT0}, s{sXr}, 10\ns_add_u32 s{sT0}, s{sT0}, s{sJ}\ns_lshl_b32 s{sT0}, s{sT0}, 6')
    a(f'buffer_load_dword v{aa}, v{vTmp}, {T1}, s{sT0} offen\nbuffer_load_dword v{aa + 1}, v{vTmp}, {T1}, s{sT0} offen offset:8\ns_waitcnt vmcnt(0)\nv_min_u32 v{aa}, -2, v{aa}\nv_min_u32 v{aa + 1}, -2, v{aa + 1}')
    def reducer(fl, lab, cuer):
        cue = lambda pos: cue1l(a, vCv, vCs, fl) if (cuer and cfg.cpos2 == pos) else None
        a(f'buffer_store_dwordx2 {V(aa, 2)}, v{vMs}, {WS}, s{sO} offen{fl}')
        if cuer: cue1l(a, vCv, vCs, fl)
        a('s_barrier')
        a(f'{lab}:')
        a(f's_add_u32 s{sO}, s{sO}, {SL}')
        if cuer: a(f'v_add_u32 v{vCv}, 1, v{vCv}')
        a('s_barrier\ns_barrier')
        for w in range(4): a(f'ds_read_b128 {V(aa + 4 * w, 4)}, v{vRr} offset:{RED + 2048 * w}')
        cue(1)
        pk = lambda d, s_: a(f'v_pk_add_f32 {V(d, 2)}, {V(d, 2)}, {V(s_, 2)}\nv_pk_add_f32 {V(d + 2, 2)}, {V(d + 2, 2)}, {V(s_ + 2, 2)}')
        a('s_waitcnt lgkmcnt(2)'); pk(aa, aa + 4)
        a('s_waitcnt lgkmcnt(0)'); pk(aa + 8, aa + 12); pk(aa, aa + 8)
        a(f'v_cvt_pk_bf16_f32 v{aa}, v{aa}, v{aa + 1}\nv_cvt_pk_bf16_f32 v{aa + 1}, v{aa + 2}, v{aa + 3}')
        fstamp(a, cfg, 7)
        cue(2)
        if not cuer and cfg.rdel: a(f's_nop {cfg.rdel - 1}')
        a(f'buffer_store_dwordx2 {V(aa, 2)}, v{vMs}, {WS}, s{sO} offen{fl}')
        cue(3)
        if cfg.uxack: a('s_waitcnt vmcnt(0)')
        nops(a, cfg.uxdel)
        a('s_barrier')
        facc(a, cfg)
        a(f's_add_u32 s{sStep}, s{sStep}, 1\ns_cmp_lt_u32 s{sStep}, {NST}\ns_cbranch_scc1 {lab}')
        fdump(a, cfg, vTmp, vTmp2)
        a('s_branch L_end')
    a(f's_cmp_ge_u32 s{sWave}, 6\ns_cbranch_scc1 L_S2_rem')
    a(f's_lshl_b32 s{sT0}, s{sJ}, 2\ns_add_u32 s{sT0}, s{sT0}, {FL2}\nv_mov_b32 v{vCs}, s{sT0}\nv_mov_b32 v{vCv}, 0')
    both(a, 'L_S2_w5', lambda fl, lab: reducer(fl, lab, True))
    a('L_S2_rem:')
    reducer(' sc1', 'L_S2_w67', False)
```

```python
import sys, struct
sys.path.insert(0, 'gen')
from asmlib import *
from layout import *

KNAME = 'gated_mix__memory_aug_recurrent_mem_tr__glu_gated_bilinear__prompt_kernel'

def f2u(x): return struct.unpack('<I', struct.pack('<f', x))[0]

WS = 's[4:7]'; DBG = 's[8:11]'; T1 = 's[12:15]'; T2 = 's[48:51]'
pX, pMEM0, pWQ, pWK, pWV, pWO, pWG, pWU, pWD, pGW, pOUT, pDBG, pWS = 16, 18, 20, 22, 24, 26, 32, 34, 36, 38, 40, 42, 44
sWave, sX, sR, sH, sXr, sJ, sHas2, sLim, sStep, sImp = 52, 53, 54, 55, 56, 57, 58, 59, 60, 61
sT0, sT1, sT2, sT3, sT4, sT5 = 62, 63, 64, 65, 66, 67
sbL, sbR, sbO = 68, 69, 70
sCL, sCR, sCO, sPL, sPO, sNL, sNO = 71, 72, 73, 74, 75, 76, 77
sSeg = 78
sSeg2 = 79
sEx = 80
sEx2 = 82
sTm = 84
sC = 88
sSpin = 89
sFl0, sFl1 = 90, 91
sPar = 46
sClm = 30

class Cfg:
    rx0 = 0; rx1 = 2; rx2 = 1; r2 = True
    qcue = True; scue = True; vo_sleep = 0; pf_ahead = 2; no_pf = True; pf64 = False
    ax = None; fx = None
    nc_qkx = 2; nc_vox = 1; nc_ff1 = 2; la = 1; early_pub = 6; km_sleep = 2
    roles = ('R', 'QKX', 'VOX', 'FF1', 'FIN')
    fake_xcc = None
    timing = False
    force_impure = False
    force_par = None
    rdelay1 = 0
    rdelay2 = 0
    nsteps = 64
    fine = 0
    rot = 1
    uxn = 16
    uxmode = 'mix'
    voxx = False
    uxpos = 1
    pfn = 0
    rmode = 'hi'
    ldma = False
    uxack = False
    uxe = 0
    uxe2 = 0
    uxdel = 0
    cdel1 = 0
    g3del = 0
    gq = None
    gv = None
    vdepth = 1
    vgap = 15
    rdel = 0
    cdepth2 = 4
    npre0 = 0
    vfirst = True
    hidel = 8
    npre = 2
    r3 = True
    presleep = 64
    claim_at = 0
    keep_flags = False
    defer_ff = True
    dbgtime = None
    vox_prio = True
    ux_st = ''
    vcue = False
    cpos3 = 2
    cwave3 = 0
    cdel3 = 0
    sorder = 0
    bg_late = True
    pubord = 'LOV'
    cdel2 = 16
    h2cue2 = True
    vocue2 = True
    h2cue = False
    prio1 = True
    cdepth = 4
    cgap = 12
    cpos1 = 8
    cpos2 = 0
    w0ack = False
    rdelay1q = 3
    order = 0
    n0qk = 6
    b3b = False
    st3 = True
    um_early = 0
    n0vo = 6
    late_vo = False
    only = None
    n1qk = 8
    n1vo = 8
    trig1 = 0
    late_r = False
    no_ux = False
    ux_nt = ''

COUNT_RETRY = [False]
CLAIM_AT = [0]

def srd(a, q, p, nbytes):
    a(f's_mov_b32 s{q}, s{p}\ns_and_b32 s{q+1}, s{p+1}, 0xffff\ns_mov_b32 s{q+2}, {nbytes}\ns_mov_b32 s{q+3}, 0x00020000')

def ux_head(a, cfg, sd, sh):
    a(f's_lshr_b32 s{sT0}, s{sh}, 4\ns_mul_i32 s{sd}, s{sT0}, {2 * MB + 0x2000 + cfg.rot * 0x8000}\ns_xor_b32 s{sd}, s{sd}, s{sPar}')
    if cfg.uxmode == 'far': a(f's_xor_b32 s{sd}, s{sd}, 0x2000')
    a(f's_bfe_u32 s{sT0}, s{sh}, 0x10003\ns_mul_i32 s{sT0}, s{sT0}, {0x6000 if cfg.uxmode == "mix" else 0x4000}\ns_xor_b32 s{sd}, s{sd}, s{sT0}')
    a(f's_and_b32 s{sT0}, s{sh}, 7\ns_lshl_b32 s{sT0}, s{sT0}, 10\ns_add_u32 s{sd}, s{sd}, s{sT0}')

def ux_tile(a, cfg, sd, sj):
    if cfg.rot: a(f's_and_b32 s{sT0}, s{sj}, 31\ns_lshl_b32 s{sT0}, s{sT0}, 16\ns_add_u32 s{sd}, s{sd}, s{sT0}')
    a(f's_lshl_b32 s{sT0}, s{sj}, 22\ns_add_u32 s{sd}, s{sd}, s{sT0}\ns_add_u32 s{sd}, s{sd}, {UX}')

def um_seg(a, sd, sseg):
    a(f's_mul_i32 s{sT0}, s{sseg}, 43\ns_lshr_b32 s{sT0}, s{sT0}, 7\ns_and_b32 s{sd}, s{sT0}, 1\ns_lshl_b32 s{sd}, s{sd}, 13\ns_xor_b32 s{sd}, s{sd}, s{sPar}')
    a(f's_lshl_b32 s{sT0}, s{sT0}, 17\ns_add_u32 s{sd}, s{sd}, s{sT0}\ns_mul_i32 s{sT0}, s{sseg}, {40 * 16384}\ns_add_u32 s{sd}, s{sd}, s{sT0}\ns_add_u32 s{sd}, s{sd}, {UM}')

def maxtree(a, dst, regs):
    regs = list(regs)
    if len(regs) % 2 == 0:
        a(f'v_max_u32 v{dst}, v{regs[0]}, v{regs[1]}'); rest = regs[2:]
    else:
        a(f'v_max3_u32 v{dst}, v{regs[0]}, v{regs[1]}, v{regs[2]}'); rest = regs[3:]
    for i in range(0, len(rest), 2):
        a(f'v_max3_u32 v{dst}, v{dst}, v{rest[i]}, v{rest[i+1]}')

def poll(a, loads, regs, tmp, first_issued=False, spec=None, specwait=False, first_wait=0, sleep=0):
    top = a.newlabel('poll'); chk = a.newlabel('chk'); done = a.newlabel('pdone')
    a(f's_mov_b32 s{sSpin}, s{sLim}')
    if first_issued:
        a(f's_waitcnt vmcnt({first_wait})')
        a(f's_branch {chk}')
    a(f'{top}:')
    if specwait: a('s_waitcnt lgkmcnt(0)')
    for l in loads: a(l)
    a('s_waitcnt vmcnt(0)')
    a(f'{chk}:')
    if spec: spec()
    maxtree(a, tmp, regs)
    a(f'v_cmp_eq_u32 vcc, -1, v{tmp}')
    a(f's_cbranch_vccz {done}')
    if COUNT_RETRY[0] and first_issued: a('s_add_u32 s101, s101, 1')
    if sleep: a(f's_sleep {sleep}')
    a(f's_sub_u32 s{sSpin}, s{sSpin}, 1')
    a(f's_cbranch_scc0 {top}')
    a(f's_mov_b32 s{sLim}, 0')
    a(f'{done}:')

def check(a, loads, regs, tmp, wait, spec=None, specwait=False, post=None, cnt=None):
    back = a.newlabel('ck'); retry = a.newlabel('rt'); done = a.newlabel('ckd')
    a(f's_waitcnt vmcnt({wait})')
    a(f'{back}:')
    if spec: spec()
    maxtree(a, tmp, regs)
    a(f'v_cmp_eq_u32 vcc, -1, v{tmp}')
    if post: post()
    a(f's_cbranch_vccnz {retry}')
    a(f'{done}:')
    def ool():
        a(f'{retry}:')
        if COUNT_RETRY[0]: a('s_add_u32 s101, s101, 1')
        if COUNT_RETRY[0] == 2 and cnt: a(f's_add_u32 s{cnt}, s{cnt}, 1')
        a(f's_sub_u32 s{sLim}, s{sLim}, 1')
        l = a.newlabel('rg')
        a(f's_cbranch_scc0 {l}\ns_mov_b32 s{sLim}, 0\ns_branch {done}\n{l}:')
        if specwait: a('s_waitcnt lgkmcnt(0)')
        a('s_nop 7')
        for x in loads: a(x)
        a(f's_waitcnt vmcnt(0)\ns_branch {back}')
    a.defer(ool)

def lstore(a, insts):
    l1 = a.newlabel('ls'); l2 = a.newlabel('le')
    a(f's_cmp_lg_u32 s{sImp}, 0')
    a(f's_cbranch_scc1 {l1}')
    for i in insts: a(i)
    a(f's_branch {l2}')
    a(f'{l1}:')
    for i in insts: a(i + (' sc1' if i.startswith('buffer_') else ''))
    a(f'{l2}:')

LSTAT = 61440
LSLOT = 65536
vClaim = 20

def claim_issue(a, vt):
    l = a.newlabel('ci')
    a(f's_or_b32 s{sT0}, s{sWave}, s{sClm}\ns_cbranch_scc1 {l}')
    a(f's_lshl_b32 s{sT0}, 1, s{sR}\ns_lshl_b32 s{sT1}, s{sX}, 5\nv_mov_b32 v{vClaim}, s{sT0}\nv_mov_b32 v{vt}, s{sT1}')
    a(f's_mov_b64 exec, 1\nbuffer_atomic_or v{vClaim}, v{vt}, {DBG}, 0 offen sc0\ns_mov_b64 exec, -1')
    a(f'{l}:')

def wait_init(a, vt, vo, presleep=0, only_check=False):
    top = a.newlabel('wi'); done = a.newlabel('wid'); ok = a.newlabel('wok')
    a(f'v_min_u32 v{vo}, 7, v0\nv_lshlrev_b32 v{vo}, 5, v{vo}')
    a(f's_cmp_lg_u32 s{sWave}, 0\ns_cbranch_scc1 {done}')
    a(f's_mov_b32 s{sT2}, 0\ns_cmp_lg_u32 s{sClm}, 0\ns_cbranch_scc1 {ok}')
    a(f's_waitcnt vmcnt(0)\nv_readfirstlane_b32 s{sT0}, v{vClaim}\ns_lshr_b32 s{sT0}, s{sT0}, s{sR}\ns_and_b32 s{sT2}, s{sT0}, 1')
    a(f'{ok}:')
    a(f'v_mov_b32 v{vt}, {LSTAT}\nv_mov_b32 v{vClaim}, s{sT2}\nds_write_b32 v{vt}, v{vClaim}\ns_waitcnt lgkmcnt(0)')
    if not only_check:
        a(f's_cmp_lg_u32 s{sT2}, 0\ns_cbranch_scc1 {done}')
        a(f's_mov_b32 s{sSpin}, s{sLim}')
        a(f'{top}:')
        if presleep: a(f's_sleep {presleep}')
        a(f'buffer_load_dword v{vt}, v{vo}, {DBG}, 0 offen sc1')
        a('s_waitcnt vmcnt(0)')
        a(f'v_cmp_ne_u32 vcc, -1, v{vt}')
        a(f's_cbranch_vccz {done}')
        if not presleep: a('s_sleep 8')
        a(f's_sub_u32 s{sSpin}, s{sSpin}, 8')
        a(f's_cbranch_scc0 {top}')
        a(f's_mov_b32 s{sLim}, 0')
    a(f'{done}:')
    a('s_barrier')
    if not only_check: a(f'buffer_load_dword v{vt}, v{vo}, {DBG}, 0 offen offset:4 sc1')
    a(f'v_mov_b32 v{vo}, {LSTAT}\nds_read_b32 v{vo}, v{vo}\ns_waitcnt vmcnt(0) lgkmcnt(0)\nv_readfirstlane_b32 s{sT0}, v{vo}\ns_cmp_lg_u32 s{sT0}, 0\ns_cbranch_scc1 L_reclaim')
    if not only_check: a(f'v_readlane_b32 s{sT0}, v{vt}, 1\nv_readlane_b32 s{sT1}, v{vt}, 2\nv_readlane_b32 s{sImp}, v{vt}, 3')

def loader(a, chunks, vA, vB, vRd, vRd2, vt, vo, nslots=3, claim=True, early=None, nearly=0):
    n = len(chunks)
    def issue(i):
        c = chunks[i]
        if c.get('pre'): c['pre'](a)
        c['soff'](a)
        a(f's_lshl_b32 s{sT1}, s{sWave}, 12')
        a(f's_add_u32 s{sT1}, s{sT1}, {LSLOT + (i % nslots) * 32768}')
        for ii in range(4):
            a(f's_mov_b32 m0, s{sT1}')
            a(f'buffer_load_dwordx4 v{vB if c.get("var", lambda i: i >> 1)(ii) else vA}, {T1}, s{sT0} offen lds')
            if ii < 3:
                a(f's_add_u32 s{sT0}, s{sT0}, {4 * c["stride"]}\ns_add_u32 s{sT1}, s{sT1}, 1024')
    issue(0)
    if claim and CLAIM_AT[0] == 0:
        a('s_waitcnt vmcnt(4)\ns_barrier')
        claim_issue(a, vt)
    if early: early()
    for i in range(1, min(nslots, n)): issue(i)
    for i in range(n):
        a(f's_waitcnt vmcnt({4 * (min(i + nslots - 1, n - 1) - i)})')
        a('s_barrier')
        a(f'v_add_u32 v{vRd2}, {LSLOT + (i % nslots) * 32768}, v{chunks[i].get("vrd", vRd)}')
        chunks[i]['reads'](a, vRd2)
        a('s_waitcnt lgkmcnt(0)')
        if i + nslots < n:
            a('s_barrier')
            issue(i + nslots)
            if claim and CLAIM_AT[0] == i + 1: claim_issue(a, vt)

def src_offsets(a, vA, vB, vt, stride, colmap=None):
    for var, vd in ((0, vA), (1, vB)):
        a(f'v_lshrrev_b32 v{vt}, 4, v0')
        if var: a(f'v_or_b32 v{vt}, 4, v{vt}')
        a(f'v_bfe_u32 v{vd}, v0, 1, 3')
        a(f'v_xor_b32 v{vd}, v{vd}, v{vt}')
        if colmap is None:
            a(f'v_lshlrev_b32 v{vd}, 5, v{vd}')
        else:
            colmap(a, vd, vt)
        a(f'v_and_b32 v{vt}, 1, v0\nv_lshl_add_u32 v{vd}, v{vt}, 4, v{vd}')
        a(f'v_lshrrev_b32 v{vt}, 4, v0\nv_mul_u32_u24 v{vt}, {stride}, v{vt}\nv_add_u32 v{vd}, v{vd}, v{vt}')

def tr_base(a, vd, vt, unit_sreg):
    a(f'v_bfe_u32 v{vd}, v0, 2, 3')
    a(f'v_xor_b32 v{vd}, s{unit_sreg}, v{vd}')
    a(f'v_lshlrev_b32 v{vd}, 5, v{vd}')
    a(f'v_and_b32 v{vt}, 3, v0\nv_lshl_add_u32 v{vd}, v{vt}, 3, v{vd}')
    a(f'v_bfe_u32 v{vt}, v0, 2, 2\nv_lshl_add_u32 v{vd}, v{vt}, 8, v{vd}')
    a(f'v_lshrrev_b32 v{vt}, 4, v0\nv_lshl_add_u32 v{vd}, v{vt}, 11, v{vd}')

def std_reads(base):
    def f(a, va):
        for kk in range(4):
            for h in range(2):
                a(f'ds_read_b64_tr_b16 {A(base + kk * 4 + h * 2, 2)}, v{va} offset:{kk * 8192 + h * 1024}')
    return f

def tstamp(a, cfg, slot, vt, vo):
    if cfg.dbgtime:
        for (x, r, sl), word in cfg.dbgtime.items():
            if sl != slot: continue
            l = a.newlabel('dt')
            a(f's_cmp_lg_u32 s{sX}, {x}\ns_cbranch_scc1 {l}\ns_cmp_lg_u32 s{sR}, {r}\ns_cbranch_scc1 {l}\ns_cmp_lg_u32 s{sWave}, 0\ns_cbranch_scc1 {l}')
            a(f's_memrealtime s[{sTm}:{sTm+1}]\ns_waitcnt lgkmcnt(0)\ns_sub_u32 s{sTm}, s{sTm}, s3\nv_mov_b32 v{vt}, s{sTm}\nv_mov_b32 v{vo}, {4 * word}')
            a(f's_mov_b64 exec, 1\nbuffer_store_dword v{vt}, v{vo}, {DBG}, 0 offen sc1\ns_mov_b64 exec, -1\n{l}:')
        return
    if not cfg.timing: return
    a(f's_memrealtime s[{sTm}:{sTm+1}]\ns_waitcnt lgkmcnt(0)')
    a(f's_lshl_b32 s{sTm+2}, s{sX}, 5\ns_add_u32 s{sTm+2}, s{sTm+2}, s{sR}\ns_lshl_b32 s{sTm+2}, s{sTm+2}, 3\ns_add_u32 s{sTm+2}, s{sTm+2}, s{sWave}\ns_lshl_b32 s{sTm+2}, s{sTm+2}, 4')
    a(f's_add_u32 s{sTm+2}, s{sTm+2}, {TIM + slot * 4}')
    a(f'v_mov_b32 v{vt}, s{sTm}\nv_mov_b32 v{vo}, s{sTm+2}')
    a(f's_mov_b64 exec, 1\nbuffer_store_dword v{vt}, v{vo}, {WS}, 0 offen\ns_mov_b64 exec, -1')

def fstamp(a, cfg, k):
    if not cfg.fine: return
    if cfg.fine == -3:
        a(f's_memrealtime s[{12 + 2 * k}:{13 + 2 * k}]')
        return
    if cfg.fine == -2:
        if cfg.only is not None and k not in cfg.only: return
        a(f's_memrealtime s[{sTm}:{sTm+1}]\ns_waitcnt lgkmcnt(0)\ns_cmp_lt_u32 s{sStep}, 60\ns_cselect_b32 s{sTm}, s{sTm}, 0')
        a(f's_add_u32 s{sTm+1}, s{sTm}, s{92+k}\ns_cmp_ge_u32 s{sStep}, 4\ns_cselect_b32 s{92+k}, s{sTm+1}, 0')
        return
    if cfg.fine < 0:
        if cfg.only is not None and k not in cfg.only: return
        a(f's_memtime s[{sTm}:{sTm+1}]\ns_waitcnt lgkmcnt(0)\ns_sub_u32 s{sTm+1}, s{sTm}, s47\ns_mov_b32 s47, s{sTm}')
        a(f's_add_u32 s{sTm+1}, s{sTm+1}, s{92+k}\ns_cmp_ge_u32 s{sStep}, 4\ns_cselect_b32 s{92+k}, s{sTm+1}, 0')
        return
    if cfg.only is not None and k not in cfg.only: return
    a(f's_memtime s[{sTm}:{sTm+1}]\ns_waitcnt lgkmcnt(0)\ns_cmp_eq_u32 s{sStep}, {cfg.fine}\ns_cselect_b32 s{92+k}, s{sTm}, s{92+k}')
def facc(a, cfg):
    if cfg.fine != -3: return
    a('s_waitcnt lgkmcnt(0)')
    for k in range(9):
        a(f's_cmp_lt_u32 s{sStep}, 60\ns_cselect_b32 s{sTm}, s{12 + 2 * k}, 0\ns_add_u32 s{sTm}, s{sTm}, s{92 + k}\ns_cmp_ge_u32 s{sStep}, 4\ns_cselect_b32 s{92 + k}, s{sTm}, 0')

def fdump(a, cfg, vt, vo):
    if not cfg.fine: return
    a(f's_lshl_b32 s{sTm+2}, s{sX}, 5\ns_add_u32 s{sTm+2}, s{sTm+2}, s{sR}\ns_lshl_b32 s{sTm+2}, s{sTm+2}, 3\ns_add_u32 s{sTm+2}, s{sTm+2}, s{sWave}\ns_lshl_b32 s{sTm+2}, s{sTm+2}, 6')
    a(f's_add_u32 s{sTm+2}, s{sTm+2}, {FTIM}\nv_mov_b32 v{vo}, s{sTm+2}\ns_mov_b64 exec, 1')
    for k in range(10):
        a(f'v_mov_b32 v{vt}, s{92+k}\nbuffer_store_dword v{vt}, v{vo}, {WS}, 0 offen offset:{4*k}')
    a('s_mov_b64 exec, -1')

def prologue(a, cfg):
    COUNT_RETRY[0] = (2 if cfg.only == () else 1) if cfg.fine < 0 else 0
    if cfg.fine < 0: a('s_mov_b32 s98, 0\ns_mov_b32 s99, 0\ns_mov_b32 s100, 0')
    CLAIM_AT[0] = cfg.claim_at
    if cfg.fine < 0: a('s_mov_b32 s101, 0')
    a('s_cmp_ge_u32 s2, 256\ns_cbranch_scc1 L_end')
    if cfg.dbgtime: a(f's_memrealtime s[{sTm}:{sTm+1}]\ns_waitcnt lgkmcnt(0)\ns_mov_b32 s3, s{sTm}')
    a('s_load_dwordx16 s[16:31], s[0:1], 0\ns_load_dwordx8 s[32:39], s[0:1], 64\ns_load_dwordx4 s[40:43], s[0:1], 96\ns_load_dwordx2 s[44:45], s[0:1], 112')
    a(f'v_lshrrev_b32 v1, 6, v0\nv_and_b32 v0, 63, v0\nv_readfirstlane_b32 s{sWave}, v1')
    if cfg.fake_xcc is None:
        a(f's_getreg_b32 s{sX}, hwreg(HW_REG_XCC_ID)\ns_and_b32 s{sX}, s{sX}, 7')
    else:
        a(f's_mov_b32 s{sX}, {cfg.fake_xcc}')
    a(f's_mov_b32 s{sLim}, 0x80000')
    a('s_waitcnt lgkmcnt(0)')
    srd(a, 4, pWS, WS_BYTES); srd(a, 8, pDBG, 256)
    srd(a, 12, pWS, WS_BYTES); srd(a, 48, pWS, WS_BYTES)
    a(f's_lshr_b32 s{sR}, s2, 3\ns_mov_b32 s{sClm}, 0')
    tstamp(a, cfg, 0, 2, 3)
    a(f's_cmp_lg_u32 s{sX}, {cfg.rx0}\ns_cbranch_scc1 L_nocal\ns_cmp_lt_u32 s{sR}, 26\ns_cbranch_scc1 L_nocal')
    a(f's_cmp_lg_u32 s{sWave}, 7\ns_cbranch_scc1 L_caldone')
    a(f's_lshr_b32 s{sT0}, s2, 6\ns_lshl_b32 s{sT0}, s{sT0}, 14\ns_and_b32 s{sT1}, s2, 63\ns_lshl_b32 s{sT1}, s{sT1}, 7')
    a(f's_add_u32 s{sT0}, s{sT0}, s{sT1}\ns_add_u32 s{sT0}, s{sT0}, {CAL}')
    a(f'v_mov_b32 v2, s{sT0}\nv_add_u32 v3, 0x2000, v2\nv_mov_b32 v4, 0')
    a(f's_mov_b64 exec, 1\ns_mov_b32 s{sT2}, -1\ns_mov_b32 s{sT3}, -1')
    for rep in range(2):
        a(f'buffer_store_dword v4, v2, {WS}, 0 offen sc1\nbuffer_store_dword v4, v3, {WS}, 0 offen sc1\ns_waitcnt vmcnt(0)')
        for vv, sd in ((2, sT2), (3, sT3)):
            a(f's_memtime s[{sTm}:{sTm+1}]\ns_waitcnt lgkmcnt(0)')
            a(f'buffer_load_dword v5, v{vv}, {WS}, 0 offen sc1\ns_waitcnt vmcnt(0)')
            a(f's_memtime s[{sTm+2}:{sTm+3}]\ns_waitcnt lgkmcnt(0)')
            a(f's_sub_u32 s{sT0}, s{sTm+2}, s{sTm}\ns_min_u32 s{sd}, s{sd}, s{sT0}')
    a(f's_cmp_lt_u32 s{sT2}, s{sT3}\ns_cselect_b32 s{sT0}, {D_VOTE0}, {D_VOTE1}')
    a(f'v_mov_b32 v2, s{sT0}\nv_mov_b32 v4, 1')
    a(f'buffer_atomic_add v4, v2, {DBG}, 0 offen\ns_waitcnt vmcnt(0)\ns_mov_b64 exec, -1')
    a('L_caldone:')
    a('s_barrier')
    a('L_nocal:')
    if cfg.force_impure:
        a(f'v_mov_b32 v2, 1\nv_mov_b32 v3, {D_IMPURE}\ns_mov_b64 exec, 1\nbuffer_atomic_or v2, v3, {DBG}, 0 offen\ns_mov_b64 exec, -1')
    a('v_lshlrev_b32 v1, 4, v0\nv_mov_b32 v4, -1\nv_mov_b32 v5, -1\nv_mov_b32 v6, -1\nv_mov_b32 v7, -1')
    a(f's_cmp_ge_u32 s{sWave}, 6\ns_cbranch_scc1 L_ini67')
    assert NPRE * SL == 256 * 2048
    a(f's_lshr_b32 s{sT0}, s{sWave}, 1\ns_mul_i32 s{sT0}, s{sT0}, {XS}\ns_and_b32 s{sT1}, s{sWave}, 1\ns_lshl_b32 s{sT1}, s{sT1}, 10\ns_add_u32 s{sT0}, s{sT0}, s{sT1}\ns_lshl_b32 s{sT1}, s2, 11\ns_add_u32 s{sT0}, s{sT0}, s{sT1}')
    a(f'buffer_store_dwordx4 v[4:7], v1, {WS}, s{sT0} offen sc1\ns_branch L_dispatch')
    a('L_ini67:')
    def um0(su):
        a(f's_lshl_b32 s{sT0}, s{su}, 10\ns_add_u32 s{sT0}, s{sT0}, {UM}')
        a(f'buffer_store_dwordx4 v[4:7], v1, {WS}, s{sT0} offen sc1')
    a(f's_sub_u32 s{sT2}, s{sWave}, 6\ns_lshl_b32 s{sT2}, s{sT2}, 8\ns_add_u32 s{sT2}, s{sT2}, s2')
    um0(sT2)
    a(f's_cmp_eq_u32 s{sWave}, 6\ns_cbranch_scc1 L_ini6\ns_cmp_lt_u32 s2, 128\ns_cbranch_scc1 L_dispatch\ns_add_u32 s{sT2}, s2, 384')
    um0(sT2)
    a('s_branch L_dispatch')
    a('L_ini6:')
    if not cfg.keep_flags:
        a(f'v_mov_b32 v8, 0\nv_mov_b32 v9, 0\ns_lshl_b32 s{sT0}, s2, 7\ns_add_u32 s{sT0}, s{sT0}, {F_BASE}\ns_mov_b64 exec, 1\nbuffer_store_dwordx2 v[8:9], v8, {WS}, s{sT0} offen sc1\ns_mov_b64 exec, -1')
    a('s_branch L_dispatch')
    a('L_reclaim:')
    a(f's_waitcnt vmcnt(0) lgkmcnt(0)\ns_barrier\ns_mov_b32 s{sClm}, 1\ns_cmp_lg_u32 s{sWave}, 0\ns_cbranch_scc1 L_pro_join')
    a('s_mov_b64 exec, 1')
    a('L_claim_loop:')
    a(f's_lshl_b32 s{sT0}, 1, s{sR}\ns_lshl_b32 s{sT1}, s{sX}, 5')
    a(f'v_mov_b32 v2, s{sT0}\nv_mov_b32 v3, s{sT1}')
    a(f'buffer_atomic_or v2, v3, {DBG}, 0 offen sc0\ns_waitcnt vmcnt(0)')
    a(f'v_readfirstlane_b32 s{sT1}, v2')
    a(f's_and_b32 s{sT2}, s{sT1}, s{sT0}\ns_cbranch_scc0 L_claim_ok')
    a(f's_cmp_eq_u32 s{sT1}, -1\ns_cbranch_scc1 L_claim_next')
    a(f's_ff0_i32_b32 s{sR}, s{sT1}\ns_branch L_claim_loop')
    a('L_claim_next:')
    a(f'v_mov_b32 v2, 1\nv_mov_b32 v3, {D_IMPURE}\nbuffer_atomic_or v2, v3, {DBG}, 0 offen\ns_waitcnt vmcnt(0)')
    a(f's_add_u32 s{sX}, s{sX}, 1\ns_and_b32 s{sX}, s{sX}, 7\ns_mov_b32 s{sR}, 0\ns_branch L_claim_loop')
    a('L_claim_ok:')
    a(f's_lshl_b32 s{sT0}, s{sX}, 5\ns_or_b32 s{sT0}, s{sT0}, s{sR}')
    a(f'v_mov_b32 v2, s{sT0}\nv_mov_b32 v3, {LSTAT + 4}\nds_write_b32 v3, v2\ns_waitcnt lgkmcnt(0)\ns_mov_b64 exec, -1')
    a('L_pro_join:')
    a('s_barrier')
    a(f'v_mov_b32 v3, {LSTAT + 4}\nds_read_b32 v2, v3\ns_waitcnt lgkmcnt(0)')
    a(f'v_readfirstlane_b32 s{sT0}, v2')
    a(f's_lshr_b32 s{sX}, s{sT0}, 5\ns_and_b32 s{sX}, s{sX}, 7\ns_and_b32 s{sR}, s{sT0}, 31')
    a('L_dispatch:')
    if 'R' in cfg.roles:
        a(f's_mov_b32 s{sXr}, 0\ns_cmp_eq_u32 s{sX}, {cfg.rx0}\ns_cbranch_scc1 L_R')
        a(f's_mov_b32 s{sXr}, 1\ns_cmp_eq_u32 s{sX}, {cfg.rx1}\ns_cbranch_scc1 L_R')
        if cfg.r2: a(f's_mov_b32 s{sXr}, 2\ns_cmp_eq_u32 s{sX}, {cfg.rx2}\ns_cbranch_scc1 L_RVO')
    if cfg.r2:
        others = [x for x in range(8) if x not in (cfg.rx0, cfg.rx1, cfg.rx2)]
        ax, fx = cfg.ax or others[1:], cfg.fx or others[:1]
        R = lambda n: 'L_' + n if n in cfg.roles else 'L_idle'
        for i, x in enumerate(ax):
            a(f's_mov_b32 s{sT0}, {i}\ns_cmp_eq_u32 s{sX}, {x}\ns_cbranch_scc1 L_Atype')
        a(f's_cmp_lg_u32 s{sX}, {fx[0]}\ns_cbranch_scc1 L_idle')
        if cfg.voxx:
            a(f's_mov_b32 s{sH}, s{sR}\ns_mov_b32 s{sXr}, 0\ns_branch {R("VOX")}')
        else:
            a(f's_lshr_b32 s{sH}, s{sR}, 1\ns_and_b32 s{sXr}, s{sR}, 1\ns_cmp_lt_u32 s{sR}, 28\ns_cbranch_scc1 {R("FF1")}')
        a('L_idle:')
        a('s_waitcnt vmcnt(0)\ns_barrier')
        claim_issue(a, 2)
        wait_init(a, 2, 3, only_check=True)
        a('s_branch L_end')
        a('L_Atype:')
        a(f's_and_b32 s{sH}, s{sR}, 7\ns_mov_b32 s{sXr}, s{sT0}\ns_cmp_ge_u32 s{sR}, 24\ns_cbranch_scc1 {R("FIN")}')
        if cfg.voxx:
            a(f's_cmp_lt_u32 s{sR}, 16\ns_cbranch_scc1 L_A3\ns_cmp_eq_u32 s{sR}, 23\ns_cbranch_scc1 L_idle')
            a(f's_lshr_b32 s{sT1}, s{sT0}, 1\ns_mul_i32 s{sT1}, s{sT1}, 7\ns_add_u32 s{sH}, s{sH}, s{sT1}\ns_and_b32 s{sXr}, s{sT0}, 1\ns_branch {R("FF1")}\nL_A3:')
        a(f's_lshl_b32 s{sT0}, s{sT0}, 3\ns_add_u32 s{sH}, s{sH}, s{sT0}\ns_mov_b32 s{sXr}, 0\ns_cmp_ge_u32 s{sR}, 16\ns_cbranch_scc1 {R("VOX")}')
        a(f's_lshr_b32 s{sXr}, s{sR}, 3\ns_branch {R("QKX")}')
        assert cfg.nc_vox == 1 and cfg.nc_qkx == 2 and cfg.nc_ff1 == 2
        return
```

```python
from core import *

XB = 0
XBS = 40960
sCp = sXr
sI = sStep
sXo, sXm = sCL, sCR
WB = 640 * 4096 * 2

def zero_flag(a, sval_addr, nwords=1):
    l = a.newlabel('zf')
    a(f's_cmp_lg_u32 s{sWave}, 1\ns_cbranch_scc1 {l}')
    a(f'v_mov_b32 v8, 0\nv_lshlrev_b32 v9, 2, v0\nv_add_u32 v9, s{sval_addr}, v9\ns_mov_b64 exec, {(1 << nwords) - 1}\nbuffer_store_dword v8, v9, {WS}, 0 offen sc1\ns_mov_b64 exec, -1')
    a(f'{l}:')

def near_par(a, cfg):
    a(f's_cmp_gt_u32 s{sT1}, s{sT0}\ns_cselect_b32 s{sPar}, ' + ('0x2000, 0' if cfg.force_par is None else '0, 0x2000'))

def x_setup(a, vXo, vt, nc, vXr):
    srd(a, 48, pX, 2048 * 1280)
    a(f'v_lshrrev_b32 v{vt}, 3, v0\nv_and_b32 v{vXo}, 7, v0\nv_xor_b32 v{vXo}, v{vXo}, v{vt}\nv_lshlrev_b32 v{vXo}, 4, v{vXo}\nv_mul_u32_u24 v{vt}, 1280, v{vt}\nv_add_u32 v{vXo}, v{vXo}, v{vt}')
    a(f's_lshr_b32 s{sT0}, s{sWave}, 1\ns_mul_i32 s{sT0}, s{sT0}, 10240\ns_and_b32 s{sT1}, s{sWave}, 1\ns_mul_i32 s{sT1}, s{sT1}, 640\ns_add_u32 s{sXo}, s{sT0}, s{sT1}')
    a(f's_mul_i32 s{sT0}, s{sCp}, {XBS}\ns_add_u32 s{sXo}, s{sXo}, s{sT0}')
    a(f's_mul_i32 s{sXm}, s{sWave}, 5120\ns_add_u32 s{sXm}, s{sXm}, {XB}')
    a(f'v_lshrrev_b32 v{vXr}, 4, v0\nv_and_b32 v{vt}, 7, v0\nv_xor_b32 v{vXr}, v{vXr}, v{vt}\nv_lshlrev_b32 v{vXr}, 4, v{vXr}\nv_lshl_add_u32 v{vXr}, v{vt}, 7, v{vXr}')
    a(f'v_bfe_u32 v{vt}, v0, 3, 1\nv_mul_u32_u24 v{vt}, 10240, v{vt}\nv_add_u32 v{vXr}, v{vXr}, v{vt}\nv_add_u32 v{vXr}, {XB}, v{vXr}\nv_xor_b32 v{vXr + 1}, 64, v{vXr}')

def x_dma1(a, vXo, nc, i):
    a(f's_add_u32 m0, s{sXm}, {896 * i}')
    a(f'buffer_load_dwordx4 v{vXo}, {T2}, s{sXo} offen offset:{128 * i} lds')
    if i == 4:
        a(f's_add_u32 s{sXo}, s{sXo}, {nc * XBS}')
        a(f's_add_u32 s{sT0}, s{sXm}, {XBS}\ns_sub_u32 s{sT1}, s{sXm}, {XBS}\ns_cmp_lt_u32 s{sXm}, {XB + XBS}\ns_cselect_b32 s{sXm}, s{sT0}, s{sT1}')

def x_dma(a, vXo, nc):
    for i in range(5): x_dma1(a, vXo, nc, i)

def project(a, vXr, buf, nbuf, accs, ntile, hooks={}):
    def rd(kk):
        b = buf + 8 * (kk % nbuf)
        a(f'ds_read_b128 {V(b, 4)}, v{vXr + (kk & 1)} offset:{(kk >> 1) * 1024}\nds_read_b128 {V(b + 4, 4)}, v{vXr + (kk & 1)} offset:{20480 + (kk >> 1) * 1024}')
    for kk in range(nbuf - 1): rd(kk)
    for kk in range(20):
        if kk + nbuf - 1 < 20: rd(kk + nbuf - 1)
        left = min(19, kk + nbuf - 1) - kk
        a(f's_waitcnt lgkmcnt({2 * left})')
        b = buf + 8 * (kk % nbuf)
        for tt in range(2):
            for t in range(ntile):
                d = accs[t][tt]
                a(f'v_mfma_f32_16x16x32_bf16 {V(d, 4)}, {A(80 * t + 4 * kk, 4)}, {V(b + 4 * tt, 4)}, {"0" if kk == 0 else V(d, 4)}')
        if kk in hooks: hooks[kk]()

def dma_hooks(a, vXo, nc, at=(1, 4, 7, 10, 13)):
    return {kk: (lambda i=i: x_dma1(a, vXo, nc, i)) for i, kk in enumerate(at)}

def toggle_xr(a, vXr, vt):
    a(f'v_add_u32 v{vt}, {XBS}, v{vXr}\nv_subrev_u32 v{vXr}, {XBS}, v{vXr}\nv_min_u32 v{vXr}, v{vXr}, v{vt}\nv_xor_b32 v{vXr + 1}, 64, v{vXr}')

def flag_store(a, vaddr, vval, sval, wave):
    l = a.newlabel('fs')
    a(f's_cmp_lg_u32 s{sWave}, {wave}\ns_cbranch_scc1 {l}')
    a(f'v_mov_b32 v{vval}, s{sval}\ns_mov_b64 exec, 1\nbuffer_store_dword v{vval}, v{vaddr}, {WS}, 0 offen sc1\ns_mov_b64 exec, -1')
    a(f'{l}:')

def spin_ge(a, vaddr, vF, sneed, sleep=4):
    top = a.newlabel('sp'); done = a.newlabel('spd')
    a(f's_mov_b32 s{sSpin}, s{sLim}')
    a(f'{top}:')
    a(f'buffer_load_dword v{vF}, v{vaddr}, {WS}, 0 offen sc1\ns_waitcnt vmcnt(0)')
    a(f'v_cmp_gt_u32 vcc, s{sneed}, v{vF}')
    a(f's_cbranch_vccz {done}')
    a(f's_sleep {sleep}')
    a(f's_sub_u32 s{sSpin}, s{sSpin}, 1\ns_cbranch_scc0 {top}\ns_mov_b32 s{sLim}, 0')
    a(f'{done}:')

def col_soff(stride, colmul, scol):
    def g(n):
        return lambda a: a(f's_lshl_b32 s{sT0}, s{sWave}, 4\ns_add_u32 s{sT0}, s{sT0}, {128 * n}\ns_mul_i32 s{sT0}, s{sT0}, {stride}\ns_mul_i32 s{sT1}, s{scol}, {colmul}\ns_add_u32 s{sT0}, s{sT0}, s{sT1}')
    return g

vA, vB, vRd, vRd2, vt, vo = 10, 11, 12, 13, 14, 15

def role_VOX(a, cfg):
    nc = cfg.nc_vox; nit = 64 // nc
    VBUF = 2 * XBS
    a('L_VOX:')
    a(f's_lshl_b32 s{sT0}, s{sH}, 1\ns_add_u32 s{sT0}, s{sT0}, s{sCp}\ns_lshl_b32 s{sT0}, s{sT0}, 7\ns_add_u32 s{sFl0}, s{sT0}, {F_UX}')
    x_setup(a, 18, 19, nc, 2)
    src_offsets(a, vA, vB, vt, 8192)
    a(f's_and_b32 s{sT2}, s{sWave}, 3\ns_lshl_b32 s{sT2}, s{sT2}, 1')
    tr_base(a, vRd, vt, sT2)
    vRdO = 16
    a(f'v_lshrrev_b32 v{vt}, 4, v0\nv_lshlrev_b32 v{vt}, 10, v{vt}\nv_sub_u32 v{vRdO}, v{vRd}, v{vt}')
    def rdv(n):
        def f(a, va):
            l = a.newlabel('vv')
            a(f's_cmp_ge_u32 s{sWave}, 4\ns_cbranch_scc1 {l}')
            std_reads(16 * n)(a, va)
            a(f'v_xor_b32 v{va}, 32, v{va}')
            std_reads(80 + 16 * n)(a, va)
            a(f'{l}:')
        return f
    def rdo(c):
        def f(a, va):
            l = a.newlabel('vo')
            a(f's_cmp_ge_u32 s{sWave}, 4\ns_cbranch_scc0 {l}')
            for e in range(2):
                if e: a(f'v_xor_b32 v{va}, 32, v{va}')
                for kk in range(4):
                    for h in range(2): a(f'ds_read_b64_tr_b16 {A(32 * c + 16 * e + 4 * kk + 2 * h, 2)}, v{va} offset:{kk * 8192 + h * 4096}')
            a(f'{l}:')
        return f
    chunks = [dict(pre=(lambda a: srd(a, 12, pWV, WB)) if n == 0 else None, soff=col_soff(8192, 256, sH)(n), stride=8192, reads=rdv(n)) for n in range(5)]
    def pre(a):
        srd(a, 12, pWO, WB); src_offsets(a, vA, vB, vt, 1280)
    so = lambda c: (lambda a: a(f's_lshl_b32 s{sT0}, s{sH}, 7\ns_lshl_b32 s{sT1}, s{sWave}, 4\ns_add_u32 s{sT0}, s{sT0}, s{sT1}\ns_mul_i32 s{sT0}, s{sT0}, 1280\ns_add_u32 s{sT0}, s{sT0}, {256 * c}'))
    chunks += [dict(pre=pre if c == 0 else None, soff=so(c), stride=1280, reads=rdo(c), var=lambda i: i & 1, vrd=vRdO) for c in range(5)]
    loader(a, chunks, vA, vB, vRd, vRd2, vt, vo, early=lambda: x_dma(a, 18, nc))
    vXr, vL16, vNeg, vVw, vFa, vP1, vTmp, vXo = 2, 1, 4, 8, 9, 10, 12, 14
    vBuf = 16; vAcc = 48; vO = 80
    a(f'v_mov_b32 v{vXo}, v18')
    tstamp(a, cfg, 1, 16, 17)
    wait_init(a, 16, 17); near_par(a, cfg)
    a(f'v_lshlrev_b32 v{vL16}, 4, v0\nv_mov_b32 v{vFa}, s{sFl0}\ns_mov_b32 s{sI}, 0')
    a(f's_cmp_ge_u32 s{sWave}, 4\ns_cbranch_scc1 L_VOX_hi')
    a(f's_lshl_b32 s{sT0}, s{sWave}, 10\ns_add_u32 s{sT0}, s{sT0}, {VBUF}\nv_add_u32 v{vVw}, s{sT0}, v{vL16}')
    a('L_VOX_lo:')
    fstamp(a, cfg, 0)
    a('s_waitcnt vmcnt(0) lgkmcnt(0)')
    fstamp(a, cfg, 1)
    a('s_barrier')
    fstamp(a, cfg, 2)
    a(f's_sub_u32 s{sT2}, s{sI}, 1\ns_sub_u32 s{sT3}, s{sI}, 2\ns_cmp_le_u32 s{sI}, {cfg.early_pub}\ns_cselect_b32 s{sT2}, s{sT2}, s{sT3}\ns_max_i32 s{sT2}, s{sT2}, 0')
    flag_store(a, vFa, vTmp + 1, sT2, 3)
    a(f's_cmp_ge_u32 s{sI}, {nit}\ns_cbranch_scc1 L_VOX_fin')
    hk = dma_hooks(a, vXo, nc, (1, 4, 7, 10, 13))
    project(a, vXr, vBuf, 4, [[vAcc, vAcc + 8], [vAcc + 4, vAcc + 12]], 2, hk)
    fstamp(a, cfg, 4)
    toggle_xr(a, vXr, vTmp)
    for q in range(8): a(f'v_cvt_pk_bf16_f32 v{vO + q}, v{vAcc + 2 * q}, v{vAcc + 2 * q + 1}')
    a(f'ds_write_b128 v{vVw}, {V(vO, 4)}\nds_write_b128 v{vVw}, {V(vO + 4, 4)} offset:4096')
    a(f'v_xor_b32 v{vVw}, 0x2000, v{vVw}')
    a(f's_add_u32 s{sI}, s{sI}, 1\ns_branch L_VOX_lo')
    a('L_VOX_fin:')
    a('s_barrier')
    flag_store(a, vFa, vTmp + 1, sI, 3)
    tstamp(a, cfg, 3, vt, vo)
    fdump(a, cfg, vt, vo)
    a('s_branch L_end')
    assert VBUF % 0x4000 == 0
    a('L_VOX_hi:')
    if cfg.vox_prio: a('s_setprio 1')
    a(f'v_add_u32 v{vVw}, {VBUF}, v{vL16}')
    assert nc == 1
    ux_head(a, cfg, sSeg2, sH)
    a(f's_and_b32 s{sT2}, s{sWave}, 3\ns_lshl_b32 s{sT2}, s{sT2}, 1')
    ux_tile(a, cfg, sSeg2, sT2)
    a('s_barrier')
    x_dma(a, vXo, nc)
    a(f's_mov_b32 s{sI}, 1\ns_waitcnt vmcnt(0)')
    a('L_VOX_hi_loop:')
    fstamp(a, cfg, 0)
    l = a.newlabel('ve')
    a(f's_waitcnt vmcnt(5)\ns_cmp_gt_u32 s{sI}, {cfg.early_pub}\ns_cbranch_scc1 {l}\ns_waitcnt vmcnt(0)\n{l}:')
    fstamp(a, cfg, 1)
    a('s_barrier')
    fstamp(a, cfg, 2)
    for i in range(8): a(f'ds_read_b128 {V(vBuf + 4 * i, 4)}, v{vVw} offset:{1024 * i}')
    a(f'v_xor_b32 v{vVw}, 0x2000, v{vVw}\ns_sub_u32 s{sSeg}, s{sI}, 1\ns_lshl_b32 s{sSeg}, s{sSeg}, 15\ns_xor_b32 s{sSeg}, s{sSeg}, s{sSeg2}')
    def ep(t):
        o = vO + 4 * (t & 1); b = vAcc + 8 * (t % 3)
        for q in range(4): a(f'v_cvt_pk_bf16_f32 v{o + q}, v{b + 2 * q}, v{b + 2 * q + 1}')
        dj = 8 * (t >> 1) + (t & 1)
        a(f's_xor_b32 s{sT2}, s{sSeg}, {cfg.rot * (dj & 31) << 16}\ns_add_u32 s{sT2}, s{sT2}, {dj * 4 * MB}')
        a(f'buffer_store_dwordx4 {V(o, 4)}, v{vL16}, {WS}, s{sT2} offen sc1{cfg.ux_st}')
        if t < 5: x_dma1(a, vXo, nc, t)
    for t in range(10):
        if t == 0: a('s_waitcnt lgkmcnt(0)')
        for ks in range(4):
            for tt in range(2):
                d = vAcc + 8 * (t % 3) + 4 * tt
                a(f'v_mfma_f32_16x16x32_bf16 {V(d, 4)}, {V(vBuf + 16 * tt + 4 * ks, 4)}, {A(16 * t + 4 * ks, 4)}, {"0" if ks == 0 else V(d, 4)}')
        if t > 0: ep(t - 1)
    ep(9)
    fstamp(a, cfg, 4)
    a(f's_add_u32 s{sI}, s{sI}, 1')
    a(f's_cmp_le_u32 s{sI}, {nit}\ns_cbranch_scc1 L_VOX_hi_loop')
    a('s_waitcnt vmcnt(0)\ns_barrier')
    fdump(a, cfg, vt, vo)
    a('s_branch L_end')

def gate_wait(a, vaddr, vF):
    a(f'v_and_b32 v{vaddr}, 31, v0\nv_lshlrev_b32 v{vaddr}, 7, v{vaddr}\nv_add_u32 v{vaddr}, {F_G}, v{vaddr}\ns_mov_b32 s{sT2}, 1')
    spin_ge(a, vaddr, vF, sT2)

def late_start(a, cfg, mid=None):
    a('s_waitcnt vmcnt(0)\ns_barrier')
    claim_issue(a, vt)
    wait_init(a, vt, vo, cfg.presleep); near_par(a, cfg)
    if mid: mid()
    if cfg.defer_ff and 'QKX' in cfg.roles:
        l = a.newlabel('ls')
        a(f's_cmp_lg_u32 s{sWave}, 0\ns_cbranch_scc1 {l}')
        a(f'v_mov_b32 v{vo}, {F_KX}\ns_mov_b32 s{sT2}, 1')
        spin_ge(a, vo, vt, sT2, 16)
        a(f'{l}:\ns_barrier')

def role_FF1(a, cfg):
    nc = cfg.nc_ff1; nit = 64 // nc
    FB = 640 * 1728 * 2
    a('L_FF1:')
    a(f's_lshl_b32 s{sT0}, s{sH}, 1\ns_add_u32 s{sT0}, s{sT0}, s{sCp}\ns_lshl_b32 s{sT0}, s{sT0}, 7\ns_add_u32 s{sFl0}, s{sT0}, {F_H}')
    late_start(a, cfg)
    src_offsets(a, vA, vB, vt, 3456); tr_base(a, vRd, vt, sWave)
    chunks = []
    for m, p in enumerate((pWG, pWU)):
        chunks += [dict(pre=(lambda a, p=p: srd(a, 12, p, FB)) if n == 0 else None, soff=col_soff(3456, 256, sH)(n), stride=3456, reads=std_reads(80 * m + 16 * n)) for n in range(5)]
    loader(a, chunks, vA, vB, vRd, vRd2, vt, vo, claim=False)
    vXr, vL16, vFa, vGa, vG, vTmp, vXo = 2, 1, 9, 8, 4, 12, 6
    vBuf = 16; vAcc = 48; vO = 64
    x_setup(a, vXo, vTmp, nc, vXr)
    x_dma(a, vXo, nc)
    tstamp(a, cfg, 1, vt, vo)
    gate_wait(a, vGa, vTmp)
    a(f'v_lshlrev_b32 v{vL16}, 4, v0\nv_mov_b32 v{vFa}, s{sFl0}')
    a(f'v_and_b32 v{vGa}, 15, v0\nv_lshlrev_b32 v{vGa}, 2, v{vGa}')
    a(f's_lshl_b32 s{sSeg2}, s{sCp}, 7\ns_add_u32 s{sSeg2}, s{sSeg2}, {GATE}')
    a(f's_lshl_b32 s{sT0}, s{sH}, 3\ns_add_u32 s{sT0}, s{sT0}, s{sWave}\ns_lshl_b32 s{sSeg}, s{sT0}, 10\ns_mul_i32 s{sT1}, s{sCp}, {112 * 1024}\ns_add_u32 s{sSeg}, s{sSeg}, s{sT1}\ns_add_u32 s{sSeg}, s{sSeg}, {HB}')
    a(f's_mov_b32 s{sI}, 0')
    a('L_FF1_loop:')
    fstamp(a, cfg, 0)
    a('s_waitcnt vmcnt(1)')
    fstamp(a, cfg, 1)
    a('s_barrier')
    fstamp(a, cfg, 2)
    a(f's_max_u32 s{sT2}, s{sI}, 1\ns_sub_u32 s{sT2}, s{sT2}, 1')
    flag_store(a, vFa, vTmp + 1, sT2, 0)
    hk = dma_hooks(a, vXo, nc, (2, 5, 8, 11, 14))
    hk[0] = lambda: a(f'buffer_load_dword v{vG}, v{vGa}, {WS}, s{sSeg2} offen sc1\nbuffer_load_dword v{vG + 1}, v{vGa}, {WS}, s{sSeg2} offen offset:64 sc1\ns_add_u32 s{sSeg2}, s{sSeg2}, {nc * 128}')
    project(a, vXr, vBuf, 4, [[vAcc, vAcc + 4], [vAcc + 8, vAcc + 12]], 2, hk)
    fstamp(a, cfg, 4)
    toggle_xr(a, vXr, vTmp)
    a(f's_waitcnt vmcnt(5)\nv_sub_f32 v{vG}, 1.0, v{vG}\nv_sub_f32 v{vG + 1}, 1.0, v{vG + 1}')
    for tt in range(2):
        for i in range(4): a(f'v_mul_f32 v{vAcc + 4 * tt + i}, v{vAcc + 4 * tt + i}, v{vG + tt}')
    for q in range(8): a(f'v_mul_f32 v{vAcc + q}, v{vAcc + q}, v{vAcc + 8 + q}')
    for q in range(4): a(f'v_cvt_pk_bf16_f32 v{vO + q}, v{vAcc + 2 * q}, v{vAcc + 2 * q + 1}')
    a(f'buffer_store_dwordx4 {V(vO, 4)}, v{vL16}, {WS}, s{sSeg} offen sc1')
    a(f's_add_u32 s{sSeg}, s{sSeg}, {nc * 112 * 1024}\ns_add_u32 s{sI}, s{sI}, 1')
    a(f's_cmp_lt_u32 s{sI}, {nit}\ns_cbranch_scc1 L_FF1_loop')
    a('s_waitcnt vmcnt(0)\ns_barrier')
    flag_store(a, vFa, vTmp + 1, sI, 0)
    tstamp(a, cfg, 3, vt, vo)
    fdump(a, cfg, vt, vo)
    a('s_branch L_end')

def role_QKX(a, cfg):
    nc = cfg.nc_qkx; nit = 64 // nc; LA = cfg.la; NS = LA + 1
    QB = 2 * XBS
    assert QB + NS * 16384 <= 163840
    a('L_QKX:')
    a(f's_lshl_b32 s{sT0}, s{sH}, 1\ns_add_u32 s{sT0}, s{sT0}, s{sCp}\ns_lshl_b32 s{sT0}, s{sT0}, 7\ns_add_u32 s{sFl1}, s{sT0}, {F_PX}\ns_add_u32 s{sFl0}, s{sT0}, {F_KX}')
    x_setup(a, 64, 19, nc, 2)
    src_offsets(a, vA, vB, vt, 8192)
    a(f's_and_b32 s{sT2}, s{sWave}, 3\ns_lshl_b32 s{sT2}, s{sT2}, 1')
    tr_base(a, vRd, vt, sT2)
    def rd(m, n):
        def f(a, va):
            l = a.newlabel('qk')
            a(f's_cmp_ge_u32 s{sWave}, 4\ns_cbranch_scc{1 if m == 0 else 0} {l}')
            std_reads(16 * n)(a, va)
            a(f'v_xor_b32 v{va}, 32, v{va}')
            std_reads(80 + 16 * n)(a, va)
            a(f'{l}:')
        return f
    chunks = []
    for m, p in enumerate((pWK, pWQ)):
        chunks += [dict(pre=(lambda a, p=p: srd(a, 12, p, WB)) if n == 0 else None, soff=col_soff(8192, 256, sH)(n), stride=8192, reads=rd(m, n)) for n in range(5)]
    loader(a, chunks, vA, vB, vRd, vRd2, vt, vo, early=lambda: x_dma(a, 64, nc))
    vXr, vL16, vNeg, vFa, vQw, vTmp, vTmp2, vXo = 2, 1, 4, 8, 9, 12, 13, 0
    vKm, vGa, vPm, vPf = 10, 11, 14, 15
    vBuf = 16; vAcc = 48; vO = 64; vMask = 72
    vS = 84
    tstamp(a, cfg, 1, vt, vo)
    wait_init(a, vt, vo); near_par(a, cfg)
    a(f'v_lshlrev_b32 v{vL16}, 4, v0\nv_mov_b32 v{vFa}, s{sFl0}')
    for i in range(4): a(f'v_mov_b32 v{vNeg + i}, -1')
    sQw, sQr, sKmP, sAt = sbL, sbR, sbO, sCO
    a(f's_lshr_b32 s{sT0}, s{sWave}, 2\ns_lshl_b32 s{sT0}, s{sT0}, 13\ns_and_b32 s{sT1}, s{sWave}, 3\ns_lshl_b32 s{sT1}, s{sT1}, 10\ns_add_u32 s{sT0}, s{sT0}, s{sT1}\ns_add_u32 s{sT0}, s{sT0}, {QB}\nv_add_u32 v{vQw}, s{sT0}, v{vL16}')
    a(f's_mov_b32 s{sQw}, 0\ns_mov_b32 s{sQr}, 0')
    a(f's_lshl_b32 s{sSeg}, s{sH}, 19\ns_lshl_b32 s{sT0}, s{sCp}, 13\ns_add_u32 s{sSeg}, s{sSeg}, s{sT0}\ns_add_u32 s{sSeg}, s{sSeg}, s{sT1}\ns_add_u32 s{sSeg}, s{sSeg}, {KX}')
    a(f's_lshl_b32 s{sKmP}, s{sH}, 11\ns_lshl_b32 s{sT0}, s{sCp}, 16\ns_add_u32 s{sKmP}, s{sKmP}, s{sT0}\ns_add_u32 s{sKmP}, s{sKmP}, {KM}')
    a(f's_mov_b32 s{sAt}, s{sCp}')
    a(f'v_and_b32 v{vKm}, 7, v0\nv_lshlrev_b32 v{vKm}, 4, v{vKm}\nv_lshrrev_b32 v{vTmp}, 4, v0\nv_lshl_add_u32 v{vKm}, v{vTmp}, 7, v{vKm}\ns_lshl_b32 s{sT0}, s{sH}, 11\ns_add_u32 s{sT0}, s{sT0}, {KM}\nv_add_u32 v{vKm}, s{sT0}, v{vKm}')
    a(f's_lshl_b32 s{sT0}, s{sWave}, 2\ns_add_u32 s{sT0}, s{sT0}, s{sFl1}\nv_mov_b32 v{vPf}, s{sT0}')
    a(f'v_and_b32 v{vPm}, 15, v0\nv_lshlrev_b32 v{vPm}, 4, v{vPm}\ns_lshr_b32 s{sT0}, s{sH}, 2\ns_lshl_b32 s{sT0}, s{sT0}, 11\ns_and_b32 s{sT1}, s{sH}, 3\ns_lshl_b32 s{sT1}, s{sT1}, 8\ns_add_u32 s{sT0}, s{sT0}, s{sT1}')
    a(f's_lshl_b32 s{sT1}, s{sWave}, 10\ns_add_u32 s{sT0}, s{sT0}, s{sT1}\ns_add_u32 s{sT0}, s{sT0}, {PXM}\nv_add_u32 v{vPm}, s{sT0}, v{vPm}')
    a(f's_lshl_b32 s{sT0}, s{sWave}, 4\nv_and_b32 v{vTmp}, 15, v0\nv_add_u32 v{vTmp}, s{sT0}, v{vTmp}\nv_lshrrev_b32 v{vTmp2}, 4, v0\nv_lshlrev_b32 v{vTmp2}, 2, v{vTmp2}\nv_sub_u32 v{vTmp}, v{vTmp}, v{vTmp2}')
    a(f'v_mov_b32 v{vS}, 0xff7fffff\nv_mov_b32 v{vS + 1}, 0')
    for t in range(2):
        for i in range(4):
            a(f'v_cmp_le_i32 vcc, {16 * t + i}, v{vTmp}\nv_cndmask_b32 v{vMask + 4 * t + i}, v{vS}, v{vS + 1}, vcc')
    a(f'v_cmp_le_u32 vcc, 32, v0')
    for i in range(4): a(f'v_cndmask_b32 v{vMask + 8 + i}, v{vS}, v{vS + 1}, vcc')
    a(f's_mov_b32 s{sC}, {f2u(128 ** -0.5 * 1.4426950408889634)}')
    a(f's_mov_b32 s{sEx}, 0\ns_mov_b32 s{sEx + 1}, 0xffff')
    vP1 = vKm; sUm = sSeg2
    l = a.newlabel('up')
    a(f's_cmp_lt_u32 s{sWave}, 4\ns_cbranch_scc1 {l}')
    a(f'v_and_b32 v{vP1}, 15, v0\nv_lshlrev_b32 v{vP1}, 4, v{vP1}\ns_lshl_b32 s{sT0}, s{sH}, 8\ns_and_b32 s{sT1}, s{sWave}, 3\ns_lshl_b32 s{sT1}, s{sT1}, 16\ns_add_u32 s{sT0}, s{sT0}, s{sT1}\nv_add_u32 v{vP1}, s{sT0}, v{vP1}')
    a(f'v_lshrrev_b32 v{vTmp}, 4, v0\nv_lshl_add_u32 v{vP1}, v{vTmp}, 14, v{vP1}')
    a(f'{l}:')
    a(f's_add_u32 s{sUm}, s{sCp}, 1')
    a(f'v_mov_b32 v{vXo}, v{vO}')
    a(f's_mov_b32 s{sI}, 0')
    a('L_QKX_loop:')
    a(f's_cmp_ge_u32 s{sI}, {nit}\ns_cbranch_scc1 L_QKX_att')
    a('s_waitcnt vmcnt(0)\ns_barrier')
    l = a.newlabel('kp'); l2 = a.newlabel('kp')
    a(f's_cmp_lt_u32 s{sWave}, 4\ns_cbranch_scc1 {l}\ns_cmp_ge_u32 s{sUm}, 64\ns_cbranch_scc1 {l2}')
    um_seg(a, sT2, sUm)
    a(f's_add_u32 s{sT0}, s{sT2}, {16 * 16384}\nbuffer_store_dwordx4 {V(vNeg, 4)}, v{vP1}, {WS}, s{sT2} offen sc1\nbuffer_store_dwordx4 {V(vNeg, 4)}, v{vP1}, {WS}, s{sT0} offen sc1')
    a(f's_cmp_ge_u32 s{sWave}, 6\ns_cbranch_scc1 {l2}\ns_add_u32 s{sT0}, s{sT2}, {32 * 16384}\nbuffer_store_dwordx4 {V(vNeg, 4)}, v{vP1}, {WS}, s{sT0} offen sc1')
    a(f'{l2}:')
    a(f's_cmp_lg_u32 s{sWave}, 7\ns_cbranch_scc1 {l}')
    a(f'buffer_store_dwordx4 {V(vNeg, 4)}, v{vL16}, {WS}, s{sKmP} offen sc1\nbuffer_store_dwordx4 {V(vNeg, 4)}, v{vL16}, {WS}, s{sKmP} offen offset:1024 sc1')
    a(f'{l}:')
    a(f's_add_u32 s{sUm}, s{sUm}, {nc}')
    a(f's_add_u32 s{sKmP}, s{sKmP}, {nc * 65536}')
    project(a, vXr, vBuf, 4, [[vAcc, vAcc + 8], [vAcc + 4, vAcc + 12]], 2, dma_hooks(a, vXo, nc))
    toggle_xr(a, vXr, vTmp)
    a(f'v_add_u32 v{vTmp}, s{sQw}, v{vQw}')
    for q in range(8): a(f'v_cvt_pk_bf16_f32 v{vO + q}, v{vAcc + 2 * q}, v{vAcc + 2 * q + 1}')
    a(f'ds_write_b128 v{vTmp}, {V(vO, 4)}\nds_write_b128 v{vTmp}, {V(vO + 4, 4)} offset:4096')
    l = a.newlabel('ks')
    a(f's_cmp_ge_u32 s{sWave}, 4\ns_cbranch_scc1 {l}')
    a(f's_add_u32 s{sT0}, s{sSeg}, 4096\nbuffer_store_dwordx4 {V(vO, 4)}, v{vL16}, {WS}, s{sSeg} offen sc1\nbuffer_store_dwordx4 {V(vO + 4, 4)}, v{vL16}, {WS}, s{sT0} offen sc1')
    a(f'{l}:')
    a(f's_add_u32 s{sSeg}, s{sSeg}, {nc * 8192}')
    a(f's_add_u32 s{sQw}, s{sQw}, 16384\ns_cmp_ge_u32 s{sQw}, {NS * 16384}\ns_cselect_b32 s{sQw}, 0, s{sQw}')
    a(f's_add_u32 s{sT3}, s{sI}, 1')
    a('s_waitcnt vmcnt(0) lgkmcnt(0)\ns_barrier')
    flag_store(a, vFa, vTmp + 1, sT3, 7)
    a('L_QKX_att:')
    a(f's_cmp_lt_u32 s{sI}, {LA}\ns_cbranch_scc1 L_QKX_next')
    a(f's_cmp_ge_u32 s{sWave}, 2\ns_cbranch_scc1 L_QKX_next')
    l = a.newlabel('gw')
    a(f's_cmp_lg_u32 s{sI}, {LA}\ns_cbranch_scc1 {l}')
    a(f'v_bfe_u32 v{vGa}, v{vL16}, 4, 5\nv_lshlrev_b32 v{vGa}, 7, v{vGa}\nv_add_u32 v{vGa}, {F_G}, v{vGa}\ns_mov_b32 s{sT2}, 1')
    spin_ge(a, vGa, vTmp, sT2)
    a(f'v_bfe_u32 v{vGa}, v{vL16}, 4, 4\nv_lshlrev_b32 v{vGa}, 2, v{vGa}\ns_lshl_b32 s{sT0}, s{sWave}, 6\ns_add_u32 s{sT0}, s{sT0}, {GATE}\nv_add_u32 v{vGa}, s{sT0}, v{vGa}')
    a(f'{l}:')
    vQ, vK0, vK1, vKM, vG = vBuf, vBuf + 16, vAcc, vBuf + 16, vO
    T0, T1_, M_ = vS, vS + 4, vS + 8
    a(f's_lshl_b32 s{sT0}, s{sAt}, 7\nbuffer_load_dword v{vG}, v{vGa}, {WS}, s{sT0} offen sc1')
    a(f's_add_u32 s{sT0}, s{sQr}, {QB}\nv_add_u32 v{vTmp}, s{sT0}, v{vL16}\ns_lshl_b32 s{sT1}, s{sWave}, 12\nv_add_u32 v{vTmp2}, s{sT1}, v{vTmp}')
    for ks in range(4):
        a(f'ds_read_b128 {V(vQ + 4 * ks, 4)}, v{vTmp2} offset:{8192 + 1024 * ks}\nds_read_b128 {V(vK0 + 4 * ks, 4)}, v{vTmp} offset:{1024 * ks}\nds_read_b128 {V(vK1 + 4 * ks, 4)}, v{vTmp} offset:{4096 + 1024 * ks}')
    for ks in range(4):
        a(f's_waitcnt lgkmcnt({9 - 3 * ks})')
        a(f'v_mfma_f32_16x16x32_bf16 {V(T0, 4)}, {V(vK0 + 4 * ks, 4)}, {V(vQ + 4 * ks, 4)}, {V(vMask, 4) if ks == 0 else V(T0, 4)}')
        a(f'v_mfma_f32_16x16x32_bf16 {V(T1_, 4)}, {V(vK1 + 4 * ks, 4)}, {V(vQ + 4 * ks, 4)}, {V(vMask + 4, 4) if ks == 0 else V(T1_, 4)}')
    a(f's_lshl_b32 s{sT2}, s{sAt}, 16\ns_nop 7')
    poll(a, [f'buffer_load_dwordx4 {V(vKM + 4 * ks, 4)}, v{vKm}, {WS}, s{sT2} offen offset:{512 * ks} sc1' for ks in range(4)], range(vKM, vKM + 16), vTmp, sleep=cfg.km_sleep)
    for ks in range(4):
        a(f'v_mfma_f32_16x16x32_bf16 {V(M_, 4)}, {V(vKM + 4 * ks, 4)}, {V(vQ + 4 * ks, 4)}, {V(vMask + 8, 4) if ks == 0 else V(M_, 4)}')
    mx, t2 = vTmp, vTmp2
    def allred(op):
        a(f'v_mov_b32 v{t2}, v{mx}\nv_permlane32_swap_b32 v{mx}, v{t2}\n{op} v{mx}, v{mx}, v{t2}')
        a(f'v_mov_b32 v{t2}, v{mx}\nv_permlane16_swap_b32 v{mx}, v{t2}\n{op} v{mx}, v{mx}, v{t2}')
    a(f'v_max_f32 v{mx}, v{vS}, v{vS + 1}')
    for i in range(2, 12, 2): a(f'v_max3_f32 v{mx}, v{mx}, v{vS + i}, v{vS + i + 1}')
    allred('v_max_f32')
    a(f'v_mul_f32 v{mx}, s{sC}, v{mx}')
    for i in range(12): a(f'v_fma_f32 v{vS + i}, v{vS + i}, s{sC}, -v{mx}')
    for i in range(12): a(f'v_exp_f32 v{vS + i}, v{vS + i}')
    a(f'v_add_f32 v{mx}, v{vS}, v{vS + 1}')
    for i in range(2, 12): a(f'v_add_f32 v{mx}, v{mx}, v{vS + i}')
    allred('v_add_f32')
    a(f'v_rcp_f32 v{mx}, v{mx}\nv_mul_f32 v{mx}, v{mx}, v{vG}')
    for i in range(12): a(f'v_mul_f32 v{vS + i}, v{vS + i}, v{mx}')
    for q in range(6): a(f'v_cvt_pk_bf16_f32 v{vS + q}, v{vS + 2 * q}, v{vS + 2 * q + 1}')
    a(f'v_permlane16_swap_b32 v{vS + 4}, v{vS + 6}\nv_permlane16_swap_b32 v{vS + 5}, v{vS + 7}')
    a(f's_lshl_b32 s{sT0}, s{sH}, 1\ns_add_u32 s{sT0}, s{sT0}, s{sWave}\ns_lshl_b32 s{sT0}, s{sT0}, 10\ns_add_u32 s{sT0}, s{sT0}, s{sT2}\ns_add_u32 s{sT0}, s{sT0}, {PXX}\ns_lshl_b32 s{sT1}, s{sAt}, 14')
    a(f'buffer_store_dwordx4 {V(vS, 4)}, v{vL16}, {WS}, s{sT0} offen sc1')
    a(f's_mov_b64 exec, s[{sEx}:{sEx + 1}]\nbuffer_store_dwordx4 {V(vS + 4, 4)}, v{vPm}, {WS}, s{sT1} offen sc1')
    a(f's_sub_u32 s{sT0}, s{sI}, {LA - 1}\ns_mov_b64 exec, 1\nv_mov_b32 v{vTmp}, s{sT0}\ns_waitcnt vmcnt(0)\nbuffer_store_dword v{vTmp}, v{vPf}, {WS}, 0 offen sc1\ns_mov_b64 exec, -1')
    a(f's_add_u32 s{sAt}, s{sAt}, {nc}')
    a(f's_add_u32 s{sQr}, s{sQr}, 16384\ns_cmp_ge_u32 s{sQr}, {NS * 16384}\ns_cselect_b32 s{sQr}, 0, s{sQr}')
    a('L_QKX_next:')
    a(f's_add_u32 s{sI}, s{sI}, 1\ns_cmp_lt_u32 s{sI}, {nit + LA}\ns_cbranch_scc1 L_QKX_loop')
    tstamp(a, cfg, 3, vt, vo)
    a('s_branch L_end')

def role_FIN(a, cfg):
    NG = 4
    a('L_FIN:')
    a(f's_lshl_b32 s{sJ}, s{sCp}, 3\ns_add_u32 s{sJ}, s{sJ}, s{sH}\ns_lshl_b32 s{sT0}, s{sJ}, 7\ns_add_u32 s{sFl0}, s{sT0}, {F_G}')
    def gates():
        srd(a, 48, pX, 2048 * 1280); srd(a, 12, pGW, 1280)
        a(f'v_and_b32 v2, 7, v0\nv_lshlrev_b32 v2, 4, v2\nv_lshrrev_b32 v3, 3, v0\nv_mul_u32_u24 v4, 1280, v3\nv_add_u32 v4, v4, v2')
        a(f's_lshl_b32 s{sT2}, s{sJ}, 3\ns_add_u32 s{sT2}, s{sT2}, s{sWave}\ns_mul_i32 s{sT0}, s{sT2}, 10240')
        for i in range(10):
            a(f'buffer_load_dwordx4 {V(16 + 4 * i, 4)}, v4, {T2}, s{sT0} offen offset:{128 * i}\nbuffer_load_dwordx4 {V(56 + 4 * i, 4)}, v2, {T1}, 0 offen offset:{128 * i}')
        a('v_mov_b32 v5, 0\ns_waitcnt vmcnt(0)')
        for i in range(40): a(f'v_dot2_f32_bf16 v5, v{16 + i}, v{56 + i}, v5')
        a('s_nop 2')
        a('v_add_f32_dpp v5, v5, v5 quad_perm:[1,0,3,2] row_mask:0xf bank_mask:0xf\nv_add_f32_dpp v5, v5, v5 quad_perm:[2,3,0,1] row_mask:0xf bank_mask:0xf\nv_add_f32_dpp v5, v5, v5 row_half_mirror row_mask:0xf bank_mask:0xf')
        a(f'v_mul_f32 v5, {hex(f2u(-1.4426950408889634))}, v5\nv_exp_f32 v5, v5\nv_add_f32 v5, 1.0, v5\nv_rcp_f32 v5, v5')
        a(f'v_lshlrev_b32 v3, 2, v3\ns_lshl_b32 s{sT2}, s{sT2}, 5\ns_add_u32 s{sT2}, s{sT2}, {GATE}')
        a(f's_mov_b32 exec_lo, 0x01010101\ns_mov_b32 exec_hi, 0x01010101\nbuffer_store_dword v5, v3, {WS}, s{sT2} offen sc1\ns_mov_b64 exec, -1')
        a(f's_waitcnt vmcnt(0)\ns_barrier\nv_mov_b32 v6, s{sFl0}\ns_mov_b32 s{sT2}, 1')
        flag_store(a, 6, 7, sT2, 1)
    late_start(a, cfg, gates)
    src_offsets(a, vA, vB, vt, 1280)
    a(f'v_bfe_u32 v{vRd}, v0, 2, 3\nv_lshlrev_b32 v{vRd}, 5, v{vRd}\nv_and_b32 v{vt}, 3, v0\nv_lshl_add_u32 v{vRd}, v{vt}, 3, v{vRd}\nv_lshrrev_b32 v{vt}, 2, v0\nv_lshl_add_u32 v{vRd}, v{vt}, 8, v{vRd}')
    a(f's_and_b32 s{sT0}, s{sWave}, 3\ns_lshl_b32 s{sT0}, s{sT0}, 13\nv_add_u32 v{vRd}, s{sT0}, v{vRd}')
    def rd(n):
        def f(a, va):
            l = a.newlabel('wd')
            a(f's_cmp_ge_u32 s{sWave}, 4\ns_cbranch_scc{1 if n % 2 == 0 else 0} {l}')
            for t in range(5):
                a(f'v_xor_b32 v{vo}, {32 * t}, v{va}')
                for h in range(2): a(f'ds_read_b64_tr_b16 {A(20 * (n // 2) + 4 * t + 2 * h, 2)}, v{vo} offset:{4096 * h}')
            a(f'{l}:')
        return f
    chunks = [dict(pre=(lambda a: srd(a, 12, pWD, 1728 * 1280)) if n == 0 else None, soff=col_soff(1280, 160, sH)(n), stride=1280, reads=rd(n), var=lambda i: i & 1) for n in range(14)]
    loader(a, chunks, vA, vB, vRd, vRd2, vt, vo, claim=False)
    tstamp(a, cfg, 1, vt, vo)
    srd(a, 12, pOUT, 2048 * 1280)
    vL16, vFh, vFu, vFp, vUm, vUm2, vRr, vOo, vTmp, vRw = 1, 2, 3, 4, 5, 6, 7, 8, 9, 10
    vAcc = 12; vBuf = 32
    acc = lambda t, tt: V(vAcc + 4 * t, 4) if tt == 0 else A(140 + 4 * t, 4)
    sS = sI
    a(f'v_lshlrev_b32 v{vL16}, 4, v0')
    cpar = lambda nc: f's_and_b32 s{sT1}, s{sCp}, {nc - 1}'
    a(cpar(cfg.nc_ff1)); a(f's_lshl_b32 s{sT1}, s{sT1}, 7\ns_add_u32 s{sT1}, s{sT1}, {F_H}\nv_min_u32 v{vFh}, 13, v0\nv_lshlrev_b32 v{vFh}, 8, v{vFh}\nv_add_u32 v{vFh}, s{sT1}, v{vFh}')
    a(cpar(cfg.nc_vox)); a(f's_lshl_b32 s{sT1}, s{sT1}, 7\ns_lshl_b32 s{sT0}, s{sWave}, 10\ns_add_u32 s{sT1}, s{sT1}, s{sT0}\ns_add_u32 s{sT1}, s{sT1}, {F_UX}\nv_and_b32 v{vFu}, 3, v0\nv_lshlrev_b32 v{vFu}, 8, v{vFu}\nv_add_u32 v{vFu}, s{sT1}, v{vFu}')
    a(cpar(cfg.nc_qkx)); a(f's_lshl_b32 s{sT1}, s{sT1}, 7\ns_lshl_b32 s{sT0}, s{sWave}, 10\ns_add_u32 s{sT1}, s{sT1}, s{sT0}\ns_add_u32 s{sT1}, s{sT1}, {F_PX}')
    a(f'v_bfe_u32 v{vFp}, v0, 1, 2\nv_lshlrev_b32 v{vFp}, 8, v{vFp}\nv_and_b32 v{vTmp}, 1, v0\nv_lshl_add_u32 v{vFp}, v{vTmp}, 2, v{vFp}\nv_add_u32 v{vFp}, s{sT1}, v{vFp}')
    a(f's_lshl_b32 s{sT0}, s{sWave}, 10\ns_mul_i32 s{sT1}, s{sH}, {5 * 16384}\ns_add_u32 s{sT0}, s{sT0}, s{sT1}\nv_add_u32 v{vUm}, s{sT0}, v{vL16}')
    a(f's_mul_i32 s{sT0}, s{sWave}, 10240\nv_add_u32 v{vRw}, s{sT0}, v{vL16}')
    a(f's_lshl_b32 s{sT0}, s{sWave}, 6\nv_add_u32 v{vTmp}, s{sT0}, v0\nv_mul_u32_u24 v{vRr}, 6554, v{vTmp}\nv_lshrrev_b32 v{vRr}, 16, v{vRr}')
    a(f'v_mul_u32_u24 v{vOo}, 10, v{vRr}\nv_sub_u32 v{vTmp}, v{vTmp}, v{vOo}')
    a(f'v_mul_u32_u24 v{vOo}, 1280, v{vRr}\nv_lshl_add_u32 v{vOo}, v{vTmp}, 4, v{vOo}\ns_mul_i32 s{sT0}, s{sH}, 160\nv_add_u32 v{vOo}, s{sT0}, v{vOo}')
    a(f'v_lshrrev_b32 v{vUm2}, 4, v{vRr}\nv_and_b32 v{vRr}, 15, v{vRr}\nv_lshlrev_b32 v{vRr}, 4, v{vRr}\nv_lshl_add_u32 v{vRr}, v{vUm2}, 10, v{vRr}')
    a(f'v_lshrrev_b32 v{vUm2}, 1, v{vTmp}\nv_lshl_add_u32 v{vRr}, v{vUm2}, 11, v{vRr}\nv_and_b32 v{vUm2}, 1, v{vTmp}\nv_lshl_add_u32 v{vRr}, v{vUm2}, 9, v{vRr}')
    sU = [sbL, sbR, sbO, sCL, sCR]
    sM = [sCO, sPL, sPO, sNL, sNO]
    a(f's_lshl_b32 s{sT3}, s{sWave}, 2')
    ux_head(a, cfg, sT2, sT3)
    for t in range(5):
        a(f's_mul_i32 s{sT3}, s{sH}, 5\ns_add_u32 s{sT3}, s{sT3}, {t}\ns_mov_b32 s{sU[t]}, s{sT2}')
        ux_tile(a, cfg, sU[t], sT3)
        a(f's_lshl_b32 s{sT1}, s{sCp}, 15\ns_xor_b32 s{sU[t]}, s{sU[t]}, s{sT1}')
    a(f's_mov_b32 s{sS}, s{sCp}')
    sh = lambda nc: nc - 1
    a('L_FIN_loop:')
    um_seg(a, sM[0], sS)
    for t in range(1, 5): a(f's_add_u32 s{sM[t]}, s{sM[0]}, {t * 16384}')
    a(f's_lshr_b32 s{sT2}, s{sS}, {sh(cfg.nc_ff1)}\ns_add_u32 s{sT2}, s{sT2}, 1')
    spin_ge(a, vFh, vTmp, sT2, 8)
    a(f's_mul_i32 s{sT2}, s{sS}, {112 * 1024}\ns_lshl_b32 s{sT0}, s{sWave}, 11\ns_add_u32 s{sT2}, s{sT2}, s{sT0}\ns_add_u32 s{sT2}, s{sT2}, {HB}')
    for n in range(7):
        if n == 6:
            a(f's_cmp_ge_u32 s{sWave}, 6\ns_cselect_b32 s{sT0}, 0, 16384\ns_add_u32 s{sT2}, s{sT2}, s{sT0}')
        a(f'buffer_load_dwordx4 {V(vBuf + 8 * n, 4)}, v{vL16}, {WS}, s{sT2} offen sc1\nbuffer_load_dwordx4 {V(vBuf + 8 * n + 4, 4)}, v{vL16}, {WS}, s{sT2} offen offset:1024 sc1')
        if n < 5: a(f's_add_u32 s{sT2}, s{sT2}, 16384')
    for n in range(7):
        b = vBuf + 8 * n
        a(f's_waitcnt vmcnt({12 - 2 * n})')
        a(f'v_swap_b32 v{b + 2}, v{b + 4}\nv_swap_b32 v{b + 3}, v{b + 5}')
        for t in range(5):
            for tt in range(2):
                a(f'v_mfma_f32_16x16x32_bf16 {acc(t, tt)}, {A(20 * n + 4 * t, 4)}, {V(b + 4 * tt, 4)}, {"0" if n == 0 else acc(t, tt)}')
    a(f's_lshr_b32 s{sT2}, s{sS}, {sh(cfg.nc_vox)}\ns_add_u32 s{sT2}, s{sT2}, 1')
    spin_ge(a, vFu, vTmp, sT2, 8)
    ub = lambda k: vBuf + 28 * (k & 1)
    def ldU(k):
        for t in range(5): a(f'buffer_load_dwordx4 {V(ub(k) + 4 * t, 4)}, v{vL16}, {WS}, s{sU[t]} offen offset:{1024 * k} sc1')
    sP = sT3
    def ldP(k):
        for tt in range(2): a(f'buffer_load_dwordx4 {V(ub(k) + 20 + 4 * tt, 4)}, v{vL16}, {WS}, s{sP} offen offset:{2048 * (k & 1) + 1024 * tt} sc1')
        if k & 1: a(f's_add_u32 s{sP}, s{sP}, 4096')
    def mm(k):
        for t in range(5):
            for tt in range(2):
                a(f'v_mfma_f32_16x16x32_bf16 {acc(t, tt)}, {V(ub(k) + 4 * t, 4)}, {V(ub(k) + 20 + 4 * tt, 4)}, {acc(t, tt)}')
    ldU(0); ldU(1)
    a(f's_lshr_b32 s{sT2}, s{sS}, {sh(cfg.nc_qkx)}\ns_add_u32 s{sT2}, s{sT2}, 1')
    spin_ge(a, vFp, vTmp, sT2, 2)
    a(f's_lshl_b32 s{sP}, s{sS}, 16\ns_lshl_b32 s{sT0}, s{sWave}, 13\ns_add_u32 s{sP}, s{sP}, s{sT0}\ns_add_u32 s{sP}, s{sP}, {PXX}')
    a(f's_lshl_b32 s{sT4}, s{sS}, 14\ns_lshl_b32 s{sT0}, s{sWave}, 11\ns_add_u32 s{sT4}, s{sT4}, s{sT0}\ns_add_u32 s{sT4}, s{sT4}, {PXM}')
    ldP(0); ldP(1)
    a('s_waitcnt vmcnt(2)'); mm(0); ldU(2); ldP(2)
    a('s_waitcnt vmcnt(7)'); mm(1); ldU(3); ldP(3)
    a('s_waitcnt vmcnt(7)'); mm(2)
    ldM = [f'buffer_load_dwordx4 {V(ub(0) + 4 * t, 4)}, v{vUm}, {WS}, s{sM[t]} offen sc1' for t in range(5)]
    for tt in range(2): a(f'buffer_load_dwordx4 {V(ub(0) + 20 + 4 * tt, 4)}, v{vL16}, {WS}, s{sT4} offen offset:{1024 * tt} sc1')
    for l in ldM: a(l)
    a('s_waitcnt vmcnt(7)'); mm(3)
    poll(a, ldM, range(ub(0), ub(0) + 20), vTmp, first_issued=True)
    mm(0)
    a(f's_add_u32 s{sT0}, s{sS}, {NG}\ns_xor_b32 s{sT0}, s{sT0}, s{sS}\ns_lshl_b32 s{sT0}, s{sT0}, 15')
    for t in range(5): a(f's_xor_b32 s{sU[t]}, s{sU[t]}, s{sT0}')
    a('s_barrier')
    for t in range(5):
        for tt in range(2): a(f'ds_write_b128 v{vRw}, {acc(t, tt)} offset:{(2 * t + tt) * 1024}')
    a('s_waitcnt lgkmcnt(0)\ns_barrier')
    l = a.newlabel('fr')
    a(f's_cmp_ge_u32 s{sWave}, 5\ns_cbranch_scc1 {l}')
    a(f'v_add_u32 v{vTmp}, {4 * 10240}, v{vRr}')
    for w in range(8):
        for h in range(2): a(f'ds_read_b128 {V(vBuf + 8 * w + 4 * h, 4)}, v{vRr if w < 4 else vTmp} offset:{(w & 3) * 10240 + 256 * h}')
    for w in range(1, 8):
        a(f's_waitcnt lgkmcnt({min(15, 14 - 2 * w)})')
        for i in range(8): a(f'v_add_f32 v{vBuf + i}, v{vBuf + i}, v{vBuf + 8 * w + i}')
    for q in range(4): a(f'v_cvt_pk_bf16_f32 v{vBuf + q}, v{vBuf + 2 * q}, v{vBuf + 2 * q + 1}')
    a(f's_mul_i32 s{sT0}, s{sS}, {XBS}\nbuffer_store_dwordx4 {V(vBuf, 4)}, v{vOo}, {T1}, s{sT0} offen')
    a(f'{l}:')
    a(f's_add_u32 s{sS}, s{sS}, {NG}\ns_cmp_lt_u32 s{sS}, 64\ns_cbranch_scc1 L_FIN_loop')
    tstamp(a, cfg, 3, vt, vo)
    a('s_branch L_end')
```

```python
from core import *

MEMBUF = 0; XBUF = 10240; KBUF = 16384; RED = 32768
FL3 = 5120
FL1, FL2 = 7680, 7936
WB = 640 * 4096 * 2
vL16, vIdx, vXw, vNeg, vTmp, vTmp2 = 1, 2, 3, 4, 8, 9
vAcc = 16; vZ = 24; vU = 56; vM = 88
vA, vB, vRd, vRd2, vt, vo = 10, 11, 12, 13, 14, 15
R4 = lambda b, n=4: list(range(b, b + n))

def bases(a, cfg):
    a(f's_cmp_gt_u32 s{sT1}, s{sT0}\ns_cselect_b32 s{sPar}, ' + ('0x2000, 0' if cfg.force_par is None else '0, 0x2000'))
    a(f's_mul_i32 s{sT3}, s{sXr}, {XS}\ns_add_u32 s{sbR}, s{sT3}, s{sPar}\ns_xor_b32 s{sbL}, s{sbR}, 0x2000')
    a(f's_sub_u32 s{sT3}, {XS}, s{sT3}\ns_add_u32 s{sbO}, s{sT3}, s{sPar}')
    a(f's_mov_b32 s{sStep}, 0\ns_mov_b32 s{sCL}, s{sbL}\ns_mov_b32 s{sCR}, s{sbR}\ns_mov_b32 s{sCO}, s{sbO}')
    a(f'v_lshlrev_b32 v{vL16}, 4, v0')

def advance(a, cfg, lab):
    a(f's_add_u32 s{sStep}, s{sStep}, 1\ns_add_u32 s{sCL}, s{sCL}, {SL}\ns_add_u32 s{sCR}, s{sCR}, {SL}\ns_add_u32 s{sCO}, s{sCO}, {SL}')
    if lab: a(f's_cmp_lt_u32 s{sStep}, {cfg.nsteps}\ns_cbranch_scc1 {lab}')

def quad_base(a, sd, sq):
    a(f's_mul_i32 s{sd}, s{sq}, 2560\ns_add_u32 s{sd}, s{sd}, 16384\ns_cmp_eq_u32 s{sq}, 3\ns_cselect_b32 s{sd}, 5120, s{sd}')

def flag_ld(vF, va, nc):
    return '\n'.join(f'buffer_load_dword v{vF + c}, v{va}, {WS}, 0 offen offset:{128 * c} sc1' for c in range(nc))

def flag_wait(a, vF, ld, nc, sleep=0):
    top = a.newlabel('fw'); done = a.newlabel('fwd')
    a(f's_mov_b32 s{sSpin}, s{sLim}\ns_lshr_b32 s{sT5}, s{sT4}, {nc - 1}')
    a(f'{top}:')
    if nc == 2:
        a(f's_bitcmp1_b32 s{sT4}, 0\ns_cselect_b64 vcc, -1, 0')
        a(f'v_cndmask_b32 v{vTmp}, v{vF}, v{vF + 1}, vcc')
        a(f'v_cmp_ge_u32 vcc, s{sT5}, v{vTmp}')
    else:
        a(f'v_cmp_ge_u32 vcc, s{sT5}, v{vF}')
    a(f's_cbranch_vccz {done}')
    if sleep: a(f's_sleep {sleep}')
    a(ld)
    a('s_waitcnt vmcnt(0)')
    a(f's_sub_u32 s{sSpin}, s{sSpin}, 1\ns_cbranch_scc0 {top}\ns_mov_b32 s{sLim}, 0')
    a(f'{done}:')

def cue_wait(a, cfg, vaddr, regs, sval, sbase=sbL):
    top = a.newlabel('cue'); done = a.newlabel('cued')
    D = len(regs)
    ld = lambda r: a(f'buffer_load_dword v{r}, v{vaddr}, {WS}, s{sbase} offen sc1')
    a(f's_mov_b32 s{sSpin}, s{sLim}')
    for r in regs:
        ld(r)
        if r != regs[-1]: a(f's_nop {cfg.cgap}')
    a(f'{top}:')
    for r in regs:
        a(f's_waitcnt vmcnt({D - 1})')
        a(f'v_cmp_gt_i32 vcc, s{sval}, v{r}')
        a(f's_cbranch_vccz {done}')
        ld(r)
    a(f's_sub_u32 s{sSpin}, s{sSpin}, 1\ns_cbranch_scc0 {top}\ns_mov_b32 s{sLim}, 0')
    a(f'{done}:')

def cue_send(a, vaddr, vval):
    a('s_mov_b64 exec, 1')
    lstore(a, [f'buffer_store_dword v{vval}, v{vaddr}, {WS}, s{sbL} offen'])
    a('s_mov_b64 exec, -1')

def idx_setup(a):
    a(f'v_mov_b32 v{vIdx}, 0x4444\nv_mov_b32 v{vTmp}, 0xeeee\nv_and_b32 v{vTmp2}, 8, v0\nv_cmp_ne_u32 vcc, 0, v{vTmp2}')
    a(f'v_cndmask_b32 v{vIdx}, v{vIdx}, v{vTmp}, vcc')

def rot_soff(n, rot):
    def f(a):
        a(f's_lshl_b32 s{sT0}, s{sWave}, 4\ns_add_u32 s{sT0}, s{sT0}, {128 * n}')
        if rot:
            a(f's_mul_i32 s{sT1}, s{sXr}, 320\ns_add_u32 s{sT0}, s{sT0}, s{sT1}')
            a(f's_cmp_ge_u32 s{sT0}, 640\ns_cselect_b32 s{sT1}, 640, 0\ns_sub_u32 s{sT0}, s{sT0}, s{sT1}')
        a(f's_lshl_b32 s{sT0}, s{sT0}, 13\ns_lshl_b32 s{sT1}, s{sH}, 8\ns_add_u32 s{sT0}, s{sT0}, s{sT1}')
    return f

def role_R(a, cfg):
    a('L_R:')
    a(f's_cmp_lt_u32 s{sR}, 16\ns_cbranch_scc1 L_RQK')
    a(f's_sub_u32 s{sJ}, s{sR}, 16')
    a(f's_cmp_eq_u32 s{sJ}, 15\ns_cbranch_scc1 L_idle')
    a('s_waitcnt vmcnt(0)\ns_barrier')
    claim_issue(a, vt)
    wait_init(a, vt, vo, cfg.presleep)
    tstamp(a, cfg, 1, vt + 2, vo + 2)
    bases(a, cfg)
    a(f's_cmp_eq_u32 s{sJ}, 14\ns_cbranch_scc1 L_PF\ns_cmp_ge_u32 s{sJ}, 10\ns_cbranch_scc1 L_PZ')
    role_S2(a, cfg)
    role_PF(a, cfg)
    role_QK(a, cfg)
    role_VO(a, cfg)

def role_QK(a, cfg):
    a('L_RQK:')
    a(f's_lshl_b32 s{sH}, s{sXr}, 4\ns_add_u32 s{sH}, s{sH}, s{sR}')
    src_offsets(a, vA, vB, vt, 8192)
    tr_base(a, vRd, vt, sWave)
    chunks = []
    for m, p in enumerate((pWQ, pWK)):
        chunks += [dict(pre=(lambda a, p=p: srd(a, 12, p, WB)) if n == 0 else None, soff=rot_soff(n, True), stride=8192, reads=std_reads(80 * m + 16 * n)) for n in range(5)]
    loader(a, chunks, vA, vB, vRd, vRd2, vt, vo)
    tstamp(a, cfg, 1, vt, vo)
    wait_init(a, vt, vo)
    bases(a, cfg); idx_setup(a)
    vXr = 10
    a(f'v_and_b32 v{vXw}, 15, v0\nv_lshlrev_b32 v{vXw}, 5, v{vXw}\nv_lshrrev_b32 v{vTmp}, 4, v0\nv_lshl_add_u32 v{vXw}, v{vTmp}, 3, v{vXw}')
    a(f's_lshl_b32 s{sT0}, s{sWave}, 9\ns_add_u32 s{sT0}, s{sT0}, {XBUF}\nv_add_u32 v{vXw}, s{sT0}, v{vXw}')
    a(f'v_lshlrev_b32 v{vXr}, 3, v0')
    def zero_acc():
        for i in range(8): a(f'v_mov_b32 v{vAcc + i}, 0')
    def half(t0):
        for i in range(5): a(f'ds_read_b128 {V(vZ + 4 * i, 4)}, v{vL16} offset:{MEMBUF + (t0 + i) * 1024}')
        for i in range(5):
            a(f's_waitcnt lgkmcnt({4 - i})')
            a(f'v_smfmac_f32_16x16x64_bf16 {V(vAcc, 4)}, {V(vZ + 4 * i, 4)}, {A((t0 + i) * 8, 8)}, v{vIdx}')
            a(f'v_smfmac_f32_16x16x64_bf16 {V(vAcc + 4, 4)}, {V(vZ + 4 * i, 4)}, {A(80 + (t0 + i) * 8, 8)}, v{vIdx}')
    def epilogue1():
        b = vAcc
        for i in range(4): a(f'v_permlane32_swap_b32 v{b + i}, v{b + 4 + i}')
        for i in range(4): a(f'v_add_f32 v{b + i}, v{b + i}, v{b + 4 + i}')
        a(f'v_cvt_pk_bf16_f32 v{b}, v{b}, v{b + 1}\nv_cvt_pk_bf16_f32 v{b + 1}, v{b + 2}, v{b + 3}')
        a(f'ds_write_b64 v{vXw}, {V(vAcc, 2)}')
        a('s_waitcnt lgkmcnt(0)\ns_barrier')
    a(f's_cmp_lt_u32 s{sWave}, 4\ns_cbranch_scc1 L_QK_lo')
    a('L_QK_hi:')
    zero_acc()
    if cfg.qcue: a('s_barrier')
    a('s_barrier'); half(0)
    a('s_barrier'); half(5); epilogue1()
    if cfg.bg_late: a('s_barrier')
    a(f's_add_u32 s{sStep}, s{sStep}, 1\ns_cmp_lt_u32 s{sStep}, {cfg.nsteps}\ns_cbranch_scc1 L_QK_hi')
    a('s_branch L_end')
    a('L_QK_lo:')
    vM16, vM4, vPs, vKr, vKf, vKs, vCs, vC2 = [vM + i for i in range(8)]
    vCv, vMask = 11, 12
    vPL = vZ + 20; vPR = vZ + 26
    vCr = [vU + i for i in range(cfg.cdepth)]
    a(f's_mul_i32 s{sT0}, s{sWave}, 1280\nv_add_u32 v{vM16}, s{sT0}, v{vL16}\ns_add_u32 s{sT0}, s{sT0}, 1024\nv_lshlrev_b32 v{vM4}, 2, v0\nv_add_u32 v{vM4}, s{sT0}, v{vM4}')
    a(f's_bfe_u32 s{sT1}, s{sH}, 0x20002')
    quad_base(a, sT0, sT1)
    a(f's_and_b32 s{sT1}, s{sH}, 3\ns_mul_i32 s{sT1}, s{sT1}, 640\ns_add_u32 s{sT0}, s{sT0}, s{sT1}')
    a(f'v_and_b32 v{vKs}, 7, v0\nv_lshlrev_b32 v{vKs}, 4, v{vKs}\nv_lshrrev_b32 v{vTmp}, 4, v0\nv_lshl_add_u32 v{vKs}, v{vTmp}, 7, v{vKs}')
    a(f'v_bfe_u32 v{vTmp}, v0, 3, 1\nv_lshl_add_u32 v{vPs}, v{vTmp}, 8, v{vKs}\nv_add_u32 v{vPs}, s{sT0}, v{vPs}')
    a(f's_mov_b32 s{sEx}, 0\ns_mov_b32 s{sEx + 1}, 0x00ff00ff')
    a(f'v_mov_b32 v{vTmp}, 0xff7fffff\nv_mov_b32 v{vTmp2}, 0')
    for i in range(4): a(f'v_cndmask_b32 v{vMask + i}, v{vTmp}, v{vTmp2}, s[{sEx}:{sEx + 1}]')
    a(f's_mov_b32 s{sEx}, 0x00ff00ff\ns_mov_b32 s{sEx + 1}, 0x00ffffff')
    a(f's_mov_b32 s{sEx2}, 0xff00ff00\ns_mov_b32 s{sEx2 + 1}, 0xff00ff00')
    a(f's_mov_b32 s{sC}, {f2u(128 ** -0.5 * 1.4426950408889634)}')
    a(f's_lshl_b32 s{sT1}, s{sH}, 8\ns_add_u32 s{sT1}, s{sT1}, {F_KX}\nv_mov_b32 v{vKf}, s{sT1}')
    a(f's_lshl_b32 s{sSeg2}, s{sH}, 11\ns_add_u32 s{sSeg2}, s{sSeg2}, {KM}')
    a(f'v_add_u32 v{vKr}, {KBUF}, v{vL16}')
    a(f'v_min_u32 v{vC2}, 9, v0\nv_lshlrev_b32 v{vC2}, 2, v{vC2}\nv_add_u32 v{vC2}, {FL2}, v{vC2}')
    a(f's_lshl_b32 s{sT0}, s{sR}, 2\ns_add_u32 s{sT0}, s{sT0}, {FL1}\nv_mov_b32 v{vCs}, s{sT0}')
    vKF = vU
    sK, sKm = sFl0, sFl1
    a(f's_lshl_b32 s{sK}, s{sH}, 19\ns_add_u32 s{sK}, s{sK}, {KX}\ns_mov_b32 s{sKm}, {KBUF}')
    ldK = flag_ld(vKF, vKf, cfg.nc_qkx)
    def kx_dma():
        flag_wait(a, vKF, ldK, cfg.nc_qkx)
        for hh in range(2):
            a(f's_mov_b32 m0, s{sKm}')
            for i in range(4): a(f'buffer_load_dwordx4 v{vL16}, {WS}, s{sK} offen offset:{1024 * i} sc1 lds')
            a(f's_add_u32 s{sK}, s{sK}, 4096\ns_add_u32 s{sKm}, s{sKm}, 4096')
        a(ldK)
        a(f's_and_b32 s{sKm}, s{sKm}, 0x3fff\ns_or_b32 s{sKm}, s{sKm}, {KBUF}')
    a(f's_cmp_lg_u32 s{sWave}, 3\ns_cbranch_scc1 L_QK_lo_go')
    a(f'v_mov_b32 v{vKF}, 0\nv_mov_b32 v{vKF + 1}, 0\ns_mov_b32 s{sT4}, 0')
    kx_dma()
    a('L_QK_lo_go:')
    tstamp(a, cfg, 2, vTmp, vTmp2)
    a('L_QK_lo_loop:')
    fstamp(a, cfg, 0)
    zero_acc()
    a(f'v_mov_b32 v{vCv}, s{sStep}')
    ldL = [f'buffer_load_dwordx4 {V(vPL, 4)}, v{vM16}, {WS}, s{sCL} offen sc1', f'buffer_load_dword v{vPL + 4}, v{vM4}, {WS}, s{sCL} offen sc1']
    ldR = [f'buffer_load_dwordx4 {V(vPR, 4)}, v{vM16}, {WS}, s{sCR} offen sc1', f'buffer_load_dword v{vPR + 4}, v{vM4}, {WS}, s{sCR} offen sc1']
    wrL = lambda: a(f'ds_write_b128 v{vM16}, {V(vPL, 4)} offset:{MEMBUF}\nds_write_b32 v{vM4}, v{vPL + 4} offset:{MEMBUF}')
    if cfg.qcue:
        lc = a.newlabel('c2')
        a(f's_cmp_lg_u32 s{sWave}, 2\ns_cbranch_scc1 {lc}')
        cue_wait(a, cfg, vC2, vCr, sStep)
        a(f'{lc}:')
        a('s_setprio 3\ns_barrier')
        fstamp(a, cfg, 1)
        for l in ldL: a(l)
        a('s_setprio 0')
        for l in ldR: a(l)
        poll(a, ldL, R4(vPL, 5), vTmp, first_issued=True, first_wait=2, spec=wrL, specwait=True)
        a('s_waitcnt lgkmcnt(0)\ns_barrier')
    else:
        poll(a, ldL, R4(vPL, 5), vTmp, spec=wrL, specwait=True)
        fstamp(a, cfg, 1)
        a('s_waitcnt lgkmcnt(0)\ns_barrier')
        for l in ldR: a(l)
    fstamp(a, cfg, 2)
    half(0)
    lk = a.newlabel('kr')
    a(f's_cmp_lg_u32 s{sWave}, 0\ns_cbranch_scc1 {lk}')
    for i in range(8): a(f'ds_read_b128 {V(vU + 4 * i, 4)}, v{vKr} offset:{1024 * i}')
    a(f'v_xor_b32 v{vKr}, 0x2000, v{vKr}')
    a(f'{lk}:')
    fstamp(a, cfg, 3)
    poll(a, ldR, R4(vPR, 5), vTmp, first_issued=True,
         spec=lambda: a(f'ds_write_b128 v{vM16}, {V(vPR, 4)} offset:{MEMBUF + 5120}\nds_write_b32 v{vM4}, v{vPR + 4} offset:{MEMBUF + 5120}'), specwait=True)
    fstamp(a, cfg, 4)
    a('s_waitcnt lgkmcnt(0)\ns_barrier')
    fstamp(a, cfg, 5)
    half(5)
    epilogue1()
    fstamp(a, cfg, 6)
    a(f's_cmp_lg_u32 s{sWave}, 0\ns_cbranch_scc1 L_QK_w123')
    vX = vZ
    for ks in range(4):
        for h in range(2): a(f'ds_read_b64_tr_b16 {V(vX + 4 * ks + 2 * h, 2)}, v{vXr} offset:{XBUF + ks * 1024 + h * 512}')
    a('s_setprio 3')
    T0, T1_, M_ = vZ + 16, vZ + 20, vZ + 24
    for ks in range(4):
        a(f's_waitcnt lgkmcnt({6 - 2 * ks})')
        a(f'v_mfma_f32_16x16x32_bf16 {V(M_, 4)}, {V(vX + 4 * ks, 4)}, {V(vX + 4 * ks, 4)}, {V(vMask, 4) if ks == 0 else V(M_, 4)}')
        a(f'v_mfma_f32_16x16x32_bf16 {V(T1_, 4)}, {V(vU + 16 + 4 * ks, 4)}, {V(vX + 4 * ks, 4)}, {"0" if ks == 0 else V(T1_, 4)}')
        a(f'v_mfma_f32_16x16x32_bf16 {V(T0, 4)}, {V(vU + 4 * ks, 4)}, {V(vX + 4 * ks, 4)}, {"0" if ks == 0 else V(T0, 4)}')
    mx, t2 = vTmp, vTmp2
    if cfg.cpos1 == 0:
        cue_send(a, vCs, vCv); a('s_nop 3')
    a(f'v_max3_f32 v{mx}, v{M_}, v{M_ + 1}, v{M_ + 2}\nv_max_f32 v{mx}, v{mx}, v{M_ + 3}')
    for i in range(4): a(f'v_mov_b32_dpp v{T0 + i}, v{T1_ + i} row_shr:8 row_mask:0xf bank_mask:0xc')
    def allred(op):
        a(f'{op}_dpp v{mx}, v{mx}, v{mx} row_ror:8 row_mask:0xf bank_mask:0xf')
        a(f'v_mov_b32 v{t2}, v{mx}\nv_permlane32_swap_b32 v{mx}, v{t2}\n{op} v{mx}, v{mx}, v{t2}')
        a(f'v_mov_b32 v{t2}, v{mx}\nv_permlane16_swap_b32 v{mx}, v{t2}\n{op} v{mx}, v{mx}, v{t2}')
    a(f'v_max3_f32 v{mx}, v{mx}, v{T0}, v{T0 + 1}\nv_max3_f32 v{mx}, v{mx}, v{T0 + 2}, v{T0 + 3}')
    allred('v_max_f32')
    if cfg.cpos1 == 1: cue_send(a, vCs, vCv)
    a(f'v_mul_f32 v{mx}, s{sC}, v{mx}')
    E = [T0 + i for i in range(4)] + [M_ + i for i in range(4)]
    for r in E: a(f'v_fma_f32 v{r}, v{r}, s{sC}, -v{mx}')
    for r in E: a(f'v_exp_f32 v{r}, v{r}')
    a(f'v_add_f32 v{mx}, v{E[0]}, v{E[1]}\nv_add_f32 v{t2}, v{E[2]}, v{E[3]}\nv_add_f32 v{mx}, v{mx}, v{E[4]}\nv_add_f32 v{t2}, v{t2}, v{E[5]}')
    a(f'v_add_f32 v{mx}, v{mx}, v{E[6]}\nv_add_f32 v{t2}, v{t2}, v{E[7]}\nv_add_f32 v{mx}, v{mx}, v{t2}')
    if cfg.cpos1 == 2: cue_send(a, vCs, vCv)
    allred('v_add_f32')
    if cfg.cpos1 == 3: cue_send(a, vCs, vCv)
    a(f'v_rcp_f32 v{mx}, v{mx}')
    for r in reversed(E): a(f'v_mul_f32 v{r}, v{r}, v{mx}')
    a(f'v_cvt_pk_bf16_f32 v{M_}, v{M_}, v{M_ + 1}\nv_cvt_pk_bf16_f32 v{M_ + 1}, v{M_ + 2}, v{M_ + 3}')
    a(f'v_cvt_pk_bf16_f32 v{T0}, v{T0}, v{T0 + 1}\nv_cvt_pk_bf16_f32 v{T0 + 1}, v{T0 + 2}, v{T0 + 3}')
    a(f'v_permlane16_swap_b32 v{M_}, v{M_ + 2}\nv_permlane16_swap_b32 v{M_ + 1}, v{M_ + 3}')
    a(f'v_mov_b32_dpp v{T0 + 2}, v{T0} row_shl:8 row_mask:0xf bank_mask:0x3\nv_mov_b32_dpp v{T0 + 3}, v{T0 + 1} row_shl:8 row_mask:0xf bank_mask:0x3')
    for i in range(4): a(f'v_mov_b32_dpp v{T0 + i}, v{M_ + i} row_shr:8 row_mask:0x4 bank_mask:0xc')
    fstamp(a, cfg, 7)
    a(f's_mov_b64 exec, s[{sEx}:{sEx + 1}]')
    lstore(a, [f'buffer_store_dwordx4 {V(T0, 4)}, v{vPs}, {WS}, s{sCL} offen'])
    a(f'buffer_store_dwordx4 {V(T0, 4)}, v{vPs}, {WS}, s{sCO} offen sc1')
    a('s_mov_b64 exec, -1')
    if cfg.cpos1 == 4: cue_send(a, vCs, vCv)
    a('s_setprio 0')
    if cfg.bg_late: a('s_barrier')
    a('s_branch L_QK_lo_tail')
    a('L_QK_w123:')
    if cfg.bg_late: a('s_barrier')
    a(f's_cmp_eq_u32 s{sWave}, 1\ns_cbranch_scc1 L_QK_w1')
    a(f's_cmp_eq_u32 s{sWave}, 2\ns_cbranch_scc1 L_QK_lo_tail')
    a(f's_add_u32 s{sT4}, s{sStep}, 1\ns_cmp_ge_u32 s{sT4}, 64\ns_cbranch_scc1 L_QK_lo_tail')
    kx_dma()
    a('s_branch L_QK_lo_tail')
    a('L_QK_w1:')
    for ks in range(4):
        for h in range(2): a(f'ds_read_b64_tr_b16 {V(vU + 4 * ks + 2 * h, 2)}, v{vXr} offset:{XBUF + ks * 1024 + h * 512}')
    a(f's_waitcnt lgkmcnt(0)\ns_mov_b64 exec, s[{sEx2}:{sEx2 + 1}]')
    for ks in range(4): a(f'buffer_store_dwordx4 {V(vU + 4 * ks, 4)}, v{vKs}, {WS}, s{sSeg2} offen offset:{512 * ks} sc1')
    a(f's_mov_b64 exec, -1\ns_add_u32 s{sSeg2}, s{sSeg2}, {32 * 2048}')
    a('L_QK_lo_tail:')
    fstamp(a, cfg, 8)
    advance(a, cfg, 'L_QK_lo_loop')
    tstamp(a, cfg, 3, vTmp, vTmp2)
    fdump(a, cfg, vTmp, vTmp2)
    a('s_branch L_end')

def role_VO(a, cfg):
    a('L_RVO:')
    a(f's_mov_b32 s{sH}, s{sR}')
    src_offsets(a, vA, vB, vt, 8192)
    tr_base(a, vRd, vt, sWave)
    chunks = [dict(pre=(lambda a: srd(a, 12, pWV, WB)) if n == 0 else None, soff=rot_soff(n, False), stride=8192, reads=std_reads(16 * n)) for n in range(5)]
    vW3 = 64
    vRdP = 16
    a(f's_and_b32 s{sT0}, s{sWave}, 3\ns_lshl_b32 s{sT0}, s{sT0}, 1')
    a(f'v_bfe_u32 v{vRdP}, v0, 3, 1\nv_or_b32 v{vRdP}, s{sT0}, v{vRdP}')
    a(f'v_bfe_u32 v{vt}, v0, 2, 1\nv_lshlrev_b32 v{vt}, 1, v{vt}\nv_xor_b32 v{vRdP}, v{vRdP}, v{vt}')
    a(f'v_bfe_u32 v{vt}, v0, 4, 1\nv_lshlrev_b32 v{vt}, 2, v{vt}\nv_xor_b32 v{vRdP}, v{vRdP}, v{vt}\nv_lshlrev_b32 v{vRdP}, 5, v{vRdP}')
    a(f'v_and_b32 v{vt}, 3, v0\nv_lshl_add_u32 v{vRdP}, v{vt}, 3, v{vRdP}')
    a(f'v_bfe_u32 v{vt}, v0, 2, 1\nv_lshl_add_u32 v{vRdP}, v{vt}, 8, v{vRdP}')
    a(f'v_lshrrev_b32 v{vt}, 4, v0\nv_lshl_add_u32 v{vRdP}, v{vt}, 10, v{vRdP}')
    def pre(a):
        srd(a, 12, pWO, WB)
        for var, vd in ((0, vA), (1, vB)):
            a(f'v_bfe_u32 v{vt}, v0, 4, 1\nv_lshlrev_b32 v{vt}, 1, v{vt}')
            if var: a(f'v_or_b32 v{vt}, 4, v{vt}')
            a(f'v_bfe_u32 v{vd}, v0, 1, 3\nv_xor_b32 v{vd}, v{vd}, v{vt}\nv_lshlrev_b32 v{vd}, 5, v{vd}')
            a(f'v_and_b32 v{vt}, 1, v0\nv_lshl_add_u32 v{vd}, v{vt}, 4, v{vd}')
            a(f'v_lshrrev_b32 v{vt}, 4, v0\nv_mul_u32_u24 v{vt}, 1280, v{vt}\nv_add_u32 v{vd}, v{vd}, v{vt}')
    so = lambda c: (lambda a: a(f's_lshl_b32 s{sT0}, s{sH}, 7\ns_lshl_b32 s{sT1}, s{sWave}, 4\ns_add_u32 s{sT0}, s{sT0}, s{sT1}\ns_mul_i32 s{sT0}, s{sT0}, 1280\ns_add_u32 s{sT0}, s{sT0}, {256 * c}'))
    def rd(c):
        def f(a, va):
            l = a.newlabel('wo')
            a(f's_cmp_ge_u32 s{sWave}, 4\ns_cbranch_scc{1 if c < 3 else 0} {l}')
            for k in range(4):
                for hb in range(2):
                    for al in range(2):
                        o = 8 * k + 4 * hb + 2 * al
                        dst = V(vW3 + o, 2) if c == 2 else A(80 + 32 * (c % 3) + o, 2)
                        a(f'ds_read_b64_tr_b16 {dst}, v{va} offset:{(32 * k + 16 * hb + 2 * al) * 256}')
            a(f'{l}:')
        return f
    chunks += [dict(pre=pre if c == 0 else None, soff=so(c), stride=1280, reads=rd(c), var=lambda i: i & 1, vrd=vRdP) for c in range(5)]
    loader(a, chunks, vA, vB, vRd, vRd2, vt, vo)
    tstamp(a, cfg, 1, vt, vo)
    wait_init(a, vt, vo)
    bases(a, cfg); idx_setup(a)
    vXr, vUg, vUg3, vG16, vG4, vM16, vM4 = 10, 11, 12, 13, 14, 15, 4
    a(f'v_and_b32 v{vXw}, 15, v0\nv_lshlrev_b32 v{vXw}, 4, v{vXw}')
    a(f'v_bfe_u32 v{vTmp}, v0, 4, 1\nv_lshl_add_u32 v{vXw}, v{vTmp}, 3, v{vXw}')
    a(f'v_lshrrev_b32 v{vTmp}, 5, v0\nv_lshl_add_u32 v{vXw}, v{vTmp}, 2, v{vXw}')
    a(f's_lshl_b32 s{sT0}, s{sWave}, 8\ns_add_u32 s{sT0}, s{sT0}, {XBUF}\nv_add_u32 v{vXw}, s{sT0}, v{vXw}')
    a(f'v_and_b32 v{vXr}, 1, v0\nv_lshlrev_b32 v{vXr}, 3, v{vXr}\nv_bfe_u32 v{vTmp}, v0, 2, 2\nv_lshl_add_u32 v{vXr}, v{vTmp}, 4, v{vXr}')
    a(f'v_lshrrev_b32 v{vTmp}, 4, v0\nv_lshl_add_u32 v{vXr}, v{vTmp}, 7, v{vXr}')
    def um_offs(vglob, spair, two):
        a(f'v_and_b32 v{vglob}, 15, v0\nv_lshlrev_b32 v{vglob}, 4, v{vglob}')
        if two: a(f'v_bfe_u32 v{vTmp}, v0, 4, 1\nv_lshl_add_u32 v{vglob}, v{vTmp}, 23, v{vglob}')
        a(f'v_lshrrev_b32 v{vTmp}, 5, v0\nv_lshl_add_u32 v{vglob}, v{vTmp}, 20, v{vglob}')
        a(f's_lshl_b32 s{sT0}, s{spair}, 21\ns_and_b32 s{sT1}, s{spair}, 1\ns_lshl_b32 s{sT1}, s{sT1}, 13\ns_xor_b32 s{sT1}, s{sT1}, s{sPar}\ns_add_u32 s{sT0}, s{sT0}, s{sT1}')
        a(f's_lshl_b32 s{sT1}, s{sH}, 8\ns_add_u32 s{sT0}, s{sT0}, s{sT1}\nv_add_u32 v{vglob}, s{sT0}, v{vglob}')
    assert UM % (4 * MB) == 0
    a(f's_add_u32 s{sT3}, s{sWave}, 8\ns_cmp_lt_u32 s{sWave}, 4\ns_cselect_b32 s{sT2}, s{sWave}, s{sT3}')
    um_offs(vUg, sT2, True)
    um_offs(vUg3, sT3, False)
    a(f's_mov_b32 s{sEx}, 0xffff\ns_mov_b32 s{sEx + 1}, 0xffff\ns_mov_b32 s{sSeg2}, {UM}')
    a(f's_mul_i32 s{sT0}, s{sWave}, 1280\nv_add_u32 v{vM16}, s{sT0}, v{vL16}\ns_add_u32 s{sT0}, s{sT0}, 1024\nv_lshlrev_b32 v{vM4}, 2, v0\nv_add_u32 v{vM4}, s{sT0}, v{vM4}')
    a(f's_lshr_b32 s{sT0}, s{sWave}, 2\ns_mul_i32 s{sT0}, s{sT0}, {16384 - 5120}\nv_add_u32 v{vG16}, s{sT0}, v{vM16}\nv_add_u32 v{vG4}, s{sT0}, v{vM4}')
    a(f'v_min_u32 v5, 19, v0\nv_lshlrev_b32 v5, 7, v5\nv_add_u32 v5, {FL3}, v5')
    tstamp(a, cfg, 2, vTmp, vTmp2)
    for np_, lab in ((3, 'L_VO_lo'), (2, 'L_VO_hi')):
        if np_ == 3: a(f's_cmp_ge_u32 s{sWave}, 4\ns_cbranch_scc1 L_VO_hi')
        a(f'{lab}:')
        fstamp(a, cfg, 0)
        for i in range(4): a(f'v_mov_b32 v{vAcc + i}, 0')
        vP = vZ
        ld = [f'buffer_load_dwordx4 {V(vP, 4)}, v{vG16}, {WS}, s{sCR} offen sc1', f'buffer_load_dword v{vP + 4}, v{vG4}, {WS}, s{sCR} offen sc1']
        if cfg.vcue:
            if np_ == 2:
                lc = a.newlabel('c3')
                a(f's_cmp_lg_u32 s{sWave}, 7\ns_cbranch_scc1 {lc}')
                cue_wait(a, cfg, 5, [64 + i for i in range(cfg.cdepth)], sStep, sbR)
                for i in range(cfg.cdel3): a('s_nop 7')
                a(f'{lc}:')
            a('s_barrier')
        poll(a, ld, R4(vP, 5), vTmp, spec=lambda: a(f'ds_write_b128 v{vM16}, {V(vP, 4)} offset:{MEMBUF}\nds_write_b32 v{vM4}, v{vP + 4} offset:{MEMBUF}'), specwait=True)
        fstamp(a, cfg, 1)
        a('s_waitcnt lgkmcnt(0)\ns_barrier')
        fstamp(a, cfg, 2)
        for i in range(10): a(f'ds_read_b128 {V(vZ + 4 * i, 4)}, v{vL16} offset:{MEMBUF + i * 1024}')
        for i in range(10):
            a(f's_waitcnt lgkmcnt({9 - i})')
            a(f'v_smfmac_f32_16x16x64_bf16 {V(vAcc, 4)}, {V(vZ + 4 * i, 4)}, {A(i * 8, 8)}, v{vIdx}')
        for i in range(8): a(f'v_mov_b32 v{vZ + i}, 0')
        a(f'v_permlane32_swap_b32 v{vAcc}, v{vAcc + 2}\nv_permlane32_swap_b32 v{vAcc + 1}, v{vAcc + 3}')
        a(f'v_add_f32 v{vAcc}, v{vAcc}, v{vAcc + 2}\nv_add_f32 v{vAcc + 1}, v{vAcc + 1}, v{vAcc + 3}')
        a(f'v_cvt_pk_bf16_f32 v{vAcc}, v{vAcc}, v{vAcc + 1}')
        a(f'ds_write_b32 v{vXw}, v{vAcc}')
        for i in range(8, 4 * np_): a(f'v_mov_b32 v{vZ + i}, 0')
        a('s_waitcnt lgkmcnt(0)\ns_barrier')
        fstamp(a, cfg, 6)
        vV = vZ + 12
        for k in range(4):
            for al in range(2): a(f'ds_read_b64_tr_b16 {V(vV + 4 * k + 2 * al, 2)}, v{vXr} offset:{XBUF + k * 512 + al * 64}')
        for k in range(4):
            a(f's_waitcnt lgkmcnt({6 - 2 * k})')
            for p in range(np_):
                w = V(vW3 + 8 * k, 8) if p == 2 else A(80 + 32 * p + 8 * k, 8)
                a(f'v_smfmac_f32_16x16x64_bf16 {V(vZ + 4 * p, 4)}, {V(vV + 4 * k, 4)}, {w}, v{vIdx}')
        o = vAcc
        for p in range(np_):
            a(f'v_cvt_pk_bf16_f32 v{o + 2 * p}, v{vZ + 4 * p}, v{vZ + 4 * p + 1}\nv_cvt_pk_bf16_f32 v{o + 2 * p + 1}, v{vZ + 4 * p + 2}, v{vZ + 4 * p + 3}')
        a(f'v_permlane16_swap_b32 v{o}, v{o + 2}\nv_permlane16_swap_b32 v{o + 1}, v{o + 3}')
        if np_ == 3: a(f'v_permlane16_swap_b32 v{o + 4}, v{o + 6}\nv_permlane16_swap_b32 v{o + 5}, v{o + 7}')
        a(f'buffer_store_dwordx4 {V(o, 4)}, v{vUg}, {WS}, s{sSeg2} offen sc1')
        if np_ == 3:
            a(f's_mov_b64 exec, s[{sEx}:{sEx + 1}]\nbuffer_store_dwordx4 {V(o + 4, 4)}, v{vUg3}, {WS}, s{sSeg2} offen sc1\ns_mov_b64 exec, -1')
        fstamp(a, cfg, 7)
        a(f's_add_u32 s{sSeg2}, s{sSeg2}, 16384')
        if cfg.vo_sleep: a(f's_sleep {cfg.vo_sleep}')
        advance(a, cfg, lab)
        tstamp(a, cfg, 3, vTmp, vTmp2)
        fdump(a, cfg, vTmp, vTmp2)
        a('s_branch L_end')

def role_S2(a, cfg):
    a('L_S2:')
    NST = cfg.nsteps - 1
    a(f's_cmp_eq_u32 s{sWave}, 4\ns_cbranch_scc1 L_S2_poll\ns_cmp_eq_u32 s{sWave}, 7\ns_cbranch_scc1 L_S2_cue\ns_cmp_gt_u32 s{sWave}, 4\ns_cbranch_scc1 L_S2_red')
    vP0, vPm, vUm, vUm2, vRw, vFa, vFl = 10, 11, 12, 13, 14, 15, 6
    PL0, PR0, Pm, Um = 16, 24, 32, 36
    A1, A2 = 52, 68
    quad_base(a, sT0, sWave)
    a(f'v_and_b32 v{vTmp}, 7, v0\nv_lshlrev_b32 v{vTmp}, 4, v{vTmp}\nv_add_u32 v{vTmp}, s{sT0}, v{vTmp}\nv_lshrrev_b32 v{vTmp2}, 4, v0')
    a(f'v_lshl_add_u32 v{vP0}, v{vTmp2}, 7, v{vTmp}\nv_mul_u32_u24 v{vTmp2}, 640, v{vTmp2}\nv_add_u32 v{vPm}, v{vTmp}, v{vTmp2}\nv_add_u32 v{vPm}, 512, v{vPm}')
    a(f'v_bfe_u32 v{vTmp2}, v0, 3, 1\nv_mul_u32_u24 v{vTmp2}, 640, v{vTmp2}\nv_add_u32 v{vP0}, v{vP0}, v{vTmp2}')
    a(f'v_and_b32 v{vTmp}, 8, v0\nv_lshlrev_b32 v{vTmp}, 10, v{vTmp}\nv_xor_b32 v{vTmp}, s{sPar}, v{vTmp}\nv_xor_b32 v{vTmp}, 0x2000, v{vTmp}\nv_add_u32 v{vPm}, v{vPm}, v{vTmp}')
    a(f's_lshl_b32 s{sT1}, s{sWave}, 10\ns_add_u32 s{sT1}, s{sT1}, {RED}\nv_add_u32 v{vRw}, s{sT1}, v{vL16}')
    a(f's_mul_i32 s{sT2}, s{sXr}, 10\ns_add_u32 s{sT2}, s{sT2}, s{sJ}')
    a(f's_lshl_b32 s{sT0}, s{sT2}, 21\ns_and_b32 s{sT1}, s{sT2}, 1\ns_lshl_b32 s{sT1}, s{sT1}, 13\ns_xor_b32 s{sT1}, s{sT1}, s{sPar}\ns_add_u32 s{sT0}, s{sT0}, s{sT1}')
    a(f's_lshl_b32 s{sT1}, s{sWave}, 10\ns_add_u32 s{sT0}, s{sT0}, s{sT1}\ns_lshl_b32 s{sT1}, s{sXr}, 12\ns_add_u32 s{sT0}, s{sT0}, s{sT1}')
    a(f'v_add_u32 v{vUm}, s{sT0}, v{vL16}\nv_xor_b32 v{vUm2}, 0x1000, v{vUm}\ns_mov_b32 s{sSeg2}, {UM}')
    a(f's_lshl_b32 s{sSeg}, s{sT2}, 22\ns_lshl_b32 s{sT0}, s{sWave}, 12\ns_add_u32 s{sSeg}, s{sSeg}, s{sT0}\ns_lshl_b32 s{sT0}, s{sXr}, 14\ns_add_u32 s{sSeg}, s{sSeg}, s{sT0}\ns_add_u32 s{sSeg}, s{sSeg}, {UX}')
    a(f'v_and_b32 v{vFa}, 3, v0\nv_bfe_u32 v{vTmp}, v0, 2, 1\nv_lshl_add_u32 v{vFa}, v{vTmp}, 4, v{vFa}\nv_lshlrev_b32 v{vFa}, 8, v{vFa}')
    a(f's_lshl_b32 s{sT0}, s{sWave}, 10\ns_add_u32 s{sT0}, s{sT0}, {F_UX}\nv_add_u32 v{vFa}, s{sT0}, v{vFa}')
    a(f'v_mov_b32 v{vFl}, 0\nv_mov_b32 v{vFl + 1}, 0')
    vC3, vC3v = 4, 5
    a(f's_lshl_b32 s{sT0}, s{sT2}, 7\ns_add_u32 s{sT0}, s{sT0}, s{sPar}\ns_add_u32 s{sT0}, s{sT0}, {2 * XS + FL3}\nv_mov_b32 v{vC3}, s{sT0}\nv_mov_b32 v{vC3v}, 0')
    def cue3(pos):
        if not cfg.vcue or (pos is not None and cfg.cpos3 != pos): return
        l = a.newlabel('c3')
        a(f's_cmp_lg_u32 s{sWave}, 0\ns_cbranch_scc1 {l}\ns_mov_b64 exec, 1\nbuffer_store_dword v{vC3v}, v{vC3}, {WS}, 0 offen sc1\ns_mov_b64 exec, -1\n{l}:')
    ldU = flag_ld(vFl, vFa, cfg.nc_vox)
    a('s_barrier\ns_barrier')
    cue3(None)
    a(f's_mov_b32 s{sT4}, 0')
    flag_wait(a, vFl, ldU, cfg.nc_vox, 2)
    tstamp(a, cfg, 2, vTmp, vTmp2)
    a('L_S2_loop:')
    fstamp(a, cfg, 0)
    if not cfg.no_ux:
        for t in range(2):
            for hf in range(2):
                if t or hf: a(f's_xor_b32 s{sT0}, s{sSeg}, {hf * 0x4000 + t * 2 * MB}')
                for i in range(4):
                    a(f'buffer_load_dwordx4 {A(32 * t + 16 * hf + 4 * i, 4)}, v{vL16}, {WS}, s{sT0 if (t or hf) else sSeg} offen offset:{1024 * i} sc1')
    a(ldU)
    a(f's_add_u32 s{sSeg}, s{sSeg}, 32768\ns_add_u32 s{sT4}, s{sStep}, 1\ns_waitcnt vmcnt(0)')
    fstamp(a, cfg, 1)
    flag_wait(a, vFl, ldU, cfg.nc_vox)
    l = a.newlabel('pz'); top = a.newlabel('pz')
    a(f's_cmp_lg_u32 s{sStep}, {NPRE - 4}\ns_cbranch_scc1 {l}')
    a(f'v_and_b32 v{vTmp2}, 7, v0\nv_lshlrev_b32 v{vTmp2}, 8, v{vTmp2}\nv_add_u32 v{vTmp2}, {F_PZ}, v{vTmp2}\ns_mov_b32 s{sSpin}, s{sLim}')
    a(f'{top}:\nbuffer_load_dword v{vTmp}, v{vTmp2}, {WS}, 0 offen sc1\ns_waitcnt vmcnt(0)\nv_cmp_eq_u32 vcc, 0, v{vTmp}\ns_cbranch_vccz {l}')
    a(f's_sub_u32 s{sSpin}, s{sSpin}, 1\ns_cbranch_scc0 {top}\ns_mov_b32 s{sLim}, 0\n{l}:')
    a(f's_andn2_b32 s{sT1}, s{sCL}, 0x2000\ns_add_u32 s{sT2}, s{sSeg2}, {MB}')
    ldp = lambda b, so: [f'buffer_load_dwordx4 {V(b, 4)}, v{vP0}, {WS}, s{so} offen sc1', f'buffer_load_dwordx4 {V(b + 4, 4)}, v{vP0}, {WS}, s{so} offen offset:1280 sc1']
    g1 = ldp(PL0, sCL)
    g2 = ldp(PR0, sCR) + [f'buffer_load_dwordx4 {V(Pm, 4)}, v{vPm}, {WS}, s{sT1} offen sc1']
    g3 = [f'buffer_load_dwordx4 {V(Um + 8 * t + 4 * hf, 4)}, v{vUm2 if hf else vUm}, {WS}, s{sT2 if t else sSeg2} offen sc1' for t in range(2) for hf in range(2)]
    def s2(b, hf, d, c):
        for q in range(2):
            for t in range(2):
                for e in range(2):
                    r = d + 8 * t + 4 * e
                    cc = V(r, 4) if q else ('0' if c is None else V(c + 8 * t + 4 * e, 4))
                    a(f'v_mfma_f32_16x16x32_bf16 {V(r, 4)}, {A(32 * t + 16 * hf + 8 * q + 4 * e, 4)}, {V(b + 4 * q, 4)}, {cc}')
    def s3():
        for t in range(2):
            for e in range(2):
                a(f'v_mfma_f32_16x16x32_bf16 {V(A1 + 8 * t + 4 * e, 4)}, {V(Um + 8 * t + 4 * e, 4)}, {V(Pm, 4)}, {V(A2 + 8 * t + 4 * e, 4)}')
    a(f'v_add_u32 v{vC3v}, 1, v{vC3v}')
    a('s_setprio 3\ns_barrier')
    fstamp(a, cfg, 3)
    if cfg.sorder == 0:
        for l in g1: a(l)
        a('s_setprio 2')
        for l in g2: a(l)
        a('s_setprio 0')
        for l in g3: a(l)
        def c3(pos, n):
            if cfg.vcue and cfg.cpos3 == pos:
                l = a.newlabel('c3')
                a(f's_cmp_lg_u32 s{sWave}, {cfg.cwave3}\ns_cbranch_scc1 {l}\ns_mov_b64 exec, 1\nbuffer_store_dword v{vC3v}, v{vC3}, {WS}, 0 offen sc1\ns_mov_b64 exec, -1\n{l}:')
            if cfg.vcue and cfg.cpos3 <= pos:
                l = a.newlabel('c3')
                a(f's_cmp_eq_u32 s{sWave}, {cfg.cwave3}\ns_cbranch_scc1 {l}\ns_waitcnt vmcnt({n})\n{l}:')
                return n + 1
            return n
        poll(a, g1, R4(PL0, 8), vTmp, first_issued=True, first_wait=c3(0, 7), spec=lambda: s2(PL0, 0, A1, None))
        poll(a, g2, R4(PR0, 8) + R4(Pm), vTmp, first_issued=True, first_wait=c3(1, 4), spec=lambda: s2(PR0, 1, A2, A1))
        fstamp(a, cfg, 4)
        poll(a, g3, R4(Um, 16), vTmp, first_issued=True, first_wait=c3(2, 0), spec=s3)
    else:
        for l in g3: a(l)
        a('s_setprio 2')
        for l in g1: a(l)
        a('s_setprio 0')
        for l in g2: a(l)
        poll(a, g3 + g1, R4(Um, 16) + R4(PL0, 8), vTmp, first_issued=True, first_wait=3, spec=lambda: s2(PL0, 0, A1, None))
        fstamp(a, cfg, 4)
        if cfg.vcue:
            l = a.newlabel('c3'); l2 = a.newlabel('c3')
            a(f's_cmp_lg_u32 s{sWave}, 0\ns_cbranch_scc1 {l}\ns_mov_b64 exec, 1\nbuffer_store_dword v{vC3v}, v{vC3}, {WS}, 0 offen sc1\ns_mov_b64 exec, -1\ns_waitcnt vmcnt(1)\ns_branch {l2}\n{l}:\ns_waitcnt vmcnt(0)\n{l2}:')
        def p2():
            s2(PR0, 1, A2, A1)
            for t in range(2):
                for e in range(2):
                    a(f'v_mfma_f32_16x16x32_bf16 {V(A2 + 8 * t + 4 * e, 4)}, {V(Um + 8 * t + 4 * e, 4)}, {V(Pm, 4)}, {V(A2 + 8 * t + 4 * e, 4)}')
        poll(a, g2, R4(PR0, 8) + R4(Pm), vTmp, first_issued=True, first_wait=1 if cfg.vcue else 0, spec=p2)
        A1 = A2
    fstamp(a, cfg, 5)
    for t in range(2):
        for i in range(4): a(f'v_add_f32_dpp v{A1 + 8 * t + i}, v{A1 + 8 * t + 4 + i}, v{A1 + 8 * t + i} row_shl:8 row_mask:0xf bank_mask:0xf')
        a(f'ds_write_b128 v{vRw}, {V(A1 + 8 * t, 4)} offset:{4096 * t}')
    a('s_waitcnt lgkmcnt(0)\ns_barrier')
    fstamp(a, cfg, 6)
    a(f's_add_u32 s{sSeg2}, s{sSeg2}, 16384')
    advance(a, cfg, None)
    a('s_barrier')
    a(f's_cmp_lt_u32 s{sStep}, {NST}\ns_cbranch_scc1 L_S2_loop')
    tstamp(a, cfg, 3, vTmp, vTmp2)
    fdump(a, cfg, vTmp, vTmp2)
    a('s_branch L_end')
    a('L_S2_poll:')
    a(f'v_and_b32 v10, 15, v0\nv_lshlrev_b32 v10, 2, v10\nv_add_u32 v10, {FL1}, v10')
    a('s_barrier\ns_barrier')
    a('L_S2_poll_loop:')
    cue_wait(a, cfg, 10, [16 + i for i in range(cfg.cdepth)], sStep)
    a('s_barrier\ns_barrier\ns_barrier')
    a(f's_add_u32 s{sStep}, s{sStep}, 1\ns_cmp_lt_u32 s{sStep}, {NST}\ns_cbranch_scc1 L_S2_poll_loop')
    a('s_branch L_end')
    a('L_S2_cue:')
    a(f's_lshl_b32 s{sT0}, s{sJ}, 2\ns_add_u32 s{sT0}, s{sT0}, {FL2}\nv_mov_b32 v10, s{sT0}\nv_mov_b32 v11, 0')
    a('s_barrier\ns_barrier')
    cue_send(a, 10, 11)
    a('L_S2_cue_loop:')
    a(f's_add_u32 s{sStep}, s{sStep}, 1\nv_mov_b32 v11, s{sStep}')
    a('s_barrier\ns_barrier')
    if cfg.cpos2 == 0:
        for i in range(cfg.cdel2): a('s_nop 7')
        cue_send(a, 10, 11)
    a('s_barrier')
    if cfg.cpos2 == 1: cue_send(a, 10, 11)
    a(f's_cmp_lt_u32 s{sStep}, {NST}\ns_cbranch_scc1 L_S2_cue_loop')
    a('s_branch L_end')
    a('L_S2_red:')
    vRr, vMs, aa, ab = 10, 11, 16, 20
    sV3 = sNL
    a(f's_sub_u32 s{sT3}, s{sWave}, 5')
    a(f'v_and_b32 v{vRr}, 3, v0\nv_lshlrev_b32 v{vRr}, 8, v{vRr}\nv_bfe_u32 v{vTmp}, v0, 2, 3\nv_lshl_add_u32 v{vRr}, v{vTmp}, 4, v{vRr}\nv_lshrrev_b32 v{vTmp}, 5, v0\nv_lshl_add_u32 v{vRr}, v{vTmp}, 3, v{vRr}')
    a(f's_lshl_b32 s{sT0}, s{sT3}, 12\ns_add_u32 s{sT0}, s{sT0}, {RED}\nv_add_u32 v{vRr}, s{sT0}, v{vRr}')
    a(f's_lshl_b32 s{sT2}, s{sJ}, 1\ns_add_u32 s{sT2}, s{sT2}, s{sT3}\ns_lshl_b32 s{sT0}, s{sT2}, 8\nv_lshlrev_b32 v{vMs}, 2, v0\nv_add_u32 v{vMs}, s{sT0}, v{vMs}')
    a(f's_mov_b32 s{sEx}, 0x11111111\ns_mov_b32 s{sEx + 1}, 0x11111111')
    a(f's_lshl_b32 s{sV3}, s{sXr}, 14\ns_add_u32 s{sV3}, s{sV3}, s{sPar}\ns_add_u32 s{sV3}, s{sV3}, {2 * XS}')
    a(f's_lshl_b32 s{sT0}, s{sJ}, 2\ns_add_u32 s{sT0}, s{sT0}, {FL2}\nv_mov_b32 v12, s{sT0}\nv_mov_b32 v13, 0')
    def rcue(pos):
        if cfg.cpos2 != pos: return
        l = a.newlabel('rc')
        a(f's_cmp_lg_u32 s{sWave}, 6\ns_cbranch_scc1 {l}')
        cue_send(a, 12, 13)
        a(f'{l}:')
    def pub():
        for p in range(1, 4): a(f'v_mov_b32_dpp v{aa + p}, v{aa} quad_perm:[{p},{p},{p},{p}] row_mask:0xf bank_mask:0xf')
        fstamp(a, cfg, 7)
        rcue(3)
        a(f's_mov_b64 exec, s[{sEx}:{sEx + 1}]')
        st = {'V': lambda: a(f'buffer_store_dwordx4 {V(aa, 4)}, v{vMs}, {WS}, s{sV3} offen sc1'),
              'O': lambda: a(f'buffer_store_dwordx4 {V(aa, 4)}, v{vMs}, {WS}, s{sCO} offen sc1'),
              'L': lambda: lstore(a, [f'buffer_store_dwordx4 {V(aa, 4)}, v{vMs}, {WS}, s{sCL} offen'])}
        for c in cfg.pubord: st[c]()
        a('s_mov_b64 exec, -1')
        rcue(4)
        a('s_barrier')
    srd(a, 12, pMEM0, 10240)
    a(f'v_bfe_u32 v{vTmp}, v0, 2, 3\nv_mul_u32_u24 v{vTmp}, 1280, v{vTmp}\nv_and_b32 v{vTmp2}, 3, v0\nv_lshl_add_u32 v{vTmp}, v{vTmp2}, 3, v{vTmp}\nv_lshrrev_b32 v{vTmp2}, 5, v0\nv_lshl_add_u32 v{vTmp}, v{vTmp2}, 2, v{vTmp}')
    a(f's_mul_i32 s{sT0}, s{sXr}, 20\ns_add_u32 s{sT0}, s{sT0}, s{sT2}\ns_lshl_b32 s{sT0}, s{sT0}, 5')
    a(f'buffer_load_dword v{aa}, v{vTmp}, {T1}, s{sT0} offen\ns_waitcnt vmcnt(0)\nv_min_u32 v{aa}, -2, v{aa}')
    a('s_barrier')
    pub()
    a('L_S2_red_loop:')
    a(f's_add_u32 s{sCL}, s{sCL}, {SL}\ns_add_u32 s{sCO}, s{sCO}, {SL}\ns_add_u32 s{sV3}, s{sV3}, {SL}')
    a('v_add_u32 v13, 1, v13')
    a('s_setprio 3\ns_barrier\ns_barrier')
    a(f'ds_read2st64_b64 {V(aa, 4)}, v{vRr} offset0:0 offset1:2\nds_read2st64_b64 {V(ab, 4)}, v{vRr} offset0:4 offset1:6\ns_waitcnt lgkmcnt(1)')
    a(f'v_add_f32 v{aa}, v{aa}, v{aa + 2}\nv_add_f32 v{aa + 1}, v{aa + 1}, v{aa + 3}\ns_waitcnt lgkmcnt(0)')
    a(f'v_add_f32 v{ab}, v{ab}, v{ab + 2}\nv_add_f32 v{ab + 1}, v{ab + 1}, v{ab + 3}\nv_add_f32 v{aa}, v{aa}, v{ab}\nv_add_f32 v{aa + 1}, v{aa + 1}, v{ab + 1}')
    a(f'v_cvt_pk_bf16_f32 v{aa}, v{aa}, v{aa + 1}')
    pub()
    a(f's_add_u32 s{sStep}, s{sStep}, 1\ns_cmp_lt_u32 s{sStep}, {NST}\ns_cbranch_scc1 L_S2_red_loop')
    fdump(a, cfg, vTmp, vTmp2)
    a('s_branch L_end')

def role_PF(a, cfg):
    a('L_PF:')
    vSp, vC = 10, 14
    a(f's_cmp_ge_u32 s{sWave}, 2\ns_cbranch_scc1 L_end')
    a(f's_lshl_b32 s{sSeg2}, s{sWave}, 14\ns_add_u32 s{sSeg2}, s{sSeg2}, s{sbL}')
    a(f'v_lshlrev_b32 v{vSp}, 7, v0\nv_mov_b32 v{vC}, {FL2}')
    a('L_PF_loop:')
    top = a.newlabel('pw'); done = a.newlabel('pwd')
    a(f's_sub_u32 s{sT4}, s{sStep}, {cfg.pf_ahead}\ns_cmp_lt_i32 s{sT4}, 0\ns_cbranch_scc1 {done}\ns_mov_b32 s{sSpin}, s{sLim}')
    a(f'{top}:')
    a(f'buffer_load_dword v{vTmp2}, v{vC}, {WS}, s{sbL} offen sc1\ns_waitcnt vmcnt(0)\nv_cmp_gt_i32 vcc, s{sT4}, v{vTmp2}\ns_cbranch_vccz {done}\ns_sleep 4')
    a(f's_sub_u32 s{sSpin}, s{sSpin}, 1\ns_cbranch_scc0 {top}\ns_mov_b32 s{sLim}, 0')
    a(f'{done}:')
    a(f'buffer_load_dword v16, v{vSp}, {WS}, s{sSeg2} offen sc1')
    a(f's_add_u32 s{sSeg2}, s{sSeg2}, {SL}')
    a(f's_add_u32 s{sStep}, s{sStep}, 1\ns_cmp_lt_u32 s{sStep}, {cfg.nsteps}\ns_cbranch_scc1 L_PF_loop')
    a('s_branch L_end')
    a('L_PZ:')
    for i in range(4): a(f'v_mov_b32 v{4 + i}, -1')
    a(f's_lshl_b32 s{sT2}, s{sXr}, 2\ns_add_u32 s{sT2}, s{sT2}, s{sJ}\ns_sub_u32 s{sT2}, s{sT2}, 10')
    a(f's_add_u32 s{sSeg}, s{sT2}, {NPRE}\ns_lshl_b32 s{sSeg}, s{sSeg}, 15')
    a(f's_lshl_b32 s{sT3}, s{sWave}, 12\ns_min_u32 s{sT4}, s{sWave}, 4\ns_lshl_b32 s{sT4}, s{sT4}, 10\ns_add_u32 s{sT4}, s{sT4}, s{sPar}\ns_add_u32 s{sT4}, s{sT4}, {2 * XS + VOFF}')
    a('L_PZ_loop:')
    a(f's_add_u32 s{sT0}, s{sSeg}, s{sT3}\ns_add_u32 s{sT1}, s{sT0}, {XS}')
    for so in (sT0, sT1):
        for i in range(4): a(f'buffer_store_dwordx4 v[4:7], v{vL16}, {WS}, s{so} offen offset:{1024 * i} sc1')
    a(f's_add_u32 s{sT0}, s{sSeg}, s{sT4}\ns_add_u32 s{sT1}, s{sT0}, 16384')
    for so in (sT0, sT1): a(f'buffer_store_dwordx4 v[4:7], v{vL16}, {WS}, s{so} offen sc1')
    a(f's_add_u32 s{sSeg}, s{sSeg}, {8 * SL}\ns_cmp_lt_u32 s{sSeg}, {64 * SL}\ns_cbranch_scc1 L_PZ_loop')
    l = a.newlabel('pzd')
    a(f's_waitcnt vmcnt(0)\ns_barrier\ns_cmp_lg_u32 s{sWave}, 0\ns_cbranch_scc1 {l}')
    a(f's_lshl_b32 s{sT2}, s{sT2}, 8\ns_add_u32 s{sT2}, s{sT2}, {F_PZ}\nv_mov_b32 v8, 1\nv_mov_b32 v9, s{sT2}\ns_mov_b64 exec, 1\nbuffer_store_dword v8, v9, {WS}, 0 offen sc1\ns_mov_b64 exec, -1')
    tstamp(a, cfg, 3, 10, 11)
    a(f'{l}:')
    if not cfg.pfn:
        a('s_branch L_end')
        return
    vFa, vFl = 11, 12
    a(f's_sub_u32 s{sT2}, s{sJ}, 10\ns_lshl_b32 s{sT0}, s{sWave}, 2\ns_add_u32 s{sT2}, s{sT2}, s{sT0}\ns_cmp_ge_u32 s{sT2}, {10 * cfg.pfn}\ns_cbranch_scc1 L_end')
    a(f's_mul_i32 s{sT3}, s{sT2}, 205\ns_lshr_b32 s{sT3}, s{sT3}, 11\ns_mul_i32 s{sT0}, s{sT3}, 10\ns_sub_u32 s{sT2}, s{sT2}, s{sT0}')
    a(f's_lshl_b32 s{sT4}, s{sT3}, 3')
    ux_head(a, cfg, sSeg, sT4)
    a(f's_mul_i32 s{sT0}, s{sXr}, 10\ns_add_u32 s{sT2}, s{sT2}, s{sT0}\ns_lshl_b32 s{sT0}, s{sT2}, 23\ns_add_u32 s{sSeg}, s{sSeg}, s{sT0}\ns_add_u32 s{sSeg}, s{sSeg}, {UX + 4 * MB + 32768}')
    a(f'v_lshlrev_b32 v{vSp}, 7, v0\nv_mov_b32 v{vC}, {FL2}')
    a(f'v_and_b32 v{vFa}, 7, v0\nv_lshlrev_b32 v{vFa}, 8, v{vFa}\ns_lshl_b32 s{sT0}, s{sT3}, 11\ns_add_u32 s{sT0}, s{sT0}, {F_UX}\nv_add_u32 v{vFa}, s{sT0}, v{vFa}\nv_mov_b32 v{vFl}, 0')
    a('L_PFX_loop:')
    top = a.newlabel('pw'); done = a.newlabel('pwd')
    a(f's_mov_b32 s{sSpin}, s{sLim}')
    a(f'{top}:')
    a(f'buffer_load_dword v{vTmp2}, v{vC}, {WS}, s{sbL} offen sc1\ns_waitcnt vmcnt(0)\nv_cmp_gt_i32 vcc, s{sStep}, v{vTmp2}\ns_cbranch_vccz {done}\ns_sleep 2')
    a(f's_sub_u32 s{sSpin}, s{sSpin}, 1\ns_cbranch_scc0 {top}\ns_mov_b32 s{sLim}, 0')
    a(f'{done}:')
    a(f's_add_u32 s{sT4}, s{sStep}, 1\nv_mov_b32 v{vFl}, 0')
    flag_wait(a, vFl, flag_ld(vFl, vFa, 1), 1)
    a(f'buffer_load_dword v16, v{vSp}, {WS}, s{sSeg} offen sc1')
    if cfg.pf64: a(f'buffer_load_dword v17, v{vSp}, {WS}, s{sSeg} offen offset:64 sc1')
    a(f's_add_u32 s{sSeg}, s{sSeg}, 32768')
    a(f's_add_u32 s{sStep}, s{sStep}, 1\ns_cmp_lt_u32 s{sStep}, {cfg.nsteps - 2}\ns_cbranch_scc1 L_PFX_loop')
    a('s_branch L_end')
```

```python
from core import *
from role_r2 import *
import role_r2

def role_R(a, cfg):
    a('L_R:')
    a(f's_cmp_lt_u32 s{sR}, 16\ns_cbranch_scc1 L_RQK')
    a(f's_sub_u32 s{sJ}, s{sR}, 16')
    a(f's_cmp_eq_u32 s{sJ}, 15\ns_cbranch_scc1 L_idle')
    a('s_waitcnt vmcnt(0)\ns_barrier')
    claim_issue(a, vt)
    wait_init(a, vt, vo, cfg.presleep)
    tstamp(a, cfg, 1, vt + 2, vo + 2)
    bases(a, cfg)
    a(f's_cmp_eq_u32 s{sJ}, 14\ns_cbranch_scc1 L_PF\ns_cmp_ge_u32 s{sJ}, 10\ns_cbranch_scc1 L_PZ')
    role_S2(a, cfg)
    role_PF(a, cfg)
    role_QK(a, cfg)
    role_VO(a, cfg)

def nops(a, n):
    while n > 0:
        a(f's_nop {min(n, 16) - 1}'); n -= 16

def both(a, name, fn):
    a(f's_cmp_lg_u32 s{sImp}, 0\ns_cbranch_scc1 {name}_i')
    fn('', name + '_p')
    a(f'{name}_i:')
    fn(' sc1', name + '_q')

def cue1l(a, vval, vaddr, fl):
    a(f's_mov_b64 exec, 1\nbuffer_store_dword v{vval}, v{vaddr}, {WS}, s{sbL} offen{fl}\ns_mov_b64 exec, -1')

def role_QK(a, cfg):
    a('L_RQK:')
    a(f's_lshl_b32 s{sH}, s{sXr}, 4\ns_add_u32 s{sH}, s{sH}, s{sR}')
    src_offsets(a, vA, vB, vt, 8192)
    tr_base(a, vRd, vt, sWave)
    chunks = []
    for m, p in enumerate((pWQ, pWK)):
        chunks += [dict(pre=(lambda a, p=p: srd(a, 12, p, WB)) if n == 0 else None, soff=rot_soff(n, True), stride=8192, reads=std_reads(80 * m + 16 * n)) for n in range(5)]
    loader(a, chunks, vA, vB, vRd, vRd2, vt, vo)
    tstamp(a, cfg, 1, vt, vo)
    bases(a, cfg); idx_setup(a)
    vXr = 10
    vM16, vM4, vPs, vKr, vKf, vKs, vCs, vC2 = [vM + i for i in range(8)]
    vP = vZ + 20
    a(f'v_and_b32 v{vXw}, 15, v0\nv_lshlrev_b32 v{vXw}, 5, v{vXw}\nv_lshrrev_b32 v{vTmp}, 4, v0\nv_lshl_add_u32 v{vXw}, v{vTmp}, 3, v{vXw}')
    a(f's_lshl_b32 s{sT0}, s{sWave}, 9\ns_add_u32 s{sT0}, s{sT0}, {XBUF}\nv_add_u32 v{vXw}, s{sT0}, v{vXw}')
    a(f'v_lshlrev_b32 v{vXr}, 3, v0')
    a(f's_and_b32 s{sT0}, s{sWave}, 3\ns_mul_i32 s{sT0}, s{sT0}, 1280\nv_add_u32 v{vM16}, s{sT0}, v{vL16}\ns_add_u32 s{sT0}, s{sT0}, 1024\nv_lshlrev_b32 v{vM4}, 2, v0\nv_add_u32 v{vM4}, s{sT0}, v{vM4}')
    def zero_acc():
        for i in range(8): a(f'v_mov_b32 v{vAcc + i}, 0')
    def reads(b, t0):
        for i in range(5): a(f'ds_read_b128 {V(b + 4 * i, 4)}, v{vL16} offset:{MEMBUF + (t0 + i) * 1024}')
    def mm(b, t0, i):
        a(f'v_smfmac_f32_16x16x64_bf16 {V(vAcc, 4)}, {V(b + 4 * i, 4)}, {A((t0 + i) * 8, 8)}, v{vIdx}')
        a(f'v_smfmac_f32_16x16x64_bf16 {V(vAcc + 4, 4)}, {V(b + 4 * i, 4)}, {A(80 + (t0 + i) * 8, 8)}, v{vIdx}')
    def half(t0):
        reads(vZ, t0)
        for i in range(5):
            a(f's_waitcnt lgkmcnt({4 - i})'); mm(vZ, t0, i)
    def epilogue1():
        b = vAcc
        for i in range(4): a(f'v_permlane32_swap_b32 v{b + i}, v{b + 4 + i}')
        for i in (0, 2): a(f'v_pk_add_f32 {V(b + i, 2)}, {V(b + i, 2)}, {V(b + 4 + i, 2)}')
        a(f'v_cvt_pk_bf16_f32 v{b}, v{b}, v{b + 1}\nv_cvt_pk_bf16_f32 v{b + 1}, v{b + 2}, v{b + 3}')
        a(f'ds_write_b64 v{vXw}, {V(vAcc, 2)}')
        a('s_waitcnt lgkmcnt(0)\ns_barrier')
    ld = lambda so: [f'buffer_load_dwordx4 {V(vP, 4)}, v{vM16}, {WS}, s{so} offen sc1', f'buffer_load_dword v{vP + 4}, v{vM4}, {WS}, s{so} offen sc1']
    wr = lambda off: (lambda: a(f'ds_write_b128 v{vM16}, {V(vP, 4)} offset:{MEMBUF + off}\nds_write_b32 v{vM4}, v{vP + 4} offset:{MEMBUF + off}'))
    BAD = XBUF + 4096
    vBad, vBadA = 5, 6
    sM0 = sNL
    a(f's_mul_i32 s{sM0}, s{sWave}, 1280\nv_mov_b32 v{vBadA}, {BAD}')
    def dma(so):
        a(f'buffer_load_dwordx4 v{vM16}, {WS}, s{so} offen sc1 lds')
        a(f's_mov_b64 exec, 0xffff\nbuffer_load_dwordx4 v{vM16}, {WS}, s{so} offen offset:1024 sc1 lds\ns_mov_b64 exec, -1')
    def redo(so, off, back):
        lab = a.newlabel('redo')
        def ool():
            a(f'{lab}:')
            if COUNT_RETRY[0]: a('s_add_u32 s101, s101, 1')
            a('s_waitcnt lgkmcnt(0)\ns_nop 7')
            poll(a, ld(so), R4(vP, 5), vTmp)
            wr(off)()
            zero_acc()
            a('s_waitcnt lgkmcnt(0)\ns_barrier')
            a(f'ds_write_b32 v{vBadA}, v{vAcc}')
            half(0); half(5); epilogue1()
            a(f's_branch {back}')
        a.defer(ool)
        return lab
    def badcheck(lab):
        a(f'ds_read_b32 v{vBad}, v{vBadA}\ns_waitcnt lgkmcnt(0)\nv_cmp_ne_u32 vcc, 0, v{vBad}\ns_cbranch_vccnz {lab}')
    a(f's_cmp_lt_u32 s{sWave}, 4\ns_cbranch_scc1 L_QK_lo')
    a(f's_mov_b32 m0, s{sM0}')
    a('L_QK_hi:')
    a('s_barrier')
    zero_acc()
    anydma = cfg.rmode == 'dma' or cfg.ldma
    if cfg.rmode != 'lo': nops(a, cfg.hidel)
    if cfg.rmode == 'dma': dma(sCR)
    if cfg.rmode == 'hi':
        for l in ld(sCR): a(l)
    a('s_barrier')
    reads(vZ, 0)
    if cfg.rmode == 'hi':
        for i in range(cfg.npre0):
            a(f's_waitcnt lgkmcnt({4 - i})'); mm(vZ, 0, i)
        check(a, ld(sCR), R4(vP, 5), vTmp, 0, spec=wr(5120), specwait=True)
        a('s_waitcnt lgkmcnt(2)')
        for i in range(cfg.npre0, cfg.npre): mm(vZ, 0, i)
        a('s_waitcnt lgkmcnt(0)')
    else:
        for i in range(cfg.npre):
            a(f's_waitcnt lgkmcnt({4 - i})'); mm(vZ, 0, i)
        a('s_waitcnt vmcnt(0)')
    if cfg.fine == -3: fstamp(a, cfg, 4)
    a('s_barrier')
    reads(vU, 5)
    a('s_waitcnt lgkmcnt(5)')
    for i in range(cfg.npre, 5): mm(vZ, 0, i)
    for i in range(5):
        a(f's_waitcnt lgkmcnt({4 - i})'); mm(vU, 5, i)
    if cfg.fine == -3: fstamp(a, cfg, 8)
    epilogue1()
    a('L_QK_hi_b:')
    if anydma: badcheck(redo(sCR, 5120, 'L_QK_hi_b'))
    facc(a, cfg)
    a(f's_add_u32 s{sStep}, s{sStep}, 1\ns_add_u32 s{sCR}, s{sCR}, {SL}')
    a('s_barrier')
    a(f's_cmp_lt_u32 s{sStep}, {cfg.nsteps}\ns_cbranch_scc1 L_QK_hi')
    fdump(a, cfg, vTmp, vTmp2)
    a('s_branch L_end')
    a.flush()
    a('L_QK_lo:')
    a('s_setprio 1')
    def common(pre=None, mid=None, verify=False, own_check=False):
        fstamp(a, cfg, 0)
        zero_acc()
        a(f's_mov_b32 m0, s{sM0}')
        if pre: pre()
        a('s_barrier')
        fstamp(a, cfg, 1)
        if cfg.ldma:
            dma(sCL)
            if cfg.rmode == 'lo':
                nops(a, cfg.hidel)
                for l in ld(sCR): a(l)
            a(f's_waitcnt vmcnt({2 if cfg.rmode == "lo" else 0})')
        else:
            assert cfg.rmode != 'lo'
            for l in ld(sCL): a(l)
            check(a, ld(sCL), R4(vP, 5), vTmp, 0, spec=wr(0), specwait=True, post=lambda: a('s_waitcnt lgkmcnt(0)'))
        a('s_barrier')
        verify = verify and anydma
        fstamp(a, cfg, 2)
        half(0)
        if cfg.fine == -3: fstamp(a, cfg, 3)
        if verify: maxtree(a, vBad, R4(vZ, 20))
        if mid: mid()
        if cfg.rmode == 'lo':
            check(a, ld(sCR), R4(vP, 5), vTmp, 0, spec=wr(5120), specwait=True, post=lambda: a('s_waitcnt lgkmcnt(0)'))
        a('s_barrier')
        fstamp(a, cfg, 5)
        half(5)
        if cfg.fine == -3: fstamp(a, cfg, 8)
        if verify:
            if cfg.rmode == 'dma': maxtree(a, vBad, [vBad] + R4(vZ, 20))
            a(f'v_cmp_eq_u32 vcc, -1, v{vBad}\ns_cmp_lg_u64 vcc, 0\ns_cselect_b32 s{sT0}, s{sLim}, 0\nv_mov_b32 v{vBad}, s{sT0}\nds_write_b32 v{vBadA}, v{vBad}')
        epilogue1()
        fstamp(a, cfg, 6)
        back = a.newlabel('qb')
        a(f'{back}:')
        if not anydma: return None
        lab = redo(sCL, 0, back)
        if not own_check: badcheck(lab)
        return lab
    def fin(lab):
        facc(a, cfg)
        advance(a, cfg, lab)
        tstamp(a, cfg, 3, vTmp, vTmp2)
        fdump(a, cfg, vTmp, vTmp2)
        a('s_branch L_end')
        a.flush()
    a(f'v_and_b32 v{vKs}, 7, v0\nv_lshlrev_b32 v{vKs}, 4, v{vKs}\nv_lshrrev_b32 v{vTmp}, 4, v0\nv_lshl_add_u32 v{vKs}, v{vTmp}, 7, v{vKs}')
    a(f's_cmp_eq_u32 s{sWave}, 1\ns_cbranch_scc1 L_QK_w1\ns_cmp_eq_u32 s{sWave}, 2\ns_cbranch_scc1 L_QK_w2\ns_cmp_eq_u32 s{sWave}, 3\ns_cbranch_scc1 L_QK_w3')
    vCv, vMask = 11, 12
    a(f's_bfe_u32 s{sT1}, s{sH}, 0x20002')
    quad_base(a, sT0, sT1)
    a(f's_and_b32 s{sT1}, s{sH}, 3\ns_mul_i32 s{sT1}, s{sT1}, 640\ns_add_u32 s{sT0}, s{sT0}, s{sT1}')
    a(f'v_bfe_u32 v{vTmp}, v0, 3, 1\nv_lshl_add_u32 v{vPs}, v{vTmp}, 8, v{vKs}\nv_add_u32 v{vPs}, s{sT0}, v{vPs}')
    a(f's_mov_b32 s{sEx}, 0\ns_mov_b32 s{sEx + 1}, 0x00ff00ff')
    a(f'v_mov_b32 v{vTmp}, 0xff7fffff\nv_mov_b32 v{vTmp2}, 0')
    for i in range(4): a(f'v_cndmask_b32 v{vMask + i}, v{vTmp}, v{vTmp2}, s[{sEx}:{sEx + 1}]')
    a(f's_mov_b32 s{sEx}, 0x00ff00ff\ns_mov_b32 s{sEx + 1}, 0x00ffffff')
    sC = sEx2
    cc = 128 ** -0.5 * 1.4426950408889634
    a(f's_mov_b32 s{sC}, {f2u(cc)}\ns_mov_b32 s{sC + 1}, {f2u(cc)}\ns_mov_b32 s{sFl0}, {f2u(-cc)}')
    a(f'v_add_u32 v{vKr}, {KBUF}, v{vL16}')
    a(f's_lshl_b32 s{sT0}, s{sR}, 2\ns_add_u32 s{sT0}, s{sT0}, {FL1}\nv_mov_b32 v{vCs}, s{sT0}')
    tstamp(a, cfg, 2, vTmp, vTmp2)
    def w0(fl, lab):
        a(f'{lab}:')
        def pre():
            a(f'v_mov_b32 v{vCv}, s{sStep}')
        def mid():
            for i in range(8): a(f'ds_read_b128 {V(vU + 4 * i, 4)}, v{vKr} offset:{1024 * i}')
            a(f'v_xor_b32 v{vKr}, 0x2000, v{vKr}')
        rlab = common(pre, mid, own_check=True)
        if rlab: a(f'ds_read_b32 v{vBad}, v{vBadA}')
        vX = vZ
        for ks in range(4):
            for h in range(2): a(f'ds_read_b64_tr_b16 {V(vX + 4 * ks + 2 * h, 2)}, v{vXr} offset:{XBUF + ks * 1024 + h * 512}')
        T0, T1_, M_ = vZ + 16, vZ + 20, vZ + 24
        for ks in range(4):
            a(f's_waitcnt lgkmcnt({6 - 2 * ks})')
            a(f'v_mfma_f32_16x16x32_bf16 {V(M_, 4)}, {V(vX + 4 * ks, 4)}, {V(vX + 4 * ks, 4)}, {V(vMask, 4) if ks == 0 else V(M_, 4)}')
            a(f'v_mfma_f32_16x16x32_bf16 {V(T1_, 4)}, {V(vU + 16 + 4 * ks, 4)}, {V(vX + 4 * ks, 4)}, {"0" if ks == 0 else V(T1_, 4)}')
            a(f'v_mfma_f32_16x16x32_bf16 {V(T0, 4)}, {V(vU + 4 * ks, 4)}, {V(vX + 4 * ks, 4)}, {"0" if ks == 0 else V(T0, 4)}')
        mx, t2 = vTmp, vTmp2
        cue = lambda pos: cue1l(a, vCv, vCs, fl) if cfg.cpos1 == pos else None
        if rlab: a(f'v_cmp_ne_u32 vcc, 0, v{vBad}\ns_cbranch_vccnz {rlab}')
        cue(0)
        a(f'v_max3_f32 v{mx}, v{M_}, v{M_ + 1}, v{M_ + 2}\nv_max_f32 v{mx}, v{mx}, v{M_ + 3}')
        for i in range(4): a(f'v_mov_b32_dpp v{T0 + i}, v{T1_ + i} row_shr:8 row_mask:0xf bank_mask:0xc')
        def allred(op, p0):
            cue(p0)
            a(f'{op}_dpp v{t2}, v{mx}, v{mx} row_ror:8 row_mask:0xf bank_mask:0xf')
            a(f'{op}_dpp v{mx}, v{mx}, v{mx} row_ror:8 row_mask:0xf bank_mask:0xf')
            cue(p0 + 1)
            a(f'v_permlane32_swap_b32 v{mx}, v{t2}\n{op} v{T1_}, v{mx}, v{t2}\n{op} v{mx}, v{mx}, v{t2}')
            cue(p0 + 2)
            a(f'v_permlane16_swap_b32 v{mx}, v{T1_}\n{op} v{mx}, v{mx}, v{T1_}')
        a(f'v_max3_f32 v{mx}, v{mx}, v{T0}, v{T0 + 1}\nv_max3_f32 v{mx}, v{mx}, v{T0 + 2}, v{T0 + 3}')
        allred('v_max_f32', 1)
        a(f'v_mul_f32 v{mx}, s{sFl0}, v{mx}')
        E = [T0 + i for i in range(4)] + [M_ + i for i in range(4)]
        for r in E[::2]: a(f'v_pk_fma_f32 {V(r, 2)}, {V(r, 2)}, s[{sC}:{sC + 1}], {V(mx, 2)} op_sel_hi:[1,1,0]')
        for r in E: a(f'v_exp_f32 v{r}, v{r}')
        a(f'v_pk_add_f32 {V(mx, 2)}, {V(E[0], 2)}, {V(E[2], 2)}\nv_pk_add_f32 {V(T1_, 2)}, {V(E[4], 2)}, {V(E[6], 2)}\nv_pk_add_f32 {V(mx, 2)}, {V(mx, 2)}, {V(T1_, 2)}\nv_add_f32 v{mx}, v{mx}, v{t2}')
        allred('v_add_f32', 4)
        a(f'v_rcp_f32 v{mx}, v{mx}')
        cue(7)
        for r in reversed(E[::2]): a(f'v_pk_mul_f32 {V(r, 2)}, {V(r, 2)}, {V(mx, 2)} op_sel_hi:[1,0]')
        a(f'v_cvt_pk_bf16_f32 v{M_}, v{M_}, v{M_ + 1}\nv_cvt_pk_bf16_f32 v{M_ + 1}, v{M_ + 2}, v{M_ + 3}')
        a(f'v_cvt_pk_bf16_f32 v{T0}, v{T0}, v{T0 + 1}\nv_cvt_pk_bf16_f32 v{T0 + 1}, v{T0 + 2}, v{T0 + 3}')
        a(f'v_permlane16_swap_b32 v{M_}, v{M_ + 2}\nv_permlane16_swap_b32 v{M_ + 1}, v{M_ + 3}')
        a(f'v_mov_b32_dpp v{T0 + 2}, v{T0} row_shl:8 row_mask:0xf bank_mask:0x3\nv_mov_b32_dpp v{T0 + 3}, v{T0 + 1} row_shl:8 row_mask:0xf bank_mask:0x3')
        for i in range(4): a(f'v_mov_b32_dpp v{T0 + i}, v{M_ + i} row_shr:8 row_mask:0x4 bank_mask:0xc')
        fstamp(a, cfg, 7)
        cue(8)
        a(f's_mov_b64 exec, s[{sEx}:{sEx + 1}]')
        a(f'buffer_store_dwordx4 {V(T0, 4)}, v{vPs}, {WS}, s{sCL} offen{fl}')
        a(f'buffer_store_dwordx4 {V(T0, 4)}, v{vPs}, {WS}, s{sCO} offen sc1')
        a('s_mov_b64 exec, -1')
        cue(9)
        a('s_barrier')
        fin(lab)
    both(a, 'L_QK_w0', w0)
    a('L_QK_w1:')
    a(f's_mov_b32 s{sEx2}, 0xff00ff00\ns_mov_b32 s{sEx2 + 1}, 0xff00ff00')
    a(f's_lshl_b32 s{sSeg2}, s{sH}, 11\ns_add_u32 s{sSeg2}, s{sSeg2}, {KM}')
    a('L_QK_w1_loop:')
    common(verify=True)
    for ks in range(4):
        for h in range(2): a(f'ds_read_b64_tr_b16 {V(vU + 4 * ks + 2 * h, 2)}, v{vXr} offset:{XBUF + ks * 1024 + h * 512}')
    l = a.newlabel('kl')
    a(f's_cmp_eq_u32 s{sStep}, {cfg.nsteps - 1}\ns_cbranch_scc1 {l}\ns_barrier\n{l}:')
    a(f's_waitcnt lgkmcnt(0)\ns_mov_b64 exec, s[{sEx2}:{sEx2 + 1}]')
    for ks in range(4): a(f'buffer_store_dwordx4 {V(vU + 4 * ks, 4)}, v{vKs}, {WS}, s{sSeg2} offen offset:{512 * ks} sc1')
    a(f's_mov_b64 exec, -1\ns_add_u32 s{sSeg2}, s{sSeg2}, {32 * 2048}')
    fin('L_QK_w1_loop')
    a('L_QK_w2:')
    a(f'v_min_u32 v{vC2}, 9, v0\nv_lshlrev_b32 v{vC2}, 2, v{vC2}\nv_add_u32 v{vC2}, {FL2}, v{vC2}')
    a(f's_lshl_b32 s{sT0}, s{sXr}, 14\ns_lshl_b32 s{sT1}, s{sR}, 7\ns_add_u32 s{sT0}, s{sT0}, s{sT1}\ns_add_u32 s{sT0}, s{sT0}, s{sPar}\ns_add_u32 s{sT0}, s{sT0}, {2 * XS}\nv_mov_b32 v{vCs}, s{sT0}')
    a('L_QK_w2_loop:')
    common(lambda: cue_wait(a, cfg, vC2, [vU + i for i in range(cfg.cdepth2)], sStep))
    if cfg.gq is not None:
        a(f'v_mov_b32 v{vTmp}, s{sStep}')
        if cfg.gq: a(f's_nop {cfg.gq - 1}')
        a(f's_mov_b64 exec, 1\nbuffer_store_dword v{vTmp}, v{vCs}, {WS}, 0 offen sc1\ns_mov_b64 exec, -1')
    a('s_barrier')
    fin('L_QK_w2_loop')
    a('L_QK_w3:')
    vKF = vU
    sK, sKm = sFl0, sFl1
    a(f's_lshl_b32 s{sT1}, s{sH}, 8\ns_add_u32 s{sT1}, s{sT1}, {F_KX}\nv_mov_b32 v{vKf}, s{sT1}')
    a(f's_lshl_b32 s{sK}, s{sH}, 19\ns_add_u32 s{sK}, s{sK}, {KX}\ns_mov_b32 s{sKm}, {KBUF}')
    ldK = flag_ld(vKF, vKf, cfg.nc_qkx)
    def kx_dma():
        flag_wait(a, vKF, ldK, cfg.nc_qkx)
        for hh in range(2):
            a(f's_mov_b32 m0, s{sKm}')
            for i in range(4): a(f'buffer_load_dwordx4 v{vL16}, {WS}, s{sK} offen offset:{1024 * i} sc1 lds')
            a(f's_add_u32 s{sK}, s{sK}, 4096\ns_add_u32 s{sKm}, s{sKm}, 4096')
        a(ldK)
        a(f's_and_b32 s{sKm}, s{sKm}, 0x3fff\ns_or_b32 s{sKm}, s{sKm}, {KBUF}')
    a(f'v_mov_b32 v{vKF}, 0\nv_mov_b32 v{vKF + 1}, 0\ns_mov_b32 s{sT4}, 0')
    kx_dma()
    a('L_QK_w3_loop:')
    common()
    a('s_barrier')
    l = a.newlabel('k3')
    a(f's_add_u32 s{sT4}, s{sStep}, 1\ns_cmp_ge_u32 s{sT4}, 64\ns_cbranch_scc1 {l}')
    kx_dma()
    a(f'{l}:')
    fin('L_QK_w3_loop')

def role_VO(a, cfg):
    a('L_RVO:')
    a(f's_mov_b32 s{sH}, s{sR}')
    src_offsets(a, vA, vB, vt, 8192)
    a(f's_and_b32 s{sT2}, s{sWave}, 3\ns_lshl_b32 s{sT2}, s{sT2}, 1')
    tr_base(a, vRd, vt, sT2)
    def rdv(n):
        def f(a, va):
            l = a.newlabel('vv')
            a(f's_cmp_ge_u32 s{sWave}, 4\ns_cbranch_scc1 {l}')
            std_reads(16 * n)(a, va)
            a(f'v_xor_b32 v{va}, 32, v{va}')
            std_reads(80 + 16 * n)(a, va)
            a(f'{l}:')
        return f
    chunks = [dict(pre=(lambda a: srd(a, 12, pWV, WB)) if n == 0 else None, soff=rot_soff(n, False), stride=8192, reads=rdv(n)) for n in range(5)]
    vRdP = 16
    a(f'v_bfe_u32 v{vRdP}, v0, 3, 1\nv_or_b32 v{vRdP}, s{sT2}, v{vRdP}')
    a(f'v_bfe_u32 v{vt}, v0, 2, 1\nv_lshlrev_b32 v{vt}, 1, v{vt}\nv_xor_b32 v{vRdP}, v{vRdP}, v{vt}')
    a(f'v_bfe_u32 v{vt}, v0, 4, 1\nv_lshlrev_b32 v{vt}, 2, v{vt}\nv_xor_b32 v{vRdP}, v{vRdP}, v{vt}\nv_lshlrev_b32 v{vRdP}, 5, v{vRdP}')
    a(f'v_and_b32 v{vt}, 3, v0\nv_lshl_add_u32 v{vRdP}, v{vt}, 3, v{vRdP}')
    a(f'v_bfe_u32 v{vt}, v0, 2, 1\nv_lshl_add_u32 v{vRdP}, v{vt}, 8, v{vRdP}')
    a(f'v_lshrrev_b32 v{vt}, 4, v0\nv_lshl_add_u32 v{vRdP}, v{vt}, 10, v{vRdP}')
    def pre(a):
        srd(a, 12, pWO, WB)
        for var, vd in ((0, vA), (1, vB)):
            a(f'v_bfe_u32 v{vt}, v0, 4, 1\nv_lshlrev_b32 v{vt}, 1, v{vt}')
            if var: a(f'v_or_b32 v{vt}, 4, v{vt}')
            a(f'v_bfe_u32 v{vd}, v0, 1, 3\nv_xor_b32 v{vd}, v{vd}, v{vt}\nv_lshlrev_b32 v{vd}, 5, v{vd}')
            a(f'v_and_b32 v{vt}, 1, v0\nv_lshl_add_u32 v{vd}, v{vt}, 4, v{vd}')
            a(f'v_lshrrev_b32 v{vt}, 4, v0\nv_mul_u32_u24 v{vt}, 1280, v{vt}\nv_add_u32 v{vd}, v{vd}, v{vt}')
    so = lambda c: (lambda a: a(f's_lshl_b32 s{sT0}, s{sH}, 7\ns_lshl_b32 s{sT1}, s{sWave}, 4\ns_add_u32 s{sT0}, s{sT0}, s{sT1}\ns_mul_i32 s{sT0}, s{sT0}, 1280\ns_add_u32 s{sT0}, s{sT0}, {256 * c}'))
    def rd(c):
        def f(a, va):
            l = a.newlabel('wo')
            a(f's_cmp_ge_u32 s{sWave}, 4\ns_cbranch_scc0 {l}')
            for k in range(4):
                for hb in range(2):
                    for al in range(2):
                        a(f'ds_read_b64_tr_b16 {A(32 * c + 8 * k + 4 * hb + 2 * al, 2)}, v{va} offset:{(32 * k + 16 * hb + 2 * al) * 256}')
            a(f'{l}:')
        return f
    chunks += [dict(pre=pre if c == 0 else None, soff=so(c), stride=1280, reads=rd(c), var=lambda i: i & 1, vrd=vRdP) for c in range(5)]
    loader(a, chunks, vA, vB, vRd, vRd2, vt, vo)
    tstamp(a, cfg, 1, vt, vo)
    bases(a, cfg); idx_setup(a)
    vXr, vUg, vG16, vG4, vM16, vM4 = 10, 11, 13, 14, 15, 4
    vP = 64
    a(f's_mul_i32 s{sT0}, s{sWave}, 1280\nv_add_u32 v{vM16}, s{sT0}, v{vL16}\ns_add_u32 s{sT0}, s{sT0}, 1024\nv_lshlrev_b32 v{vM4}, 2, v0\nv_add_u32 v{vM4}, s{sT0}, v{vM4}')
    a(f's_lshr_b32 s{sT0}, s{sWave}, 2\ns_mul_i32 s{sT0}, s{sT0}, {16384 - 5120}\ns_add_u32 s{sT0}, s{sT0}, {VOFF}\nv_add_u32 v{vG16}, s{sT0}, v{vM16}\nv_add_u32 v{vG4}, s{sT0}, v{vM4}')
    def fetch():
        top = a.newlabel('vp'); done = a.newlabel('vd')
        D = cfg.vdepth
        sets = [vP, 88, 56][:D]
        ldv = lambda r: a(f'buffer_load_dwordx4 {V(r, 4)}, v{vG16}, {WS}, s{sCR} offen sc1\nbuffer_load_dword v{r + 4}, v{vG4}, {WS}, s{sCR} offen sc1')
        wrv = lambda r: a(f'ds_write_b128 v{vM16}, {V(r, 4)} offset:{MEMBUF}\nds_write_b32 v{vM4}, v{r + 4} offset:{MEMBUF}')
        for r in sets[:-1]:
            ldv(r); a(f's_nop {cfg.vgap}')
        a(f'{top}:')
        ldv(sets[-1])
        for i, r in enumerate(sets):
            a(f's_waitcnt vmcnt({2 * (D - 1)})')
            maxtree(a, vTmp, R4(r, 5))
            a(f'v_cmp_eq_u32 vcc, -1, v{vTmp}')
            ok = a.newlabel('vk')
            a(f's_cbranch_vccz {ok}')
            if i < D - 1:
                ldv(r)
                a.defer(lambda ok=ok, r=r: (a(f'{ok}:'), wrv(r), a(f's_branch {done}')))
            else:
                a(f's_sub_u32 s{sLim}, s{sLim}, 1\ns_cbranch_scc0 {top}\ns_mov_b32 s{sLim}, 0\n{ok}:')
                wrv(r)
        a(f'{done}:')
        a('s_waitcnt lgkmcnt(0)')
        fstamp(a, cfg, 1)
        a('s_barrier')
        fstamp(a, cfg, 2)
    tstamp(a, cfg, 2, vTmp, vTmp2)
    a(f's_cmp_ge_u32 s{sWave}, 4\ns_cbranch_scc1 L_VO_hi')
    a(f'v_and_b32 v{vXw}, 15, v0\nv_lshlrev_b32 v{vXw}, 4, v{vXw}')
    a(f'v_bfe_u32 v{vTmp}, v0, 4, 1\nv_lshl_add_u32 v{vXw}, v{vTmp}, 3, v{vXw}')
    a(f'v_lshrrev_b32 v{vTmp}, 5, v0\nv_lshl_add_u32 v{vXw}, v{vTmp}, 8, v{vXw}')
    a(f's_lshl_b32 s{sT0}, s{sWave}, 9\ns_add_u32 s{sT0}, s{sT0}, {XBUF}\nv_add_u32 v{vXw}, s{sT0}, v{vXw}')
    a('L_VO_lo:')
    for i in range(8): a(f'v_mov_b32 v{vAcc + i}, 0')
    fetch()
    for i in range(10): a(f'ds_read_b128 {V(vZ + 4 * i, 4)}, v{vL16} offset:{MEMBUF + i * 1024}')
    for i in range(10):
        a(f's_waitcnt lgkmcnt({9 - i})')
        a(f'v_smfmac_f32_16x16x64_bf16 {V(vAcc, 4)}, {V(vZ + 4 * i, 4)}, {A(i * 8, 8)}, v{vIdx}')
        a(f'v_smfmac_f32_16x16x64_bf16 {V(vAcc + 4, 4)}, {V(vZ + 4 * i, 4)}, {A(80 + i * 8, 8)}, v{vIdx}')
    b = vAcc
    for i in range(4): a(f'v_permlane32_swap_b32 v{b + i}, v{b + 4 + i}')
    for i in (0, 2): a(f'v_pk_add_f32 {V(b + i, 2)}, {V(b + i, 2)}, {V(b + 4 + i, 2)}')
    a(f'v_cvt_pk_bf16_f32 v{b}, v{b}, v{b + 1}\nv_cvt_pk_bf16_f32 v{b + 1}, v{b + 2}, v{b + 3}')
    a(f'ds_write_b64 v{vXw}, {V(vAcc, 2)}\ns_waitcnt lgkmcnt(0)\ns_barrier')
    fstamp(a, cfg, 6)
    a('s_barrier')
    facc(a, cfg)
    advance(a, cfg, 'L_VO_lo')
    tstamp(a, cfg, 3, vTmp, vTmp2)
    fdump(a, cfg, vTmp, vTmp2)
    a('s_branch L_end')
    a.flush()
    a('L_VO_hi:')
    a(f'v_and_b32 v{vXr}, 1, v0\nv_lshlrev_b32 v{vXr}, 3, v{vXr}\nv_bfe_u32 v{vTmp}, v0, 2, 2\nv_lshl_add_u32 v{vXr}, v{vTmp}, 4, v{vXr}')
    a(f'v_lshrrev_b32 v{vTmp}, 4, v0\nv_lshl_add_u32 v{vXr}, v{vTmp}, 7, v{vXr}')
    assert UM % (4 * MB) == 0
    a(f'v_and_b32 v{vUg}, 15, v0\nv_lshlrev_b32 v{vUg}, 4, v{vUg}\nv_bfe_u32 v{vTmp}, v0, 4, 1\nv_lshl_add_u32 v{vUg}, v{vTmp}, 17, v{vUg}')
    a(f'v_lshrrev_b32 v{vTmp}, 5, v0\nv_lshl_add_u32 v{vUg}, v{vTmp}, 14, v{vUg}')
    a(f's_and_b32 s{sT0}, s{sWave}, 3\ns_lshl_b32 s{sT0}, s{sT0}, 15\ns_lshl_b32 s{sT1}, s{sH}, 8\ns_add_u32 s{sT0}, s{sT0}, s{sT1}\nv_add_u32 v{vUg}, s{sT0}, v{vUg}')
    a(f's_mov_b32 s{sEx}, 0xffff\ns_mov_b32 s{sEx + 1}, 0xffff')
    vV = 72; vO = 48
    a(f's_lshr_b32 s{sT0}, s{sH}, 4\ns_lshl_b32 s{sT0}, s{sT0}, 14\ns_and_b32 s{sT1}, s{sH}, 15\ns_lshl_b32 s{sT1}, s{sT1}, 7\ns_add_u32 s{sT0}, s{sT0}, s{sT1}\ns_add_u32 s{sT0}, s{sT0}, s{sPar}\ns_add_u32 s{sT0}, s{sT0}, {2 * XS + SL}\nv_mov_b32 v12, s{sT0}')
    a('L_VO_hi_loop:')
    fetch()
    for i in range(20): a(f'v_mov_b32 v{vZ + i}, 0')
    if cfg.gv is not None:
        l = a.newlabel('gv')
        a(f's_cmp_lg_u32 s{sWave}, 4\ns_cbranch_scc1 {l}\nv_mov_b32 v{vTmp}, s{sStep}')
        for i in range(cfg.gv): a('s_nop 7')
        a(f's_mov_b64 exec, 1\nbuffer_store_dword v{vTmp}, v12, {WS}, 0 offen sc1\ns_mov_b64 exec, -1\n{l}:')
    um_seg(a, sSeg2, sStep)
    a(f's_add_u32 s{sT2}, s{sSeg2}, {16 * 16384}\ns_add_u32 s{sT3}, s{sSeg2}, {32 * 16384}')
    a('s_barrier')
    fstamp(a, cfg, 6)
    for k in range(4):
        for al in range(2): a(f'ds_read_b64_tr_b16 {V(vV + 4 * k + 2 * al, 2)}, v{vXr} offset:{XBUF + k * 512 + al * 64}')
    def sm(p, k): return f'v_smfmac_f32_16x16x64_bf16 {V(vZ + 4 * p, 4)}, {V(vV + 4 * k, 4)}, {A(32 * p + 8 * k, 8)}, v{vIdx}'
    def outl(ps, o, so):
        r = []
        for q, p in enumerate(ps):
            r += [f'v_cvt_pk_bf16_f32 v{o + 2 * q}, v{vZ + 4 * p}, v{vZ + 4 * p + 1}', f'v_cvt_pk_bf16_f32 v{o + 2 * q + 1}, v{vZ + 4 * p + 2}, v{vZ + 4 * p + 3}']
        r += [f'v_permlane16_swap_b32 v{o}, v{o + 2}', f'v_permlane16_swap_b32 v{o + 1}, v{o + 3}']
        st = f'buffer_store_dwordx4 {V(o, 4)}, v{vUg}, {WS}, s{so} offen sc1'
        if len(ps) == 1: st = f's_mov_b64 exec, s[{sEx}:{sEx + 1}]\n' + st + '\ns_mov_b64 exec, -1'
        return r + [st]
    for k in range(4):
        a(f's_waitcnt lgkmcnt({6 - 2 * k})'); a(sm(4, k))
    seq = [sm(p, k) for k in range(4) for p in (0, 1)] + [sm(p, k) for k in range(4) for p in (2, 3)]
    fill = {}
    for i, x in enumerate(outl((4,), vO + 8, sT3)): fill[3 + i] = x
    for i, x in enumerate(outl((0, 1), vO, sSeg2)): fill[min(11 + i, 15) if i < 5 else 100 + i] = x
    for i, x in enumerate(seq):
        a(x)
        if i in fill: a(fill[i])
    for i in sorted(k for k in fill if k >= 100): a(fill[i])
    for x in outl((2, 3), vO + 4, sT2): a(x)
    fstamp(a, cfg, 7)
    a('s_barrier')
    facc(a, cfg)
    advance(a, cfg, 'L_VO_hi_loop')
    fdump(a, cfg, vTmp, vTmp2)
    a('s_branch L_end')
    a.flush()

def role_S2(a, cfg):
    a('L_S2:')
    NST = cfg.nsteps - 1
    a(f's_cmp_ge_u32 s{sWave}, 4\ns_cbranch_scc1 L_S2_red')
    vP0, vPm, vUm, vUm2, vRw, vFa, vFl = 10, 11, 12, 13, 14, 15, 6
    PL0, PR0, Pm, Um = 16, 24, 32, 36
    A1, A2 = 52, 68
    quad_base(a, sT0, sWave)
    a(f'v_and_b32 v{vTmp}, 7, v0\nv_lshlrev_b32 v{vTmp}, 4, v{vTmp}\nv_add_u32 v{vTmp}, s{sT0}, v{vTmp}\nv_lshrrev_b32 v{vTmp2}, 4, v0')
    a(f'v_lshl_add_u32 v{vP0}, v{vTmp2}, 7, v{vTmp}\nv_mul_u32_u24 v{vTmp2}, 640, v{vTmp2}\nv_add_u32 v{vPm}, v{vTmp}, v{vTmp2}\nv_add_u32 v{vPm}, 512, v{vPm}')
    a(f'v_bfe_u32 v{vTmp2}, v0, 3, 1\nv_mul_u32_u24 v{vTmp2}, 640, v{vTmp2}\nv_add_u32 v{vP0}, v{vP0}, v{vTmp2}')
    a(f'v_and_b32 v{vTmp}, 8, v0\nv_lshlrev_b32 v{vTmp}, 10, v{vTmp}\nv_xor_b32 v{vTmp}, s{sPar}, v{vTmp}\nv_xor_b32 v{vTmp}, 0x2000, v{vTmp}\nv_add_u32 v{vPm}, v{vPm}, v{vTmp}')
    a(f'v_and_b32 v{vRw}, 15, v0\nv_lshlrev_b32 v{vRw}, 5, v{vRw}\nv_lshrrev_b32 v{vTmp}, 4, v0\nv_lshl_add_u32 v{vRw}, v{vTmp}, 3, v{vRw}')
    a(f's_lshl_b32 s{sT1}, s{sWave}, 11\ns_add_u32 s{sT1}, s{sT1}, {RED}\nv_add_u32 v{vRw}, s{sT1}, v{vRw}')
    a(f's_mul_i32 s{sT2}, s{sXr}, 10\ns_add_u32 s{sT2}, s{sT2}, s{sJ}')
    a(f's_lshl_b32 s{sT0}, s{sT2}, 15\ns_lshl_b32 s{sT1}, s{sWave}, 10\ns_add_u32 s{sT0}, s{sT0}, s{sT1}\ns_lshl_b32 s{sT1}, s{sXr}, 12\ns_add_u32 s{sT0}, s{sT0}, s{sT1}')
    a(f'v_add_u32 v{vUm}, s{sT0}, v{vL16}\nv_xor_b32 v{vUm2}, 0x1000, v{vUm}')
    a(f's_lshl_b32 s{sT3}, s{sXr}, 2\ns_add_u32 s{sT3}, s{sT3}, s{sWave}\ns_lshl_b32 s{sT3}, s{sT3}, 2\ns_lshl_b32 s{sT2}, s{sT2}, 1')
    sUb = sFl0
    ux_head(a, cfg, sUb, sT3); ux_tile(a, cfg, sUb, sT2)
    a(f's_mov_b32 s{sSeg}, s{sUb}')
    a(f'v_and_b32 v{vFa}, 3, v0\nv_bfe_u32 v{vTmp}, v0, 2, 1\nv_lshl_add_u32 v{vFa}, v{vTmp}, 4, v{vFa}\nv_lshlrev_b32 v{vFa}, 8, v{vFa}')
    a(f's_lshl_b32 s{sT0}, s{sWave}, 10\ns_add_u32 s{sT0}, s{sT0}, {F_UX}\nv_add_u32 v{vFa}, s{sT0}, v{vFa}')
    a(f'v_mov_b32 v{vFl}, 0\nv_mov_b32 v{vFl + 1}, 0')
    ldU = flag_ld(vFl, vFa, cfg.nc_vox)
    a('s_barrier')
    a(f's_mov_b32 s{sT4}, 0')
    flag_wait(a, vFl, ldU, cfg.nc_vox, 2)
    tstamp(a, cfg, 2, vTmp, vTmp2)
    E = cfg.uxe
    def uxl(lo, hi, base):
        if cfg.no_ux: return
        for n in range(lo, hi):
            t, hf, i = n >> 3, (n >> 2) & 1, n & 3
            if i == 0 or n == lo: a(f's_xor_b32 s{sT0}, s{sSeg}, {hf * (2 * MB + 0x2000 + cfg.rot * 0x8000) + t * (4 * MB + cfg.rot * 0x10000)}')
            a(f'buffer_load_dwordx4 {A(base + 4 * n, 4)}, v{vL16}, {WS}, s{sT0} offen offset:{1024 * i} sc1{cfg.ux_nt}')
    uxl(0, E, 64)
    a('L_S2_loop:')
    fstamp(a, cfg, 0)
    if not E:
        a(f's_mov_b32 s{sT4}, s{sStep}')
        flag_wait(a, vFl, ldU, cfg.nc_vox)
    uxl(E, cfg.uxn, 0)
    a(ldU)
    a(f's_add_u32 s{sSeg}, s{sStep}, 1\ns_lshl_b32 s{sSeg}, s{sSeg}, 15\ns_xor_b32 s{sSeg}, s{sSeg}, s{sUb}')
    if E:
        a(f's_waitcnt vmcnt({17 - E})')
        for i in range(4 * E): a(f'v_accvgpr_mov_b32 a{i}, a{64 + i}')
        a(f's_add_u32 s{sT4}, s{sStep}, 1\ns_waitcnt vmcnt(0)')
        flag_wait(a, vFl, ldU, cfg.nc_vox)
    if cfg.fine == -3:
        a('s_waitcnt vmcnt(0)')
        fstamp(a, cfg, 1)
    l = a.newlabel('pz'); top = a.newlabel('pz')
    a(f's_cmp_lg_u32 s{sStep}, {NPRE - 4}\ns_cbranch_scc1 {l}')
    a(f'v_and_b32 v{vTmp2}, 7, v0\nv_lshlrev_b32 v{vTmp2}, 8, v{vTmp2}\nv_add_u32 v{vTmp2}, {F_PZ}, v{vTmp2}\ns_mov_b32 s{sSpin}, s{sLim}')
    a(f'{top}:\nbuffer_load_dword v{vTmp}, v{vTmp2}, {WS}, 0 offen sc1\ns_waitcnt vmcnt(0)\nv_cmp_eq_u32 vcc, 0, v{vTmp}\ns_cbranch_vccz {l}')
    a(f's_sub_u32 s{sSpin}, s{sSpin}, 1\ns_cbranch_scc0 {top}\ns_mov_b32 s{sLim}, 0\n{l}:')
    um_seg(a, sSeg2, sStep)
    a(f's_andn2_b32 s{sT1}, s{sCL}, 0x2000\ns_add_u32 s{sT2}, s{sSeg2}, 16384')
    ldp = lambda b, so: [f'buffer_load_dwordx4 {V(b, 4)}, v{vP0}, {WS}, s{so} offen sc1', f'buffer_load_dwordx4 {V(b + 4, 4)}, v{vP0}, {WS}, s{so} offen offset:1280 sc1']
    g1 = ldp(PL0, sCL)
    g2 = ldp(PR0, sCR) + [f'buffer_load_dwordx4 {V(Pm, 4)}, v{vPm}, {WS}, s{sT1} offen sc1']
    g3 = [f'buffer_load_dwordx4 {V(Um + 8 * t + 4 * hf, 4)}, v{vUm2 if hf else vUm}, {WS}, s{sT2 if t else sSeg2} offen sc1' for t in range(2) for hf in range(2)]
    def s2(b, hf, d, c):
        for q in range(2):
            for t in range(2):
                for e in range(2):
                    r = d + 8 * t + 4 * e
                    cc = V(r, 4) if q else ('0' if c is None else V(c + 8 * t + 4 * e, 4))
                    a(f'v_mfma_f32_16x16x32_bf16 {V(r, 4)}, {A(32 * t + 16 * hf + 8 * q + 4 * e, 4)}, {V(b + 4 * q, 4)}, {cc}')
    def s3(d, c):
        for t in range(2):
            for e in range(2):
                a(f'v_mfma_f32_16x16x32_bf16 {V(d + 8 * t + 4 * e, 4)}, {V(Um + 8 * t + 4 * e, 4)}, {V(Pm, 4)}, {V(c + 8 * t + 4 * e, 4)}')
    def dump(d):
        for t in range(2):
            for i in range(4): a(f'v_add_f32_dpp v{d + 8 * t + i}, v{d + 8 * t + 4 + i}, v{d + 8 * t + i} row_shl:8 row_mask:0xf bank_mask:0xf')
            a(f'ds_write2st64_b64 v{vRw}, {V(d + 8 * t, 2)}, {V(d + 8 * t + 2, 2)} offset0:{2 * t} offset1:{2 * t + 1}')
    a('s_setprio 3\ns_barrier')
    fstamp(a, cfg, 3)
    if cfg.sorder == 0:
        for l in g1: a(l)
        a('s_setprio 2')
        for l in g2: a(l)
        a('s_setprio 1')
        nops(a, cfg.g3del)
        for l in g3: a(l)
        a('s_setprio 0')
        if cfg.uxpos == 0: uxl(0, E, 64)
        check(a, g1, R4(PL0, 8), vTmp, 7 + (E if cfg.uxpos == 0 else 0), cnt=98, spec=lambda: s2(PL0, 0, A1, None))
        if cfg.fine == -3: fstamp(a, cfg, 2)
        if cfg.uxpos == 1: uxl(0, E, 64)
        check(a, g2, R4(PR0, 8) + R4(Pm), vTmp, 4 + (E if cfg.uxpos <= 1 else 0), cnt=99, spec=lambda: s2(PR0, 1, A2, A1))
        fstamp(a, cfg, 4)
        if cfg.uxpos == 2: uxl(0, E, 64)
        check(a, g3, R4(Um, 16), vTmp, E, cnt=100, spec=lambda: s3(A1, A2), specwait=True, post=lambda: dump(A1))
    elif cfg.sorder == 2:
        for l in g1: a(l)
        for l in g3: a(l)
        a('s_setprio 2'); a(g2[2])
        a('s_setprio 1'); a(g2[0])
        a('s_setprio 0'); a(g2[1])
        check(a, g1, R4(PL0, 8), vTmp, 7, cnt=98, spec=lambda: s2(PL0, 0, A1, None))
        if cfg.fine == -3: fstamp(a, cfg, 2)
        check(a, g3 + g2[2:], R4(Um, 16) + R4(Pm), vTmp, 2, cnt=100, spec=lambda: s3(A2, A1))
        fstamp(a, cfg, 4)
        def half_s2(q, d, c):
            for t in range(2):
                for e in range(2):
                    a(f'v_mfma_f32_16x16x32_bf16 {V(d + 8 * t + 4 * e, 4)}, {A(32 * t + 16 + 8 * q + 4 * e, 4)}, {V(PR0 + 4 * q, 4)}, {V(c + 8 * t + 4 * e, 4)}')
        check(a, g2[:1], R4(PR0), vTmp, 1, cnt=99, spec=lambda: half_s2(0, A1, A2))
        check(a, g2[1:2], R4(PR0 + 4), vTmp, 0, cnt=99, spec=lambda: half_s2(1, A2, A1), specwait=True, post=lambda: dump(A2))
    else:
        for l in g3: a(l)
        a('s_setprio 2')
        for l in g1: a(l)
        a('s_setprio 0')
        for l in g2: a(l)
        check(a, g3 + g1, R4(Um, 16) + R4(PL0, 8), vTmp, 3, spec=lambda: s2(PL0, 0, A1, None))
        fstamp(a, cfg, 4)
        check(a, g2, R4(PR0, 8) + R4(Pm), vTmp, 0, spec=lambda: (s2(PR0, 1, A2, A1), s3(A2, A2)), specwait=True, post=lambda: dump(A2))
    if cfg.fine == -3: fstamp(a, cfg, 5)
    a('s_waitcnt lgkmcnt(0)\ns_barrier')
    fstamp(a, cfg, 6)
    a('s_barrier')
    facc(a, cfg)
    advance(a, cfg, None)
    a(f's_cmp_lt_u32 s{sStep}, {NST}\ns_cbranch_scc1 L_S2_loop')
    tstamp(a, cfg, 3, vTmp, vTmp2)
    fdump(a, cfg, vTmp, vTmp2)
    a('s_branch L_end')
    a.flush()
    a('L_S2_red:')
    vRr, vMs, vC1, vCs, vCv, aa = 10, 11, 12, 13, 14, 16
    sO = sNL
    a(f's_setprio 3\ns_cmp_lg_u32 s{sWave}, 4\ns_cbranch_scc1 L_S2_r567')
    a(f'v_and_b32 v{vC1}, 15, v0\nv_lshlrev_b32 v{vC1}, 2, v{vC1}\nv_add_u32 v{vC1}, {FL1}, v{vC1}')
    a(f's_add_u32 s{sT2}, s{sPar}, {2 * XS}\ns_sub_u32 s{sT2}, s{sT2}, s{sbL}\nv_and_b32 v{vTmp}, 15, v0\nv_lshlrev_b32 v{vTmp}, 7, v{vTmp}\nv_add_u32 v{vTmp}, s{sT2}, v{vTmp}')
    if cfg.gq is not None:
        a(f's_xor_b32 s{sT0}, s{sXr}, 1\ns_lshl_b32 s{sT0}, s{sT0}, 14\ns_mov_b32 exec_lo, 0xffff0000\ns_mov_b32 exec_hi, 0\nv_add_u32 v{vC1}, s{sT0}, v{vTmp}\ns_mov_b64 exec, -1')
    if cfg.gv is not None:
        a(f'v_bfe_u32 v{vTmp2}, v0, 4, 1\nv_lshl_add_u32 v{vTmp}, v{vTmp2}, 14, v{vTmp}\ns_mov_b32 exec_lo, 0\nv_add_u32 v{vC1}, {SL}, v{vTmp}\ns_mov_b64 exec, -1')
    a(f's_lshl_b32 s{sT0}, s{sJ}, 2\ns_add_u32 s{sT0}, s{sT0}, {FL2}\nv_mov_b32 v{vCs}, s{sT0}\nv_mov_b32 v{vCv}, 0')
    def w4(fl, lab):
        a('s_barrier')
        a(f'{lab}:')
        a(f'v_add_u32 v{vCv}, 1, v{vCv}')
        cue_wait(a, cfg, vC1, [28 + i for i in range(cfg.cdepth)], sStep)
        nops(a, cfg.cdel1)
        a('s_barrier\ns_barrier')
        if cfg.cpos2 == 0:
            nops(a, cfg.cdel2)
            cue1l(a, vCv, vCs, fl)
        a('s_barrier')
        a(f's_add_u32 s{sStep}, s{sStep}, 1\ns_cmp_lt_u32 s{sStep}, {NST}\ns_cbranch_scc1 {lab}')
        a('s_branch L_end')
    both(a, 'L_S2_w4', w4)
    a('L_S2_r567:')
    a(f'v_lshrrev_b32 v{vRr}, 4, v0\nv_lshlrev_b32 v{vRr}, 9, v{vRr}\nv_and_b32 v{vTmp}, 15, v0\nv_lshl_add_u32 v{vRr}, v{vTmp}, 4, v{vRr}')
    a(f's_lshl_b32 s{sT0}, s{sJ}, 9\nv_lshlrev_b32 v{vMs}, 3, v0\nv_add_u32 v{vMs}, s{sT0}, v{vMs}')
    a(f's_lshl_b32 s{sO}, s{sXr}, 14\ns_add_u32 s{sO}, s{sO}, s{sPar}\ns_add_u32 s{sO}, s{sO}, {2 * XS + VOFF}')
    a(f's_cmp_eq_u32 s{sWave}, 6\ns_cselect_b32 s{sO}, s{sCO}, s{sO}\ns_cmp_eq_u32 s{sWave}, 5\ns_cselect_b32 s{sO}, s{sCL}, s{sO}')
    srd(a, 12, pMEM0, 10240)
    a(f'v_bfe_u32 v{vTmp}, v0, 1, 3\nv_mul_u32_u24 v{vTmp}, 1280, v{vTmp}\nv_and_b32 v{vTmp2}, 1, v0\nv_lshl_add_u32 v{vTmp}, v{vTmp2}, 4, v{vTmp}\nv_bfe_u32 v{vTmp2}, v0, 4, 1\nv_lshl_add_u32 v{vTmp}, v{vTmp2}, 2, v{vTmp}')
    a(f'v_and_b32 v{vTmp2}, 32, v0\nv_add_u32 v{vTmp}, v{vTmp}, v{vTmp2}')
    a(f's_mul_i32 s{sT0}, s{sXr}, 10\ns_add_u32 s{sT0}, s{sT0}, s{sJ}\ns_lshl_b32 s{sT0}, s{sT0}, 6')
    a(f'buffer_load_dword v{aa}, v{vTmp}, {T1}, s{sT0} offen\nbuffer_load_dword v{aa + 1}, v{vTmp}, {T1}, s{sT0} offen offset:8\ns_waitcnt vmcnt(0)\nv_min_u32 v{aa}, -2, v{aa}\nv_min_u32 v{aa + 1}, -2, v{aa + 1}')
    def reducer(fl, lab, cuer):
        cue = lambda pos: cue1l(a, vCv, vCs, fl) if (cuer and cfg.cpos2 == pos) else None
        a(f'buffer_store_dwordx2 {V(aa, 2)}, v{vMs}, {WS}, s{sO} offen{fl}')
        if cuer: cue1l(a, vCv, vCs, fl)
        a('s_barrier')
        a(f'{lab}:')
        a(f's_add_u32 s{sO}, s{sO}, {SL}')
        if cuer: a(f'v_add_u32 v{vCv}, 1, v{vCv}')
        a('s_barrier\ns_barrier')
        for w in range(4): a(f'ds_read_b128 {V(aa + 4 * w, 4)}, v{vRr} offset:{RED + 2048 * w}')
        cue(1)
        pk = lambda d, s_: a(f'v_pk_add_f32 {V(d, 2)}, {V(d, 2)}, {V(s_, 2)}\nv_pk_add_f32 {V(d + 2, 2)}, {V(d + 2, 2)}, {V(s_ + 2, 2)}')
        a('s_waitcnt lgkmcnt(2)'); pk(aa, aa + 4)
        a('s_waitcnt lgkmcnt(0)'); pk(aa + 8, aa + 12); pk(aa, aa + 8)
        a(f'v_cvt_pk_bf16_f32 v{aa}, v{aa}, v{aa + 1}\nv_cvt_pk_bf16_f32 v{aa + 1}, v{aa + 2}, v{aa + 3}')
        fstamp(a, cfg, 7)
        cue(2)
        if not cuer and cfg.rdel: a(f's_nop {cfg.rdel - 1}')
        a(f'buffer_store_dwordx2 {V(aa, 2)}, v{vMs}, {WS}, s{sO} offen{fl}')
        cue(3)
        if cfg.uxack: a('s_waitcnt vmcnt(0)')
        nops(a, cfg.uxdel)
        a('s_barrier')
        facc(a, cfg)
        a(f's_add_u32 s{sStep}, s{sStep}, 1\ns_cmp_lt_u32 s{sStep}, {NST}\ns_cbranch_scc1 {lab}')
        fdump(a, cfg, vTmp, vTmp2)
        a('s_branch L_end')
    a(f's_cmp_ge_u32 s{sWave}, 6\ns_cbranch_scc1 L_S2_rem')
    a(f's_lshl_b32 s{sT0}, s{sJ}, 2\ns_add_u32 s{sT0}, s{sT0}, {FL2}\nv_mov_b32 v{vCs}, s{sT0}\nv_mov_b32 v{vCv}, 0')
    both(a, 'L_S2_w5', lambda fl, lab: reducer(fl, lab, True))
    a('L_S2_rem:')
    reducer(' sc1', 'L_S2_w67', False)
```

```python
import sys, struct
sys.path.insert(0, 'gen')
from asmlib import *
from layout import *

KNAME = 'gated_mix__memory_aug_recurrent_mem_tr__glu_gated_bilinear__prompt_kernel'

def f2u(x): return struct.unpack('<I', struct.pack('<f', x))[0]

WS = 's[4:7]'; DBG = 's[8:11]'; T1 = 's[12:15]'; T2 = 's[48:51]'
pX, pMEM0, pWQ, pWK, pWV, pWO, pWG, pWU, pWD, pGW, pOUT, pDBG, pWS = 16, 18, 20, 22, 24, 26, 32, 34, 36, 38, 40, 42, 44
sWave, sX, sR, sH, sXr, sJ, sHas2, sLim, sStep, sImp = 52, 53, 54, 55, 56, 57, 58, 59, 60, 61
sT0, sT1, sT2, sT3, sT4, sT5 = 62, 63, 64, 65, 66, 67
sbL, sbR, sbO = 68, 69, 70
sCL, sCR, sCO, sPL, sPO, sNL, sNO = 71, 72, 73, 74, 75, 76, 77
sSeg = 78
sSeg2 = 79
sEx = 80
sEx2 = 82
sTm = 84
sC = 88
sSpin = 89
sFl0, sFl1 = 90, 91
sPar = 46
sClm = 30

class Cfg:
    rx0 = 0; rx1 = 2; rx2 = 1; r2 = True
    qcue = True; scue = True; vo_sleep = 0; pf_ahead = 2; no_pf = True; pf64 = False
    ax = None; fx = None
    nc_qkx = 2; nc_vox = 1; nc_ff1 = 2; la = 1; early_pub = 6; km_sleep = 2
    roles = ('R', 'QKX', 'VOX', 'FF1', 'FIN')
    fake_xcc = None
    timing = False
    force_impure = False
    force_par = None
    rdelay1 = 0
    rdelay2 = 0
    nsteps = 64
    fine = 0
    late_gate = True
    late_pz = True
    fuse = True
    wopf = True
    rot = 1
    uxn = 16
    uxmode = 'mix'
    voxx = False
    uxpos = 1
    pfn = 0
    rmode = 'hi'
    ldma = False
    uxack = False
    uxe = 0
    uxe2 = 0
    uxdel = 0
    cdel1 = 0
    g3del = 0
    gq = None
    gv = None
    vdepth = 1
    vgap = 15
    rdel = 0
    cdepth2 = 4
    npre0 = 0
    vfirst = True
    hidel = 8
    npre = 2
    r3 = True
    presleep = 64
    claim_at = 0
    keep_flags = False
    defer_ff = True
    dbgtime = None
    vox_prio = True
    ux_st = ''
    vcue = False
    cpos3 = 2
    cwave3 = 0
    cdel3 = 0
    sorder = 0
    bg_late = True
    pubord = 'LOV'
    cdel2 = 16
    h2cue2 = True
    vocue2 = True
    h2cue = False
    prio1 = True
    cdepth = 4
    cgap = 12
    cpos1 = 8
    cpos2 = 0
    w0ack = False
    rdelay1q = 3
    order = 0
    n0qk = 6
    b3b = False
    st3 = True
    um_early = 0
    n0vo = 6
    late_vo = False
    only = None
    n1qk = 8
    n1vo = 8
    trig1 = 0
    late_r = False
    no_ux = False
    ux_nt = ''

COUNT_RETRY = [False]
CLAIM_AT = [0]

def srd(a, q, p, nbytes):
    a(f's_mov_b32 s{q}, s{p}\ns_and_b32 s{q+1}, s{p+1}, 0xffff\ns_mov_b32 s{q+2}, {nbytes}\ns_mov_b32 s{q+3}, 0x00020000')

def ux_head(a, cfg, sd, sh):
    a(f's_lshr_b32 s{sT0}, s{sh}, 4\ns_mul_i32 s{sd}, s{sT0}, {2 * MB + 0x2000 + cfg.rot * 0x8000}')
    if cfg.uxmode != 'mix': a(f's_xor_b32 s{sd}, s{sd}, s{sPar}')
    if cfg.uxmode == 'far': a(f's_xor_b32 s{sd}, s{sd}, 0x2000')
    a(f's_bfe_u32 s{sT0}, s{sh}, 0x10003\ns_mul_i32 s{sT0}, s{sT0}, {0x6000 if cfg.uxmode == "mix" else 0x4000}\ns_xor_b32 s{sd}, s{sd}, s{sT0}')
    a(f's_and_b32 s{sT0}, s{sh}, 7\ns_lshl_b32 s{sT0}, s{sT0}, 10\ns_add_u32 s{sd}, s{sd}, s{sT0}')

def ux_tile(a, cfg, sd, sj):
    if cfg.rot: a(f's_and_b32 s{sT0}, s{sj}, 31\ns_lshl_b32 s{sT0}, s{sT0}, 16\ns_add_u32 s{sd}, s{sd}, s{sT0}')
    a(f's_lshl_b32 s{sT0}, s{sj}, 22\ns_add_u32 s{sd}, s{sd}, s{sT0}\ns_add_u32 s{sd}, s{sd}, {UX}')

def um_seg(a, sd, sseg):
    a(f's_mul_i32 s{sT0}, s{sseg}, 43\ns_lshr_b32 s{sT0}, s{sT0}, 7\ns_and_b32 s{sd}, s{sT0}, 1\ns_lshl_b32 s{sd}, s{sd}, 13\ns_xor_b32 s{sd}, s{sd}, s{sPar}')
    a(f's_lshl_b32 s{sT0}, s{sT0}, 17\ns_add_u32 s{sd}, s{sd}, s{sT0}\ns_mul_i32 s{sT0}, s{sseg}, {40 * 16384}\ns_add_u32 s{sd}, s{sd}, s{sT0}\ns_add_u32 s{sd}, s{sd}, {UM}')

def maxtree(a, dst, regs):
    regs = list(regs)
    if len(regs) % 2 == 0:
        a(f'v_max_u32 v{dst}, v{regs[0]}, v{regs[1]}'); rest = regs[2:]
    else:
        a(f'v_max3_u32 v{dst}, v{regs[0]}, v{regs[1]}, v{regs[2]}'); rest = regs[3:]
    for i in range(0, len(rest), 2):
        a(f'v_max3_u32 v{dst}, v{dst}, v{rest[i]}, v{rest[i+1]}')

def poll(a, loads, regs, tmp, first_issued=False, spec=None, specwait=False, first_wait=0, sleep=0):
    top = a.newlabel('poll'); chk = a.newlabel('chk'); done = a.newlabel('pdone')
    a(f's_mov_b32 s{sSpin}, s{sLim}')
    if first_issued:
        a(f's_waitcnt vmcnt({first_wait})')
        a(f's_branch {chk}')
    a(f'{top}:')
    if specwait: a('s_waitcnt lgkmcnt(0)')
    for l in loads: a(l)
    a('s_waitcnt vmcnt(0)')
    a(f'{chk}:')
    if spec: spec()
    maxtree(a, tmp, regs)
    a(f'v_cmp_eq_u32 vcc, -1, v{tmp}')
    a(f's_cbranch_vccz {done}')
    if COUNT_RETRY[0] and first_issued: a('s_add_u32 s101, s101, 1')
    if sleep: a(f's_sleep {sleep}')
    a(f's_sub_u32 s{sSpin}, s{sSpin}, 1')
    a(f's_cbranch_scc0 {top}')
    a(f's_mov_b32 s{sLim}, 0')
    a(f'{done}:')

def check(a, loads, regs, tmp, wait, spec=None, specwait=False, post=None, cnt=None):
    back = a.newlabel('ck'); retry = a.newlabel('rt'); done = a.newlabel('ckd')
    a(f's_waitcnt vmcnt({wait})')
    a(f'{back}:')
    if spec: spec()
    maxtree(a, tmp, regs)
    a(f'v_cmp_eq_u32 vcc, -1, v{tmp}')
    if post: post()
    a(f's_cbranch_vccnz {retry}')
    a(f'{done}:')
    def ool():
        a(f'{retry}:')
        if COUNT_RETRY[0]: a('s_add_u32 s101, s101, 1')
        if COUNT_RETRY[0] == 2 and cnt: a(f's_add_u32 s{cnt}, s{cnt}, 1')
        a(f's_sub_u32 s{sLim}, s{sLim}, 1')
        l = a.newlabel('rg')
        a(f's_cbranch_scc0 {l}\ns_mov_b32 s{sLim}, 0\ns_branch {done}\n{l}:')
        if specwait: a('s_waitcnt lgkmcnt(0)')
        a('s_nop 7')
        for x in loads: a(x)
        a(f's_waitcnt vmcnt(0)\ns_branch {back}')
    a.defer(ool)

def lstore(a, insts):
    l1 = a.newlabel('ls'); l2 = a.newlabel('le')
    a(f's_cmp_lg_u32 s{sImp}, 0')
    a(f's_cbranch_scc1 {l1}')
    for i in insts: a(i)
    a(f's_branch {l2}')
    a(f'{l1}:')
    for i in insts: a(i + (' sc1' if i.startswith('buffer_') else ''))
    a(f'{l2}:')

LSTAT = 163840 - 8
vClaim = 20

def claim_issue(a, vt):
    l = a.newlabel('ci')
    a(f's_or_b32 s{sT0}, s{sWave}, s{sClm}\ns_cbranch_scc1 {l}')
    a(f's_lshl_b32 s{sT0}, 1, s{sR}\ns_lshl_b32 s{sT1}, s{sX}, 5\nv_mov_b32 v{vClaim}, s{sT0}\nv_mov_b32 v{vt}, s{sT1}')
    a(f's_mov_b64 exec, 1\nbuffer_atomic_or v{vClaim}, v{vt}, {DBG}, 0 offen sc0\ns_mov_b64 exec, -1')
    a(f'{l}:')

def wait_init(a, vt, vo, presleep=0, only_check=False):
    top = a.newlabel('wi'); done = a.newlabel('wid'); ok = a.newlabel('wok')
    a(f'v_min_u32 v{vo}, 7, v0\nv_lshlrev_b32 v{vo}, 5, v{vo}')
    a(f's_cmp_lg_u32 s{sWave}, 0\ns_cbranch_scc1 {done}')
    a(f's_mov_b32 s{sT2}, 0\ns_cmp_lg_u32 s{sClm}, 0\ns_cbranch_scc1 {ok}')
    a(f's_waitcnt vmcnt(0)\nv_readfirstlane_b32 s{sT0}, v{vClaim}\ns_lshr_b32 s{sT0}, s{sT0}, s{sR}\ns_and_b32 s{sT2}, s{sT0}, 1')
    a(f'{ok}:')
    a(f'v_mov_b32 v{vt}, {LSTAT}\nv_mov_b32 v{vClaim}, s{sT2}\nds_write_b32 v{vt}, v{vClaim}\ns_waitcnt lgkmcnt(0)')
    if not only_check:
        a(f's_cmp_lg_u32 s{sT2}, 0\ns_cbranch_scc1 {done}')
        a(f's_mov_b32 s{sSpin}, s{sLim}')
        a(f'{top}:')
        if presleep: a(f's_sleep {presleep}')
        a(f'buffer_load_dword v{vt}, v{vo}, {DBG}, 0 offen sc1')
        a('s_waitcnt vmcnt(0)')
        a(f'v_cmp_ne_u32 vcc, -1, v{vt}')
        a(f's_cbranch_vccz {done}')
        if not presleep: a('s_sleep 8')
        a(f's_sub_u32 s{sSpin}, s{sSpin}, 8')
        a(f's_cbranch_scc0 {top}')
        a(f's_mov_b32 s{sLim}, 0')
    a(f'{done}:')
    a('s_barrier')
    if not only_check: a(f'buffer_load_dword v{vt}, v{vo}, {DBG}, 0 offen offset:4 sc1')
    a(f'v_mov_b32 v{vo}, {LSTAT}\nds_read_b32 v{vo}, v{vo}\ns_waitcnt vmcnt(0) lgkmcnt(0)\nv_readfirstlane_b32 s{sT0}, v{vo}\ns_cmp_lg_u32 s{sT0}, 0\ns_cbranch_scc1 L_reclaim')
    if not only_check: a(f'v_readlane_b32 s{sT0}, v{vt}, 1\nv_readlane_b32 s{sT1}, v{vt}, 2\nv_readlane_b32 s{sImp}, v{vt}, 3')

def loader(a, chunks, vA, vB, vRd, vRd2, vt, vo, nslots=3, claim=True, early=None, nearly=0):
    n = len(chunks)
    LSLOT = 163840 - nslots * 32768
    def issue(i):
        c = chunks[i]
        if c.get('pre'): c['pre'](a)
        c['soff'](a)
        a(f's_lshl_b32 s{sT1}, s{sWave}, 12')
        a(f's_add_u32 s{sT1}, s{sT1}, {LSLOT + (i % nslots) * 32768}')
        for ii in range(4):
            a(f's_mov_b32 m0, s{sT1}')
            a(f'buffer_load_dwordx4 v{vB if c.get("var", lambda i: i >> 1)(ii) else vA}, {T1}, s{sT0} offen lds')
            if ii < 3:
                a(f's_add_u32 s{sT0}, s{sT0}, {4 * c["stride"]}\ns_add_u32 s{sT1}, s{sT1}, 1024')
    vIa, vIb, vIo = 21, 22, 23
    lst = LSLOT + ((n - 2) % nslots) * 32768
    issue(0)
    if claim:
        a('s_waitcnt vmcnt(4)\ns_barrier')
        claim_issue(a, vt)
        a(f'v_min_u32 v{vIo}, 7, v0\nv_lshlrev_b32 v{vIo}, 5, v{vIo}')
    if early: early()
    for i in range(1, min(nslots, n)): issue(i)
    for i in range(n):
        w = 4 * (min(i + nslots - 1, n - 1) - i)
        x = chunks[i - 1].get('hi_stores', 0) if i else 0
        if x:
            l = a.newlabel('lw')
            a(f's_waitcnt vmcnt({w + x})\ns_cmp_ge_u32 s{sWave}, 4\ns_cbranch_scc1 {l}\ns_waitcnt vmcnt({w})\n{l}:')
        else:
            a(f's_waitcnt vmcnt({w})')
        a('s_barrier')
        if claim and i == n - 2 - nslots: a(f'buffer_load_dword v{vIa}, v{vIo}, {DBG}, 0 offen sc1')
        if claim and i == n - 2: a(f'buffer_load_dword v{vIb}, v{vIo}, {DBG}, 0 offen offset:4 sc1')
        if claim and i == n - 1:
            l = a.newlabel('lc')
            a(f's_cmp_lg_u32 s{sWave}, 0\ns_cbranch_scc1 {l}')
            a(f'v_readfirstlane_b32 s{sT0}, v{vClaim}\ns_lshr_b32 s{sT0}, s{sT0}, s{sR}\ns_andn2_b32 s{sT0}, s{sT0}, s{sClm}\ns_and_b32 s{sT0}, s{sT0}, 1')
            a(f'v_cmp_ne_u32 vcc, -1, v{vIa}\ns_cmp_lg_u64 vcc, 0\ns_cselect_b32 s{sT0}, 1, s{sT0}\nv_mov_b32 v{vIa}, s{sT0}\nv_mov_b32 v{vIo}, {lst}\nds_write_b32 v{vIo}, v{vIa}')
            a(f'{l}:')
        a(f'v_add_u32 v{vRd2}, {LSLOT + (i % nslots) * 32768}, v{chunks[i].get("vrd", vRd)}')
        chunks[i]['reads'](a, vRd2)
        a('s_waitcnt lgkmcnt(0)')
        if i + nslots < n:
            a('s_barrier')
            issue(i + nslots)
        if chunks[i].get('post'):
            chunks[i]['post'](a)
            a('s_waitcnt lgkmcnt(0)')
    a('s_barrier')
    if claim:
        fast = a.newlabel('lf')
        a(f'v_mov_b32 v{vIo}, {lst}\nds_read_b32 v{vIo}, v{vIo}\nv_readlane_b32 s{sT0}, v{vIb}, 1\nv_readlane_b32 s{sT1}, v{vIb}, 2\nv_readlane_b32 s{sImp}, v{vIb}, 3')
        a(f's_waitcnt lgkmcnt(0)\nv_cmp_eq_u32 vcc, 0, v{vIo}\ns_cbranch_vccnz {fast}')
        wait_init(a, vt, vo)
        a(f'{fast}:')

def src_offsets(a, vA, vB, vt, stride, colmap=None):
    for var, vd in ((0, vA), (1, vB)):
        a(f'v_lshrrev_b32 v{vt}, 4, v0')
        if var: a(f'v_or_b32 v{vt}, 4, v{vt}')
        a(f'v_bfe_u32 v{vd}, v0, 1, 3')
        a(f'v_xor_b32 v{vd}, v{vd}, v{vt}')
        if colmap is None:
            a(f'v_lshlrev_b32 v{vd}, 5, v{vd}')
        else:
            colmap(a, vd, vt)
        a(f'v_and_b32 v{vt}, 1, v0\nv_lshl_add_u32 v{vd}, v{vt}, 4, v{vd}')
        a(f'v_lshrrev_b32 v{vt}, 4, v0\nv_mul_u32_u24 v{vt}, {stride}, v{vt}\nv_add_u32 v{vd}, v{vd}, v{vt}')

def tr_base(a, vd, vt, unit_sreg):
    a(f'v_bfe_u32 v{vd}, v0, 2, 3')
    a(f'v_xor_b32 v{vd}, s{unit_sreg}, v{vd}')
    a(f'v_lshlrev_b32 v{vd}, 5, v{vd}')
    a(f'v_and_b32 v{vt}, 3, v0\nv_lshl_add_u32 v{vd}, v{vt}, 3, v{vd}')
    a(f'v_bfe_u32 v{vt}, v0, 2, 2\nv_lshl_add_u32 v{vd}, v{vt}, 8, v{vd}')
    a(f'v_lshrrev_b32 v{vt}, 4, v0\nv_lshl_add_u32 v{vd}, v{vt}, 11, v{vd}')

def std_reads(base):
    def f(a, va):
        for kk in range(4):
            for h in range(2):
                a(f'ds_read_b64_tr_b16 {A(base + kk * 4 + h * 2, 2)}, v{va} offset:{kk * 8192 + h * 1024}')
    return f

def tstamp(a, cfg, slot, vt, vo):
    if cfg.dbgtime:
        for (x, r, sl), word in cfg.dbgtime.items():
            if sl != slot: continue
            l = a.newlabel('dt')
            a(f's_cmp_lg_u32 s{sX}, {x}\ns_cbranch_scc1 {l}\ns_cmp_lg_u32 s{sR}, {r}\ns_cbranch_scc1 {l}\ns_cmp_lg_u32 s{sWave}, 0\ns_cbranch_scc1 {l}')
            a(f's_memrealtime s[{sTm}:{sTm+1}]\ns_waitcnt lgkmcnt(0)\ns_sub_u32 s{sTm}, s{sTm}, s3\nv_mov_b32 v{vt}, s{sTm}\nv_mov_b32 v{vo}, {4 * word}')
            a(f's_mov_b64 exec, 1\nbuffer_store_dword v{vt}, v{vo}, {DBG}, 0 offen sc1\ns_mov_b64 exec, -1\n{l}:')
        return
    if not cfg.timing: return
    a(f's_memrealtime s[{sTm}:{sTm+1}]\ns_waitcnt lgkmcnt(0)')
    a(f's_lshl_b32 s{sTm+2}, s{sX}, 5\ns_add_u32 s{sTm+2}, s{sTm+2}, s{sR}\ns_lshl_b32 s{sTm+2}, s{sTm+2}, 3\ns_add_u32 s{sTm+2}, s{sTm+2}, s{sWave}\ns_lshl_b32 s{sTm+2}, s{sTm+2}, 4')
    a(f's_add_u32 s{sTm+2}, s{sTm+2}, {TIM + slot * 4}')
    a(f'v_mov_b32 v{vt}, s{sTm}\nv_mov_b32 v{vo}, s{sTm+2}')
    a(f's_mov_b64 exec, 1\nbuffer_store_dword v{vt}, v{vo}, {WS}, 0 offen\ns_mov_b64 exec, -1')

def fstamp(a, cfg, k):
    if not cfg.fine: return
    if cfg.fine == -3:
        a(f's_memrealtime s[{12 + 2 * k}:{13 + 2 * k}]')
        return
    if cfg.fine == -2:
        if cfg.only is not None and k not in cfg.only: return
        a(f's_memrealtime s[{sTm}:{sTm+1}]\ns_waitcnt lgkmcnt(0)\ns_cmp_lt_u32 s{sStep}, 60\ns_cselect_b32 s{sTm}, s{sTm}, 0')
        a(f's_add_u32 s{sTm+1}, s{sTm}, s{92+k}\ns_cmp_ge_u32 s{sStep}, 4\ns_cselect_b32 s{92+k}, s{sTm+1}, 0')
        return
    if cfg.fine < 0:
        if cfg.only is not None and k not in cfg.only: return
        a(f's_memtime s[{sTm}:{sTm+1}]\ns_waitcnt lgkmcnt(0)\ns_sub_u32 s{sTm+1}, s{sTm}, s47\ns_mov_b32 s47, s{sTm}')
        a(f's_add_u32 s{sTm+1}, s{sTm+1}, s{92+k}\ns_cmp_ge_u32 s{sStep}, 4\ns_cselect_b32 s{92+k}, s{sTm+1}, 0')
        return
    if cfg.only is not None and k not in cfg.only: return
    a(f's_memtime s[{sTm}:{sTm+1}]\ns_waitcnt lgkmcnt(0)\ns_cmp_eq_u32 s{sStep}, {cfg.fine}\ns_cselect_b32 s{92+k}, s{sTm}, s{92+k}')
def facc(a, cfg):
    if cfg.fine != -3: return
    a('s_waitcnt lgkmcnt(0)')
    for k in range(9):
        a(f's_cmp_lt_u32 s{sStep}, 60\ns_cselect_b32 s{sTm}, s{12 + 2 * k}, 0\ns_add_u32 s{sTm}, s{sTm}, s{92 + k}\ns_cmp_ge_u32 s{sStep}, 4\ns_cselect_b32 s{92 + k}, s{sTm}, 0')

def fdump(a, cfg, vt, vo):
    if not cfg.fine: return
    a(f's_lshl_b32 s{sTm+2}, s{sX}, 5\ns_add_u32 s{sTm+2}, s{sTm+2}, s{sR}\ns_lshl_b32 s{sTm+2}, s{sTm+2}, 3\ns_add_u32 s{sTm+2}, s{sTm+2}, s{sWave}\ns_lshl_b32 s{sTm+2}, s{sTm+2}, 6')
    a(f's_add_u32 s{sTm+2}, s{sTm+2}, {FTIM}\nv_mov_b32 v{vo}, s{sTm+2}\ns_mov_b64 exec, 1')
    for k in range(10):
        a(f'v_mov_b32 v{vt}, s{92+k}\nbuffer_store_dword v{vt}, v{vo}, {WS}, 0 offen offset:{4*k}')
    a('s_mov_b64 exec, -1')

def prologue(a, cfg):
    COUNT_RETRY[0] = (2 if cfg.only == () else 1) if cfg.fine < 0 else 0
    if cfg.fine < 0: a('s_mov_b32 s98, 0\ns_mov_b32 s99, 0\ns_mov_b32 s100, 0')
    CLAIM_AT[0] = cfg.claim_at
    if cfg.fine < 0: a('s_mov_b32 s101, 0')
    a('s_cmp_ge_u32 s2, 256\ns_cbranch_scc1 L_end')
    if cfg.dbgtime: a(f's_memrealtime s[{sTm}:{sTm+1}]\ns_waitcnt lgkmcnt(0)\ns_mov_b32 s3, s{sTm}')
    a('s_load_dwordx16 s[16:31], s[0:1], 0\ns_load_dwordx8 s[32:39], s[0:1], 64\ns_load_dwordx4 s[40:43], s[0:1], 96\ns_load_dwordx2 s[44:45], s[0:1], 112')
    a(f'v_lshrrev_b32 v1, 6, v0\nv_and_b32 v0, 63, v0\nv_readfirstlane_b32 s{sWave}, v1')
    if cfg.fake_xcc is None:
        a(f's_getreg_b32 s{sX}, hwreg(HW_REG_XCC_ID)\ns_and_b32 s{sX}, s{sX}, 7')
    else:
        a(f's_mov_b32 s{sX}, {cfg.fake_xcc}')
    a(f's_mov_b32 s{sLim}, 0x80000')
    a('s_waitcnt lgkmcnt(0)')
    srd(a, 4, pWS, WS_BYTES); srd(a, 8, pDBG, 256)
    srd(a, 12, pWS, WS_BYTES); srd(a, 48, pWS, WS_BYTES)
    a(f's_lshr_b32 s{sR}, s2, 3\ns_mov_b32 s{sClm}, 0')
    tstamp(a, cfg, 0, 2, 3)
    a(f's_cmp_lg_u32 s{sX}, {cfg.rx0}\ns_cbranch_scc1 L_nocal\ns_cmp_lt_u32 s{sR}, 26\ns_cbranch_scc1 L_nocal')
    a(f's_cmp_lg_u32 s{sWave}, 7\ns_cbranch_scc1 L_caldone')
    a(f's_lshr_b32 s{sT0}, s2, 6\ns_lshl_b32 s{sT0}, s{sT0}, 14\ns_and_b32 s{sT1}, s2, 63\ns_lshl_b32 s{sT1}, s{sT1}, 7')
    a(f's_add_u32 s{sT0}, s{sT0}, s{sT1}\ns_add_u32 s{sT0}, s{sT0}, {CAL}')
    a(f'v_mov_b32 v2, s{sT0}\nv_add_u32 v3, 0x2000, v2\nv_mov_b32 v4, 0')
    a(f's_mov_b64 exec, 1\ns_mov_b32 s{sT2}, -1\ns_mov_b32 s{sT3}, -1')
    for rep in range(2):
        a(f'buffer_store_dword v4, v2, {WS}, 0 offen sc1\nbuffer_store_dword v4, v3, {WS}, 0 offen sc1\ns_waitcnt vmcnt(0)')
        for vv, sd in ((2, sT2), (3, sT3)):
            a(f's_memtime s[{sTm}:{sTm+1}]\ns_waitcnt lgkmcnt(0)')
            a(f'buffer_load_dword v5, v{vv}, {WS}, 0 offen sc1\ns_waitcnt vmcnt(0)')
            a(f's_memtime s[{sTm+2}:{sTm+3}]\ns_waitcnt lgkmcnt(0)')
            a(f's_sub_u32 s{sT0}, s{sTm+2}, s{sTm}\ns_min_u32 s{sd}, s{sd}, s{sT0}')
    a(f's_cmp_lt_u32 s{sT2}, s{sT3}\ns_cselect_b32 s{sT0}, {D_VOTE0}, {D_VOTE1}')
    a(f'v_mov_b32 v2, s{sT0}\nv_mov_b32 v4, 1')
    a(f'buffer_atomic_add v4, v2, {DBG}, 0 offen\ns_waitcnt vmcnt(0)\ns_mov_b64 exec, -1')
    a('L_caldone:')
    a('s_barrier')
    a('L_nocal:')
    if cfg.force_impure:
        a(f'v_mov_b32 v2, 1\nv_mov_b32 v3, {D_IMPURE}\ns_mov_b64 exec, 1\nbuffer_atomic_or v2, v3, {DBG}, 0 offen\ns_mov_b64 exec, -1')
    a('v_lshlrev_b32 v1, 4, v0\nv_mov_b32 v4, -1\nv_mov_b32 v5, -1\nv_mov_b32 v6, -1\nv_mov_b32 v7, -1')
    a(f's_cmp_ge_u32 s{sWave}, 6\ns_cbranch_scc1 L_ini67')
    assert NPRE * SL == 256 * 2048
    a(f's_lshr_b32 s{sT0}, s{sWave}, 1\ns_mul_i32 s{sT0}, s{sT0}, {XS}\ns_and_b32 s{sT1}, s{sWave}, 1\ns_lshl_b32 s{sT1}, s{sT1}, 10\ns_add_u32 s{sT0}, s{sT0}, s{sT1}\ns_lshl_b32 s{sT1}, s2, 11\ns_add_u32 s{sT0}, s{sT0}, s{sT1}')
    a(f'buffer_store_dwordx4 v[4:7], v1, {WS}, s{sT0} offen sc1\ns_branch L_dispatch')
    a('L_ini67:')
    def um0(su):
        a(f's_lshl_b32 s{sT0}, s{su}, 10\ns_add_u32 s{sT0}, s{sT0}, {UM}')
        a(f'buffer_store_dwordx4 v[4:7], v1, {WS}, s{sT0} offen sc1')
    a(f's_sub_u32 s{sT2}, s{sWave}, 6\ns_lshl_b32 s{sT2}, s{sT2}, 8\ns_add_u32 s{sT2}, s{sT2}, s2')
    um0(sT2)
    a(f's_cmp_eq_u32 s{sWave}, 6\ns_cbranch_scc1 L_ini6\ns_cmp_lt_u32 s2, 128\ns_cbranch_scc1 L_dispatch\ns_add_u32 s{sT2}, s2, 384')
    um0(sT2)
    a('s_branch L_dispatch')
    a('L_ini6:')
    if not cfg.keep_flags:
        a(f'v_mov_b32 v8, 0\nv_mov_b32 v9, 0\ns_lshl_b32 s{sT0}, s2, 7\ns_add_u32 s{sT0}, s{sT0}, {F_BASE}\ns_mov_b64 exec, 1\nbuffer_store_dwordx2 v[8:9], v8, {WS}, s{sT0} offen sc1\ns_mov_b64 exec, -1')
    a('s_branch L_dispatch')
    a('L_reclaim:')
    a(f's_waitcnt vmcnt(0) lgkmcnt(0)\ns_barrier\ns_mov_b32 s{sClm}, 1\ns_cmp_lg_u32 s{sWave}, 0\ns_cbranch_scc1 L_pro_join')
    a('s_mov_b64 exec, 1')
    a('L_claim_loop:')
    a(f's_lshl_b32 s{sT0}, 1, s{sR}\ns_lshl_b32 s{sT1}, s{sX}, 5')
    a(f'v_mov_b32 v2, s{sT0}\nv_mov_b32 v3, s{sT1}')
    a(f'buffer_atomic_or v2, v3, {DBG}, 0 offen sc0\ns_waitcnt vmcnt(0)')
    a(f'v_readfirstlane_b32 s{sT1}, v2')
    a(f's_and_b32 s{sT2}, s{sT1}, s{sT0}\ns_cbranch_scc0 L_claim_ok')
    a(f's_cmp_eq_u32 s{sT1}, -1\ns_cbranch_scc1 L_claim_next')
    a(f's_ff0_i32_b32 s{sR}, s{sT1}\ns_branch L_claim_loop')
    a('L_claim_next:')
    a(f'v_mov_b32 v2, 1\nv_mov_b32 v3, {D_IMPURE}\nbuffer_atomic_or v2, v3, {DBG}, 0 offen\ns_waitcnt vmcnt(0)')
    a(f's_add_u32 s{sX}, s{sX}, 1\ns_and_b32 s{sX}, s{sX}, 7\ns_mov_b32 s{sR}, 0\ns_branch L_claim_loop')
    a('L_claim_ok:')
    a(f's_lshl_b32 s{sT0}, s{sX}, 5\ns_or_b32 s{sT0}, s{sT0}, s{sR}')
    a(f'v_mov_b32 v2, s{sT0}\nv_mov_b32 v3, {LSTAT + 4}\nds_write_b32 v3, v2\ns_waitcnt lgkmcnt(0)\ns_mov_b64 exec, -1')
    a('L_pro_join:')
    a('s_barrier')
    a(f'v_mov_b32 v3, {LSTAT + 4}\nds_read_b32 v2, v3\ns_waitcnt lgkmcnt(0)')
    a(f'v_readfirstlane_b32 s{sT0}, v2')
    a(f's_lshr_b32 s{sX}, s{sT0}, 5\ns_and_b32 s{sX}, s{sX}, 7\ns_and_b32 s{sR}, s{sT0}, 31')
    a('L_dispatch:')
    if 'R' in cfg.roles:
        a(f's_mov_b32 s{sXr}, 0\ns_cmp_eq_u32 s{sX}, {cfg.rx0}\ns_cbranch_scc1 L_R')
        a(f's_mov_b32 s{sXr}, 1\ns_cmp_eq_u32 s{sX}, {cfg.rx1}\ns_cbranch_scc1 L_R')
        if cfg.r2: a(f's_mov_b32 s{sXr}, 2\ns_cmp_eq_u32 s{sX}, {cfg.rx2}\ns_cbranch_scc1 L_RVO')
    if cfg.r2:
        others = [x for x in range(8) if x not in (cfg.rx0, cfg.rx1, cfg.rx2)]
        ax, fx = cfg.ax or others[1:], cfg.fx or others[:1]
        R = lambda n: 'L_' + n if n in cfg.roles else 'L_idle'
        for i, x in enumerate(ax):
            a(f's_mov_b32 s{sT0}, {i}\ns_cmp_eq_u32 s{sX}, {x}\ns_cbranch_scc1 L_Atype')
        a(f's_cmp_lg_u32 s{sX}, {fx[0]}\ns_cbranch_scc1 L_idle')
        if cfg.voxx:
            a(f's_mov_b32 s{sH}, s{sR}\ns_mov_b32 s{sXr}, 0\ns_branch {R("VOX")}')
        else:
            a(f's_lshr_b32 s{sH}, s{sR}, 1\ns_and_b32 s{sXr}, s{sR}, 1\ns_cmp_lt_u32 s{sR}, 28\ns_cbranch_scc1 {R("FF1")}')
        a('L_idle:')
        a('s_waitcnt vmcnt(0)\ns_barrier')
        claim_issue(a, 2)
        wait_init(a, 2, 3, only_check=True)
        a('s_branch L_end')
        a('L_Atype:')
        a(f's_and_b32 s{sH}, s{sR}, 7\ns_mov_b32 s{sXr}, s{sT0}\ns_cmp_ge_u32 s{sR}, 24\ns_cbranch_scc1 {R("FIN")}')
        if cfg.voxx:
            a(f's_cmp_lt_u32 s{sR}, 16\ns_cbranch_scc1 L_A3\ns_cmp_eq_u32 s{sR}, 23\ns_cbranch_scc1 L_idle')
            a(f's_lshr_b32 s{sT1}, s{sT0}, 1\ns_mul_i32 s{sT1}, s{sT1}, 7\ns_add_u32 s{sH}, s{sH}, s{sT1}\ns_and_b32 s{sXr}, s{sT0}, 1\ns_branch {R("FF1")}\nL_A3:')
        a(f's_lshl_b32 s{sT0}, s{sT0}, 3\ns_add_u32 s{sH}, s{sH}, s{sT0}\ns_mov_b32 s{sXr}, 0\ns_cmp_ge_u32 s{sR}, 16\ns_cbranch_scc1 {R("VOX")}')
        a(f's_lshr_b32 s{sXr}, s{sR}, 3\ns_branch {R("QKX")}')
        assert cfg.nc_vox == 1 and cfg.nc_qkx == 2 and cfg.nc_ff1 == 2
        return
```

```python
from core import *

XB = 0
XBS = 40960
sCp = sXr
sI = sStep
sXo, sXm = sCL, sCR
WB = 640 * 4096 * 2

def zero_flag(a, sval_addr, nwords=1):
    l = a.newlabel('zf')
    a(f's_cmp_lg_u32 s{sWave}, 1\ns_cbranch_scc1 {l}')
    a(f'v_mov_b32 v8, 0\nv_lshlrev_b32 v9, 2, v0\nv_add_u32 v9, s{sval_addr}, v9\ns_mov_b64 exec, {(1 << nwords) - 1}\nbuffer_store_dword v8, v9, {WS}, 0 offen sc1\ns_mov_b64 exec, -1')
    a(f'{l}:')

def near_par(a, cfg):
    a(f's_cmp_gt_u32 s{sT1}, s{sT0}\ns_cselect_b32 s{sPar}, ' + ('0x2000, 0' if cfg.force_par is None else '0, 0x2000'))

def x_setup(a, vXo, vt, nc, vXr):
    srd(a, 48, pX, 2048 * 1280)
    a(f'v_lshrrev_b32 v{vt}, 3, v0\nv_and_b32 v{vXo}, 7, v0\nv_xor_b32 v{vXo}, v{vXo}, v{vt}\nv_lshlrev_b32 v{vXo}, 4, v{vXo}\nv_mul_u32_u24 v{vt}, 1280, v{vt}\nv_add_u32 v{vXo}, v{vXo}, v{vt}')
    a(f's_lshr_b32 s{sT0}, s{sWave}, 1\ns_mul_i32 s{sT0}, s{sT0}, 10240\ns_and_b32 s{sT1}, s{sWave}, 1\ns_mul_i32 s{sT1}, s{sT1}, 640\ns_add_u32 s{sXo}, s{sT0}, s{sT1}')
    a(f's_mul_i32 s{sT0}, s{sCp}, {XBS}\ns_add_u32 s{sXo}, s{sXo}, s{sT0}')
    a(f's_mul_i32 s{sXm}, s{sWave}, 5120\ns_add_u32 s{sXm}, s{sXm}, {XB}')
    a(f'v_lshrrev_b32 v{vXr}, 4, v0\nv_and_b32 v{vt}, 7, v0\nv_xor_b32 v{vXr}, v{vXr}, v{vt}\nv_lshlrev_b32 v{vXr}, 4, v{vXr}\nv_lshl_add_u32 v{vXr}, v{vt}, 7, v{vXr}')
    a(f'v_bfe_u32 v{vt}, v0, 3, 1\nv_mul_u32_u24 v{vt}, 10240, v{vt}\nv_add_u32 v{vXr}, v{vXr}, v{vt}\nv_add_u32 v{vXr}, {XB}, v{vXr}\nv_xor_b32 v{vXr + 1}, 64, v{vXr}')

def x_dma1(a, vXo, nc, i):
    a(f's_add_u32 m0, s{sXm}, {896 * i}')
    a(f'buffer_load_dwordx4 v{vXo}, {T2}, s{sXo} offen offset:{128 * i} lds')
    if i == 4:
        a(f's_add_u32 s{sXo}, s{sXo}, {nc * XBS}')
        a(f's_add_u32 s{sT0}, s{sXm}, {XBS}\ns_sub_u32 s{sT1}, s{sXm}, {XBS}\ns_cmp_lt_u32 s{sXm}, {XB + XBS}\ns_cselect_b32 s{sXm}, s{sT0}, s{sT1}')

def x_dma(a, vXo, nc):
    for i in range(5): x_dma1(a, vXo, nc, i)

def project(a, vXr, buf, nbuf, accs, ntile, hooks={}):
    def rd(kk):
        b = buf + 8 * (kk % nbuf)
        a(f'ds_read_b128 {V(b, 4)}, v{vXr + (kk & 1)} offset:{(kk >> 1) * 1024}\nds_read_b128 {V(b + 4, 4)}, v{vXr + (kk & 1)} offset:{20480 + (kk >> 1) * 1024}')
    for kk in range(nbuf - 1): rd(kk)
    for kk in range(20):
        if kk + nbuf - 1 < 20: rd(kk + nbuf - 1)
        left = min(19, kk + nbuf - 1) - kk
        a(f's_waitcnt lgkmcnt({2 * left})')
        b = buf + 8 * (kk % nbuf)
        for tt in range(2):
            for t in range(ntile):
                d = accs[t][tt]
                a(f'v_mfma_f32_16x16x32_bf16 {V(d, 4)}, {A(80 * t + 4 * kk, 4)}, {V(b + 4 * tt, 4)}, {"0" if kk == 0 else V(d, 4)}')
        if kk in hooks: hooks[kk]()

def project4(a, vXr, buf, accs, n):
    for k0 in (4 * n, 4 * n + 2):
        for kk in (k0, k0 + 1):
            b = buf + 8 * (kk & 1)
            a(f'ds_read_b128 {V(b, 4)}, v{vXr + (kk & 1)} offset:{(kk >> 1) * 1024}\nds_read_b128 {V(b + 4, 4)}, v{vXr + (kk & 1)} offset:{20480 + (kk >> 1) * 1024}')
        a('s_waitcnt lgkmcnt(0)')
        for kk in (k0, k0 + 1):
            b = buf + 8 * (kk & 1)
            for tt in range(2):
                for t in range(2):
                    d = accs[t][tt]
                    a(f'v_mfma_f32_16x16x32_bf16 {V(d, 4)}, {A(80 * t + 4 * kk, 4)}, {V(b + 4 * tt, 4)}, {"0" if kk == 0 else V(d, 4)}')

def dma_hooks(a, vXo, nc, at=(1, 4, 7, 10, 13)):
    return {kk: (lambda i=i: x_dma1(a, vXo, nc, i)) for i, kk in enumerate(at)}

def toggle_xr(a, vXr, vt):
    a(f'v_add_u32 v{vt}, {XBS}, v{vXr}\nv_subrev_u32 v{vXr}, {XBS}, v{vXr}\nv_min_u32 v{vXr}, v{vXr}, v{vt}\nv_xor_b32 v{vXr + 1}, 64, v{vXr}')

def flag_store(a, vaddr, vval, sval, wave):
    l = a.newlabel('fs')
    a(f's_cmp_lg_u32 s{sWave}, {wave}\ns_cbranch_scc1 {l}')
    a(f'v_mov_b32 v{vval}, s{sval}\ns_mov_b64 exec, 1\nbuffer_store_dword v{vval}, v{vaddr}, {WS}, 0 offen sc1\ns_mov_b64 exec, -1')
    a(f'{l}:')

def spin_ge(a, vaddr, vF, sneed, sleep=4):
    top = a.newlabel('sp'); done = a.newlabel('spd')
    a(f's_mov_b32 s{sSpin}, s{sLim}')
    a(f'{top}:')
    a(f'buffer_load_dword v{vF}, v{vaddr}, {WS}, 0 offen sc1\ns_waitcnt vmcnt(0)')
    a(f'v_cmp_gt_u32 vcc, s{sneed}, v{vF}')
    a(f's_cbranch_vccz {done}')
    a(f's_sleep {sleep}')
    a(f's_sub_u32 s{sSpin}, s{sSpin}, 1\ns_cbranch_scc0 {top}\ns_mov_b32 s{sLim}, 0')
    a(f'{done}:')

def col_soff(stride, colmul, scol):
    def g(n):
        return lambda a: a(f's_lshl_b32 s{sT0}, s{sWave}, 4\ns_add_u32 s{sT0}, s{sT0}, {128 * n}\ns_mul_i32 s{sT0}, s{sT0}, {stride}\ns_mul_i32 s{sT1}, s{scol}, {colmul}\ns_add_u32 s{sT0}, s{sT0}, s{sT1}')
    return g

vA, vB, vRd, vRd2, vt, vo = 10, 11, 12, 13, 14, 15

def role_VOX(a, cfg):
    nc = cfg.nc_vox; nit = 64 // nc
    VBUF = 2 * XBS
    a('L_VOX:')
    a(f's_lshl_b32 s{sT0}, s{sH}, 1\ns_add_u32 s{sT0}, s{sT0}, s{sCp}\ns_lshl_b32 s{sT0}, s{sT0}, 7\ns_add_u32 s{sFl0}, s{sT0}, {F_UX}')
    assert nc == 1 and cfg.uxmode == 'mix' and VBUF % 0x4000 == 0
    vXr, vL16, vVw, vFa, vTmp, vXo = 2, 1, 8, 9, 6, 5
    vBuf = 24; vAcc = 56; vO = 80
    ACC = [[vAcc, vAcc + 8], [vAcc + 4, vAcc + 12]]
    x_setup(a, vXo, vTmp, nc, vXr)
    src_offsets(a, vA, vB, vt, 8192)
    a(f's_and_b32 s{sT2}, s{sWave}, 3\ns_lshl_b32 s{sT2}, s{sT2}, 1')
    tr_base(a, vRd, vt, sT2)
    vRdO = 16
    a(f'v_lshrrev_b32 v{vt}, 4, v0\nv_lshlrev_b32 v{vt}, 10, v{vt}\nv_sub_u32 v{vRdO}, v{vRd}, v{vt}')
    ux_head(a, cfg, sSeg2, sH)
    ux_tile(a, cfg, sSeg2, sT2)
    a(f's_mov_b32 s{sSeg}, s{sSeg2}\nv_lshlrev_b32 v{vL16}, 4, v0\nv_mov_b32 v{vFa}, s{sFl0}')
    a(f's_lshl_b32 s{sT0}, s{sWave}, 10\ns_cmp_ge_u32 s{sWave}, 4\ns_cselect_b32 s{sT0}, 0, s{sT0}\ns_add_u32 s{sT0}, s{sT0}, {VBUF}\nv_add_u32 v{vVw}, s{sT0}, v{vL16}')
    def v_out():
        toggle_xr(a, vXr, vTmp)
        for q in range(8): a(f'v_cvt_pk_bf16_f32 v{vO + q}, v{vAcc + 2 * q}, v{vAcc + 2 * q + 1}')
        a(f'ds_write_b128 v{vVw}, {V(vO, 4)}\nds_write_b128 v{vVw}, {V(vO + 4, 4)} offset:4096')
        a(f'v_xor_b32 v{vVw}, 0x2000, v{vVw}')
    def v_in():
        for i in range(8): a(f'ds_read_b128 {V(vBuf + 4 * i, 4)}, v{vVw} offset:{1024 * i}')
        a(f'v_xor_b32 v{vVw}, 0x2000, v{vVw}')
    def umm(t):
        for ks in range(4):
            for tt in range(2):
                d = vAcc + 8 * (t % 3) + 4 * tt
                a(f'v_mfma_f32_16x16x32_bf16 {V(d, 4)}, {V(vBuf + 16 * tt + 4 * ks, 4)}, {A(16 * t + 4 * ks, 4)}, {"0" if ks == 0 else V(d, 4)}')
    def ep(t):
        o = vO + 4 * (t & 1); b = vAcc + 8 * (t % 3)
        for q in range(4): a(f'v_cvt_pk_bf16_f32 v{o + q}, v{b + 2 * q}, v{b + 2 * q + 1}')
        dj = 8 * (t >> 1) + (t & 1)
        a(f's_xor_b32 s{sT2}, s{sSeg}, {cfg.rot * (dj & 31) << 16}\ns_add_u32 s{sT2}, s{sT2}, {dj * 4 * MB}')
        a(f'buffer_store_dwordx4 {V(o, 4)}, v{vL16}, {WS}, s{sT2} offen sc1{cfg.ux_st}')
    def rdv(n):
        def f(a, va):
            l = a.newlabel('vv')
            x_dma1(a, vXo, nc, n)
            a(f's_cmp_ge_u32 s{sWave}, 4\ns_cbranch_scc1 {l}')
            std_reads(16 * n)(a, va)
            a(f'v_xor_b32 v{va}, 32, v{va}')
            std_reads(80 + 16 * n)(a, va)
            a(f'{l}:')
        return f
    def psv(n):
        def f(a):
            l = a.newlabel('vv')
            a(f's_cmp_ge_u32 s{sWave}, 4\ns_cbranch_scc1 {l}')
            project4(a, vXr, vBuf, ACC, n)
            if n == 4: v_out()
            a(f'{l}:')
        return f
    def rdo(c):
        def f(a, va):
            l = a.newlabel('vo'); l2 = a.newlabel('vo')
            x_dma1(a, vXo, nc, c)
            a(f's_cmp_ge_u32 s{sWave}, 4\ns_cbranch_scc0 {l}')
            for e in range(2):
                if e: a(f'v_xor_b32 v{va}, 32, v{va}')
                for kk in range(4):
                    for h in range(2): a(f'ds_read_b64_tr_b16 {A(32 * c + 16 * e + 4 * kk + 2 * h, 2)}, v{va} offset:{kk * 8192 + h * 4096}')
            if c == 0: v_in()
            a(f'{l}:')
        return f
    def pso(c):
        def f(a):
            l = a.newlabel('vo'); l2 = a.newlabel('vo')
            a(f's_cmp_ge_u32 s{sWave}, 4\ns_cbranch_scc0 {l}')
            umm(2 * c); umm(2 * c + 1); ep(2 * c); ep(2 * c + 1)
            a(f's_branch {l2}\n{l}:')
            project4(a, vXr, vBuf, ACC, c)
            if c == 4: v_out()
            a(f'{l2}:')
        return f
    chunks = [dict(pre=(lambda a: srd(a, 12, pWV, WB)) if n == 0 else None, soff=col_soff(8192, 256, sH)(n), stride=8192, reads=rdv(n), post=psv(n)) for n in range(5)]
    def pre(a):
        srd(a, 12, pWO, WB); src_offsets(a, vA, vB, vt, 1280)
    so = lambda c: (lambda a: a(f's_lshl_b32 s{sT0}, s{sH}, 7\ns_lshl_b32 s{sT1}, s{sWave}, 4\ns_add_u32 s{sT0}, s{sT0}, s{sT1}\ns_mul_i32 s{sT0}, s{sT0}, 1280\ns_add_u32 s{sT0}, s{sT0}, {256 * c}'))
    chunks += [dict(pre=pre if c == 0 else None, soff=so(c), stride=1280, reads=rdo(c), post=pso(c), hi_stores=2, var=lambda i: i & 1, vrd=vRdO) for c in range(5)]
    loader(a, chunks, vA, vB, vRd, vRd2, vt, vo, nslots=2, early=lambda: x_dma(a, vXo, nc))
    tstamp(a, cfg, 1, 16, 17)
    a(f's_mov_b32 s{sI}, 2')
    a(f's_cmp_ge_u32 s{sWave}, 4\ns_cbranch_scc1 L_VOX_hi')
    a('L_VOX_lo:')
    fstamp(a, cfg, 0)
    a('s_waitcnt vmcnt(0) lgkmcnt(0)')
    fstamp(a, cfg, 1)
    a('s_barrier')
    fstamp(a, cfg, 2)
    a(f's_sub_u32 s{sT2}, s{sI}, 1\ns_sub_u32 s{sT3}, s{sI}, 2\ns_cmp_le_u32 s{sI}, {cfg.early_pub}\ns_cselect_b32 s{sT2}, s{sT2}, s{sT3}\ns_max_i32 s{sT2}, s{sT2}, 0')
    flag_store(a, vFa, vTmp + 1, sT2, 3)
    a(f's_cmp_ge_u32 s{sI}, {nit}\ns_cbranch_scc1 L_VOX_fin')
    hk = dma_hooks(a, vXo, nc, (1, 4, 7, 10, 13))
    project(a, vXr, vBuf, 4, ACC, 2, hk)
    fstamp(a, cfg, 4)
    v_out()
    a(f's_add_u32 s{sI}, s{sI}, 1\ns_branch L_VOX_lo')
    a('L_VOX_fin:')
    a('s_barrier')
    flag_store(a, vFa, vTmp + 1, sI, 3)
    tstamp(a, cfg, 3, vt, vo)
    fdump(a, cfg, vt, vo)
    a('s_branch L_end')
    a('L_VOX_hi:')
    if cfg.vox_prio: a('s_setprio 1')
    a('L_VOX_hi_loop:')
    fstamp(a, cfg, 0)
    l = a.newlabel('ve')
    a(f's_waitcnt vmcnt(5)\ns_cmp_gt_u32 s{sI}, {cfg.early_pub}\ns_cbranch_scc1 {l}\ns_waitcnt vmcnt(0)\n{l}:')
    fstamp(a, cfg, 1)
    a('s_barrier')
    fstamp(a, cfg, 2)
    v_in()
    a(f's_sub_u32 s{sSeg}, s{sI}, 1\ns_lshl_b32 s{sSeg}, s{sSeg}, 15\ns_xor_b32 s{sSeg}, s{sSeg}, s{sSeg2}\ns_waitcnt lgkmcnt(0)')
    for t in range(10):
        umm(t)
        if t > 0:
            ep(t - 1)
            if t <= 5: x_dma1(a, vXo, nc, t - 1)
    ep(9)
    fstamp(a, cfg, 4)
    a(f's_add_u32 s{sI}, s{sI}, 1')
    a(f's_cmp_le_u32 s{sI}, {nit}\ns_cbranch_scc1 L_VOX_hi_loop')
    a('s_waitcnt vmcnt(0)\ns_barrier')
    fdump(a, cfg, vt, vo)
    a('s_branch L_end')

def gate_wait(a, vaddr, vF):
    a(f'v_and_b32 v{vaddr}, 31, v0\nv_lshlrev_b32 v{vaddr}, 7, v{vaddr}\nv_add_u32 v{vaddr}, {F_G}, v{vaddr}\ns_mov_b32 s{sT2}, 1')
    spin_ge(a, vaddr, vF, sT2)

def late_start(a, cfg, mid=None, claimed=False):
    if not claimed:
        a('s_waitcnt vmcnt(0)\ns_barrier')
        claim_issue(a, vt)
    a('s_waitcnt vmcnt(0)')
    wait_init(a, vt, vo, cfg.presleep); near_par(a, cfg)
    if mid and not cfg.late_gate: mid()
    if cfg.defer_ff and 'QKX' in cfg.roles:
        l = a.newlabel('ls')
        a(f's_cmp_lg_u32 s{sWave}, 0\ns_cbranch_scc1 {l}')
        a(f'v_mov_b32 v{vo}, {F_KX}\ns_mov_b32 s{sT2}, 1')
        spin_ge(a, vo, vt, sT2, 16)
        a(f'{l}:')
    a('s_barrier')
    if mid and cfg.late_gate: mid()

def role_FF1(a, cfg):
    nc = cfg.nc_ff1; nit = 64 // nc
    FB = 640 * 1728 * 2
    a('L_FF1:')
    a(f's_lshl_b32 s{sT0}, s{sH}, 1\ns_add_u32 s{sT0}, s{sT0}, s{sCp}\ns_lshl_b32 s{sT0}, s{sT0}, 7\ns_add_u32 s{sFl0}, s{sT0}, {F_H}')
    if cfg.wopf:
        a('s_waitcnt vmcnt(0)\ns_barrier')
        claim_issue(a, vt)
        a('s_barrier')
        srd(a, 12, pWO, WB)
        a(f's_lshl_b32 s{sT0}, s{sR}, 3\ns_add_u32 s{sT0}, s{sT0}, s{sWave}\ns_lshl_b32 s{sT0}, s{sT0}, 13\nv_lshlrev_b32 v{vt}, 7, v0')
        for i in range(3):
            a(f'buffer_load_dword v{vo}, v{vt}, {T1}, s{sT0} offen')
            if i < 2: a(f's_add_u32 s{sT0}, s{sT0}, {224 * 8192}')
    late_start(a, cfg, claimed=cfg.wopf)
    src_offsets(a, vA, vB, vt, 3456); tr_base(a, vRd, vt, sWave)
    chunks = []
    for m, p in enumerate((pWG, pWU)):
        chunks += [dict(pre=(lambda a, p=p: srd(a, 12, p, FB)) if n == 0 else None, soff=col_soff(3456, 256, sH)(n), stride=3456, reads=std_reads(80 * m + 16 * n)) for n in range(5)]
    loader(a, chunks, vA, vB, vRd, vRd2, vt, vo, claim=False)
    vXr, vL16, vFa, vGa, vG, vTmp, vXo = 2, 1, 9, 8, 4, 12, 6
    vBuf = 16; vAcc = 48; vO = 64
    x_setup(a, vXo, vTmp, nc, vXr)
    x_dma(a, vXo, nc)
    tstamp(a, cfg, 1, vt, vo)
    gate_wait(a, vGa, vTmp)
    a(f'v_lshlrev_b32 v{vL16}, 4, v0\nv_mov_b32 v{vFa}, s{sFl0}')
    a(f'v_and_b32 v{vGa}, 15, v0\nv_lshlrev_b32 v{vGa}, 2, v{vGa}')
    a(f's_lshl_b32 s{sSeg2}, s{sCp}, 7\ns_add_u32 s{sSeg2}, s{sSeg2}, {GATE}')
    a(f's_lshl_b32 s{sT0}, s{sH}, 3\ns_add_u32 s{sT0}, s{sT0}, s{sWave}\ns_lshl_b32 s{sSeg}, s{sT0}, 10\ns_mul_i32 s{sT1}, s{sCp}, {112 * 1024}\ns_add_u32 s{sSeg}, s{sSeg}, s{sT1}\ns_add_u32 s{sSeg}, s{sSeg}, {HB}')
    a(f's_mov_b32 s{sI}, 0')
    a('L_FF1_loop:')
    fstamp(a, cfg, 0)
    a('s_waitcnt vmcnt(1)')
    fstamp(a, cfg, 1)
    a('s_barrier')
    fstamp(a, cfg, 2)
    a(f's_max_u32 s{sT2}, s{sI}, 1\ns_sub_u32 s{sT2}, s{sT2}, 1')
    flag_store(a, vFa, vTmp + 1, sT2, 0)
    hk = dma_hooks(a, vXo, nc, (2, 5, 8, 11, 14))
    hk[0] = lambda: a(f'buffer_load_dword v{vG}, v{vGa}, {WS}, s{sSeg2} offen sc1\nbuffer_load_dword v{vG + 1}, v{vGa}, {WS}, s{sSeg2} offen offset:64 sc1\ns_add_u32 s{sSeg2}, s{sSeg2}, {nc * 128}')
    project(a, vXr, vBuf, 4, [[vAcc, vAcc + 4], [vAcc + 8, vAcc + 12]], 2, hk)
    fstamp(a, cfg, 4)
    toggle_xr(a, vXr, vTmp)
    a(f's_waitcnt vmcnt(5)\nv_sub_f32 v{vG}, 1.0, v{vG}\nv_sub_f32 v{vG + 1}, 1.0, v{vG + 1}')
    for tt in range(2):
        for i in range(4): a(f'v_mul_f32 v{vAcc + 4 * tt + i}, v{vAcc + 4 * tt + i}, v{vG + tt}')
    for q in range(8): a(f'v_mul_f32 v{vAcc + q}, v{vAcc + q}, v{vAcc + 8 + q}')
    for q in range(4): a(f'v_cvt_pk_bf16_f32 v{vO + q}, v{vAcc + 2 * q}, v{vAcc + 2 * q + 1}')
    a(f'buffer_store_dwordx4 {V(vO, 4)}, v{vL16}, {WS}, s{sSeg} offen sc1')
    a(f's_add_u32 s{sSeg}, s{sSeg}, {nc * 112 * 1024}\ns_add_u32 s{sI}, s{sI}, 1')
    a(f's_cmp_lt_u32 s{sI}, {nit}\ns_cbranch_scc1 L_FF1_loop')
    a('s_waitcnt vmcnt(0)\ns_barrier')
    flag_store(a, vFa, vTmp + 1, sI, 0)
    tstamp(a, cfg, 3, vt, vo)
    fdump(a, cfg, vt, vo)
    a('s_branch L_end')

def role_QKX(a, cfg):
    nc = cfg.nc_qkx; nit = 64 // nc; LA = cfg.la; NS = LA + 1
    QB = 2 * XBS
    assert QB + NS * 16384 <= 163840
    a('L_QKX:')
    a(f's_lshl_b32 s{sT0}, s{sH}, 1\ns_add_u32 s{sT0}, s{sT0}, s{sCp}\ns_lshl_b32 s{sT0}, s{sT0}, 7\ns_add_u32 s{sFl1}, s{sT0}, {F_PX}\ns_add_u32 s{sFl0}, s{sT0}, {F_KX}')
    x_setup(a, 64, 19, nc, 2)
    src_offsets(a, vA, vB, vt, 8192)
    a(f's_and_b32 s{sT2}, s{sWave}, 3\ns_lshl_b32 s{sT2}, s{sT2}, 1')
    tr_base(a, vRd, vt, sT2)
    def rd(m, n):
        def f(a, va):
            l = a.newlabel('qk')
            a(f's_cmp_ge_u32 s{sWave}, 4\ns_cbranch_scc{1 if m == 0 else 0} {l}')
            std_reads(16 * n)(a, va)
            a(f'v_xor_b32 v{va}, 32, v{va}')
            std_reads(80 + 16 * n)(a, va)
            a(f'{l}:')
            if m == 1: x_dma1(a, 64, nc, n)
        return f
    def ps(m, n):
        def f(a):
            l = a.newlabel('qk')
            a(f's_cmp_ge_u32 s{sWave}, 4\ns_cbranch_scc{1 if m == 0 else 0} {l}')
            project4(a, 2, 24, [[48, 56], [52, 60]], n)
            a(f'{l}:')
        return f
    chunks = []
    for m, p in enumerate((pWK, pWQ)):
        chunks += [dict(pre=(lambda a, p=p: srd(a, 12, p, WB)) if n == 0 else None, soff=col_soff(8192, 256, sH)(n), stride=8192, reads=rd(m, n), post=ps(m, n)) for n in range(5)]
    loader(a, chunks, vA, vB, vRd, vRd2, vt, vo, nslots=2, early=lambda: x_dma(a, 64, nc))
    vXr, vL16, vNeg, vFa, vQw, vTmp, vTmp2, vXo = 2, 1, 4, 8, 9, 12, 13, 0
    vKm, vGa, vPm, vPf = 10, 11, 14, 15
    vBuf = 16; vAcc = 48; vO = 64; vMask = 72
    vS = 84
    tstamp(a, cfg, 1, vt, vo)
    near_par(a, cfg)
    a(f'v_lshlrev_b32 v{vL16}, 4, v0\nv_mov_b32 v{vFa}, s{sFl0}')
    for i in range(4): a(f'v_mov_b32 v{vNeg + i}, -1')
    sQw, sQr, sKmP, sAt = sbL, sbR, sbO, sCO
    a(f's_lshr_b32 s{sT0}, s{sWave}, 2\ns_lshl_b32 s{sT0}, s{sT0}, 13\ns_and_b32 s{sT1}, s{sWave}, 3\ns_lshl_b32 s{sT1}, s{sT1}, 10\ns_add_u32 s{sT0}, s{sT0}, s{sT1}\ns_add_u32 s{sT0}, s{sT0}, {QB}\nv_add_u32 v{vQw}, s{sT0}, v{vL16}')
    a(f's_mov_b32 s{sQw}, 0\ns_mov_b32 s{sQr}, 0')
    a(f's_lshl_b32 s{sSeg}, s{sH}, 19\ns_lshl_b32 s{sT0}, s{sCp}, 13\ns_add_u32 s{sSeg}, s{sSeg}, s{sT0}\ns_add_u32 s{sSeg}, s{sSeg}, s{sT1}\ns_add_u32 s{sSeg}, s{sSeg}, {KX}')
    a(f's_lshl_b32 s{sKmP}, s{sH}, 11\ns_lshl_b32 s{sT0}, s{sCp}, 16\ns_add_u32 s{sKmP}, s{sKmP}, s{sT0}\ns_add_u32 s{sKmP}, s{sKmP}, {KM}')
    a(f's_mov_b32 s{sAt}, s{sCp}')
    a(f'v_and_b32 v{vKm}, 7, v0\nv_lshlrev_b32 v{vKm}, 4, v{vKm}\nv_lshrrev_b32 v{vTmp}, 4, v0\nv_lshl_add_u32 v{vKm}, v{vTmp}, 7, v{vKm}\ns_lshl_b32 s{sT0}, s{sH}, 11\ns_add_u32 s{sT0}, s{sT0}, {KM}\nv_add_u32 v{vKm}, s{sT0}, v{vKm}')
    a(f's_lshl_b32 s{sT0}, s{sWave}, 2\ns_add_u32 s{sT0}, s{sT0}, s{sFl1}\nv_mov_b32 v{vPf}, s{sT0}')
    a(f'v_and_b32 v{vPm}, 15, v0\nv_lshlrev_b32 v{vPm}, 4, v{vPm}\ns_lshr_b32 s{sT0}, s{sH}, 2\ns_lshl_b32 s{sT0}, s{sT0}, 11\ns_and_b32 s{sT1}, s{sH}, 3\ns_lshl_b32 s{sT1}, s{sT1}, 8\ns_add_u32 s{sT0}, s{sT0}, s{sT1}')
    a(f's_lshl_b32 s{sT1}, s{sWave}, 10\ns_add_u32 s{sT0}, s{sT0}, s{sT1}\ns_add_u32 s{sT0}, s{sT0}, {PXM}\nv_add_u32 v{vPm}, s{sT0}, v{vPm}')
    a(f's_lshl_b32 s{sT0}, s{sWave}, 4\nv_and_b32 v{vTmp}, 15, v0\nv_add_u32 v{vTmp}, s{sT0}, v{vTmp}\nv_lshrrev_b32 v{vTmp2}, 4, v0\nv_lshlrev_b32 v{vTmp2}, 2, v{vTmp2}\nv_sub_u32 v{vTmp}, v{vTmp}, v{vTmp2}')
    a(f'v_mov_b32 v{vS}, 0xff7fffff\nv_mov_b32 v{vS + 1}, 0')
    for t in range(2):
        for i in range(4):
            a(f'v_cmp_le_i32 vcc, {16 * t + i}, v{vTmp}\nv_cndmask_b32 v{vMask + 4 * t + i}, v{vS}, v{vS + 1}, vcc')
    a(f'v_cmp_le_u32 vcc, 32, v0')
    for i in range(4): a(f'v_cndmask_b32 v{vMask + 8 + i}, v{vS}, v{vS + 1}, vcc')
    a(f's_mov_b32 s{sC}, {f2u(128 ** -0.5 * 1.4426950408889634)}')
    a(f's_mov_b32 s{sEx}, 0\ns_mov_b32 s{sEx + 1}, 0xffff')
    vP1 = vKm; sUm = sSeg2
    l = a.newlabel('up')
    a(f's_cmp_lt_u32 s{sWave}, 4\ns_cbranch_scc1 {l}')
    a(f'v_and_b32 v{vP1}, 15, v0\nv_lshlrev_b32 v{vP1}, 4, v{vP1}\ns_lshl_b32 s{sT0}, s{sH}, 8\ns_and_b32 s{sT1}, s{sWave}, 3\ns_lshl_b32 s{sT1}, s{sT1}, 16\ns_add_u32 s{sT0}, s{sT0}, s{sT1}\nv_add_u32 v{vP1}, s{sT0}, v{vP1}')
    a(f'v_lshrrev_b32 v{vTmp}, 4, v0\nv_lshl_add_u32 v{vP1}, v{vTmp}, 14, v{vP1}')
    a(f'{l}:')
    a(f's_add_u32 s{sUm}, s{sCp}, 1')
    a(f'v_mov_b32 v{vXo}, v{vO}')
    a(f's_mov_b32 s{sI}, 0')
    a('L_QKX_loop:')
    a(f's_cmp_ge_u32 s{sI}, {nit}\ns_cbranch_scc1 L_QKX_att')
    a('s_waitcnt vmcnt(0)\ns_barrier')
    l = a.newlabel('kp'); l2 = a.newlabel('kp')
    a(f's_cmp_lt_u32 s{sWave}, 4\ns_cbranch_scc1 {l}\ns_cmp_ge_u32 s{sUm}, 64\ns_cbranch_scc1 {l2}')
    um_seg(a, sT2, sUm)
    a(f's_add_u32 s{sT0}, s{sT2}, {16 * 16384}\nbuffer_store_dwordx4 {V(vNeg, 4)}, v{vP1}, {WS}, s{sT2} offen sc1\nbuffer_store_dwordx4 {V(vNeg, 4)}, v{vP1}, {WS}, s{sT0} offen sc1')
    a(f's_cmp_ge_u32 s{sWave}, 6\ns_cbranch_scc1 {l2}\ns_add_u32 s{sT0}, s{sT2}, {32 * 16384}\nbuffer_store_dwordx4 {V(vNeg, 4)}, v{vP1}, {WS}, s{sT0} offen sc1')
    a(f'{l2}:')
    a(f's_cmp_lg_u32 s{sWave}, 7\ns_cbranch_scc1 {l}')
    a(f'buffer_store_dwordx4 {V(vNeg, 4)}, v{vL16}, {WS}, s{sKmP} offen sc1\nbuffer_store_dwordx4 {V(vNeg, 4)}, v{vL16}, {WS}, s{sKmP} offen offset:1024 sc1')
    a(f'{l}:')
    a(f's_add_u32 s{sUm}, s{sUm}, {nc}')
    a(f's_add_u32 s{sKmP}, s{sKmP}, {nc * 65536}')
    a(f's_cmp_eq_u32 s{sI}, 0\ns_cbranch_scc1 L_QKX_skip')
    project(a, vXr, vBuf, 4, [[vAcc, vAcc + 8], [vAcc + 4, vAcc + 12]], 2, dma_hooks(a, vXo, nc))
    a('L_QKX_skip:')
    toggle_xr(a, vXr, vTmp)
    a(f'v_add_u32 v{vTmp}, s{sQw}, v{vQw}')
    for q in range(8): a(f'v_cvt_pk_bf16_f32 v{vO + q}, v{vAcc + 2 * q}, v{vAcc + 2 * q + 1}')
    a(f'ds_write_b128 v{vTmp}, {V(vO, 4)}\nds_write_b128 v{vTmp}, {V(vO + 4, 4)} offset:4096')
    l = a.newlabel('ks')
    a(f's_cmp_ge_u32 s{sWave}, 4\ns_cbranch_scc1 {l}')
    a(f's_add_u32 s{sT0}, s{sSeg}, 4096\nbuffer_store_dwordx4 {V(vO, 4)}, v{vL16}, {WS}, s{sSeg} offen sc1\nbuffer_store_dwordx4 {V(vO + 4, 4)}, v{vL16}, {WS}, s{sT0} offen sc1')
    a(f'{l}:')
    a(f's_add_u32 s{sSeg}, s{sSeg}, {nc * 8192}')
    a(f's_add_u32 s{sQw}, s{sQw}, 16384\ns_cmp_ge_u32 s{sQw}, {NS * 16384}\ns_cselect_b32 s{sQw}, 0, s{sQw}')
    a(f's_add_u32 s{sT3}, s{sI}, 1')
    a('s_waitcnt vmcnt(0) lgkmcnt(0)\ns_barrier')
    flag_store(a, vFa, vTmp + 1, sT3, 7)
    a('L_QKX_att:')
    a(f's_cmp_lt_u32 s{sI}, {LA}\ns_cbranch_scc1 L_QKX_next')
    a(f's_cmp_ge_u32 s{sWave}, 2\ns_cbranch_scc1 L_QKX_next')
    l = a.newlabel('gw')
    a(f's_cmp_lg_u32 s{sI}, {LA}\ns_cbranch_scc1 {l}')
    a(f'v_bfe_u32 v{vGa}, v{vL16}, 4, 5\nv_lshlrev_b32 v{vGa}, 7, v{vGa}\nv_add_u32 v{vGa}, {F_G}, v{vGa}\ns_mov_b32 s{sT2}, 1')
    spin_ge(a, vGa, vTmp, sT2)
    a(f'v_bfe_u32 v{vGa}, v{vL16}, 4, 4\nv_lshlrev_b32 v{vGa}, 2, v{vGa}\ns_lshl_b32 s{sT0}, s{sWave}, 6\ns_add_u32 s{sT0}, s{sT0}, {GATE}\nv_add_u32 v{vGa}, s{sT0}, v{vGa}')
    a(f'{l}:')
    vQ, vK0, vK1, vKM, vG = vBuf, vBuf + 16, vAcc, vBuf + 16, vO
    T0, T1_, M_ = vS, vS + 4, vS + 8
    a(f's_lshl_b32 s{sT0}, s{sAt}, 7\nbuffer_load_dword v{vG}, v{vGa}, {WS}, s{sT0} offen sc1')
    a(f's_add_u32 s{sT0}, s{sQr}, {QB}\nv_add_u32 v{vTmp}, s{sT0}, v{vL16}\ns_lshl_b32 s{sT1}, s{sWave}, 12\nv_add_u32 v{vTmp2}, s{sT1}, v{vTmp}')
    for ks in range(4):
        a(f'ds_read_b128 {V(vQ + 4 * ks, 4)}, v{vTmp2} offset:{8192 + 1024 * ks}\nds_read_b128 {V(vK0 + 4 * ks, 4)}, v{vTmp} offset:{1024 * ks}\nds_read_b128 {V(vK1 + 4 * ks, 4)}, v{vTmp} offset:{4096 + 1024 * ks}')
    for ks in range(4):
        a(f's_waitcnt lgkmcnt({9 - 3 * ks})')
        a(f'v_mfma_f32_16x16x32_bf16 {V(T0, 4)}, {V(vK0 + 4 * ks, 4)}, {V(vQ + 4 * ks, 4)}, {V(vMask, 4) if ks == 0 else V(T0, 4)}')
        a(f'v_mfma_f32_16x16x32_bf16 {V(T1_, 4)}, {V(vK1 + 4 * ks, 4)}, {V(vQ + 4 * ks, 4)}, {V(vMask + 4, 4) if ks == 0 else V(T1_, 4)}')
    a(f's_lshl_b32 s{sT2}, s{sAt}, 16\ns_nop 7')
    poll(a, [f'buffer_load_dwordx4 {V(vKM + 4 * ks, 4)}, v{vKm}, {WS}, s{sT2} offen offset:{512 * ks} sc1' for ks in range(4)], range(vKM, vKM + 16), vTmp, sleep=cfg.km_sleep)
    for ks in range(4):
        a(f'v_mfma_f32_16x16x32_bf16 {V(M_, 4)}, {V(vKM + 4 * ks, 4)}, {V(vQ + 4 * ks, 4)}, {V(vMask + 8, 4) if ks == 0 else V(M_, 4)}')
    mx, t2 = vTmp, vTmp2
    def allred(op):
        a(f'v_mov_b32 v{t2}, v{mx}\nv_permlane32_swap_b32 v{mx}, v{t2}\n{op} v{mx}, v{mx}, v{t2}')
        a(f'v_mov_b32 v{t2}, v{mx}\nv_permlane16_swap_b32 v{mx}, v{t2}\n{op} v{mx}, v{mx}, v{t2}')
    a(f'v_max_f32 v{mx}, v{vS}, v{vS + 1}')
    for i in range(2, 12, 2): a(f'v_max3_f32 v{mx}, v{mx}, v{vS + i}, v{vS + i + 1}')
    allred('v_max_f32')
    a(f'v_mul_f32 v{mx}, s{sC}, v{mx}')
    for i in range(12): a(f'v_fma_f32 v{vS + i}, v{vS + i}, s{sC}, -v{mx}')
    for i in range(12): a(f'v_exp_f32 v{vS + i}, v{vS + i}')
    a(f'v_add_f32 v{mx}, v{vS}, v{vS + 1}')
    for i in range(2, 12): a(f'v_add_f32 v{mx}, v{mx}, v{vS + i}')
    allred('v_add_f32')
    a(f'v_rcp_f32 v{mx}, v{mx}\nv_mul_f32 v{mx}, v{mx}, v{vG}')
    for i in range(12): a(f'v_mul_f32 v{vS + i}, v{vS + i}, v{mx}')
    for q in range(6): a(f'v_cvt_pk_bf16_f32 v{vS + q}, v{vS + 2 * q}, v{vS + 2 * q + 1}')
    a(f'v_permlane16_swap_b32 v{vS + 4}, v{vS + 6}\nv_permlane16_swap_b32 v{vS + 5}, v{vS + 7}')
    a(f's_lshl_b32 s{sT0}, s{sH}, 1\ns_add_u32 s{sT0}, s{sT0}, s{sWave}\ns_lshl_b32 s{sT0}, s{sT0}, 10\ns_add_u32 s{sT0}, s{sT0}, s{sT2}\ns_add_u32 s{sT0}, s{sT0}, {PXX}\ns_lshl_b32 s{sT1}, s{sAt}, 14')
    a(f'buffer_store_dwordx4 {V(vS, 4)}, v{vL16}, {WS}, s{sT0} offen sc1')
    a(f's_mov_b64 exec, s[{sEx}:{sEx + 1}]\nbuffer_store_dwordx4 {V(vS + 4, 4)}, v{vPm}, {WS}, s{sT1} offen sc1')
    a(f's_sub_u32 s{sT0}, s{sI}, {LA - 1}\ns_mov_b64 exec, 1\nv_mov_b32 v{vTmp}, s{sT0}\ns_waitcnt vmcnt(0)\nbuffer_store_dword v{vTmp}, v{vPf}, {WS}, 0 offen sc1\ns_mov_b64 exec, -1')
    a(f's_add_u32 s{sAt}, s{sAt}, {nc}')
    a(f's_add_u32 s{sQr}, s{sQr}, 16384\ns_cmp_ge_u32 s{sQr}, {NS * 16384}\ns_cselect_b32 s{sQr}, 0, s{sQr}')
    a('L_QKX_next:')
    a(f's_add_u32 s{sI}, s{sI}, 1\ns_cmp_lt_u32 s{sI}, {nit + LA}\ns_cbranch_scc1 L_QKX_loop')
    tstamp(a, cfg, 3, vt, vo)
    a('s_branch L_end')

def role_FIN(a, cfg):
    NG = 4
    a('L_FIN:')
    a(f's_lshl_b32 s{sJ}, s{sCp}, 3\ns_add_u32 s{sJ}, s{sJ}, s{sH}\ns_lshl_b32 s{sT0}, s{sJ}, 7\ns_add_u32 s{sFl0}, s{sT0}, {F_G}')
    def gates():
        srd(a, 48, pX, 2048 * 1280); srd(a, 12, pGW, 1280)
        a(f'v_and_b32 v2, 7, v0\nv_lshlrev_b32 v2, 4, v2\nv_lshrrev_b32 v3, 3, v0\nv_mul_u32_u24 v4, 1280, v3\nv_add_u32 v4, v4, v2')
        a(f's_lshl_b32 s{sT2}, s{sJ}, 3\ns_add_u32 s{sT2}, s{sT2}, s{sWave}\ns_mul_i32 s{sT0}, s{sT2}, 10240')
        for i in range(10):
            a(f'buffer_load_dwordx4 {V(16 + 4 * i, 4)}, v4, {T2}, s{sT0} offen offset:{128 * i}\nbuffer_load_dwordx4 {V(56 + 4 * i, 4)}, v2, {T1}, 0 offen offset:{128 * i}')
        a('v_mov_b32 v5, 0\ns_waitcnt vmcnt(0)')
        for i in range(40): a(f'v_dot2_f32_bf16 v5, v{16 + i}, v{56 + i}, v5')
        a('s_nop 2')
        a('v_add_f32_dpp v5, v5, v5 quad_perm:[1,0,3,2] row_mask:0xf bank_mask:0xf\nv_add_f32_dpp v5, v5, v5 quad_perm:[2,3,0,1] row_mask:0xf bank_mask:0xf\nv_add_f32_dpp v5, v5, v5 row_half_mirror row_mask:0xf bank_mask:0xf')
        a(f'v_mul_f32 v5, {hex(f2u(-1.4426950408889634))}, v5\nv_exp_f32 v5, v5\nv_add_f32 v5, 1.0, v5\nv_rcp_f32 v5, v5')
        a(f'v_lshlrev_b32 v3, 2, v3\ns_lshl_b32 s{sT2}, s{sT2}, 5\ns_add_u32 s{sT2}, s{sT2}, {GATE}')
        a(f's_mov_b32 exec_lo, 0x01010101\ns_mov_b32 exec_hi, 0x01010101\nbuffer_store_dword v5, v3, {WS}, s{sT2} offen sc1\ns_mov_b64 exec, -1')
        a(f's_waitcnt vmcnt(0)\ns_barrier\nv_mov_b32 v6, s{sFl0}\ns_mov_b32 s{sT2}, 1')
        flag_store(a, 6, 7, sT2, 1)
    late_start(a, cfg, gates)
    def cm(a, vd, vt2):
        a(f'v_cmp_lt_u32 vcc, 4, v{vd}\nv_lshlrev_b32 v{vd}, 5, v{vd}\nv_mov_b32 v{vt2}, 0x40000000\nv_cndmask_b32 v{vd}, v{vd}, v{vt2}, vcc')
    src_offsets(a, vA, vB, vt, 1280, cm)
    a(f'v_bfe_u32 v{vRd}, v0, 2, 3\nv_lshlrev_b32 v{vRd}, 5, v{vRd}\nv_and_b32 v{vt}, 3, v0\nv_lshl_add_u32 v{vRd}, v{vt}, 3, v{vRd}\nv_lshrrev_b32 v{vt}, 2, v0\nv_lshl_add_u32 v{vRd}, v{vt}, 8, v{vRd}')
    a(f's_and_b32 s{sT0}, s{sWave}, 3\ns_lshl_b32 s{sT0}, s{sT0}, 13\nv_add_u32 v{vRd}, s{sT0}, v{vRd}')
    def rd(n):
        def f(a, va):
            l = a.newlabel('wd')
            a(f's_cmp_ge_u32 s{sWave}, 4\ns_cbranch_scc{1 if n % 2 == 0 else 0} {l}')
            for t in range(5):
                a(f'v_xor_b32 v{vo}, {32 * t}, v{va}')
                for h in range(2): a(f'ds_read_b64_tr_b16 {A(20 * (n // 2) + 4 * t + 2 * h, 2)}, v{vo} offset:{4096 * h}')
            a(f'{l}:')
        return f
    chunks = [dict(pre=(lambda a: srd(a, 12, pWD, 1728 * 1280)) if n == 0 else None, soff=col_soff(1280, 160, sH)(n), stride=1280, reads=rd(n), var=lambda i: i & 1) for n in range(14)]
    loader(a, chunks, vA, vB, vRd, vRd2, vt, vo, claim=False)
    tstamp(a, cfg, 1, vt, vo)
    srd(a, 12, pOUT, 2048 * 1280)
    vL16, vFh, vFu, vFp, vUm, vUm2, vRr, vOo, vTmp, vRw = 1, 2, 3, 4, 5, 6, 7, 8, 9, 10
    vAcc = 12; vBuf = 32
    acc = lambda t, tt: V(vAcc + 4 * t, 4) if tt == 0 else A(140 + 4 * t, 4)
    sS = sI
    a(f'v_lshlrev_b32 v{vL16}, 4, v0')
    cpar = lambda nc: f's_and_b32 s{sT1}, s{sCp}, {nc - 1}'
    a(cpar(cfg.nc_ff1)); a(f's_lshl_b32 s{sT1}, s{sT1}, 7\ns_add_u32 s{sT1}, s{sT1}, {F_H}\nv_min_u32 v{vFh}, 13, v0\nv_lshlrev_b32 v{vFh}, 8, v{vFh}\nv_add_u32 v{vFh}, s{sT1}, v{vFh}')
    a(cpar(cfg.nc_vox)); a(f's_lshl_b32 s{sT1}, s{sT1}, 7\ns_lshl_b32 s{sT0}, s{sWave}, 10\ns_add_u32 s{sT1}, s{sT1}, s{sT0}\ns_add_u32 s{sT1}, s{sT1}, {F_UX}\nv_and_b32 v{vFu}, 3, v0\nv_lshlrev_b32 v{vFu}, 8, v{vFu}\nv_add_u32 v{vFu}, s{sT1}, v{vFu}')
    a(cpar(cfg.nc_qkx)); a(f's_lshl_b32 s{sT1}, s{sT1}, 7\ns_lshl_b32 s{sT0}, s{sWave}, 10\ns_add_u32 s{sT1}, s{sT1}, s{sT0}\ns_add_u32 s{sT1}, s{sT1}, {F_PX}')
    a(f'v_bfe_u32 v{vFp}, v0, 1, 2\nv_lshlrev_b32 v{vFp}, 8, v{vFp}\nv_and_b32 v{vTmp}, 1, v0\nv_lshl_add_u32 v{vFp}, v{vTmp}, 2, v{vFp}\nv_add_u32 v{vFp}, s{sT1}, v{vFp}')
    a(f's_lshl_b32 s{sT0}, s{sWave}, 10\ns_mul_i32 s{sT1}, s{sH}, {5 * 16384}\ns_add_u32 s{sT0}, s{sT0}, s{sT1}\nv_add_u32 v{vUm}, s{sT0}, v{vL16}')
    a(f's_mul_i32 s{sT0}, s{sWave}, 10240\nv_add_u32 v{vRw}, s{sT0}, v{vL16}')
    a(f's_lshl_b32 s{sT0}, s{sWave}, 6\nv_add_u32 v{vTmp}, s{sT0}, v0\nv_mul_u32_u24 v{vRr}, 6554, v{vTmp}\nv_lshrrev_b32 v{vRr}, 16, v{vRr}')
    a(f'v_mul_u32_u24 v{vOo}, 10, v{vRr}\nv_sub_u32 v{vTmp}, v{vTmp}, v{vOo}')
    a(f'v_mul_u32_u24 v{vOo}, 1280, v{vRr}\nv_lshl_add_u32 v{vOo}, v{vTmp}, 4, v{vOo}\ns_mul_i32 s{sT0}, s{sH}, 160\nv_add_u32 v{vOo}, s{sT0}, v{vOo}')
    a(f'v_lshrrev_b32 v{vUm2}, 4, v{vRr}\nv_and_b32 v{vRr}, 15, v{vRr}\nv_lshlrev_b32 v{vRr}, 4, v{vRr}\nv_lshl_add_u32 v{vRr}, v{vUm2}, 10, v{vRr}')
    a(f'v_lshrrev_b32 v{vUm2}, 1, v{vTmp}\nv_lshl_add_u32 v{vRr}, v{vUm2}, 11, v{vRr}\nv_and_b32 v{vUm2}, 1, v{vTmp}\nv_lshl_add_u32 v{vRr}, v{vUm2}, 9, v{vRr}')
    sU = [sbL, sbR, sbO, sCL, sCR]
    sM = [sCO, sPL, sPO, sNL, sNO]
    a(f's_lshl_b32 s{sT3}, s{sWave}, 2')
    ux_head(a, cfg, sT2, sT3)
    for t in range(5):
        a(f's_mul_i32 s{sT3}, s{sH}, 5\ns_add_u32 s{sT3}, s{sT3}, {t}\ns_mov_b32 s{sU[t]}, s{sT2}')
        ux_tile(a, cfg, sU[t], sT3)
        a(f's_lshl_b32 s{sT1}, s{sCp}, 15\ns_xor_b32 s{sU[t]}, s{sU[t]}, s{sT1}')
    a(f's_mov_b32 s{sS}, s{sCp}')
    sh = lambda nc: nc - 1
    a('L_FIN_loop:')
    um_seg(a, sM[0], sS)
    for t in range(1, 5): a(f's_add_u32 s{sM[t]}, s{sM[0]}, {t * 16384}')
    a(f's_lshr_b32 s{sT2}, s{sS}, {sh(cfg.nc_ff1)}\ns_add_u32 s{sT2}, s{sT2}, 1')
    spin_ge(a, vFh, vTmp, sT2, 8)
    a(f's_mul_i32 s{sT2}, s{sS}, {112 * 1024}\ns_lshl_b32 s{sT0}, s{sWave}, 11\ns_add_u32 s{sT2}, s{sT2}, s{sT0}\ns_add_u32 s{sT2}, s{sT2}, {HB}')
    for n in range(7):
        if n == 6:
            a(f's_cmp_ge_u32 s{sWave}, 6\ns_cselect_b32 s{sT0}, 0, 16384\ns_add_u32 s{sT2}, s{sT2}, s{sT0}')
        a(f'buffer_load_dwordx4 {V(vBuf + 8 * n, 4)}, v{vL16}, {WS}, s{sT2} offen sc1\nbuffer_load_dwordx4 {V(vBuf + 8 * n + 4, 4)}, v{vL16}, {WS}, s{sT2} offen offset:1024 sc1')
        if n < 5: a(f's_add_u32 s{sT2}, s{sT2}, 16384')
    for n in range(7):
        b = vBuf + 8 * n
        a(f's_waitcnt vmcnt({12 - 2 * n})')
        a(f'v_swap_b32 v{b + 2}, v{b + 4}\nv_swap_b32 v{b + 3}, v{b + 5}')
        for t in range(5):
            for tt in range(2):
                a(f'v_mfma_f32_16x16x32_bf16 {acc(t, tt)}, {A(20 * n + 4 * t, 4)}, {V(b + 4 * tt, 4)}, {"0" if n == 0 else acc(t, tt)}')
    a(f's_lshr_b32 s{sT2}, s{sS}, {sh(cfg.nc_vox)}\ns_add_u32 s{sT2}, s{sT2}, 1')
    spin_ge(a, vFu, vTmp, sT2, 8)
    ub = lambda k: vBuf + 28 * (k & 1)
    def ldU(k):
        for t in range(5): a(f'buffer_load_dwordx4 {V(ub(k) + 4 * t, 4)}, v{vL16}, {WS}, s{sU[t]} offen offset:{1024 * k} sc1')
    sP = sT3
    def ldP(k):
        for tt in range(2): a(f'buffer_load_dwordx4 {V(ub(k) + 20 + 4 * tt, 4)}, v{vL16}, {WS}, s{sP} offen offset:{2048 * (k & 1) + 1024 * tt} sc1')
        if k & 1: a(f's_add_u32 s{sP}, s{sP}, 4096')
    def mm(k):
        for t in range(5):
            for tt in range(2):
                a(f'v_mfma_f32_16x16x32_bf16 {acc(t, tt)}, {V(ub(k) + 4 * t, 4)}, {V(ub(k) + 20 + 4 * tt, 4)}, {acc(t, tt)}')
    ldU(0); ldU(1)
    a(f's_lshr_b32 s{sT2}, s{sS}, {sh(cfg.nc_qkx)}\ns_add_u32 s{sT2}, s{sT2}, 1')
    spin_ge(a, vFp, vTmp, sT2, 2)
    a(f's_lshl_b32 s{sP}, s{sS}, 16\ns_lshl_b32 s{sT0}, s{sWave}, 13\ns_add_u32 s{sP}, s{sP}, s{sT0}\ns_add_u32 s{sP}, s{sP}, {PXX}')
    a(f's_lshl_b32 s{sT4}, s{sS}, 14\ns_lshl_b32 s{sT0}, s{sWave}, 11\ns_add_u32 s{sT4}, s{sT4}, s{sT0}\ns_add_u32 s{sT4}, s{sT4}, {PXM}')
    ldP(0); ldP(1)
    a('s_waitcnt vmcnt(2)'); mm(0); ldU(2); ldP(2)
    a('s_waitcnt vmcnt(7)'); mm(1); ldU(3); ldP(3)
    a('s_waitcnt vmcnt(7)'); mm(2)
    ldM = [f'buffer_load_dwordx4 {V(ub(0) + 4 * t, 4)}, v{vUm}, {WS}, s{sM[t]} offen sc1' for t in range(5)]
    for tt in range(2): a(f'buffer_load_dwordx4 {V(ub(0) + 20 + 4 * tt, 4)}, v{vL16}, {WS}, s{sT4} offen offset:{1024 * tt} sc1')
    for l in ldM: a(l)
    a('s_waitcnt vmcnt(7)'); mm(3)
    poll(a, ldM, range(ub(0), ub(0) + 20), vTmp, first_issued=True)
    mm(0)
    a(f's_add_u32 s{sT0}, s{sS}, {NG}\ns_xor_b32 s{sT0}, s{sT0}, s{sS}\ns_lshl_b32 s{sT0}, s{sT0}, 15')
    for t in range(5): a(f's_xor_b32 s{sU[t]}, s{sU[t]}, s{sT0}')
    a('s_barrier')
    for t in range(5):
        for tt in range(2): a(f'ds_write_b128 v{vRw}, {acc(t, tt)} offset:{(2 * t + tt) * 1024}')
    a('s_waitcnt lgkmcnt(0)\ns_barrier')
    l = a.newlabel('fr')
    a(f's_cmp_ge_u32 s{sWave}, 5\ns_cbranch_scc1 {l}')
    a(f'v_add_u32 v{vTmp}, {4 * 10240}, v{vRr}')
    for w in range(8):
        for h in range(2): a(f'ds_read_b128 {V(vBuf + 8 * w + 4 * h, 4)}, v{vRr if w < 4 else vTmp} offset:{(w & 3) * 10240 + 256 * h}')
    for w in range(1, 8):
        a(f's_waitcnt lgkmcnt({min(15, 14 - 2 * w)})')
        for i in range(8): a(f'v_add_f32 v{vBuf + i}, v{vBuf + i}, v{vBuf + 8 * w + i}')
    for q in range(4): a(f'v_cvt_pk_bf16_f32 v{vBuf + q}, v{vBuf + 2 * q}, v{vBuf + 2 * q + 1}')
    a(f's_mul_i32 s{sT0}, s{sS}, {XBS}\nbuffer_store_dwordx4 {V(vBuf, 4)}, v{vOo}, {T1}, s{sT0} offen')
    a(f'{l}:')
    a(f's_add_u32 s{sS}, s{sS}, {NG}\ns_cmp_lt_u32 s{sS}, 64\ns_cbranch_scc1 L_FIN_loop')
    tstamp(a, cfg, 3, vt, vo)
    a('s_branch L_end')
```

```python
from core import *

MEMBUF = 0; XBUF = 10240; KBUF = 16384; RED = 32768
FL3 = 5120
FL1, FL2 = 7680, 7936
WB = 640 * 4096 * 2
vL16, vIdx, vXw, vNeg, vTmp, vTmp2 = 1, 2, 3, 4, 8, 9
vAcc = 16; vZ = 24; vU = 56; vM = 88
vA, vB, vRd, vRd2, vt, vo = 10, 11, 12, 13, 14, 15
R4 = lambda b, n=4: list(range(b, b + n))

def bases(a, cfg):
    a(f's_cmp_gt_u32 s{sT1}, s{sT0}\ns_cselect_b32 s{sPar}, ' + ('0x2000, 0' if cfg.force_par is None else '0, 0x2000'))
    a(f's_mul_i32 s{sT3}, s{sXr}, {XS}\ns_add_u32 s{sbR}, s{sT3}, s{sPar}\ns_xor_b32 s{sbL}, s{sbR}, 0x2000')
    a(f's_sub_u32 s{sT3}, {XS}, s{sT3}\ns_add_u32 s{sbO}, s{sT3}, s{sPar}')
    a(f's_mov_b32 s{sStep}, 0\ns_mov_b32 s{sCL}, s{sbL}\ns_mov_b32 s{sCR}, s{sbR}\ns_mov_b32 s{sCO}, s{sbO}')
    a(f'v_lshlrev_b32 v{vL16}, 4, v0')

def advance(a, cfg, lab):
    a(f's_add_u32 s{sStep}, s{sStep}, 1\ns_add_u32 s{sCL}, s{sCL}, {SL}\ns_add_u32 s{sCR}, s{sCR}, {SL}\ns_add_u32 s{sCO}, s{sCO}, {SL}')
    if lab: a(f's_cmp_lt_u32 s{sStep}, {cfg.nsteps}\ns_cbranch_scc1 {lab}')

def quad_base(a, sd, sq):
    a(f's_mul_i32 s{sd}, s{sq}, 2560\ns_add_u32 s{sd}, s{sd}, 16384\ns_cmp_eq_u32 s{sq}, 3\ns_cselect_b32 s{sd}, 5120, s{sd}')

def flag_ld(vF, va, nc):
    return '\n'.join(f'buffer_load_dword v{vF + c}, v{va}, {WS}, 0 offen offset:{128 * c} sc1' for c in range(nc))

def flag_wait(a, vF, ld, nc, sleep=0):
    top = a.newlabel('fw'); done = a.newlabel('fwd')
    a(f's_mov_b32 s{sSpin}, s{sLim}\ns_lshr_b32 s{sT5}, s{sT4}, {nc - 1}')
    a(f'{top}:')
    if nc == 2:
        a(f's_bitcmp1_b32 s{sT4}, 0\ns_cselect_b64 vcc, -1, 0')
        a(f'v_cndmask_b32 v{vTmp}, v{vF}, v{vF + 1}, vcc')
        a(f'v_cmp_ge_u32 vcc, s{sT5}, v{vTmp}')
    else:
        a(f'v_cmp_ge_u32 vcc, s{sT5}, v{vF}')
    a(f's_cbranch_vccz {done}')
    if sleep: a(f's_sleep {sleep}')
    a(ld)
    a('s_waitcnt vmcnt(0)')
    a(f's_sub_u32 s{sSpin}, s{sSpin}, 1\ns_cbranch_scc0 {top}\ns_mov_b32 s{sLim}, 0')
    a(f'{done}:')

def cue_wait(a, cfg, vaddr, regs, sval, sbase=sbL):
    top = a.newlabel('cue'); done = a.newlabel('cued')
    D = len(regs)
    ld = lambda r: a(f'buffer_load_dword v{r}, v{vaddr}, {WS}, s{sbase} offen sc1')
    a(f's_mov_b32 s{sSpin}, s{sLim}')
    for r in regs:
        ld(r)
        if r != regs[-1]: a(f's_nop {cfg.cgap}')
    a(f'{top}:')
    for r in regs:
        a(f's_waitcnt vmcnt({D - 1})')
        a(f'v_cmp_gt_i32 vcc, s{sval}, v{r}')
        a(f's_cbranch_vccz {done}')
        ld(r)
    a(f's_sub_u32 s{sSpin}, s{sSpin}, 1\ns_cbranch_scc0 {top}\ns_mov_b32 s{sLim}, 0')
    a(f'{done}:')

def cue_send(a, vaddr, vval):
    a('s_mov_b64 exec, 1')
    lstore(a, [f'buffer_store_dword v{vval}, v{vaddr}, {WS}, s{sbL} offen'])
    a('s_mov_b64 exec, -1')

def idx_setup(a):
    a(f'v_mov_b32 v{vIdx}, 0x4444\nv_mov_b32 v{vTmp}, 0xeeee\nv_and_b32 v{vTmp2}, 8, v0\nv_cmp_ne_u32 vcc, 0, v{vTmp2}')
    a(f'v_cndmask_b32 v{vIdx}, v{vIdx}, v{vTmp}, vcc')

def rot_soff(n, rot):
    def f(a):
        a(f's_lshl_b32 s{sT0}, s{sWave}, 4\ns_add_u32 s{sT0}, s{sT0}, {128 * n}')
        if rot:
            a(f's_mul_i32 s{sT1}, s{sXr}, 320\ns_add_u32 s{sT0}, s{sT0}, s{sT1}')
            a(f's_cmp_ge_u32 s{sT0}, 640\ns_cselect_b32 s{sT1}, 640, 0\ns_sub_u32 s{sT0}, s{sT0}, s{sT1}')
        a(f's_lshl_b32 s{sT0}, s{sT0}, 13\ns_lshl_b32 s{sT1}, s{sH}, 8\ns_add_u32 s{sT0}, s{sT0}, s{sT1}')
    return f

def role_R(a, cfg):
    a('L_R:')
    a(f's_cmp_lt_u32 s{sR}, 16\ns_cbranch_scc1 L_RQK')
    a(f's_sub_u32 s{sJ}, s{sR}, 16')
    a(f's_cmp_eq_u32 s{sJ}, 15\ns_cbranch_scc1 L_idle')
    a('s_waitcnt vmcnt(0)\ns_barrier')
    claim_issue(a, vt)
    wait_init(a, vt, vo, cfg.presleep)
    tstamp(a, cfg, 1, vt + 2, vo + 2)
    bases(a, cfg)
    a(f's_cmp_eq_u32 s{sJ}, 14\ns_cbranch_scc1 L_PF\ns_cmp_ge_u32 s{sJ}, 10\ns_cbranch_scc1 L_PZ')
    role_S2(a, cfg)
    role_PF(a, cfg)
    role_QK(a, cfg)
    role_VO(a, cfg)

def role_QK(a, cfg):
    a('L_RQK:')
    a(f's_lshl_b32 s{sH}, s{sXr}, 4\ns_add_u32 s{sH}, s{sH}, s{sR}')
    src_offsets(a, vA, vB, vt, 8192)
    tr_base(a, vRd, vt, sWave)
    chunks = []
    for m, p in enumerate((pWQ, pWK)):
        chunks += [dict(pre=(lambda a, p=p: srd(a, 12, p, WB)) if n == 0 else None, soff=rot_soff(n, True), stride=8192, reads=std_reads(80 * m + 16 * n)) for n in range(5)]
    loader(a, chunks, vA, vB, vRd, vRd2, vt, vo)
    tstamp(a, cfg, 1, vt, vo)
    wait_init(a, vt, vo)
    bases(a, cfg); idx_setup(a)
    vXr = 10
    a(f'v_and_b32 v{vXw}, 15, v0\nv_lshlrev_b32 v{vXw}, 5, v{vXw}\nv_lshrrev_b32 v{vTmp}, 4, v0\nv_lshl_add_u32 v{vXw}, v{vTmp}, 3, v{vXw}')
    a(f's_lshl_b32 s{sT0}, s{sWave}, 9\ns_add_u32 s{sT0}, s{sT0}, {XBUF}\nv_add_u32 v{vXw}, s{sT0}, v{vXw}')
    a(f'v_lshlrev_b32 v{vXr}, 3, v0')
    def zero_acc():
        for i in range(8): a(f'v_mov_b32 v{vAcc + i}, 0')
    def half(t0):
        for i in range(5): a(f'ds_read_b128 {V(vZ + 4 * i, 4)}, v{vL16} offset:{MEMBUF + (t0 + i) * 1024}')
        for i in range(5):
            a(f's_waitcnt lgkmcnt({4 - i})')
            a(f'v_smfmac_f32_16x16x64_bf16 {V(vAcc, 4)}, {V(vZ + 4 * i, 4)}, {A((t0 + i) * 8, 8)}, v{vIdx}')
            a(f'v_smfmac_f32_16x16x64_bf16 {V(vAcc + 4, 4)}, {V(vZ + 4 * i, 4)}, {A(80 + (t0 + i) * 8, 8)}, v{vIdx}')
    def epilogue1():
        b = vAcc
        for i in range(4): a(f'v_permlane32_swap_b32 v{b + i}, v{b + 4 + i}')
        for i in range(4): a(f'v_add_f32 v{b + i}, v{b + i}, v{b + 4 + i}')
        a(f'v_cvt_pk_bf16_f32 v{b}, v{b}, v{b + 1}\nv_cvt_pk_bf16_f32 v{b + 1}, v{b + 2}, v{b + 3}')
        a(f'ds_write_b64 v{vXw}, {V(vAcc, 2)}')
        a('s_waitcnt lgkmcnt(0)\ns_barrier')
    a(f's_cmp_lt_u32 s{sWave}, 4\ns_cbranch_scc1 L_QK_lo')
    a('L_QK_hi:')
    zero_acc()
    if cfg.qcue: a('s_barrier')
    a('s_barrier'); half(0)
    a('s_barrier'); half(5); epilogue1()
    if cfg.bg_late: a('s_barrier')
    a(f's_add_u32 s{sStep}, s{sStep}, 1\ns_cmp_lt_u32 s{sStep}, {cfg.nsteps}\ns_cbranch_scc1 L_QK_hi')
    a('s_branch L_end')
    a('L_QK_lo:')
    vM16, vM4, vPs, vKr, vKf, vKs, vCs, vC2 = [vM + i for i in range(8)]
    vCv, vMask = 11, 12
    vPL = vZ + 20; vPR = vZ + 26
    vCr = [vU + i for i in range(cfg.cdepth)]
    a(f's_mul_i32 s{sT0}, s{sWave}, 1280\nv_add_u32 v{vM16}, s{sT0}, v{vL16}\ns_add_u32 s{sT0}, s{sT0}, 1024\nv_lshlrev_b32 v{vM4}, 2, v0\nv_add_u32 v{vM4}, s{sT0}, v{vM4}')
    a(f's_bfe_u32 s{sT1}, s{sH}, 0x20002')
    quad_base(a, sT0, sT1)
    a(f's_and_b32 s{sT1}, s{sH}, 3\ns_mul_i32 s{sT1}, s{sT1}, 640\ns_add_u32 s{sT0}, s{sT0}, s{sT1}')
    a(f'v_and_b32 v{vKs}, 7, v0\nv_lshlrev_b32 v{vKs}, 4, v{vKs}\nv_lshrrev_b32 v{vTmp}, 4, v0\nv_lshl_add_u32 v{vKs}, v{vTmp}, 7, v{vKs}')
    a(f'v_bfe_u32 v{vTmp}, v0, 3, 1\nv_lshl_add_u32 v{vPs}, v{vTmp}, 8, v{vKs}\nv_add_u32 v{vPs}, s{sT0}, v{vPs}')
    a(f's_mov_b32 s{sEx}, 0\ns_mov_b32 s{sEx + 1}, 0x00ff00ff')
    a(f'v_mov_b32 v{vTmp}, 0xff7fffff\nv_mov_b32 v{vTmp2}, 0')
    for i in range(4): a(f'v_cndmask_b32 v{vMask + i}, v{vTmp}, v{vTmp2}, s[{sEx}:{sEx + 1}]')
    a(f's_mov_b32 s{sEx}, 0x00ff00ff\ns_mov_b32 s{sEx + 1}, 0x00ffffff')
    a(f's_mov_b32 s{sEx2}, 0xff00ff00\ns_mov_b32 s{sEx2 + 1}, 0xff00ff00')
    a(f's_mov_b32 s{sC}, {f2u(128 ** -0.5 * 1.4426950408889634)}')
    a(f's_lshl_b32 s{sT1}, s{sH}, 8\ns_add_u32 s{sT1}, s{sT1}, {F_KX}\nv_mov_b32 v{vKf}, s{sT1}')
    a(f's_lshl_b32 s{sSeg2}, s{sH}, 11\ns_add_u32 s{sSeg2}, s{sSeg2}, {KM}')
    a(f'v_add_u32 v{vKr}, {KBUF}, v{vL16}')
    a(f'v_min_u32 v{vC2}, 9, v0\nv_lshlrev_b32 v{vC2}, 2, v{vC2}\nv_add_u32 v{vC2}, {FL2}, v{vC2}')
    a(f's_lshl_b32 s{sT0}, s{sR}, 2\ns_add_u32 s{sT0}, s{sT0}, {FL1}\nv_mov_b32 v{vCs}, s{sT0}')
    vKF = vU
    sK, sKm = sFl0, sFl1
    a(f's_lshl_b32 s{sK}, s{sH}, 19\ns_add_u32 s{sK}, s{sK}, {KX}\ns_mov_b32 s{sKm}, {KBUF}')
    ldK = flag_ld(vKF, vKf, cfg.nc_qkx)
    def kx_dma():
        flag_wait(a, vKF, ldK, cfg.nc_qkx)
        for hh in range(2):
            a(f's_mov_b32 m0, s{sKm}')
            for i in range(4): a(f'buffer_load_dwordx4 v{vL16}, {WS}, s{sK} offen offset:{1024 * i} sc1 lds')
            a(f's_add_u32 s{sK}, s{sK}, 4096\ns_add_u32 s{sKm}, s{sKm}, 4096')
        a(ldK)
        a(f's_and_b32 s{sKm}, s{sKm}, 0x3fff\ns_or_b32 s{sKm}, s{sKm}, {KBUF}')
    a(f's_cmp_lg_u32 s{sWave}, 3\ns_cbranch_scc1 L_QK_lo_go')
    a(f'v_mov_b32 v{vKF}, 0\nv_mov_b32 v{vKF + 1}, 0\ns_mov_b32 s{sT4}, 0')
    kx_dma()
    a('L_QK_lo_go:')
    tstamp(a, cfg, 2, vTmp, vTmp2)
    a('L_QK_lo_loop:')
    fstamp(a, cfg, 0)
    zero_acc()
    a(f'v_mov_b32 v{vCv}, s{sStep}')
    ldL = [f'buffer_load_dwordx4 {V(vPL, 4)}, v{vM16}, {WS}, s{sCL} offen sc1', f'buffer_load_dword v{vPL + 4}, v{vM4}, {WS}, s{sCL} offen sc1']
    ldR = [f'buffer_load_dwordx4 {V(vPR, 4)}, v{vM16}, {WS}, s{sCR} offen sc1', f'buffer_load_dword v{vPR + 4}, v{vM4}, {WS}, s{sCR} offen sc1']
    wrL = lambda: a(f'ds_write_b128 v{vM16}, {V(vPL, 4)} offset:{MEMBUF}\nds_write_b32 v{vM4}, v{vPL + 4} offset:{MEMBUF}')
    if cfg.qcue:
        lc = a.newlabel('c2')
        a(f's_cmp_lg_u32 s{sWave}, 2\ns_cbranch_scc1 {lc}')
        cue_wait(a, cfg, vC2, vCr, sStep)
        a(f'{lc}:')
        a('s_setprio 3\ns_barrier')
        fstamp(a, cfg, 1)
        for l in ldL: a(l)
        a('s_setprio 0')
        for l in ldR: a(l)
        poll(a, ldL, R4(vPL, 5), vTmp, first_issued=True, first_wait=2, spec=wrL, specwait=True)
        a('s_waitcnt lgkmcnt(0)\ns_barrier')
    else:
        poll(a, ldL, R4(vPL, 5), vTmp, spec=wrL, specwait=True)
        fstamp(a, cfg, 1)
        a('s_waitcnt lgkmcnt(0)\ns_barrier')
        for l in ldR: a(l)
    fstamp(a, cfg, 2)
    half(0)
    lk = a.newlabel('kr')
    a(f's_cmp_lg_u32 s{sWave}, 0\ns_cbranch_scc1 {lk}')
    for i in range(8): a(f'ds_read_b128 {V(vU + 4 * i, 4)}, v{vKr} offset:{1024 * i}')
    a(f'v_xor_b32 v{vKr}, 0x2000, v{vKr}')
    a(f'{lk}:')
    fstamp(a, cfg, 3)
    poll(a, ldR, R4(vPR, 5), vTmp, first_issued=True,
         spec=lambda: a(f'ds_write_b128 v{vM16}, {V(vPR, 4)} offset:{MEMBUF + 5120}\nds_write_b32 v{vM4}, v{vPR + 4} offset:{MEMBUF + 5120}'), specwait=True)
    fstamp(a, cfg, 4)
    a('s_waitcnt lgkmcnt(0)\ns_barrier')
    fstamp(a, cfg, 5)
    half(5)
    epilogue1()
    fstamp(a, cfg, 6)
    a(f's_cmp_lg_u32 s{sWave}, 0\ns_cbranch_scc1 L_QK_w123')
    vX = vZ
    for ks in range(4):
        for h in range(2): a(f'ds_read_b64_tr_b16 {V(vX + 4 * ks + 2 * h, 2)}, v{vXr} offset:{XBUF + ks * 1024 + h * 512}')
    a('s_setprio 3')
    T0, T1_, M_ = vZ + 16, vZ + 20, vZ + 24
    for ks in range(4):
        a(f's_waitcnt lgkmcnt({6 - 2 * ks})')
        a(f'v_mfma_f32_16x16x32_bf16 {V(M_, 4)}, {V(vX + 4 * ks, 4)}, {V(vX + 4 * ks, 4)}, {V(vMask, 4) if ks == 0 else V(M_, 4)}')
        a(f'v_mfma_f32_16x16x32_bf16 {V(T1_, 4)}, {V(vU + 16 + 4 * ks, 4)}, {V(vX + 4 * ks, 4)}, {"0" if ks == 0 else V(T1_, 4)}')
        a(f'v_mfma_f32_16x16x32_bf16 {V(T0, 4)}, {V(vU + 4 * ks, 4)}, {V(vX + 4 * ks, 4)}, {"0" if ks == 0 else V(T0, 4)}')
    mx, t2 = vTmp, vTmp2
    if cfg.cpos1 == 0:
        cue_send(a, vCs, vCv); a('s_nop 3')
    a(f'v_max3_f32 v{mx}, v{M_}, v{M_ + 1}, v{M_ + 2}\nv_max_f32 v{mx}, v{mx}, v{M_ + 3}')
    for i in range(4): a(f'v_mov_b32_dpp v{T0 + i}, v{T1_ + i} row_shr:8 row_mask:0xf bank_mask:0xc')
    def allred(op):
        a(f'{op}_dpp v{mx}, v{mx}, v{mx} row_ror:8 row_mask:0xf bank_mask:0xf')
        a(f'v_mov_b32 v{t2}, v{mx}\nv_permlane32_swap_b32 v{mx}, v{t2}\n{op} v{mx}, v{mx}, v{t2}')
        a(f'v_mov_b32 v{t2}, v{mx}\nv_permlane16_swap_b32 v{mx}, v{t2}\n{op} v{mx}, v{mx}, v{t2}')
    a(f'v_max3_f32 v{mx}, v{mx}, v{T0}, v{T0 + 1}\nv_max3_f32 v{mx}, v{mx}, v{T0 + 2}, v{T0 + 3}')
    allred('v_max_f32')
    if cfg.cpos1 == 1: cue_send(a, vCs, vCv)
    a(f'v_mul_f32 v{mx}, s{sC}, v{mx}')
    E = [T0 + i for i in range(4)] + [M_ + i for i in range(4)]
    for r in E: a(f'v_fma_f32 v{r}, v{r}, s{sC}, -v{mx}')
    for r in E: a(f'v_exp_f32 v{r}, v{r}')
    a(f'v_add_f32 v{mx}, v{E[0]}, v{E[1]}\nv_add_f32 v{t2}, v{E[2]}, v{E[3]}\nv_add_f32 v{mx}, v{mx}, v{E[4]}\nv_add_f32 v{t2}, v{t2}, v{E[5]}')
    a(f'v_add_f32 v{mx}, v{mx}, v{E[6]}\nv_add_f32 v{t2}, v{t2}, v{E[7]}\nv_add_f32 v{mx}, v{mx}, v{t2}')
    if cfg.cpos1 == 2: cue_send(a, vCs, vCv)
    allred('v_add_f32')
    if cfg.cpos1 == 3: cue_send(a, vCs, vCv)
    a(f'v_rcp_f32 v{mx}, v{mx}')
    for r in reversed(E): a(f'v_mul_f32 v{r}, v{r}, v{mx}')
    a(f'v_cvt_pk_bf16_f32 v{M_}, v{M_}, v{M_ + 1}\nv_cvt_pk_bf16_f32 v{M_ + 1}, v{M_ + 2}, v{M_ + 3}')
    a(f'v_cvt_pk_bf16_f32 v{T0}, v{T0}, v{T0 + 1}\nv_cvt_pk_bf16_f32 v{T0 + 1}, v{T0 + 2}, v{T0 + 3}')
    a(f'v_permlane16_swap_b32 v{M_}, v{M_ + 2}\nv_permlane16_swap_b32 v{M_ + 1}, v{M_ + 3}')
    a(f'v_mov_b32_dpp v{T0 + 2}, v{T0} row_shl:8 row_mask:0xf bank_mask:0x3\nv_mov_b32_dpp v{T0 + 3}, v{T0 + 1} row_shl:8 row_mask:0xf bank_mask:0x3')
    for i in range(4): a(f'v_mov_b32_dpp v{T0 + i}, v{M_ + i} row_shr:8 row_mask:0x4 bank_mask:0xc')
    fstamp(a, cfg, 7)
    a(f's_mov_b64 exec, s[{sEx}:{sEx + 1}]')
    lstore(a, [f'buffer_store_dwordx4 {V(T0, 4)}, v{vPs}, {WS}, s{sCL} offen'])
    a(f'buffer_store_dwordx4 {V(T0, 4)}, v{vPs}, {WS}, s{sCO} offen sc1')
    a('s_mov_b64 exec, -1')
    if cfg.cpos1 == 4: cue_send(a, vCs, vCv)
    a('s_setprio 0')
    if cfg.bg_late: a('s_barrier')
    a('s_branch L_QK_lo_tail')
    a('L_QK_w123:')
    if cfg.bg_late: a('s_barrier')
    a(f's_cmp_eq_u32 s{sWave}, 1\ns_cbranch_scc1 L_QK_w1')
    a(f's_cmp_eq_u32 s{sWave}, 2\ns_cbranch_scc1 L_QK_lo_tail')
    a(f's_add_u32 s{sT4}, s{sStep}, 1\ns_cmp_ge_u32 s{sT4}, 64\ns_cbranch_scc1 L_QK_lo_tail')
    kx_dma()
    a('s_branch L_QK_lo_tail')
    a('L_QK_w1:')
    for ks in range(4):
        for h in range(2): a(f'ds_read_b64_tr_b16 {V(vU + 4 * ks + 2 * h, 2)}, v{vXr} offset:{XBUF + ks * 1024 + h * 512}')
    a(f's_waitcnt lgkmcnt(0)\ns_mov_b64 exec, s[{sEx2}:{sEx2 + 1}]')
    for ks in range(4): a(f'buffer_store_dwordx4 {V(vU + 4 * ks, 4)}, v{vKs}, {WS}, s{sSeg2} offen offset:{512 * ks} sc1')
    a(f's_mov_b64 exec, -1\ns_add_u32 s{sSeg2}, s{sSeg2}, {32 * 2048}')
    a('L_QK_lo_tail:')
    fstamp(a, cfg, 8)
    advance(a, cfg, 'L_QK_lo_loop')
    tstamp(a, cfg, 3, vTmp, vTmp2)
    fdump(a, cfg, vTmp, vTmp2)
    a('s_branch L_end')

def role_VO(a, cfg):
    a('L_RVO:')
    a(f's_mov_b32 s{sH}, s{sR}')
    src_offsets(a, vA, vB, vt, 8192)
    tr_base(a, vRd, vt, sWave)
    chunks = [dict(pre=(lambda a: srd(a, 12, pWV, WB)) if n == 0 else None, soff=rot_soff(n, False), stride=8192, reads=std_reads(16 * n)) for n in range(5)]
    vW3 = 64
    vRdP = 16
    a(f's_and_b32 s{sT0}, s{sWave}, 3\ns_lshl_b32 s{sT0}, s{sT0}, 1')
    a(f'v_bfe_u32 v{vRdP}, v0, 3, 1\nv_or_b32 v{vRdP}, s{sT0}, v{vRdP}')
    a(f'v_bfe_u32 v{vt}, v0, 2, 1\nv_lshlrev_b32 v{vt}, 1, v{vt}\nv_xor_b32 v{vRdP}, v{vRdP}, v{vt}')
    a(f'v_bfe_u32 v{vt}, v0, 4, 1\nv_lshlrev_b32 v{vt}, 2, v{vt}\nv_xor_b32 v{vRdP}, v{vRdP}, v{vt}\nv_lshlrev_b32 v{vRdP}, 5, v{vRdP}')
    a(f'v_and_b32 v{vt}, 3, v0\nv_lshl_add_u32 v{vRdP}, v{vt}, 3, v{vRdP}')
    a(f'v_bfe_u32 v{vt}, v0, 2, 1\nv_lshl_add_u32 v{vRdP}, v{vt}, 8, v{vRdP}')
    a(f'v_lshrrev_b32 v{vt}, 4, v0\nv_lshl_add_u32 v{vRdP}, v{vt}, 10, v{vRdP}')
    def pre(a):
        srd(a, 12, pWO, WB)
        for var, vd in ((0, vA), (1, vB)):
            a(f'v_bfe_u32 v{vt}, v0, 4, 1\nv_lshlrev_b32 v{vt}, 1, v{vt}')
            if var: a(f'v_or_b32 v{vt}, 4, v{vt}')
            a(f'v_bfe_u32 v{vd}, v0, 1, 3\nv_xor_b32 v{vd}, v{vd}, v{vt}\nv_lshlrev_b32 v{vd}, 5, v{vd}')
            a(f'v_and_b32 v{vt}, 1, v0\nv_lshl_add_u32 v{vd}, v{vt}, 4, v{vd}')
            a(f'v_lshrrev_b32 v{vt}, 4, v0\nv_mul_u32_u24 v{vt}, 1280, v{vt}\nv_add_u32 v{vd}, v{vd}, v{vt}')
    so = lambda c: (lambda a: a(f's_lshl_b32 s{sT0}, s{sH}, 7\ns_lshl_b32 s{sT1}, s{sWave}, 4\ns_add_u32 s{sT0}, s{sT0}, s{sT1}\ns_mul_i32 s{sT0}, s{sT0}, 1280\ns_add_u32 s{sT0}, s{sT0}, {256 * c}'))
    def rd(c):
        def f(a, va):
            l = a.newlabel('wo')
            a(f's_cmp_ge_u32 s{sWave}, 4\ns_cbranch_scc{1 if c < 3 else 0} {l}')
            for k in range(4):
                for hb in range(2):
                    for al in range(2):
                        o = 8 * k + 4 * hb + 2 * al
                        dst = V(vW3 + o, 2) if c == 2 else A(80 + 32 * (c % 3) + o, 2)
                        a(f'ds_read_b64_tr_b16 {dst}, v{va} offset:{(32 * k + 16 * hb + 2 * al) * 256}')
            a(f'{l}:')
        return f
    chunks += [dict(pre=pre if c == 0 else None, soff=so(c), stride=1280, reads=rd(c), var=lambda i: i & 1, vrd=vRdP) for c in range(5)]
    loader(a, chunks, vA, vB, vRd, vRd2, vt, vo)
    tstamp(a, cfg, 1, vt, vo)
    wait_init(a, vt, vo)
    bases(a, cfg); idx_setup(a)
    vXr, vUg, vUg3, vG16, vG4, vM16, vM4 = 10, 11, 12, 13, 14, 15, 4
    a(f'v_and_b32 v{vXw}, 15, v0\nv_lshlrev_b32 v{vXw}, 4, v{vXw}')
    a(f'v_bfe_u32 v{vTmp}, v0, 4, 1\nv_lshl_add_u32 v{vXw}, v{vTmp}, 3, v{vXw}')
    a(f'v_lshrrev_b32 v{vTmp}, 5, v0\nv_lshl_add_u32 v{vXw}, v{vTmp}, 2, v{vXw}')
    a(f's_lshl_b32 s{sT0}, s{sWave}, 8\ns_add_u32 s{sT0}, s{sT0}, {XBUF}\nv_add_u32 v{vXw}, s{sT0}, v{vXw}')
    a(f'v_and_b32 v{vXr}, 1, v0\nv_lshlrev_b32 v{vXr}, 3, v{vXr}\nv_bfe_u32 v{vTmp}, v0, 2, 2\nv_lshl_add_u32 v{vXr}, v{vTmp}, 4, v{vXr}')
    a(f'v_lshrrev_b32 v{vTmp}, 4, v0\nv_lshl_add_u32 v{vXr}, v{vTmp}, 7, v{vXr}')
    def um_offs(vglob, spair, two):
        a(f'v_and_b32 v{vglob}, 15, v0\nv_lshlrev_b32 v{vglob}, 4, v{vglob}')
        if two: a(f'v_bfe_u32 v{vTmp}, v0, 4, 1\nv_lshl_add_u32 v{vglob}, v{vTmp}, 23, v{vglob}')
        a(f'v_lshrrev_b32 v{vTmp}, 5, v0\nv_lshl_add_u32 v{vglob}, v{vTmp}, 20, v{vglob}')
        a(f's_lshl_b32 s{sT0}, s{spair}, 21\ns_and_b32 s{sT1}, s{spair}, 1\ns_lshl_b32 s{sT1}, s{sT1}, 13\ns_xor_b32 s{sT1}, s{sT1}, s{sPar}\ns_add_u32 s{sT0}, s{sT0}, s{sT1}')
        a(f's_lshl_b32 s{sT1}, s{sH}, 8\ns_add_u32 s{sT0}, s{sT0}, s{sT1}\nv_add_u32 v{vglob}, s{sT0}, v{vglob}')
    assert UM % (4 * MB) == 0
    a(f's_add_u32 s{sT3}, s{sWave}, 8\ns_cmp_lt_u32 s{sWave}, 4\ns_cselect_b32 s{sT2}, s{sWave}, s{sT3}')
    um_offs(vUg, sT2, True)
    um_offs(vUg3, sT3, False)
    a(f's_mov_b32 s{sEx}, 0xffff\ns_mov_b32 s{sEx + 1}, 0xffff\ns_mov_b32 s{sSeg2}, {UM}')
    a(f's_mul_i32 s{sT0}, s{sWave}, 1280\nv_add_u32 v{vM16}, s{sT0}, v{vL16}\ns_add_u32 s{sT0}, s{sT0}, 1024\nv_lshlrev_b32 v{vM4}, 2, v0\nv_add_u32 v{vM4}, s{sT0}, v{vM4}')
    a(f's_lshr_b32 s{sT0}, s{sWave}, 2\ns_mul_i32 s{sT0}, s{sT0}, {16384 - 5120}\nv_add_u32 v{vG16}, s{sT0}, v{vM16}\nv_add_u32 v{vG4}, s{sT0}, v{vM4}')
    a(f'v_min_u32 v5, 19, v0\nv_lshlrev_b32 v5, 7, v5\nv_add_u32 v5, {FL3}, v5')
    tstamp(a, cfg, 2, vTmp, vTmp2)
    for np_, lab in ((3, 'L_VO_lo'), (2, 'L_VO_hi')):
        if np_ == 3: a(f's_cmp_ge_u32 s{sWave}, 4\ns_cbranch_scc1 L_VO_hi')
        a(f'{lab}:')
        fstamp(a, cfg, 0)
        for i in range(4): a(f'v_mov_b32 v{vAcc + i}, 0')
        vP = vZ
        ld = [f'buffer_load_dwordx4 {V(vP, 4)}, v{vG16}, {WS}, s{sCR} offen sc1', f'buffer_load_dword v{vP + 4}, v{vG4}, {WS}, s{sCR} offen sc1']
        if cfg.vcue:
            if np_ == 2:
                lc = a.newlabel('c3')
                a(f's_cmp_lg_u32 s{sWave}, 7\ns_cbranch_scc1 {lc}')
                cue_wait(a, cfg, 5, [64 + i for i in range(cfg.cdepth)], sStep, sbR)
                for i in range(cfg.cdel3): a('s_nop 7')
                a(f'{lc}:')
            a('s_barrier')
        poll(a, ld, R4(vP, 5), vTmp, spec=lambda: a(f'ds_write_b128 v{vM16}, {V(vP, 4)} offset:{MEMBUF}\nds_write_b32 v{vM4}, v{vP + 4} offset:{MEMBUF}'), specwait=True)
        fstamp(a, cfg, 1)
        a('s_waitcnt lgkmcnt(0)\ns_barrier')
        fstamp(a, cfg, 2)
        for i in range(10): a(f'ds_read_b128 {V(vZ + 4 * i, 4)}, v{vL16} offset:{MEMBUF + i * 1024}')
        for i in range(10):
            a(f's_waitcnt lgkmcnt({9 - i})')
            a(f'v_smfmac_f32_16x16x64_bf16 {V(vAcc, 4)}, {V(vZ + 4 * i, 4)}, {A(i * 8, 8)}, v{vIdx}')
        for i in range(8): a(f'v_mov_b32 v{vZ + i}, 0')
        a(f'v_permlane32_swap_b32 v{vAcc}, v{vAcc + 2}\nv_permlane32_swap_b32 v{vAcc + 1}, v{vAcc + 3}')
        a(f'v_add_f32 v{vAcc}, v{vAcc}, v{vAcc + 2}\nv_add_f32 v{vAcc + 1}, v{vAcc + 1}, v{vAcc + 3}')
        a(f'v_cvt_pk_bf16_f32 v{vAcc}, v{vAcc}, v{vAcc + 1}')
        a(f'ds_write_b32 v{vXw}, v{vAcc}')
        for i in range(8, 4 * np_): a(f'v_mov_b32 v{vZ + i}, 0')
        a('s_waitcnt lgkmcnt(0)\ns_barrier')
        fstamp(a, cfg, 6)
        vV = vZ + 12
        for k in range(4):
            for al in range(2): a(f'ds_read_b64_tr_b16 {V(vV + 4 * k + 2 * al, 2)}, v{vXr} offset:{XBUF + k * 512 + al * 64}')
        for k in range(4):
            a(f's_waitcnt lgkmcnt({6 - 2 * k})')
            for p in range(np_):
                w = V(vW3 + 8 * k, 8) if p == 2 else A(80 + 32 * p + 8 * k, 8)
                a(f'v_smfmac_f32_16x16x64_bf16 {V(vZ + 4 * p, 4)}, {V(vV + 4 * k, 4)}, {w}, v{vIdx}')
        o = vAcc
        for p in range(np_):
            a(f'v_cvt_pk_bf16_f32 v{o + 2 * p}, v{vZ + 4 * p}, v{vZ + 4 * p + 1}\nv_cvt_pk_bf16_f32 v{o + 2 * p + 1}, v{vZ + 4 * p + 2}, v{vZ + 4 * p + 3}')
        a(f'v_permlane16_swap_b32 v{o}, v{o + 2}\nv_permlane16_swap_b32 v{o + 1}, v{o + 3}')
        if np_ == 3: a(f'v_permlane16_swap_b32 v{o + 4}, v{o + 6}\nv_permlane16_swap_b32 v{o + 5}, v{o + 7}')
        a(f'buffer_store_dwordx4 {V(o, 4)}, v{vUg}, {WS}, s{sSeg2} offen sc1')
        if np_ == 3:
            a(f's_mov_b64 exec, s[{sEx}:{sEx + 1}]\nbuffer_store_dwordx4 {V(o + 4, 4)}, v{vUg3}, {WS}, s{sSeg2} offen sc1\ns_mov_b64 exec, -1')
        fstamp(a, cfg, 7)
        a(f's_add_u32 s{sSeg2}, s{sSeg2}, 16384')
        if cfg.vo_sleep: a(f's_sleep {cfg.vo_sleep}')
        advance(a, cfg, lab)
        tstamp(a, cfg, 3, vTmp, vTmp2)
        fdump(a, cfg, vTmp, vTmp2)
        a('s_branch L_end')

def role_S2(a, cfg):
    a('L_S2:')
    NST = cfg.nsteps - 1
    a(f's_cmp_eq_u32 s{sWave}, 4\ns_cbranch_scc1 L_S2_poll\ns_cmp_eq_u32 s{sWave}, 7\ns_cbranch_scc1 L_S2_cue\ns_cmp_gt_u32 s{sWave}, 4\ns_cbranch_scc1 L_S2_red')
    vP0, vPm, vUm, vUm2, vRw, vFa, vFl = 10, 11, 12, 13, 14, 15, 6
    PL0, PR0, Pm, Um = 16, 24, 32, 36
    A1, A2 = 52, 68
    quad_base(a, sT0, sWave)
    a(f'v_and_b32 v{vTmp}, 7, v0\nv_lshlrev_b32 v{vTmp}, 4, v{vTmp}\nv_add_u32 v{vTmp}, s{sT0}, v{vTmp}\nv_lshrrev_b32 v{vTmp2}, 4, v0')
    a(f'v_lshl_add_u32 v{vP0}, v{vTmp2}, 7, v{vTmp}\nv_mul_u32_u24 v{vTmp2}, 640, v{vTmp2}\nv_add_u32 v{vPm}, v{vTmp}, v{vTmp2}\nv_add_u32 v{vPm}, 512, v{vPm}')
    a(f'v_bfe_u32 v{vTmp2}, v0, 3, 1\nv_mul_u32_u24 v{vTmp2}, 640, v{vTmp2}\nv_add_u32 v{vP0}, v{vP0}, v{vTmp2}')
    a(f'v_and_b32 v{vTmp}, 8, v0\nv_lshlrev_b32 v{vTmp}, 10, v{vTmp}\nv_xor_b32 v{vTmp}, s{sPar}, v{vTmp}\nv_xor_b32 v{vTmp}, 0x2000, v{vTmp}\nv_add_u32 v{vPm}, v{vPm}, v{vTmp}')
    a(f's_lshl_b32 s{sT1}, s{sWave}, 10\ns_add_u32 s{sT1}, s{sT1}, {RED}\nv_add_u32 v{vRw}, s{sT1}, v{vL16}')
    a(f's_mul_i32 s{sT2}, s{sXr}, 10\ns_add_u32 s{sT2}, s{sT2}, s{sJ}')
    a(f's_lshl_b32 s{sT0}, s{sT2}, 21\ns_and_b32 s{sT1}, s{sT2}, 1\ns_lshl_b32 s{sT1}, s{sT1}, 13\ns_xor_b32 s{sT1}, s{sT1}, s{sPar}\ns_add_u32 s{sT0}, s{sT0}, s{sT1}')
    a(f's_lshl_b32 s{sT1}, s{sWave}, 10\ns_add_u32 s{sT0}, s{sT0}, s{sT1}\ns_lshl_b32 s{sT1}, s{sXr}, 12\ns_add_u32 s{sT0}, s{sT0}, s{sT1}')
    a(f'v_add_u32 v{vUm}, s{sT0}, v{vL16}\nv_xor_b32 v{vUm2}, 0x1000, v{vUm}\ns_mov_b32 s{sSeg2}, {UM}')
    a(f's_lshl_b32 s{sSeg}, s{sT2}, 22\ns_lshl_b32 s{sT0}, s{sWave}, 12\ns_add_u32 s{sSeg}, s{sSeg}, s{sT0}\ns_lshl_b32 s{sT0}, s{sXr}, 14\ns_add_u32 s{sSeg}, s{sSeg}, s{sT0}\ns_add_u32 s{sSeg}, s{sSeg}, {UX}')
    a(f'v_and_b32 v{vFa}, 3, v0\nv_bfe_u32 v{vTmp}, v0, 2, 1\nv_lshl_add_u32 v{vFa}, v{vTmp}, 4, v{vFa}\nv_lshlrev_b32 v{vFa}, 8, v{vFa}')
    a(f's_lshl_b32 s{sT0}, s{sWave}, 10\ns_add_u32 s{sT0}, s{sT0}, {F_UX}\nv_add_u32 v{vFa}, s{sT0}, v{vFa}')
    a(f'v_mov_b32 v{vFl}, 0\nv_mov_b32 v{vFl + 1}, 0')
    vC3, vC3v = 4, 5
    a(f's_lshl_b32 s{sT0}, s{sT2}, 7\ns_add_u32 s{sT0}, s{sT0}, s{sPar}\ns_add_u32 s{sT0}, s{sT0}, {2 * XS + FL3}\nv_mov_b32 v{vC3}, s{sT0}\nv_mov_b32 v{vC3v}, 0')
    def cue3(pos):
        if not cfg.vcue or (pos is not None and cfg.cpos3 != pos): return
        l = a.newlabel('c3')
        a(f's_cmp_lg_u32 s{sWave}, 0\ns_cbranch_scc1 {l}\ns_mov_b64 exec, 1\nbuffer_store_dword v{vC3v}, v{vC3}, {WS}, 0 offen sc1\ns_mov_b64 exec, -1\n{l}:')
    ldU = flag_ld(vFl, vFa, cfg.nc_vox)
    a('s_barrier\ns_barrier')
    cue3(None)
    a(f's_mov_b32 s{sT4}, 0')
    flag_wait(a, vFl, ldU, cfg.nc_vox, 2)
    tstamp(a, cfg, 2, vTmp, vTmp2)
    a('L_S2_loop:')
    fstamp(a, cfg, 0)
    if not cfg.no_ux:
        for t in range(2):
            for hf in range(2):
                if t or hf: a(f's_xor_b32 s{sT0}, s{sSeg}, {hf * 0x4000 + t * 2 * MB}')
                for i in range(4):
                    a(f'buffer_load_dwordx4 {A(32 * t + 16 * hf + 4 * i, 4)}, v{vL16}, {WS}, s{sT0 if (t or hf) else sSeg} offen offset:{1024 * i} sc1')
    a(ldU)
    a(f's_add_u32 s{sSeg}, s{sSeg}, 32768\ns_add_u32 s{sT4}, s{sStep}, 1\ns_waitcnt vmcnt(0)')
    fstamp(a, cfg, 1)
    flag_wait(a, vFl, ldU, cfg.nc_vox)
    l = a.newlabel('pz'); top = a.newlabel('pz')
    a(f's_cmp_lg_u32 s{sStep}, {NPRE - 4}\ns_cbranch_scc1 {l}')
    a(f'v_and_b32 v{vTmp2}, 7, v0\nv_lshlrev_b32 v{vTmp2}, 8, v{vTmp2}\nv_add_u32 v{vTmp2}, {F_PZ}, v{vTmp2}\ns_mov_b32 s{sSpin}, s{sLim}')
    a(f'{top}:\nbuffer_load_dword v{vTmp}, v{vTmp2}, {WS}, 0 offen sc1\ns_waitcnt vmcnt(0)\nv_cmp_eq_u32 vcc, 0, v{vTmp}\ns_cbranch_vccz {l}')
    a(f's_sub_u32 s{sSpin}, s{sSpin}, 1\ns_cbranch_scc0 {top}\ns_mov_b32 s{sLim}, 0\n{l}:')
    a(f's_andn2_b32 s{sT1}, s{sCL}, 0x2000\ns_add_u32 s{sT2}, s{sSeg2}, {MB}')
    ldp = lambda b, so: [f'buffer_load_dwordx4 {V(b, 4)}, v{vP0}, {WS}, s{so} offen sc1', f'buffer_load_dwordx4 {V(b + 4, 4)}, v{vP0}, {WS}, s{so} offen offset:1280 sc1']
    g1 = ldp(PL0, sCL)
    g2 = ldp(PR0, sCR) + [f'buffer_load_dwordx4 {V(Pm, 4)}, v{vPm}, {WS}, s{sT1} offen sc1']
    g3 = [f'buffer_load_dwordx4 {V(Um + 8 * t + 4 * hf, 4)}, v{vUm2 if hf else vUm}, {WS}, s{sT2 if t else sSeg2} offen sc1' for t in range(2) for hf in range(2)]
    def s2(b, hf, d, c):
        for q in range(2):
            for t in range(2):
                for e in range(2):
                    r = d + 8 * t + 4 * e
                    cc = V(r, 4) if q else ('0' if c is None else V(c + 8 * t + 4 * e, 4))
                    a(f'v_mfma_f32_16x16x32_bf16 {V(r, 4)}, {A(32 * t + 16 * hf + 8 * q + 4 * e, 4)}, {V(b + 4 * q, 4)}, {cc}')
    def s3():
        for t in range(2):
            for e in range(2):
                a(f'v_mfma_f32_16x16x32_bf16 {V(A1 + 8 * t + 4 * e, 4)}, {V(Um + 8 * t + 4 * e, 4)}, {V(Pm, 4)}, {V(A2 + 8 * t + 4 * e, 4)}')
    a(f'v_add_u32 v{vC3v}, 1, v{vC3v}')
    a('s_setprio 3\ns_barrier')
    fstamp(a, cfg, 3)
    if cfg.sorder == 0:
        for l in g1: a(l)
        a('s_setprio 2')
        for l in g2: a(l)
        a('s_setprio 0')
        for l in g3: a(l)
        def c3(pos, n):
            if cfg.vcue and cfg.cpos3 == pos:
                l = a.newlabel('c3')
                a(f's_cmp_lg_u32 s{sWave}, {cfg.cwave3}\ns_cbranch_scc1 {l}\ns_mov_b64 exec, 1\nbuffer_store_dword v{vC3v}, v{vC3}, {WS}, 0 offen sc1\ns_mov_b64 exec, -1\n{l}:')
            if cfg.vcue and cfg.cpos3 <= pos:
                l = a.newlabel('c3')
                a(f's_cmp_eq_u32 s{sWave}, {cfg.cwave3}\ns_cbranch_scc1 {l}\ns_waitcnt vmcnt({n})\n{l}:')
                return n + 1
            return n
        poll(a, g1, R4(PL0, 8), vTmp, first_issued=True, first_wait=c3(0, 7), spec=lambda: s2(PL0, 0, A1, None))
        poll(a, g2, R4(PR0, 8) + R4(Pm), vTmp, first_issued=True, first_wait=c3(1, 4), spec=lambda: s2(PR0, 1, A2, A1))
        fstamp(a, cfg, 4)
        poll(a, g3, R4(Um, 16), vTmp, first_issued=True, first_wait=c3(2, 0), spec=s3)
    else:
        for l in g3: a(l)
        a('s_setprio 2')
        for l in g1: a(l)
        a('s_setprio 0')
        for l in g2: a(l)
        poll(a, g3 + g1, R4(Um, 16) + R4(PL0, 8), vTmp, first_issued=True, first_wait=3, spec=lambda: s2(PL0, 0, A1, None))
        fstamp(a, cfg, 4)
        if cfg.vcue:
            l = a.newlabel('c3'); l2 = a.newlabel('c3')
            a(f's_cmp_lg_u32 s{sWave}, 0\ns_cbranch_scc1 {l}\ns_mov_b64 exec, 1\nbuffer_store_dword v{vC3v}, v{vC3}, {WS}, 0 offen sc1\ns_mov_b64 exec, -1\ns_waitcnt vmcnt(1)\ns_branch {l2}\n{l}:\ns_waitcnt vmcnt(0)\n{l2}:')
        def p2():
            s2(PR0, 1, A2, A1)
            for t in range(2):
                for e in range(2):
                    a(f'v_mfma_f32_16x16x32_bf16 {V(A2 + 8 * t + 4 * e, 4)}, {V(Um + 8 * t + 4 * e, 4)}, {V(Pm, 4)}, {V(A2 + 8 * t + 4 * e, 4)}')
        poll(a, g2, R4(PR0, 8) + R4(Pm), vTmp, first_issued=True, first_wait=1 if cfg.vcue else 0, spec=p2)
        A1 = A2
    fstamp(a, cfg, 5)
    for t in range(2):
        for i in range(4): a(f'v_add_f32_dpp v{A1 + 8 * t + i}, v{A1 + 8 * t + 4 + i}, v{A1 + 8 * t + i} row_shl:8 row_mask:0xf bank_mask:0xf')
        a(f'ds_write_b128 v{vRw}, {V(A1 + 8 * t, 4)} offset:{4096 * t}')
    a('s_waitcnt lgkmcnt(0)\ns_barrier')
    fstamp(a, cfg, 6)
    a(f's_add_u32 s{sSeg2}, s{sSeg2}, 16384')
    advance(a, cfg, None)
    a('s_barrier')
    a(f's_cmp_lt_u32 s{sStep}, {NST}\ns_cbranch_scc1 L_S2_loop')
    tstamp(a, cfg, 3, vTmp, vTmp2)
    fdump(a, cfg, vTmp, vTmp2)
    a('s_branch L_end')
    a('L_S2_poll:')
    a(f'v_and_b32 v10, 15, v0\nv_lshlrev_b32 v10, 2, v10\nv_add_u32 v10, {FL1}, v10')
    a('s_barrier\ns_barrier')
    a('L_S2_poll_loop:')
    cue_wait(a, cfg, 10, [16 + i for i in range(cfg.cdepth)], sStep)
    a('s_barrier\ns_barrier\ns_barrier')
    a(f's_add_u32 s{sStep}, s{sStep}, 1\ns_cmp_lt_u32 s{sStep}, {NST}\ns_cbranch_scc1 L_S2_poll_loop')
    a('s_branch L_end')
    a('L_S2_cue:')
    a(f's_lshl_b32 s{sT0}, s{sJ}, 2\ns_add_u32 s{sT0}, s{sT0}, {FL2}\nv_mov_b32 v10, s{sT0}\nv_mov_b32 v11, 0')
    a('s_barrier\ns_barrier')
    cue_send(a, 10, 11)
    a('L_S2_cue_loop:')
    a(f's_add_u32 s{sStep}, s{sStep}, 1\nv_mov_b32 v11, s{sStep}')
    a('s_barrier\ns_barrier')
    if cfg.cpos2 == 0:
        for i in range(cfg.cdel2): a('s_nop 7')
        cue_send(a, 10, 11)
    a('s_barrier')
    if cfg.cpos2 == 1: cue_send(a, 10, 11)
    a(f's_cmp_lt_u32 s{sStep}, {NST}\ns_cbranch_scc1 L_S2_cue_loop')
    a('s_branch L_end')
    a('L_S2_red:')
    vRr, vMs, aa, ab = 10, 11, 16, 20
    sV3 = sNL
    a(f's_sub_u32 s{sT3}, s{sWave}, 5')
    a(f'v_and_b32 v{vRr}, 3, v0\nv_lshlrev_b32 v{vRr}, 8, v{vRr}\nv_bfe_u32 v{vTmp}, v0, 2, 3\nv_lshl_add_u32 v{vRr}, v{vTmp}, 4, v{vRr}\nv_lshrrev_b32 v{vTmp}, 5, v0\nv_lshl_add_u32 v{vRr}, v{vTmp}, 3, v{vRr}')
    a(f's_lshl_b32 s{sT0}, s{sT3}, 12\ns_add_u32 s{sT0}, s{sT0}, {RED}\nv_add_u32 v{vRr}, s{sT0}, v{vRr}')
    a(f's_lshl_b32 s{sT2}, s{sJ}, 1\ns_add_u32 s{sT2}, s{sT2}, s{sT3}\ns_lshl_b32 s{sT0}, s{sT2}, 8\nv_lshlrev_b32 v{vMs}, 2, v0\nv_add_u32 v{vMs}, s{sT0}, v{vMs}')
    a(f's_mov_b32 s{sEx}, 0x11111111\ns_mov_b32 s{sEx + 1}, 0x11111111')
    a(f's_lshl_b32 s{sV3}, s{sXr}, 14\ns_add_u32 s{sV3}, s{sV3}, s{sPar}\ns_add_u32 s{sV3}, s{sV3}, {2 * XS}')
    a(f's_lshl_b32 s{sT0}, s{sJ}, 2\ns_add_u32 s{sT0}, s{sT0}, {FL2}\nv_mov_b32 v12, s{sT0}\nv_mov_b32 v13, 0')
    def rcue(pos):
        if cfg.cpos2 != pos: return
        l = a.newlabel('rc')
        a(f's_cmp_lg_u32 s{sWave}, 6\ns_cbranch_scc1 {l}')
        cue_send(a, 12, 13)
        a(f'{l}:')
    def pub():
        for p in range(1, 4): a(f'v_mov_b32_dpp v{aa + p}, v{aa} quad_perm:[{p},{p},{p},{p}] row_mask:0xf bank_mask:0xf')
        fstamp(a, cfg, 7)
        rcue(3)
        a(f's_mov_b64 exec, s[{sEx}:{sEx + 1}]')
        st = {'V': lambda: a(f'buffer_store_dwordx4 {V(aa, 4)}, v{vMs}, {WS}, s{sV3} offen sc1'),
              'O': lambda: a(f'buffer_store_dwordx4 {V(aa, 4)}, v{vMs}, {WS}, s{sCO} offen sc1'),
              'L': lambda: lstore(a, [f'buffer_store_dwordx4 {V(aa, 4)}, v{vMs}, {WS}, s{sCL} offen'])}
        for c in cfg.pubord: st[c]()
        a('s_mov_b64 exec, -1')
        rcue(4)
        a('s_barrier')
    srd(a, 12, pMEM0, 10240)
    a(f'v_bfe_u32 v{vTmp}, v0, 2, 3\nv_mul_u32_u24 v{vTmp}, 1280, v{vTmp}\nv_and_b32 v{vTmp2}, 3, v0\nv_lshl_add_u32 v{vTmp}, v{vTmp2}, 3, v{vTmp}\nv_lshrrev_b32 v{vTmp2}, 5, v0\nv_lshl_add_u32 v{vTmp}, v{vTmp2}, 2, v{vTmp}')
    a(f's_mul_i32 s{sT0}, s{sXr}, 20\ns_add_u32 s{sT0}, s{sT0}, s{sT2}\ns_lshl_b32 s{sT0}, s{sT0}, 5')
    a(f'buffer_load_dword v{aa}, v{vTmp}, {T1}, s{sT0} offen\ns_waitcnt vmcnt(0)\nv_min_u32 v{aa}, -2, v{aa}')
    a('s_barrier')
    pub()
    a('L_S2_red_loop:')
    a(f's_add_u32 s{sCL}, s{sCL}, {SL}\ns_add_u32 s{sCO}, s{sCO}, {SL}\ns_add_u32 s{sV3}, s{sV3}, {SL}')
    a('v_add_u32 v13, 1, v13')
    a('s_setprio 3\ns_barrier\ns_barrier')
    a(f'ds_read2st64_b64 {V(aa, 4)}, v{vRr} offset0:0 offset1:2\nds_read2st64_b64 {V(ab, 4)}, v{vRr} offset0:4 offset1:6\ns_waitcnt lgkmcnt(1)')
    a(f'v_add_f32 v{aa}, v{aa}, v{aa + 2}\nv_add_f32 v{aa + 1}, v{aa + 1}, v{aa + 3}\ns_waitcnt lgkmcnt(0)')
    a(f'v_add_f32 v{ab}, v{ab}, v{ab + 2}\nv_add_f32 v{ab + 1}, v{ab + 1}, v{ab + 3}\nv_add_f32 v{aa}, v{aa}, v{ab}\nv_add_f32 v{aa + 1}, v{aa + 1}, v{ab + 1}')
    a(f'v_cvt_pk_bf16_f32 v{aa}, v{aa}, v{aa + 1}')
    pub()
    a(f's_add_u32 s{sStep}, s{sStep}, 1\ns_cmp_lt_u32 s{sStep}, {NST}\ns_cbranch_scc1 L_S2_red_loop')
    fdump(a, cfg, vTmp, vTmp2)
    a('s_branch L_end')

def role_PF(a, cfg):
    a('L_PF:')
    vSp, vC = 10, 14
    a(f's_cmp_ge_u32 s{sWave}, 2\ns_cbranch_scc1 L_end')
    a(f's_lshl_b32 s{sSeg2}, s{sWave}, 14\ns_add_u32 s{sSeg2}, s{sSeg2}, s{sbL}')
    a(f'v_lshlrev_b32 v{vSp}, 7, v0\nv_mov_b32 v{vC}, {FL2}')
    a('L_PF_loop:')
    top = a.newlabel('pw'); done = a.newlabel('pwd')
    a(f's_sub_u32 s{sT4}, s{sStep}, {cfg.pf_ahead}\ns_cmp_lt_i32 s{sT4}, 0\ns_cbranch_scc1 {done}\ns_mov_b32 s{sSpin}, s{sLim}')
    a(f'{top}:')
    a(f'buffer_load_dword v{vTmp2}, v{vC}, {WS}, s{sbL} offen sc1\ns_waitcnt vmcnt(0)\nv_cmp_gt_i32 vcc, s{sT4}, v{vTmp2}\ns_cbranch_vccz {done}\ns_sleep 4')
    a(f's_sub_u32 s{sSpin}, s{sSpin}, 1\ns_cbranch_scc0 {top}\ns_mov_b32 s{sLim}, 0')
    a(f'{done}:')
    a(f'buffer_load_dword v16, v{vSp}, {WS}, s{sSeg2} offen sc1')
    a(f's_add_u32 s{sSeg2}, s{sSeg2}, {SL}')
    a(f's_add_u32 s{sStep}, s{sStep}, 1\ns_cmp_lt_u32 s{sStep}, {cfg.nsteps}\ns_cbranch_scc1 L_PF_loop')
    a('s_branch L_end')
    a('L_PZ:')
    if cfg.late_pz and 'QKX' in cfg.roles:
        top = a.newlabel('pl'); done = a.newlabel('pl')
        a(f'v_mov_b32 v10, {F_KX}\ns_mov_b32 s{sSpin}, s{sLim}\ns_cmp_lg_u32 s{sWave}, 0\ns_cbranch_scc1 {done}\n{top}:')
        a(f'buffer_load_dword v11, v10, {WS}, 0 offen sc1\ns_waitcnt vmcnt(0)\nv_cmp_eq_u32 vcc, 0, v11\ns_cbranch_vccz {done}\ns_sleep 16')
        a(f's_sub_u32 s{sSpin}, s{sSpin}, 1\ns_cbranch_scc0 {top}\n{done}:\ns_barrier')
    for i in range(4): a(f'v_mov_b32 v{4 + i}, -1')
    a(f's_lshl_b32 s{sT2}, s{sXr}, 2\ns_add_u32 s{sT2}, s{sT2}, s{sJ}\ns_sub_u32 s{sT2}, s{sT2}, 10')
    a(f's_add_u32 s{sSeg}, s{sT2}, {NPRE}\ns_lshl_b32 s{sSeg}, s{sSeg}, 15')
    a(f's_lshl_b32 s{sT3}, s{sWave}, 12\ns_min_u32 s{sT4}, s{sWave}, 4\ns_lshl_b32 s{sT4}, s{sT4}, 10\ns_add_u32 s{sT4}, s{sT4}, s{sPar}\ns_add_u32 s{sT4}, s{sT4}, {2 * XS + VOFF}')
    a('L_PZ_loop:')
    a(f's_add_u32 s{sT0}, s{sSeg}, s{sT3}\ns_add_u32 s{sT1}, s{sT0}, {XS}')
    for so in (sT0, sT1):
        for i in range(4): a(f'buffer_store_dwordx4 v[4:7], v{vL16}, {WS}, s{so} offen offset:{1024 * i} sc1')
    a(f's_add_u32 s{sT0}, s{sSeg}, s{sT4}\ns_add_u32 s{sT1}, s{sT0}, 16384')
    for so in (sT0, sT1): a(f'buffer_store_dwordx4 v[4:7], v{vL16}, {WS}, s{so} offen sc1')
    a(f's_add_u32 s{sSeg}, s{sSeg}, {8 * SL}\ns_cmp_lt_u32 s{sSeg}, {64 * SL}\ns_cbranch_scc1 L_PZ_loop')
    l = a.newlabel('pzd')
    a(f's_waitcnt vmcnt(0)\ns_barrier\ns_cmp_lg_u32 s{sWave}, 0\ns_cbranch_scc1 {l}')
    a(f's_lshl_b32 s{sT2}, s{sT2}, 8\ns_add_u32 s{sT2}, s{sT2}, {F_PZ}\nv_mov_b32 v8, 1\nv_mov_b32 v9, s{sT2}\ns_mov_b64 exec, 1\nbuffer_store_dword v8, v9, {WS}, 0 offen sc1\ns_mov_b64 exec, -1')
    tstamp(a, cfg, 3, 10, 11)
    a(f'{l}:')
    if not cfg.pfn:
        a('s_branch L_end')
        return
    vFa, vFl = 11, 12
    a(f's_sub_u32 s{sT2}, s{sJ}, 10\ns_lshl_b32 s{sT0}, s{sWave}, 2\ns_add_u32 s{sT2}, s{sT2}, s{sT0}\ns_cmp_ge_u32 s{sT2}, {10 * cfg.pfn}\ns_cbranch_scc1 L_end')
    a(f's_mul_i32 s{sT3}, s{sT2}, 205\ns_lshr_b32 s{sT3}, s{sT3}, 11\ns_mul_i32 s{sT0}, s{sT3}, 10\ns_sub_u32 s{sT2}, s{sT2}, s{sT0}')
    a(f's_lshl_b32 s{sT4}, s{sT3}, 3')
    ux_head(a, cfg, sSeg, sT4)
    a(f's_mul_i32 s{sT0}, s{sXr}, 10\ns_add_u32 s{sT2}, s{sT2}, s{sT0}\ns_lshl_b32 s{sT0}, s{sT2}, 23\ns_add_u32 s{sSeg}, s{sSeg}, s{sT0}\ns_add_u32 s{sSeg}, s{sSeg}, {UX + 4 * MB + 32768}')
    a(f'v_lshlrev_b32 v{vSp}, 7, v0\nv_mov_b32 v{vC}, {FL2}')
    a(f'v_and_b32 v{vFa}, 7, v0\nv_lshlrev_b32 v{vFa}, 8, v{vFa}\ns_lshl_b32 s{sT0}, s{sT3}, 11\ns_add_u32 s{sT0}, s{sT0}, {F_UX}\nv_add_u32 v{vFa}, s{sT0}, v{vFa}\nv_mov_b32 v{vFl}, 0')
    a('L_PFX_loop:')
    top = a.newlabel('pw'); done = a.newlabel('pwd')
    a(f's_mov_b32 s{sSpin}, s{sLim}')
    a(f'{top}:')
    a(f'buffer_load_dword v{vTmp2}, v{vC}, {WS}, s{sbL} offen sc1\ns_waitcnt vmcnt(0)\nv_cmp_gt_i32 vcc, s{sStep}, v{vTmp2}\ns_cbranch_vccz {done}\ns_sleep 2')
    a(f's_sub_u32 s{sSpin}, s{sSpin}, 1\ns_cbranch_scc0 {top}\ns_mov_b32 s{sLim}, 0')
    a(f'{done}:')
    a(f's_add_u32 s{sT4}, s{sStep}, 1\nv_mov_b32 v{vFl}, 0')
    flag_wait(a, vFl, flag_ld(vFl, vFa, 1), 1)
    a(f'buffer_load_dword v16, v{vSp}, {WS}, s{sSeg} offen sc1')
    if cfg.pf64: a(f'buffer_load_dword v17, v{vSp}, {WS}, s{sSeg} offen offset:64 sc1')
    a(f's_add_u32 s{sSeg}, s{sSeg}, 32768')
    a(f's_add_u32 s{sStep}, s{sStep}, 1\ns_cmp_lt_u32 s{sStep}, {cfg.nsteps - 2}\ns_cbranch_scc1 L_PFX_loop')
    a('s_branch L_end')
```

```python
import sys, struct
sys.path.insert(0, 'gen')
from asmlib import *
from layout import *

KNAME = 'gated_mix__memory_aug_recurrent_mem_tr__glu_gated_bilinear__prompt_kernel'

def f2u(x): return struct.unpack('<I', struct.pack('<f', x))[0]

WS = 's[4:7]'; DBG = 's[8:11]'; T1 = 's[12:15]'; T2 = 's[48:51]'
pX, pMEM0, pWQ, pWK, pWV, pWO, pWG, pWU, pWD, pGW, pOUT, pDBG, pWS = 16, 18, 20, 22, 24, 26, 32, 34, 36, 38, 40, 42, 44
sWave, sX, sR, sH, sXr, sJ, sHas2, sLim, sStep, sImp = 52, 53, 54, 55, 56, 57, 58, 59, 60, 61
sT0, sT1, sT2, sT3, sT4, sT5 = 62, 63, 64, 65, 66, 67
sbL, sbR, sbO = 68, 69, 70
sCL, sCR, sCO, sPL, sPO, sNL, sNO = 71, 72, 73, 74, 75, 76, 77
sSeg = 78
sSeg2 = 79
sEx = 80
sEx2 = 82
sTm = 84
sC = 88
sSpin = 89
sFl0, sFl1 = 90, 91
sPar = 46
sClm = 30

class Cfg:
    rx0 = 0; rx1 = 2; rx2 = 1; r2 = True
    qcue = True; scue = True; vo_sleep = 0; pf_ahead = 2; no_pf = True; pf64 = False
    ax = None; fx = None
    nc_qkx = 2; nc_vox = 1; nc_ff1 = 2; la = 1; early_pub = 6; km_sleep = 2
    roles = ('R', 'QKX', 'VOX', 'FF1', 'FIN')
    fake_xcc = None
    timing = False
    force_impure = False
    force_par = None
    rdelay1 = 0
    rdelay2 = 0
    nsteps = 64
    fine = 0
    codepf = 2
    late_gate = True
    late_pz = True
    fuse = True
    wopf = False
    rot = 1
    uxn = 16
    uxmode = 'mix'
    voxx = False
    uxpos = 1
    pfn = 0
    rmode = 'hi'
    ldma = False
    uxack = False
    uxe = 0
    uxe2 = 0
    uxdel = 0
    cdel1 = 0
    g3del = 0
    gq = None
    gv = None
    vdepth = 1
    vgap = 15
    rdel = 0
    cdepth2 = 4
    npre0 = 0
    vfirst = True
    hidel = 8
    npre = 2
    r3 = True
    presleep = 64
    claim_at = 0
    keep_flags = False
    defer_ff = True
    dbgtime = None
    vox_prio = True
    ux_st = ''
    vcue = False
    cpos3 = 2
    cwave3 = 0
    cdel3 = 0
    sorder = 0
    bg_late = True
    pubord = 'LOV'
    cdel2 = 16
    h2cue2 = True
    vocue2 = True
    h2cue = False
    prio1 = True
    cdepth = 4
    cgap = 12
    cpos1 = 8
    cpos2 = 0
    w0ack = False
    rdelay1q = 3
    order = 0
    n0qk = 6
    b3b = False
    st3 = True
    um_early = 0
    n0vo = 6
    late_vo = False
    only = None
    n1qk = 8
    n1vo = 8
    trig1 = 0
    late_r = False
    no_ux = False
    ux_nt = ''

COUNT_RETRY = [False]
CLAIM_AT = [0]

def srd(a, q, p, nbytes):
    a(f's_mov_b32 s{q}, s{p}\ns_and_b32 s{q+1}, s{p+1}, 0xffff\ns_mov_b32 s{q+2}, {nbytes}\ns_mov_b32 s{q+3}, 0x00020000')

def ux_head(a, cfg, sd, sh):
    a(f's_lshr_b32 s{sT0}, s{sh}, 4\ns_mul_i32 s{sd}, s{sT0}, {2 * MB + 0x2000 + cfg.rot * 0x8000}')
    if cfg.uxmode != 'mix': a(f's_xor_b32 s{sd}, s{sd}, s{sPar}')
    if cfg.uxmode == 'far': a(f's_xor_b32 s{sd}, s{sd}, 0x2000')
    a(f's_bfe_u32 s{sT0}, s{sh}, 0x10003\ns_mul_i32 s{sT0}, s{sT0}, {0x6000 if cfg.uxmode == "mix" else 0x4000}\ns_xor_b32 s{sd}, s{sd}, s{sT0}')
    a(f's_and_b32 s{sT0}, s{sh}, 7\ns_lshl_b32 s{sT0}, s{sT0}, 10\ns_add_u32 s{sd}, s{sd}, s{sT0}')

def ux_tile(a, cfg, sd, sj):
    if cfg.rot: a(f's_and_b32 s{sT0}, s{sj}, 31\ns_lshl_b32 s{sT0}, s{sT0}, 16\ns_add_u32 s{sd}, s{sd}, s{sT0}')
    a(f's_lshl_b32 s{sT0}, s{sj}, 22\ns_add_u32 s{sd}, s{sd}, s{sT0}\ns_add_u32 s{sd}, s{sd}, {UX}')

def um_seg(a, sd, sseg):
    a(f's_mul_i32 s{sT0}, s{sseg}, 43\ns_lshr_b32 s{sT0}, s{sT0}, 7\ns_and_b32 s{sd}, s{sT0}, 1\ns_lshl_b32 s{sd}, s{sd}, 13\ns_xor_b32 s{sd}, s{sd}, s{sPar}')
    a(f's_lshl_b32 s{sT0}, s{sT0}, 17\ns_add_u32 s{sd}, s{sd}, s{sT0}\ns_mul_i32 s{sT0}, s{sseg}, {40 * 16384}\ns_add_u32 s{sd}, s{sd}, s{sT0}\ns_add_u32 s{sd}, s{sd}, {UM}')

def maxtree(a, dst, regs):
    regs = list(regs)
    if len(regs) % 2 == 0:
        a(f'v_max_u32 v{dst}, v{regs[0]}, v{regs[1]}'); rest = regs[2:]
    else:
        a(f'v_max3_u32 v{dst}, v{regs[0]}, v{regs[1]}, v{regs[2]}'); rest = regs[3:]
    for i in range(0, len(rest), 2):
        a(f'v_max3_u32 v{dst}, v{dst}, v{rest[i]}, v{rest[i+1]}')

def poll(a, loads, regs, tmp, first_issued=False, spec=None, specwait=False, first_wait=0, sleep=0):
    top = a.newlabel('poll'); chk = a.newlabel('chk'); done = a.newlabel('pdone')
    a(f's_mov_b32 s{sSpin}, s{sLim}')
    if first_issued:
        a(f's_waitcnt vmcnt({first_wait})')
        a(f's_branch {chk}')
    a(f'{top}:')
    if specwait: a('s_waitcnt lgkmcnt(0)')
    for l in loads: a(l)
    a('s_waitcnt vmcnt(0)')
    a(f'{chk}:')
    if spec: spec()
    maxtree(a, tmp, regs)
    a(f'v_cmp_eq_u32 vcc, -1, v{tmp}')
    a(f's_cbranch_vccz {done}')
    if COUNT_RETRY[0] and first_issued: a('s_add_u32 s101, s101, 1')
    if sleep: a(f's_sleep {sleep}')
    a(f's_sub_u32 s{sSpin}, s{sSpin}, 1')
    a(f's_cbranch_scc0 {top}')
    a(f's_mov_b32 s{sLim}, 0')
    a(f'{done}:')

def check(a, loads, regs, tmp, wait, spec=None, specwait=False, post=None, cnt=None):
    back = a.newlabel('ck'); retry = a.newlabel('rt'); done = a.newlabel('ckd')
    a(f's_waitcnt vmcnt({wait})')
    a(f'{back}:')
    if spec: spec()
    maxtree(a, tmp, regs)
    a(f'v_cmp_eq_u32 vcc, -1, v{tmp}')
    if post: post()
    a(f's_cbranch_vccnz {retry}')
    a(f'{done}:')
    def ool():
        a(f'{retry}:')
        if COUNT_RETRY[0]: a('s_add_u32 s101, s101, 1')
        if COUNT_RETRY[0] == 2 and cnt: a(f's_add_u32 s{cnt}, s{cnt}, 1')
        a(f's_sub_u32 s{sLim}, s{sLim}, 1')
        l = a.newlabel('rg')
        a(f's_cbranch_scc0 {l}\ns_mov_b32 s{sLim}, 0\ns_branch {done}\n{l}:')
        if specwait: a('s_waitcnt lgkmcnt(0)')
        a('s_nop 7')
        for x in loads: a(x)
        a(f's_waitcnt vmcnt(0)\ns_branch {back}')
    a.defer(ool)

def lstore(a, insts):
    l1 = a.newlabel('ls'); l2 = a.newlabel('le')
    a(f's_cmp_lg_u32 s{sImp}, 0')
    a(f's_cbranch_scc1 {l1}')
    for i in insts: a(i)
    a(f's_branch {l2}')
    a(f'{l1}:')
    for i in insts: a(i + (' sc1' if i.startswith('buffer_') else ''))
    a(f'{l2}:')

LSTAT = 163840 - 8
vClaim = 20

def claim_issue(a, vt):
    l = a.newlabel('ci')
    a(f's_or_b32 s{sT0}, s{sWave}, s{sClm}\ns_cbranch_scc1 {l}')
    a(f's_lshl_b32 s{sT0}, 1, s{sR}\ns_lshl_b32 s{sT1}, s{sX}, 5\nv_mov_b32 v{vClaim}, s{sT0}\nv_mov_b32 v{vt}, s{sT1}')
    a(f's_mov_b64 exec, 1\nbuffer_atomic_or v{vClaim}, v{vt}, {DBG}, 0 offen sc0\ns_mov_b64 exec, -1')
    a(f'{l}:')

def wait_init(a, vt, vo, presleep=0, only_check=False):
    top = a.newlabel('wi'); done = a.newlabel('wid'); ok = a.newlabel('wok')
    a(f'v_min_u32 v{vo}, 7, v0\nv_lshlrev_b32 v{vo}, 5, v{vo}')
    a(f's_cmp_lg_u32 s{sWave}, 0\ns_cbranch_scc1 {done}')
    a(f's_mov_b32 s{sT2}, 0\ns_cmp_lg_u32 s{sClm}, 0\ns_cbranch_scc1 {ok}')
    a(f's_waitcnt vmcnt(0)\nv_readfirstlane_b32 s{sT0}, v{vClaim}\ns_lshr_b32 s{sT0}, s{sT0}, s{sR}\ns_and_b32 s{sT2}, s{sT0}, 1')
    a(f'{ok}:')
    a(f'v_mov_b32 v{vt}, {LSTAT}\nv_mov_b32 v{vClaim}, s{sT2}\nds_write_b32 v{vt}, v{vClaim}\ns_waitcnt lgkmcnt(0)')
    if not only_check:
        a(f's_cmp_lg_u32 s{sT2}, 0\ns_cbranch_scc1 {done}')
        a(f's_mov_b32 s{sSpin}, s{sLim}')
        a(f'{top}:')
        if presleep: a(f's_sleep {presleep}')
        a(f'buffer_load_dword v{vt}, v{vo}, {DBG}, 0 offen sc1')
        a('s_waitcnt vmcnt(0)')
        a(f'v_cmp_ne_u32 vcc, -1, v{vt}')
        a(f's_cbranch_vccz {done}')
        if not presleep: a('s_sleep 8')
        a(f's_sub_u32 s{sSpin}, s{sSpin}, 8')
        a(f's_cbranch_scc0 {top}')
        a(f's_mov_b32 s{sLim}, 0')
    a(f'{done}:')
    a('s_barrier')
    if not only_check: a(f'buffer_load_dword v{vt}, v{vo}, {DBG}, 0 offen offset:4 sc1')
    a(f'v_mov_b32 v{vo}, {LSTAT}\nds_read_b32 v{vo}, v{vo}\ns_waitcnt vmcnt(0) lgkmcnt(0)\nv_readfirstlane_b32 s{sT0}, v{vo}\ns_cmp_lg_u32 s{sT0}, 0\ns_cbranch_scc1 L_reclaim')
    if not only_check: a(f'v_readlane_b32 s{sT0}, v{vt}, 1\nv_readlane_b32 s{sT1}, v{vt}, 2\nv_readlane_b32 s{sImp}, v{vt}, 3')

def loader(a, chunks, vA, vB, vRd, vRd2, vt, vo, nslots=3, claim=True, early=None, nearly=0):
    n = len(chunks)
    LSLOT = 163840 - nslots * 32768
    def issue(i):
        c = chunks[i]
        if c.get('pre'): c['pre'](a)
        c['soff'](a)
        a(f's_lshl_b32 s{sT1}, s{sWave}, 12')
        a(f's_add_u32 s{sT1}, s{sT1}, {LSLOT + (i % nslots) * 32768}')
        for ii in range(4):
            a(f's_mov_b32 m0, s{sT1}')
            a(f'buffer_load_dwordx4 v{vB if c.get("var", lambda i: i >> 1)(ii) else vA}, {T1}, s{sT0} offen lds')
            if ii < 3:
                a(f's_add_u32 s{sT0}, s{sT0}, {4 * c["stride"]}\ns_add_u32 s{sT1}, s{sT1}, 1024')
    vIa, vIb, vIo = 21, 22, 23
    lst = LSLOT + ((n - 2) % nslots) * 32768
    issue(0)
    if claim:
        a('s_waitcnt vmcnt(4)\ns_barrier')
        claim_issue(a, vt)
        a(f'v_min_u32 v{vIo}, 7, v0\nv_lshlrev_b32 v{vIo}, 5, v{vIo}')
    if early: early()
    for i in range(1, min(nslots, n)): issue(i)
    for i in range(n):
        w = 4 * (min(i + nslots - 1, n - 1) - i)
        x = chunks[i - 1].get('hi_stores', 0) if i else 0
        if x:
            l = a.newlabel('lw')
            a(f's_waitcnt vmcnt({w + x})\ns_cmp_ge_u32 s{sWave}, 4\ns_cbranch_scc1 {l}\ns_waitcnt vmcnt({w})\n{l}:')
        else:
            a(f's_waitcnt vmcnt({w})')
        a('s_barrier')
        if claim and i == n - 2 - nslots: a(f'buffer_load_dword v{vIa}, v{vIo}, {DBG}, 0 offen sc1')
        if claim and i == n - 2: a(f'buffer_load_dword v{vIb}, v{vIo}, {DBG}, 0 offen offset:4 sc1')
        if claim and i == n - 1:
            l = a.newlabel('lc')
            a(f's_cmp_lg_u32 s{sWave}, 0\ns_cbranch_scc1 {l}')
            a(f'v_readfirstlane_b32 s{sT0}, v{vClaim}\ns_lshr_b32 s{sT0}, s{sT0}, s{sR}\ns_andn2_b32 s{sT0}, s{sT0}, s{sClm}\ns_and_b32 s{sT0}, s{sT0}, 1')
            a(f'v_cmp_ne_u32 vcc, -1, v{vIa}\ns_cmp_lg_u64 vcc, 0\ns_cselect_b32 s{sT0}, 1, s{sT0}\nv_mov_b32 v{vIa}, s{sT0}\nv_mov_b32 v{vIo}, {lst}\nds_write_b32 v{vIo}, v{vIa}')
            a(f'{l}:')
        a(f'v_add_u32 v{vRd2}, {LSLOT + (i % nslots) * 32768}, v{chunks[i].get("vrd", vRd)}')
        chunks[i]['reads'](a, vRd2)
        a('s_waitcnt lgkmcnt(0)')
        if i + nslots < n:
            a('s_barrier')
            issue(i + nslots)
        if chunks[i].get('post'):
            chunks[i]['post'](a)
            a('s_waitcnt lgkmcnt(0)')
    a('s_barrier')
    if claim:
        fast = a.newlabel('lf')
        a(f'v_mov_b32 v{vIo}, {lst}\nds_read_b32 v{vIo}, v{vIo}\nv_readlane_b32 s{sT0}, v{vIb}, 1\nv_readlane_b32 s{sT1}, v{vIb}, 2\nv_readlane_b32 s{sImp}, v{vIb}, 3')
        a(f's_waitcnt lgkmcnt(0)\nv_cmp_eq_u32 vcc, 0, v{vIo}\ns_cbranch_vccnz {fast}')
        wait_init(a, vt, vo)
        a(f'{fast}:')

def src_offsets(a, vA, vB, vt, stride, colmap=None):
    for var, vd in ((0, vA), (1, vB)):
        a(f'v_lshrrev_b32 v{vt}, 4, v0')
        if var: a(f'v_or_b32 v{vt}, 4, v{vt}')
        a(f'v_bfe_u32 v{vd}, v0, 1, 3')
        a(f'v_xor_b32 v{vd}, v{vd}, v{vt}')
        if colmap is None:
            a(f'v_lshlrev_b32 v{vd}, 5, v{vd}')
        else:
            colmap(a, vd, vt)
        a(f'v_and_b32 v{vt}, 1, v0\nv_lshl_add_u32 v{vd}, v{vt}, 4, v{vd}')
        a(f'v_lshrrev_b32 v{vt}, 4, v0\nv_mul_u32_u24 v{vt}, {stride}, v{vt}\nv_add_u32 v{vd}, v{vd}, v{vt}')

def tr_base(a, vd, vt, unit_sreg):
    a(f'v_bfe_u32 v{vd}, v0, 2, 3')
    a(f'v_xor_b32 v{vd}, s{unit_sreg}, v{vd}')
    a(f'v_lshlrev_b32 v{vd}, 5, v{vd}')
    a(f'v_and_b32 v{vt}, 3, v0\nv_lshl_add_u32 v{vd}, v{vt}, 3, v{vd}')
    a(f'v_bfe_u32 v{vt}, v0, 2, 2\nv_lshl_add_u32 v{vd}, v{vt}, 8, v{vd}')
    a(f'v_lshrrev_b32 v{vt}, 4, v0\nv_lshl_add_u32 v{vd}, v{vt}, 11, v{vd}')

def std_reads(base):
    def f(a, va):
        for kk in range(4):
            for h in range(2):
                a(f'ds_read_b64_tr_b16 {A(base + kk * 4 + h * 2, 2)}, v{va} offset:{kk * 8192 + h * 1024}')
    return f

def tstamp(a, cfg, slot, vt, vo):
    if cfg.dbgtime:
        for (x, r, sl), word in cfg.dbgtime.items():
            if sl != slot: continue
            l = a.newlabel('dt')
            a(f's_cmp_lg_u32 s{sX}, {x}\ns_cbranch_scc1 {l}\ns_cmp_lg_u32 s{sR}, {r}\ns_cbranch_scc1 {l}\ns_cmp_lg_u32 s{sWave}, 0\ns_cbranch_scc1 {l}')
            a(f's_memrealtime s[{sTm}:{sTm+1}]\ns_waitcnt lgkmcnt(0)\ns_sub_u32 s{sTm}, s{sTm}, s3\nv_mov_b32 v{vt}, s{sTm}\nv_mov_b32 v{vo}, {4 * word}')
            a(f's_mov_b64 exec, 1\nbuffer_store_dword v{vt}, v{vo}, {DBG}, 0 offen sc1\ns_mov_b64 exec, -1\n{l}:')
        return
    if not cfg.timing: return
    a(f's_memrealtime s[{sTm}:{sTm+1}]\ns_waitcnt lgkmcnt(0)')
    a(f's_lshl_b32 s{sTm+2}, s{sX}, 5\ns_add_u32 s{sTm+2}, s{sTm+2}, s{sR}\ns_lshl_b32 s{sTm+2}, s{sTm+2}, 3\ns_add_u32 s{sTm+2}, s{sTm+2}, s{sWave}\ns_lshl_b32 s{sTm+2}, s{sTm+2}, 4')
    a(f's_add_u32 s{sTm+2}, s{sTm+2}, {TIM + slot * 4}')
    a(f'v_mov_b32 v{vt}, s{sTm}\nv_mov_b32 v{vo}, s{sTm+2}')
    a(f's_mov_b64 exec, 1\nbuffer_store_dword v{vt}, v{vo}, {WS}, 0 offen\ns_mov_b64 exec, -1')

def fstamp(a, cfg, k):
    if not cfg.fine: return
    if cfg.fine == -3:
        a(f's_memrealtime s[{12 + 2 * k}:{13 + 2 * k}]')
        return
    if cfg.fine == -2:
        if cfg.only is not None and k not in cfg.only: return
        a(f's_memrealtime s[{sTm}:{sTm+1}]\ns_waitcnt lgkmcnt(0)\ns_cmp_lt_u32 s{sStep}, 60\ns_cselect_b32 s{sTm}, s{sTm}, 0')
        a(f's_add_u32 s{sTm+1}, s{sTm}, s{92+k}\ns_cmp_ge_u32 s{sStep}, 4\ns_cselect_b32 s{92+k}, s{sTm+1}, 0')
        return
    if cfg.fine < 0:
        if cfg.only is not None and k not in cfg.only: return
        a(f's_memtime s[{sTm}:{sTm+1}]\ns_waitcnt lgkmcnt(0)\ns_sub_u32 s{sTm+1}, s{sTm}, s47\ns_mov_b32 s47, s{sTm}')
        a(f's_add_u32 s{sTm+1}, s{sTm+1}, s{92+k}\ns_cmp_ge_u32 s{sStep}, 4\ns_cselect_b32 s{92+k}, s{sTm+1}, 0')
        return
    if cfg.only is not None and k not in cfg.only: return
    a(f's_memtime s[{sTm}:{sTm+1}]\ns_waitcnt lgkmcnt(0)\ns_cmp_eq_u32 s{sStep}, {cfg.fine}\ns_cselect_b32 s{92+k}, s{sTm}, s{92+k}')
def facc(a, cfg):
    if cfg.fine != -3: return
    a('s_waitcnt lgkmcnt(0)')
    for k in range(9):
        a(f's_cmp_lt_u32 s{sStep}, 60\ns_cselect_b32 s{sTm}, s{12 + 2 * k}, 0\ns_add_u32 s{sTm}, s{sTm}, s{92 + k}\ns_cmp_ge_u32 s{sStep}, 4\ns_cselect_b32 s{92 + k}, s{sTm}, 0')

def fdump(a, cfg, vt, vo):
    if not cfg.fine: return
    a(f's_lshl_b32 s{sTm+2}, s{sX}, 5\ns_add_u32 s{sTm+2}, s{sTm+2}, s{sR}\ns_lshl_b32 s{sTm+2}, s{sTm+2}, 3\ns_add_u32 s{sTm+2}, s{sTm+2}, s{sWave}\ns_lshl_b32 s{sTm+2}, s{sTm+2}, 6')
    a(f's_add_u32 s{sTm+2}, s{sTm+2}, {FTIM}\nv_mov_b32 v{vo}, s{sTm+2}\ns_mov_b64 exec, 1')
    for k in range(10):
        a(f'v_mov_b32 v{vt}, s{92+k}\nbuffer_store_dword v{vt}, v{vo}, {WS}, 0 offen offset:{4*k}')
    a('s_mov_b64 exec, -1')

def prologue(a, cfg):
    COUNT_RETRY[0] = (2 if cfg.only == () else 1) if cfg.fine < 0 else 0
    if cfg.fine < 0: a('s_mov_b32 s98, 0\ns_mov_b32 s99, 0\ns_mov_b32 s100, 0')
    CLAIM_AT[0] = cfg.claim_at
    if cfg.fine < 0: a('s_mov_b32 s101, 0')
    a('s_cmp_ge_u32 s2, 256\ns_cbranch_scc1 L_end')
    if cfg.dbgtime: a(f's_memrealtime s[{sTm}:{sTm+1}]\ns_waitcnt lgkmcnt(0)\ns_mov_b32 s3, s{sTm}')
    if cfg.codepf:
        a('s_getpc_b64 s[4:5]')
        a('L_pc0:')
        a('s_lshr_b32 s6, s2, 3\ns_lshl_b32 s6, s6, 11\nv_lshlrev_b32 v2, 7, v0\nv_add_u32 v2, s6, v2\nv_min_u32 v2, L_end-L_pc0, v2')
        a('v_cmp_gt_u32 vcc, 16, v0\ns_and_saveexec_b64 s[8:9], vcc\ns_cbranch_execz L_pc1\nglobal_load_dword v94, v2, s[4:5]\nL_pc1:\ns_mov_b64 exec, -1')
    a('s_load_dwordx16 s[16:31], s[0:1], 0\ns_load_dwordx8 s[32:39], s[0:1], 64\ns_load_dwordx4 s[40:43], s[0:1], 96\ns_load_dwordx2 s[44:45], s[0:1], 112')
    a(f'v_lshrrev_b32 v1, 6, v0\nv_and_b32 v0, 63, v0\nv_readfirstlane_b32 s{sWave}, v1')
    if cfg.fake_xcc is None:
        a(f's_getreg_b32 s{sX}, hwreg(HW_REG_XCC_ID)\ns_and_b32 s{sX}, s{sX}, 7')
    else:
        a(f's_mov_b32 s{sX}, {cfg.fake_xcc}')
    a(f's_mov_b32 s{sLim}, 0x80000')
    a('s_waitcnt lgkmcnt(0)')
    srd(a, 4, pWS, WS_BYTES); srd(a, 8, pDBG, 256)
    srd(a, 12, pWS, WS_BYTES); srd(a, 48, pWS, WS_BYTES)
    a(f's_lshr_b32 s{sR}, s2, 3\ns_mov_b32 s{sClm}, 0')
    tstamp(a, cfg, 0, 2, 3)
    a(f's_cmp_lg_u32 s{sX}, {cfg.rx0}\ns_cbranch_scc1 L_nocal\ns_cmp_lt_u32 s{sR}, 26\ns_cbranch_scc1 L_nocal')
    a(f's_cmp_lg_u32 s{sWave}, 7\ns_cbranch_scc1 L_caldone')
    a(f's_lshr_b32 s{sT0}, s2, 6\ns_lshl_b32 s{sT0}, s{sT0}, 14\ns_and_b32 s{sT1}, s2, 63\ns_lshl_b32 s{sT1}, s{sT1}, 7')
    a(f's_add_u32 s{sT0}, s{sT0}, s{sT1}\ns_add_u32 s{sT0}, s{sT0}, {CAL}')
    a(f'v_mov_b32 v2, s{sT0}\nv_add_u32 v3, 0x2000, v2\nv_mov_b32 v4, 0')
    a(f's_mov_b64 exec, 1\ns_mov_b32 s{sT2}, -1\ns_mov_b32 s{sT3}, -1')
    for rep in range(2):
        a(f'buffer_store_dword v4, v2, {WS}, 0 offen sc1\nbuffer_store_dword v4, v3, {WS}, 0 offen sc1\ns_waitcnt vmcnt(0)')
        for vv, sd in ((2, sT2), (3, sT3)):
            a(f's_memtime s[{sTm}:{sTm+1}]\ns_waitcnt lgkmcnt(0)')
            a(f'buffer_load_dword v5, v{vv}, {WS}, 0 offen sc1\ns_waitcnt vmcnt(0)')
            a(f's_memtime s[{sTm+2}:{sTm+3}]\ns_waitcnt lgkmcnt(0)')
            a(f's_sub_u32 s{sT0}, s{sTm+2}, s{sTm}\ns_min_u32 s{sd}, s{sd}, s{sT0}')
    a(f's_cmp_lt_u32 s{sT2}, s{sT3}\ns_cselect_b32 s{sT0}, {D_VOTE0}, {D_VOTE1}')
    a(f'v_mov_b32 v2, s{sT0}\nv_mov_b32 v4, 1')
    a(f'buffer_atomic_add v4, v2, {DBG}, 0 offen\ns_waitcnt vmcnt(0)\ns_mov_b64 exec, -1')
    a('L_caldone:')
    a('s_barrier')
    a('L_nocal:')
    if cfg.force_impure:
        a(f'v_mov_b32 v2, 1\nv_mov_b32 v3, {D_IMPURE}\ns_mov_b64 exec, 1\nbuffer_atomic_or v2, v3, {DBG}, 0 offen\ns_mov_b64 exec, -1')
    a('v_lshlrev_b32 v1, 4, v0\nv_mov_b32 v4, -1\nv_mov_b32 v5, -1\nv_mov_b32 v6, -1\nv_mov_b32 v7, -1')
    a(f's_cmp_ge_u32 s{sWave}, 6\ns_cbranch_scc1 L_ini67')
    assert NPRE * SL == 256 * 2048
    a(f's_lshr_b32 s{sT0}, s{sWave}, 1\ns_mul_i32 s{sT0}, s{sT0}, {XS}\ns_and_b32 s{sT1}, s{sWave}, 1\ns_lshl_b32 s{sT1}, s{sT1}, 10\ns_add_u32 s{sT0}, s{sT0}, s{sT1}\ns_lshl_b32 s{sT1}, s2, 11\ns_add_u32 s{sT0}, s{sT0}, s{sT1}')
    a(f'buffer_store_dwordx4 v[4:7], v1, {WS}, s{sT0} offen sc1\ns_branch L_dispatch')
    a('L_ini67:')
    def um0(su):
        a(f's_lshl_b32 s{sT0}, s{su}, 10\ns_add_u32 s{sT0}, s{sT0}, {UM}')
        a(f'buffer_store_dwordx4 v[4:7], v1, {WS}, s{sT0} offen sc1')
    a(f's_sub_u32 s{sT2}, s{sWave}, 6\ns_lshl_b32 s{sT2}, s{sT2}, 8\ns_add_u32 s{sT2}, s{sT2}, s2')
    um0(sT2)
    a(f's_cmp_eq_u32 s{sWave}, 6\ns_cbranch_scc1 L_ini6\ns_cmp_lt_u32 s2, 128\ns_cbranch_scc1 L_dispatch\ns_add_u32 s{sT2}, s2, 384')
    um0(sT2)
    a('s_branch L_dispatch')
    a('L_ini6:')
    if not cfg.keep_flags:
        a(f'v_mov_b32 v8, 0\nv_mov_b32 v9, 0\ns_lshl_b32 s{sT0}, s2, 7\ns_add_u32 s{sT0}, s{sT0}, {F_BASE}\ns_mov_b64 exec, 1\nbuffer_store_dwordx2 v[8:9], v8, {WS}, s{sT0} offen sc1\ns_mov_b64 exec, -1')
    a('s_branch L_dispatch')
    a('L_reclaim:')
    a(f's_waitcnt vmcnt(0) lgkmcnt(0)\ns_barrier\ns_mov_b32 s{sClm}, 1\ns_cmp_lg_u32 s{sWave}, 0\ns_cbranch_scc1 L_pro_join')
    a('s_mov_b64 exec, 1')
    a('L_claim_loop:')
    a(f's_lshl_b32 s{sT0}, 1, s{sR}\ns_lshl_b32 s{sT1}, s{sX}, 5')
    a(f'v_mov_b32 v2, s{sT0}\nv_mov_b32 v3, s{sT1}')
    a(f'buffer_atomic_or v2, v3, {DBG}, 0 offen sc0\ns_waitcnt vmcnt(0)')
    a(f'v_readfirstlane_b32 s{sT1}, v2')
    a(f's_and_b32 s{sT2}, s{sT1}, s{sT0}\ns_cbranch_scc0 L_claim_ok')
    a(f's_cmp_eq_u32 s{sT1}, -1\ns_cbranch_scc1 L_claim_next')
    a(f's_ff0_i32_b32 s{sR}, s{sT1}\ns_branch L_claim_loop')
    a('L_claim_next:')
    a(f'v_mov_b32 v2, 1\nv_mov_b32 v3, {D_IMPURE}\nbuffer_atomic_or v2, v3, {DBG}, 0 offen\ns_waitcnt vmcnt(0)')
    a(f's_add_u32 s{sX}, s{sX}, 1\ns_and_b32 s{sX}, s{sX}, 7\ns_mov_b32 s{sR}, 0\ns_branch L_claim_loop')
    a('L_claim_ok:')
    a(f's_lshl_b32 s{sT0}, s{sX}, 5\ns_or_b32 s{sT0}, s{sT0}, s{sR}')
    a(f'v_mov_b32 v2, s{sT0}\nv_mov_b32 v3, {LSTAT + 4}\nds_write_b32 v3, v2\ns_waitcnt lgkmcnt(0)\ns_mov_b64 exec, -1')
    a('L_pro_join:')
    a('s_barrier')
    a(f'v_mov_b32 v3, {LSTAT + 4}\nds_read_b32 v2, v3\ns_waitcnt lgkmcnt(0)')
    a(f'v_readfirstlane_b32 s{sT0}, v2')
    a(f's_lshr_b32 s{sX}, s{sT0}, 5\ns_and_b32 s{sX}, s{sX}, 7\ns_and_b32 s{sR}, s{sT0}, 31')
    a('L_dispatch:')
    if 'R' in cfg.roles:
        a(f's_mov_b32 s{sXr}, 0\ns_cmp_eq_u32 s{sX}, {cfg.rx0}\ns_cbranch_scc1 L_R')
        a(f's_mov_b32 s{sXr}, 1\ns_cmp_eq_u32 s{sX}, {cfg.rx1}\ns_cbranch_scc1 L_R')
        if cfg.r2: a(f's_mov_b32 s{sXr}, 2\ns_cmp_eq_u32 s{sX}, {cfg.rx2}\ns_cbranch_scc1 L_RVO')
    if cfg.r2:
        others = [x for x in range(8) if x not in (cfg.rx0, cfg.rx1, cfg.rx2)]
        ax, fx = cfg.ax or others[1:], cfg.fx or others[:1]
        R = lambda n: 'L_' + n if n in cfg.roles else 'L_idle'
        for i, x in enumerate(ax):
            a(f's_mov_b32 s{sT0}, {i}\ns_cmp_eq_u32 s{sX}, {x}\ns_cbranch_scc1 L_Atype')
        a(f's_cmp_lg_u32 s{sX}, {fx[0]}\ns_cbranch_scc1 L_idle')
        if cfg.voxx:
            a(f's_mov_b32 s{sH}, s{sR}\ns_mov_b32 s{sXr}, 0\ns_branch {R("VOX")}')
        else:
            a(f's_lshr_b32 s{sH}, s{sR}, 1\ns_and_b32 s{sXr}, s{sR}, 1\ns_cmp_lt_u32 s{sR}, 28\ns_cbranch_scc1 {R("FF1")}')
        a('L_idle:')
        a('s_waitcnt vmcnt(0)\ns_barrier')
        claim_issue(a, 2)
        wait_init(a, 2, 3, only_check=True)
        a('s_branch L_end')
        a('L_Atype:')
        a(f's_and_b32 s{sH}, s{sR}, 7\ns_mov_b32 s{sXr}, s{sT0}\ns_cmp_ge_u32 s{sR}, 24\ns_cbranch_scc1 {R("FIN")}')
        if cfg.voxx:
            a(f's_cmp_lt_u32 s{sR}, 16\ns_cbranch_scc1 L_A3\ns_cmp_eq_u32 s{sR}, 23\ns_cbranch_scc1 L_idle')
            a(f's_lshr_b32 s{sT1}, s{sT0}, 1\ns_mul_i32 s{sT1}, s{sT1}, 7\ns_add_u32 s{sH}, s{sH}, s{sT1}\ns_and_b32 s{sXr}, s{sT0}, 1\ns_branch {R("FF1")}\nL_A3:')
        a(f's_lshl_b32 s{sT0}, s{sT0}, 3\ns_add_u32 s{sH}, s{sH}, s{sT0}\ns_mov_b32 s{sXr}, 0\ns_cmp_ge_u32 s{sR}, 16\ns_cbranch_scc1 {R("VOX")}')
        a(f's_lshr_b32 s{sXr}, s{sR}, 3\ns_branch {R("QKX")}')
        assert cfg.nc_vox == 1 and cfg.nc_qkx == 2 and cfg.nc_ff1 == 2
        return
```

```python
import sys, struct
sys.path.insert(0, 'gen')
from asmlib import *
from layout import *

KNAME = 'gated_mix__memory_aug_recurrent_mem_tr__glu_gated_bilinear__prompt_kernel'

def f2u(x): return struct.unpack('<I', struct.pack('<f', x))[0]

WS = 's[4:7]'; DBG = 's[8:11]'; T1 = 's[12:15]'; T2 = 's[48:51]'
pX, pMEM0, pWQ, pWK, pWV, pWO, pWG, pWU, pWD, pGW, pOUT, pDBG, pWS = 16, 18, 20, 22, 24, 26, 32, 34, 36, 38, 40, 42, 44
sWave, sX, sR, sH, sXr, sJ, sHas2, sLim, sStep, sImp = 52, 53, 54, 55, 56, 57, 58, 59, 60, 61
sT0, sT1, sT2, sT3, sT4, sT5 = 62, 63, 64, 65, 66, 67
sbL, sbR, sbO = 68, 69, 70
sCL, sCR, sCO, sPL, sPO, sNL, sNO = 71, 72, 73, 74, 75, 76, 77
sSeg = 78
sSeg2 = 79
sEx = 80
sEx2 = 82
sTm = 84
sC = 88
sSpin = 89
sFl0, sFl1 = 90, 91
sPar = 46
sClm = 30

class Cfg:
    rx0 = 0; rx1 = 2; rx2 = 1; r2 = True
    qcue = True; scue = True; vo_sleep = 0; pf_ahead = 2; no_pf = True; pf64 = False
    ax = None; fx = None
    nc_qkx = 2; nc_vox = 1; nc_ff1 = 2; la = 1; early_pub = 6; km_sleep = 2
    roles = ('R', 'QKX', 'VOX', 'FF1', 'FIN')
    fake_xcc = None
    timing = False
    force_impure = False
    force_par = None
    rdelay1 = 0
    rdelay2 = 0
    nsteps = 64
    fine = 0
    xfin = True
    fast_tail = True
    codepf = 0
    late_gate = True
    late_pz = True
    fuse = True
    wopf = False
    rot = 1
    uxn = 16
    uxmode = 'mix'
    voxx = False
    uxpos = 1
    pfn = 0
    rmode = 'hi'
    ldma = False
    uxack = False
    uxe = 0
    uxe2 = 0
    uxdel = 0
    cdel1 = 0
    g3del = 0
    gq = None
    gv = None
    vdepth = 1
    vgap = 15
    rdel = 0
    cdepth2 = 4
    npre0 = 0
    vfirst = True
    hidel = 8
    npre = 2
    r3 = True
    presleep = 64
    claim_at = 0
    keep_flags = False
    defer_ff = True
    dbgtime = None
    vox_prio = True
    ux_st = ''
    vcue = False
    cpos3 = 2
    cwave3 = 0
    cdel3 = 0
    sorder = 0
    bg_late = True
    pubord = 'LOV'
    cdel2 = 16
    h2cue2 = True
    vocue2 = True
    h2cue = False
    prio1 = True
    cdepth = 4
    cgap = 12
    cpos1 = 8
    cpos2 = 0
    w0ack = False
    rdelay1q = 3
    order = 0
    n0qk = 6
    b3b = False
    st3 = True
    um_early = 0
    n0vo = 6
    late_vo = False
    only = None
    n1qk = 8
    n1vo = 8
    trig1 = 0
    late_r = False
    no_ux = False
    ux_nt = ''

COUNT_RETRY = [False]
CLAIM_AT = [0]

def srd(a, q, p, nbytes):
    a(f's_mov_b32 s{q}, s{p}\ns_and_b32 s{q+1}, s{p+1}, 0xffff\ns_mov_b32 s{q+2}, {nbytes}\ns_mov_b32 s{q+3}, 0x00020000')

def ux_head(a, cfg, sd, sh):
    a(f's_lshr_b32 s{sT0}, s{sh}, 4\ns_mul_i32 s{sd}, s{sT0}, {2 * MB + 0x2000 + cfg.rot * 0x8000}')
    if cfg.uxmode != 'mix': a(f's_xor_b32 s{sd}, s{sd}, s{sPar}')
    if cfg.uxmode == 'far': a(f's_xor_b32 s{sd}, s{sd}, 0x2000')
    a(f's_bfe_u32 s{sT0}, s{sh}, 0x10003\ns_mul_i32 s{sT0}, s{sT0}, {0x6000 if cfg.uxmode == "mix" else 0x4000}\ns_xor_b32 s{sd}, s{sd}, s{sT0}')
    a(f's_and_b32 s{sT0}, s{sh}, 7\ns_lshl_b32 s{sT0}, s{sT0}, 10\ns_add_u32 s{sd}, s{sd}, s{sT0}')

def ux_tile(a, cfg, sd, sj):
    if cfg.rot: a(f's_and_b32 s{sT0}, s{sj}, 31\ns_lshl_b32 s{sT0}, s{sT0}, 16\ns_add_u32 s{sd}, s{sd}, s{sT0}')
    a(f's_lshl_b32 s{sT0}, s{sj}, 22\ns_add_u32 s{sd}, s{sd}, s{sT0}\ns_add_u32 s{sd}, s{sd}, {UX}')

def um_seg(a, sd, sseg):
    a(f's_mul_i32 s{sT0}, s{sseg}, 43\ns_lshr_b32 s{sT0}, s{sT0}, 7\ns_and_b32 s{sd}, s{sT0}, 1\ns_lshl_b32 s{sd}, s{sd}, 13\ns_xor_b32 s{sd}, s{sd}, s{sPar}')
    a(f's_lshl_b32 s{sT0}, s{sT0}, 17\ns_add_u32 s{sd}, s{sd}, s{sT0}\ns_mul_i32 s{sT0}, s{sseg}, {40 * 16384}\ns_add_u32 s{sd}, s{sd}, s{sT0}\ns_add_u32 s{sd}, s{sd}, {UM}')

def maxtree(a, dst, regs):
    regs = list(regs)
    if len(regs) % 2 == 0:
        a(f'v_max_u32 v{dst}, v{regs[0]}, v{regs[1]}'); rest = regs[2:]
    else:
        a(f'v_max3_u32 v{dst}, v{regs[0]}, v{regs[1]}, v{regs[2]}'); rest = regs[3:]
    for i in range(0, len(rest), 2):
        a(f'v_max3_u32 v{dst}, v{dst}, v{rest[i]}, v{rest[i+1]}')

def poll(a, loads, regs, tmp, first_issued=False, spec=None, specwait=False, first_wait=0, sleep=0):
    top = a.newlabel('poll'); chk = a.newlabel('chk'); done = a.newlabel('pdone')
    a(f's_mov_b32 s{sSpin}, s{sLim}')
    if first_issued:
        a(f's_waitcnt vmcnt({first_wait})')
        a(f's_branch {chk}')
    a(f'{top}:')
    if specwait: a('s_waitcnt lgkmcnt(0)')
    for l in loads: a(l)
    a('s_waitcnt vmcnt(0)')
    a(f'{chk}:')
    if spec: spec()
    maxtree(a, tmp, regs)
    a(f'v_cmp_eq_u32 vcc, -1, v{tmp}')
    a(f's_cbranch_vccz {done}')
    if COUNT_RETRY[0] and first_issued: a('s_add_u32 s101, s101, 1')
    if sleep: a(f's_sleep {sleep}')
    a(f's_sub_u32 s{sSpin}, s{sSpin}, 1')
    a(f's_cbranch_scc0 {top}')
    a(f's_mov_b32 s{sLim}, 0')
    a(f'{done}:')

def check(a, loads, regs, tmp, wait, spec=None, specwait=False, post=None, cnt=None):
    back = a.newlabel('ck'); retry = a.newlabel('rt'); done = a.newlabel('ckd')
    a(f's_waitcnt vmcnt({wait})')
    a(f'{back}:')
    if spec: spec()
    maxtree(a, tmp, regs)
    a(f'v_cmp_eq_u32 vcc, -1, v{tmp}')
    if post: post()
    a(f's_cbranch_vccnz {retry}')
    a(f'{done}:')
    def ool():
        a(f'{retry}:')
        if COUNT_RETRY[0]: a('s_add_u32 s101, s101, 1')
        if COUNT_RETRY[0] == 2 and cnt: a(f's_add_u32 s{cnt}, s{cnt}, 1')
        a(f's_sub_u32 s{sLim}, s{sLim}, 1')
        l = a.newlabel('rg')
        a(f's_cbranch_scc0 {l}\ns_mov_b32 s{sLim}, 0\ns_branch {done}\n{l}:')
        if specwait: a('s_waitcnt lgkmcnt(0)')
        a('s_nop 7')
        for x in loads: a(x)
        a(f's_waitcnt vmcnt(0)\ns_branch {back}')
    a.defer(ool)

def lstore(a, insts):
    l1 = a.newlabel('ls'); l2 = a.newlabel('le')
    a(f's_cmp_lg_u32 s{sImp}, 0')
    a(f's_cbranch_scc1 {l1}')
    for i in insts: a(i)
    a(f's_branch {l2}')
    a(f'{l1}:')
    for i in insts: a(i + (' sc1' if i.startswith('buffer_') else ''))
    a(f'{l2}:')

LSTAT = 163840 - 8
vClaim = 20

def claim_issue(a, vt):
    l = a.newlabel('ci')
    a(f's_or_b32 s{sT0}, s{sWave}, s{sClm}\ns_cbranch_scc1 {l}')
    a(f's_lshl_b32 s{sT0}, 1, s{sR}\ns_lshl_b32 s{sT1}, s{sX}, 5\nv_mov_b32 v{vClaim}, s{sT0}\nv_mov_b32 v{vt}, s{sT1}')
    a(f's_mov_b64 exec, 1\nbuffer_atomic_or v{vClaim}, v{vt}, {DBG}, 0 offen sc0\ns_mov_b64 exec, -1')
    a(f'{l}:')

def wait_init(a, vt, vo, presleep=0, only_check=False):
    top = a.newlabel('wi'); done = a.newlabel('wid'); ok = a.newlabel('wok')
    a(f'v_min_u32 v{vo}, 7, v0\nv_lshlrev_b32 v{vo}, 5, v{vo}')
    a(f's_cmp_lg_u32 s{sWave}, 0\ns_cbranch_scc1 {done}')
    a(f's_mov_b32 s{sT2}, 0\ns_cmp_lg_u32 s{sClm}, 0\ns_cbranch_scc1 {ok}')
    a(f's_waitcnt vmcnt(0)\nv_readfirstlane_b32 s{sT0}, v{vClaim}\ns_lshr_b32 s{sT0}, s{sT0}, s{sR}\ns_and_b32 s{sT2}, s{sT0}, 1')
    a(f'{ok}:')
    a(f'v_mov_b32 v{vt}, {LSTAT}\nv_mov_b32 v{vClaim}, s{sT2}\nds_write_b32 v{vt}, v{vClaim}\ns_waitcnt lgkmcnt(0)')
    if not only_check:
        a(f's_cmp_lg_u32 s{sT2}, 0\ns_cbranch_scc1 {done}')
        a(f's_mov_b32 s{sSpin}, s{sLim}')
        a(f'{top}:')
        if presleep: a(f's_sleep {presleep}')
        a(f'buffer_load_dword v{vt}, v{vo}, {DBG}, 0 offen sc1')
        a('s_waitcnt vmcnt(0)')
        a(f'v_cmp_ne_u32 vcc, -1, v{vt}')
        a(f's_cbranch_vccz {done}')
        if not presleep: a('s_sleep 8')
        a(f's_sub_u32 s{sSpin}, s{sSpin}, 8')
        a(f's_cbranch_scc0 {top}')
        a(f's_mov_b32 s{sLim}, 0')
    a(f'{done}:')
    a('s_barrier')
    if not only_check: a(f'buffer_load_dword v{vt}, v{vo}, {DBG}, 0 offen offset:4 sc1')
    a(f'v_mov_b32 v{vo}, {LSTAT}\nds_read_b32 v{vo}, v{vo}\ns_waitcnt vmcnt(0) lgkmcnt(0)\nv_readfirstlane_b32 s{sT0}, v{vo}\ns_cmp_lg_u32 s{sT0}, 0\ns_cbranch_scc1 L_reclaim')
    if not only_check: a(f'v_readlane_b32 s{sT0}, v{vt}, 1\nv_readlane_b32 s{sT1}, v{vt}, 2\nv_readlane_b32 s{sImp}, v{vt}, 3')

def loader(a, chunks, vA, vB, vRd, vRd2, vt, vo, nslots=3, claim=True, early=None, nearly=0):
    n = len(chunks)
    LSLOT = 163840 - nslots * 32768
    def issue(i):
        c = chunks[i]
        if c.get('pre'): c['pre'](a)
        c['soff'](a)
        a(f's_lshl_b32 s{sT1}, s{sWave}, 12')
        a(f's_add_u32 s{sT1}, s{sT1}, {LSLOT + (i % nslots) * 32768}')
        for ii in range(4):
            a(f's_mov_b32 m0, s{sT1}')
            a(f'buffer_load_dwordx4 v{vB if c.get("var", lambda i: i >> 1)(ii) else vA}, {T1}, s{sT0} offen lds')
            if ii < 3:
                a(f's_add_u32 s{sT0}, s{sT0}, {4 * c["stride"]}\ns_add_u32 s{sT1}, s{sT1}, 1024')
    vIa, vIb, vIo = 21, 22, 23
    lst = LSLOT + ((n - 2) % nslots) * 32768
    issue(0)
    if claim:
        a('s_waitcnt vmcnt(4)\ns_barrier')
        claim_issue(a, vt)
        a(f'v_min_u32 v{vIo}, 7, v0\nv_lshlrev_b32 v{vIo}, 5, v{vIo}')
    if early: early()
    for i in range(1, min(nslots, n)): issue(i)
    for i in range(n):
        w = 4 * (min(i + nslots - 1, n - 1) - i)
        x = chunks[i - 1].get('hi_stores', 0) if i else 0
        if x:
            l = a.newlabel('lw')
            a(f's_waitcnt vmcnt({w + x})\ns_cmp_ge_u32 s{sWave}, 4\ns_cbranch_scc1 {l}\ns_waitcnt vmcnt({w})\n{l}:')
        else:
            a(f's_waitcnt vmcnt({w})')
        a('s_barrier')
        if claim and i == n - 2 - nslots: a(f'buffer_load_dword v{vIa}, v{vIo}, {DBG}, 0 offen sc1')
        if claim and i == n - 2: a(f'buffer_load_dword v{vIb}, v{vIo}, {DBG}, 0 offen offset:4 sc1')
        if claim and i == n - 1:
            l = a.newlabel('lc')
            a(f's_cmp_lg_u32 s{sWave}, 0\ns_cbranch_scc1 {l}')
            a(f'v_readfirstlane_b32 s{sT0}, v{vClaim}\ns_lshr_b32 s{sT0}, s{sT0}, s{sR}\ns_andn2_b32 s{sT0}, s{sT0}, s{sClm}\ns_and_b32 s{sT0}, s{sT0}, 1')
            a(f'v_cmp_ne_u32 vcc, -1, v{vIa}\ns_cmp_lg_u64 vcc, 0\ns_cselect_b32 s{sT0}, 1, s{sT0}\nv_mov_b32 v{vIa}, s{sT0}\nv_mov_b32 v{vIo}, {lst}\nds_write_b32 v{vIo}, v{vIa}')
            a(f'{l}:')
        a(f'v_add_u32 v{vRd2}, {LSLOT + (i % nslots) * 32768}, v{chunks[i].get("vrd", vRd)}')
        chunks[i]['reads'](a, vRd2)
        a('s_waitcnt lgkmcnt(0)')
        if i + nslots < n:
            a('s_barrier')
            issue(i + nslots)
        if chunks[i].get('post'):
            chunks[i]['post'](a)
            a('s_waitcnt lgkmcnt(0)')
    a('s_barrier')
    if claim:
        fast = a.newlabel('lf')
        a(f'v_mov_b32 v{vIo}, {lst}\nds_read_b32 v{vIo}, v{vIo}\nv_readlane_b32 s{sT0}, v{vIb}, 1\nv_readlane_b32 s{sT1}, v{vIb}, 2\nv_readlane_b32 s{sImp}, v{vIb}, 3')
        a(f's_waitcnt lgkmcnt(0)\nv_cmp_eq_u32 vcc, 0, v{vIo}\ns_cbranch_vccnz {fast}')
        wait_init(a, vt, vo)
        a(f'{fast}:')

def src_offsets(a, vA, vB, vt, stride, colmap=None):
    for var, vd in ((0, vA), (1, vB)):
        a(f'v_lshrrev_b32 v{vt}, 4, v0')
        if var: a(f'v_or_b32 v{vt}, 4, v{vt}')
        a(f'v_bfe_u32 v{vd}, v0, 1, 3')
        a(f'v_xor_b32 v{vd}, v{vd}, v{vt}')
        if colmap is None:
            a(f'v_lshlrev_b32 v{vd}, 5, v{vd}')
        else:
            colmap(a, vd, vt)
        a(f'v_and_b32 v{vt}, 1, v0\nv_lshl_add_u32 v{vd}, v{vt}, 4, v{vd}')
        a(f'v_lshrrev_b32 v{vt}, 4, v0\nv_mul_u32_u24 v{vt}, {stride}, v{vt}\nv_add_u32 v{vd}, v{vd}, v{vt}')

def tr_base(a, vd, vt, unit_sreg):
    a(f'v_bfe_u32 v{vd}, v0, 2, 3')
    a(f'v_xor_b32 v{vd}, s{unit_sreg}, v{vd}')
    a(f'v_lshlrev_b32 v{vd}, 5, v{vd}')
    a(f'v_and_b32 v{vt}, 3, v0\nv_lshl_add_u32 v{vd}, v{vt}, 3, v{vd}')
    a(f'v_bfe_u32 v{vt}, v0, 2, 2\nv_lshl_add_u32 v{vd}, v{vt}, 8, v{vd}')
    a(f'v_lshrrev_b32 v{vt}, 4, v0\nv_lshl_add_u32 v{vd}, v{vt}, 11, v{vd}')

def std_reads(base):
    def f(a, va):
        for kk in range(4):
            for h in range(2):
                a(f'ds_read_b64_tr_b16 {A(base + kk * 4 + h * 2, 2)}, v{va} offset:{kk * 8192 + h * 1024}')
    return f

def tstamp(a, cfg, slot, vt, vo):
    if cfg.dbgtime:
        for (x, r, sl), word in cfg.dbgtime.items():
            if sl != slot: continue
            l = a.newlabel('dt')
            a(f's_cmp_lg_u32 s{sX}, {x}\ns_cbranch_scc1 {l}\ns_cmp_lg_u32 s{sR}, {r}\ns_cbranch_scc1 {l}\ns_cmp_lg_u32 s{sWave}, 0\ns_cbranch_scc1 {l}')
            a(f's_memrealtime s[{sTm}:{sTm+1}]\ns_waitcnt lgkmcnt(0)\ns_sub_u32 s{sTm}, s{sTm}, s3\nv_mov_b32 v{vt}, s{sTm}\nv_mov_b32 v{vo}, {4 * word}')
            a(f's_mov_b64 exec, 1\nbuffer_store_dword v{vt}, v{vo}, {DBG}, 0 offen sc1\ns_mov_b64 exec, -1\n{l}:')
        return
    if not cfg.timing: return
    a(f's_memrealtime s[{sTm}:{sTm+1}]\ns_waitcnt lgkmcnt(0)')
    a(f's_lshl_b32 s{sTm+2}, s{sX}, 5\ns_add_u32 s{sTm+2}, s{sTm+2}, s{sR}\ns_lshl_b32 s{sTm+2}, s{sTm+2}, 3\ns_add_u32 s{sTm+2}, s{sTm+2}, s{sWave}\ns_lshl_b32 s{sTm+2}, s{sTm+2}, 4')
    a(f's_add_u32 s{sTm+2}, s{sTm+2}, {TIM + slot * 4}')
    a(f'v_mov_b32 v{vt}, s{sTm}\nv_mov_b32 v{vo}, s{sTm+2}')
    a(f's_mov_b64 exec, 1\nbuffer_store_dword v{vt}, v{vo}, {WS}, 0 offen\ns_mov_b64 exec, -1')

def fstamp(a, cfg, k):
    if not cfg.fine: return
    if cfg.fine == -3:
        a(f's_memrealtime s[{12 + 2 * k}:{13 + 2 * k}]')
        return
    if cfg.fine == -2:
        if cfg.only is not None and k not in cfg.only: return
        a(f's_memrealtime s[{sTm}:{sTm+1}]\ns_waitcnt lgkmcnt(0)\ns_cmp_lt_u32 s{sStep}, 60\ns_cselect_b32 s{sTm}, s{sTm}, 0')
        a(f's_add_u32 s{sTm+1}, s{sTm}, s{92+k}\ns_cmp_ge_u32 s{sStep}, 4\ns_cselect_b32 s{92+k}, s{sTm+1}, 0')
        return
    if cfg.fine < 0:
        if cfg.only is not None and k not in cfg.only: return
        a(f's_memtime s[{sTm}:{sTm+1}]\ns_waitcnt lgkmcnt(0)\ns_sub_u32 s{sTm+1}, s{sTm}, s47\ns_mov_b32 s47, s{sTm}')
        a(f's_add_u32 s{sTm+1}, s{sTm+1}, s{92+k}\ns_cmp_ge_u32 s{sStep}, 4\ns_cselect_b32 s{92+k}, s{sTm+1}, 0')
        return
    if cfg.only is not None and k not in cfg.only: return
    a(f's_memtime s[{sTm}:{sTm+1}]\ns_waitcnt lgkmcnt(0)\ns_cmp_eq_u32 s{sStep}, {cfg.fine}\ns_cselect_b32 s{92+k}, s{sTm}, s{92+k}')
def facc(a, cfg):
    if cfg.fine != -3: return
    a('s_waitcnt lgkmcnt(0)')
    for k in range(9):
        a(f's_cmp_lt_u32 s{sStep}, 60\ns_cselect_b32 s{sTm}, s{12 + 2 * k}, 0\ns_add_u32 s{sTm}, s{sTm}, s{92 + k}\ns_cmp_ge_u32 s{sStep}, 4\ns_cselect_b32 s{92 + k}, s{sTm}, 0')

def fdump(a, cfg, vt, vo):
    if not cfg.fine: return
    a(f's_lshl_b32 s{sTm+2}, s{sX}, 5\ns_add_u32 s{sTm+2}, s{sTm+2}, s{sR}\ns_lshl_b32 s{sTm+2}, s{sTm+2}, 3\ns_add_u32 s{sTm+2}, s{sTm+2}, s{sWave}\ns_lshl_b32 s{sTm+2}, s{sTm+2}, 6')
    a(f's_add_u32 s{sTm+2}, s{sTm+2}, {FTIM}\nv_mov_b32 v{vo}, s{sTm+2}\ns_mov_b64 exec, 1')
    for k in range(10):
        a(f'v_mov_b32 v{vt}, s{92+k}\nbuffer_store_dword v{vt}, v{vo}, {WS}, 0 offen offset:{4*k}')
    a('s_mov_b64 exec, -1')

def prologue(a, cfg):
    COUNT_RETRY[0] = (2 if cfg.only == () else 1) if cfg.fine < 0 else 0
    if cfg.fine < 0: a('s_mov_b32 s98, 0\ns_mov_b32 s99, 0\ns_mov_b32 s100, 0')
    CLAIM_AT[0] = cfg.claim_at
    if cfg.fine < 0: a('s_mov_b32 s101, 0')
    a('s_cmp_ge_u32 s2, 256\ns_cbranch_scc1 L_end')
    if cfg.dbgtime: a(f's_memrealtime s[{sTm}:{sTm+1}]\ns_waitcnt lgkmcnt(0)\ns_mov_b32 s3, s{sTm}')
    if cfg.codepf:
        a('s_getpc_b64 s[4:5]')
        a('L_pc0:')
        a('s_lshr_b32 s6, s2, 3\ns_lshl_b32 s6, s6, 11\nv_lshlrev_b32 v2, 7, v0\nv_add_u32 v2, s6, v2\nv_min_u32 v2, L_end-L_pc0, v2')
        a('v_cmp_gt_u32 vcc, 16, v0\ns_and_saveexec_b64 s[8:9], vcc\ns_cbranch_execz L_pc1\nglobal_load_dword v94, v2, s[4:5]\nL_pc1:\ns_mov_b64 exec, -1')
    a('s_load_dwordx16 s[16:31], s[0:1], 0\ns_load_dwordx8 s[32:39], s[0:1], 64\ns_load_dwordx4 s[40:43], s[0:1], 96\ns_load_dwordx2 s[44:45], s[0:1], 112')
    a(f'v_lshrrev_b32 v1, 6, v0\nv_and_b32 v0, 63, v0\nv_readfirstlane_b32 s{sWave}, v1')
    if cfg.fake_xcc is None:
        a(f's_getreg_b32 s{sX}, hwreg(HW_REG_XCC_ID)\ns_and_b32 s{sX}, s{sX}, 7')
    else:
        a(f's_mov_b32 s{sX}, {cfg.fake_xcc}')
    a(f's_mov_b32 s{sLim}, 0x80000')
    a('s_waitcnt lgkmcnt(0)')
    srd(a, 4, pWS, WS_BYTES); srd(a, 8, pDBG, 256)
    srd(a, 12, pWS, WS_BYTES); srd(a, 48, pWS, WS_BYTES)
    a(f's_lshr_b32 s{sR}, s2, 3\ns_mov_b32 s{sClm}, 0')
    tstamp(a, cfg, 0, 2, 3)
    a(f's_cmp_lg_u32 s{sX}, {cfg.rx0}\ns_cbranch_scc1 L_nocal\ns_cmp_lt_u32 s{sR}, 26\ns_cbranch_scc1 L_nocal')
    a(f's_cmp_lg_u32 s{sWave}, 7\ns_cbranch_scc1 L_caldone')
    a(f's_lshr_b32 s{sT0}, s2, 6\ns_lshl_b32 s{sT0}, s{sT0}, 14\ns_and_b32 s{sT1}, s2, 63\ns_lshl_b32 s{sT1}, s{sT1}, 7')
    a(f's_add_u32 s{sT0}, s{sT0}, s{sT1}\ns_add_u32 s{sT0}, s{sT0}, {CAL}')
    a(f'v_mov_b32 v2, s{sT0}\nv_add_u32 v3, 0x2000, v2\nv_mov_b32 v4, 0')
    a(f's_mov_b64 exec, 1\ns_mov_b32 s{sT2}, -1\ns_mov_b32 s{sT3}, -1')
    for rep in range(2):
        a(f'buffer_store_dword v4, v2, {WS}, 0 offen sc1\nbuffer_store_dword v4, v3, {WS}, 0 offen sc1\ns_waitcnt vmcnt(0)')
        for vv, sd in ((2, sT2), (3, sT3)):
            a(f's_memtime s[{sTm}:{sTm+1}]\ns_waitcnt lgkmcnt(0)')
            a(f'buffer_load_dword v5, v{vv}, {WS}, 0 offen sc1\ns_waitcnt vmcnt(0)')
            a(f's_memtime s[{sTm+2}:{sTm+3}]\ns_waitcnt lgkmcnt(0)')
            a(f's_sub_u32 s{sT0}, s{sTm+2}, s{sTm}\ns_min_u32 s{sd}, s{sd}, s{sT0}')
    a(f's_cmp_lt_u32 s{sT2}, s{sT3}\ns_cselect_b32 s{sT0}, {D_VOTE0}, {D_VOTE1}')
    a(f'v_mov_b32 v2, s{sT0}\nv_mov_b32 v4, 1')
    a(f'buffer_atomic_add v4, v2, {DBG}, 0 offen\ns_waitcnt vmcnt(0)\ns_mov_b64 exec, -1')
    a('L_caldone:')
    a('s_barrier')
    a('L_nocal:')
    if cfg.force_impure:
        a(f'v_mov_b32 v2, 1\nv_mov_b32 v3, {D_IMPURE}\ns_mov_b64 exec, 1\nbuffer_atomic_or v2, v3, {DBG}, 0 offen\ns_mov_b64 exec, -1')
    a('v_lshlrev_b32 v1, 4, v0\nv_mov_b32 v4, -1\nv_mov_b32 v5, -1\nv_mov_b32 v6, -1\nv_mov_b32 v7, -1')
    a(f's_cmp_ge_u32 s{sWave}, 6\ns_cbranch_scc1 L_ini67')
    assert NPRE * SL == 256 * 2048
    a(f's_lshr_b32 s{sT0}, s{sWave}, 1\ns_mul_i32 s{sT0}, s{sT0}, {XS}\ns_and_b32 s{sT1}, s{sWave}, 1\ns_lshl_b32 s{sT1}, s{sT1}, 10\ns_add_u32 s{sT0}, s{sT0}, s{sT1}\ns_lshl_b32 s{sT1}, s2, 11\ns_add_u32 s{sT0}, s{sT0}, s{sT1}')
    a(f'buffer_store_dwordx4 v[4:7], v1, {WS}, s{sT0} offen sc1\ns_branch L_dispatch')
    a('L_ini67:')
    def um0(su):
        a(f's_lshl_b32 s{sT0}, s{su}, 10\ns_add_u32 s{sT0}, s{sT0}, {UM}')
        a(f'buffer_store_dwordx4 v[4:7], v1, {WS}, s{sT0} offen sc1')
    a(f's_sub_u32 s{sT2}, s{sWave}, 6\ns_lshl_b32 s{sT2}, s{sT2}, 8\ns_add_u32 s{sT2}, s{sT2}, s2')
    um0(sT2)
    a(f's_cmp_eq_u32 s{sWave}, 6\ns_cbranch_scc1 L_ini6\ns_cmp_lt_u32 s2, 128\ns_cbranch_scc1 L_ini7\ns_add_u32 s{sT2}, s2, 384')
    um0(sT2)
    a('s_branch L_dispatch')
    a('L_ini7:')
    a(f's_cmp_ge_u32 s2, 80\ns_cbranch_scc1 L_dispatch\ns_mov_b32 s{sT1}, {PXX + (63 << 16)}\ns_cmp_ge_u32 s2, 64\ns_cselect_b32 s{sT1}, {PXM + (63 << 14) - 65536}, s{sT1}\ns_lshl_b32 s{sT0}, s2, 10\ns_add_u32 s{sT0}, s{sT0}, s{sT1}')
    a(f'buffer_store_dwordx4 v[4:7], v1, {WS}, s{sT0} offen sc1\ns_branch L_dispatch')
    a('L_ini6:')
    if not cfg.keep_flags:
        a(f'v_mov_b32 v8, 0\nv_mov_b32 v9, 0\ns_lshl_b32 s{sT0}, s2, 7\ns_add_u32 s{sT0}, s{sT0}, {F_BASE}\ns_mov_b64 exec, 1\nbuffer_store_dwordx2 v[8:9], v8, {WS}, s{sT0} offen sc1\ns_mov_b64 exec, -1')
    a('s_branch L_dispatch')
    a('L_reclaim:')
    a(f's_waitcnt vmcnt(0) lgkmcnt(0)\ns_barrier\ns_mov_b32 s{sClm}, 1\ns_cmp_lg_u32 s{sWave}, 0\ns_cbranch_scc1 L_pro_join')
    a('s_mov_b64 exec, 1')
    a('L_claim_loop:')
    a(f's_lshl_b32 s{sT0}, 1, s{sR}\ns_lshl_b32 s{sT1}, s{sX}, 5')
    a(f'v_mov_b32 v2, s{sT0}\nv_mov_b32 v3, s{sT1}')
    a(f'buffer_atomic_or v2, v3, {DBG}, 0 offen sc0\ns_waitcnt vmcnt(0)')
    a(f'v_readfirstlane_b32 s{sT1}, v2')
    a(f's_and_b32 s{sT2}, s{sT1}, s{sT0}\ns_cbranch_scc0 L_claim_ok')
    a(f's_cmp_eq_u32 s{sT1}, -1\ns_cbranch_scc1 L_claim_next')
    a(f's_ff0_i32_b32 s{sR}, s{sT1}\ns_branch L_claim_loop')
    a('L_claim_next:')
    a(f'v_mov_b32 v2, 1\nv_mov_b32 v3, {D_IMPURE}\nbuffer_atomic_or v2, v3, {DBG}, 0 offen\ns_waitcnt vmcnt(0)')
    a(f's_add_u32 s{sX}, s{sX}, 1\ns_and_b32 s{sX}, s{sX}, 7\ns_mov_b32 s{sR}, 0\ns_branch L_claim_loop')
    a('L_claim_ok:')
    a(f's_lshl_b32 s{sT0}, s{sX}, 5\ns_or_b32 s{sT0}, s{sT0}, s{sR}')
    a(f'v_mov_b32 v2, s{sT0}\nv_mov_b32 v3, {LSTAT + 4}\nds_write_b32 v3, v2\ns_waitcnt lgkmcnt(0)\ns_mov_b64 exec, -1')
    a('L_pro_join:')
    a('s_barrier')
    a(f'v_mov_b32 v3, {LSTAT + 4}\nds_read_b32 v2, v3\ns_waitcnt lgkmcnt(0)')
    a(f'v_readfirstlane_b32 s{sT0}, v2')
    a(f's_lshr_b32 s{sX}, s{sT0}, 5\ns_and_b32 s{sX}, s{sX}, 7\ns_and_b32 s{sR}, s{sT0}, 31')
    a('L_dispatch:')
    if 'R' in cfg.roles:
        a(f's_mov_b32 s{sXr}, 0\ns_cmp_eq_u32 s{sX}, {cfg.rx0}\ns_cbranch_scc1 L_R')
        a(f's_mov_b32 s{sXr}, 1\ns_cmp_eq_u32 s{sX}, {cfg.rx1}\ns_cbranch_scc1 L_R')
        if cfg.r2: a(f's_mov_b32 s{sXr}, 2\ns_cmp_eq_u32 s{sX}, {cfg.rx2}\ns_cbranch_scc1 L_RVO')
    if cfg.r2:
        others = [x for x in range(8) if x not in (cfg.rx0, cfg.rx1, cfg.rx2)]
        ax, fx = cfg.ax or others[1:], cfg.fx or others[:1]
        R = lambda n: 'L_' + n if n in cfg.roles else 'L_idle'
        for i, x in enumerate(ax):
            a(f's_mov_b32 s{sT0}, {i}\ns_cmp_eq_u32 s{sX}, {x}\ns_cbranch_scc1 L_Atype')
        a(f's_cmp_lg_u32 s{sX}, {fx[0]}\ns_cbranch_scc1 L_idle')
        if cfg.voxx:
            a(f's_mov_b32 s{sH}, s{sR}\ns_mov_b32 s{sXr}, 0\ns_branch {R("VOX")}')
        else:
            a(f's_lshr_b32 s{sH}, s{sR}, 1\ns_and_b32 s{sXr}, s{sR}, 1\ns_cmp_lt_u32 s{sR}, 28\ns_cbranch_scc1 {R("FF1")}')
        a('L_idle:')
        a('s_waitcnt vmcnt(0)\ns_barrier')
        claim_issue(a, 2)
        wait_init(a, 2, 3, only_check=True)
        a('s_branch L_end')
        a('L_Atype:')
        a(f's_and_b32 s{sH}, s{sR}, 7\ns_mov_b32 s{sXr}, s{sT0}\ns_cmp_ge_u32 s{sR}, 24\ns_cbranch_scc1 {R("FIN")}')
        if cfg.voxx:
            a(f's_cmp_lt_u32 s{sR}, 16\ns_cbranch_scc1 L_A3\ns_cmp_eq_u32 s{sR}, 23\ns_cbranch_scc1 L_idle')
            a(f's_lshr_b32 s{sT1}, s{sT0}, 1\ns_mul_i32 s{sT1}, s{sT1}, 7\ns_add_u32 s{sH}, s{sH}, s{sT1}\ns_and_b32 s{sXr}, s{sT0}, 1\ns_branch {R("FF1")}\nL_A3:')
        a(f's_lshl_b32 s{sT0}, s{sT0}, 3\ns_add_u32 s{sH}, s{sH}, s{sT0}\ns_mov_b32 s{sXr}, 0\ns_cmp_ge_u32 s{sR}, 16\ns_cbranch_scc1 {R("VOX")}')
        a(f's_lshr_b32 s{sXr}, s{sR}, 3\ns_branch {R("QKX")}')
        assert cfg.nc_vox == 1 and cfg.nc_qkx == 2 and cfg.nc_ff1 == 2
        return
```

```python
from core import *

XB = 0
XBS = 40960
sCp = sXr
sI = sStep
sXo, sXm = sCL, sCR
WB = 640 * 4096 * 2

def zero_flag(a, sval_addr, nwords=1):
    l = a.newlabel('zf')
    a(f's_cmp_lg_u32 s{sWave}, 1\ns_cbranch_scc1 {l}')
    a(f'v_mov_b32 v8, 0\nv_lshlrev_b32 v9, 2, v0\nv_add_u32 v9, s{sval_addr}, v9\ns_mov_b64 exec, {(1 << nwords) - 1}\nbuffer_store_dword v8, v9, {WS}, 0 offen sc1\ns_mov_b64 exec, -1')
    a(f'{l}:')

def near_par(a, cfg):
    a(f's_cmp_gt_u32 s{sT1}, s{sT0}\ns_cselect_b32 s{sPar}, ' + ('0x2000, 0' if cfg.force_par is None else '0, 0x2000'))

def x_setup(a, vXo, vt, nc, vXr):
    srd(a, 48, pX, 2048 * 1280)
    a(f'v_lshrrev_b32 v{vt}, 3, v0\nv_and_b32 v{vXo}, 7, v0\nv_xor_b32 v{vXo}, v{vXo}, v{vt}\nv_lshlrev_b32 v{vXo}, 4, v{vXo}\nv_mul_u32_u24 v{vt}, 1280, v{vt}\nv_add_u32 v{vXo}, v{vXo}, v{vt}')
    a(f's_lshr_b32 s{sT0}, s{sWave}, 1\ns_mul_i32 s{sT0}, s{sT0}, 10240\ns_and_b32 s{sT1}, s{sWave}, 1\ns_mul_i32 s{sT1}, s{sT1}, 640\ns_add_u32 s{sXo}, s{sT0}, s{sT1}')
    a(f's_mul_i32 s{sT0}, s{sCp}, {XBS}\ns_add_u32 s{sXo}, s{sXo}, s{sT0}')
    a(f's_mul_i32 s{sXm}, s{sWave}, 5120\ns_add_u32 s{sXm}, s{sXm}, {XB}')
    a(f'v_lshrrev_b32 v{vXr}, 4, v0\nv_and_b32 v{vt}, 7, v0\nv_xor_b32 v{vXr}, v{vXr}, v{vt}\nv_lshlrev_b32 v{vXr}, 4, v{vXr}\nv_lshl_add_u32 v{vXr}, v{vt}, 7, v{vXr}')
    a(f'v_bfe_u32 v{vt}, v0, 3, 1\nv_mul_u32_u24 v{vt}, 10240, v{vt}\nv_add_u32 v{vXr}, v{vXr}, v{vt}\nv_add_u32 v{vXr}, {XB}, v{vXr}\nv_xor_b32 v{vXr + 1}, 64, v{vXr}')

def x_dma1(a, vXo, nc, i):
    a(f's_add_u32 m0, s{sXm}, {896 * i}')
    a(f'buffer_load_dwordx4 v{vXo}, {T2}, s{sXo} offen offset:{128 * i} lds')
    if i == 4:
        a(f's_add_u32 s{sXo}, s{sXo}, {nc * XBS}')
        a(f's_add_u32 s{sT0}, s{sXm}, {XBS}\ns_sub_u32 s{sT1}, s{sXm}, {XBS}\ns_cmp_lt_u32 s{sXm}, {XB + XBS}\ns_cselect_b32 s{sXm}, s{sT0}, s{sT1}')

def x_dma(a, vXo, nc):
    for i in range(5): x_dma1(a, vXo, nc, i)

def project(a, vXr, buf, nbuf, accs, ntile, hooks={}):
    def rd(kk):
        b = buf + 8 * (kk % nbuf)
        a(f'ds_read_b128 {V(b, 4)}, v{vXr + (kk & 1)} offset:{(kk >> 1) * 1024}\nds_read_b128 {V(b + 4, 4)}, v{vXr + (kk & 1)} offset:{20480 + (kk >> 1) * 1024}')
    for kk in range(nbuf - 1): rd(kk)
    for kk in range(20):
        if kk + nbuf - 1 < 20: rd(kk + nbuf - 1)
        left = min(19, kk + nbuf - 1) - kk
        a(f's_waitcnt lgkmcnt({2 * left})')
        b = buf + 8 * (kk % nbuf)
        for tt in range(2):
            for t in range(ntile):
                d = accs[t][tt]
                a(f'v_mfma_f32_16x16x32_bf16 {V(d, 4)}, {A(80 * t + 4 * kk, 4)}, {V(b + 4 * tt, 4)}, {"0" if kk == 0 else V(d, 4)}')
        if kk in hooks: hooks[kk]()

def project4(a, vXr, buf, accs, n):
    for k0 in (4 * n, 4 * n + 2):
        for kk in (k0, k0 + 1):
            b = buf + 8 * (kk & 1)
            a(f'ds_read_b128 {V(b, 4)}, v{vXr + (kk & 1)} offset:{(kk >> 1) * 1024}\nds_read_b128 {V(b + 4, 4)}, v{vXr + (kk & 1)} offset:{20480 + (kk >> 1) * 1024}')
        a('s_waitcnt lgkmcnt(0)')
        for kk in (k0, k0 + 1):
            b = buf + 8 * (kk & 1)
            for tt in range(2):
                for t in range(2):
                    d = accs[t][tt]
                    a(f'v_mfma_f32_16x16x32_bf16 {V(d, 4)}, {A(80 * t + 4 * kk, 4)}, {V(b + 4 * tt, 4)}, {"0" if kk == 0 else V(d, 4)}')

def dma_hooks(a, vXo, nc, at=(1, 4, 7, 10, 13)):
    return {kk: (lambda i=i: x_dma1(a, vXo, nc, i)) for i, kk in enumerate(at)}

def toggle_xr(a, vXr, vt):
    a(f'v_add_u32 v{vt}, {XBS}, v{vXr}\nv_subrev_u32 v{vXr}, {XBS}, v{vXr}\nv_min_u32 v{vXr}, v{vXr}, v{vt}\nv_xor_b32 v{vXr + 1}, 64, v{vXr}')

def flag_store(a, vaddr, vval, sval, wave):
    l = a.newlabel('fs')
    a(f's_cmp_lg_u32 s{sWave}, {wave}\ns_cbranch_scc1 {l}')
    a(f'v_mov_b32 v{vval}, s{sval}\ns_mov_b64 exec, 1\nbuffer_store_dword v{vval}, v{vaddr}, {WS}, 0 offen sc1\ns_mov_b64 exec, -1')
    a(f'{l}:')

def spin_ge(a, vaddr, vF, sneed, sleep=4):
    top = a.newlabel('sp'); done = a.newlabel('spd')
    a(f's_mov_b32 s{sSpin}, s{sLim}')
    a(f'{top}:')
    a(f'buffer_load_dword v{vF}, v{vaddr}, {WS}, 0 offen sc1\ns_waitcnt vmcnt(0)')
    a(f'v_cmp_gt_u32 vcc, s{sneed}, v{vF}')
    a(f's_cbranch_vccz {done}')
    a(f's_sleep {sleep}')
    a(f's_sub_u32 s{sSpin}, s{sSpin}, 1\ns_cbranch_scc0 {top}\ns_mov_b32 s{sLim}, 0')
    a(f'{done}:')

def col_soff(stride, colmul, scol):
    def g(n):
        return lambda a: a(f's_lshl_b32 s{sT0}, s{sWave}, 4\ns_add_u32 s{sT0}, s{sT0}, {128 * n}\ns_mul_i32 s{sT0}, s{sT0}, {stride}\ns_mul_i32 s{sT1}, s{scol}, {colmul}\ns_add_u32 s{sT0}, s{sT0}, s{sT1}')
    return g

vA, vB, vRd, vRd2, vt, vo = 10, 11, 12, 13, 14, 15

def role_VOX(a, cfg):
    nc = cfg.nc_vox; nit = 64 // nc
    VBUF = 2 * XBS
    a('L_VOX:')
    a(f's_lshl_b32 s{sT0}, s{sH}, 1\ns_add_u32 s{sT0}, s{sT0}, s{sCp}\ns_lshl_b32 s{sT0}, s{sT0}, 7\ns_add_u32 s{sFl0}, s{sT0}, {F_UX}')
    assert nc == 1 and cfg.uxmode == 'mix' and VBUF % 0x4000 == 0
    vXr, vL16, vVw, vFa, vTmp, vXo = 2, 1, 8, 9, 6, 5
    vBuf = 24; vAcc = 56; vO = 80
    ACC = [[vAcc, vAcc + 8], [vAcc + 4, vAcc + 12]]
    x_setup(a, vXo, vTmp, nc, vXr)
    src_offsets(a, vA, vB, vt, 8192)
    a(f's_and_b32 s{sT2}, s{sWave}, 3\ns_lshl_b32 s{sT2}, s{sT2}, 1')
    tr_base(a, vRd, vt, sT2)
    vRdO = 16
    a(f'v_lshrrev_b32 v{vt}, 4, v0\nv_lshlrev_b32 v{vt}, 10, v{vt}\nv_sub_u32 v{vRdO}, v{vRd}, v{vt}')
    ux_head(a, cfg, sSeg2, sH)
    ux_tile(a, cfg, sSeg2, sT2)
    a(f's_mov_b32 s{sSeg}, s{sSeg2}\nv_lshlrev_b32 v{vL16}, 4, v0\nv_mov_b32 v{vFa}, s{sFl0}')
    a(f's_lshl_b32 s{sT0}, s{sWave}, 10\ns_cmp_ge_u32 s{sWave}, 4\ns_cselect_b32 s{sT0}, 0, s{sT0}\ns_add_u32 s{sT0}, s{sT0}, {VBUF}\nv_add_u32 v{vVw}, s{sT0}, v{vL16}')
    def v_out():
        toggle_xr(a, vXr, vTmp)
        for q in range(8): a(f'v_cvt_pk_bf16_f32 v{vO + q}, v{vAcc + 2 * q}, v{vAcc + 2 * q + 1}')
        a(f'ds_write_b128 v{vVw}, {V(vO, 4)}\nds_write_b128 v{vVw}, {V(vO + 4, 4)} offset:4096')
        a(f'v_xor_b32 v{vVw}, 0x2000, v{vVw}')
    def v_in():
        for i in range(8): a(f'ds_read_b128 {V(vBuf + 4 * i, 4)}, v{vVw} offset:{1024 * i}')
        a(f'v_xor_b32 v{vVw}, 0x2000, v{vVw}')
    def umm(t):
        for ks in range(4):
            for tt in range(2):
                d = vAcc + 8 * (t % 3) + 4 * tt
                a(f'v_mfma_f32_16x16x32_bf16 {V(d, 4)}, {V(vBuf + 16 * tt + 4 * ks, 4)}, {A(16 * t + 4 * ks, 4)}, {"0" if ks == 0 else V(d, 4)}')
    def ep(t):
        o = vO + 4 * (t & 1); b = vAcc + 8 * (t % 3)
        for q in range(4): a(f'v_cvt_pk_bf16_f32 v{o + q}, v{b + 2 * q}, v{b + 2 * q + 1}')
        dj = 8 * (t >> 1) + (t & 1)
        a(f's_xor_b32 s{sT2}, s{sSeg}, {cfg.rot * (dj & 31) << 16}\ns_add_u32 s{sT2}, s{sT2}, {dj * 4 * MB}')
        a(f'buffer_store_dwordx4 {V(o, 4)}, v{vL16}, {WS}, s{sT2} offen sc1{cfg.ux_st}')
    def rdv(n):
        def f(a, va):
            l = a.newlabel('vv')
            x_dma1(a, vXo, nc, n)
            a(f's_cmp_ge_u32 s{sWave}, 4\ns_cbranch_scc1 {l}')
            std_reads(16 * n)(a, va)
            a(f'v_xor_b32 v{va}, 32, v{va}')
            std_reads(80 + 16 * n)(a, va)
            a(f'{l}:')
        return f
    def psv(n):
        def f(a):
            l = a.newlabel('vv')
            a(f's_cmp_ge_u32 s{sWave}, 4\ns_cbranch_scc1 {l}')
            project4(a, vXr, vBuf, ACC, n)
            if n == 4: v_out()
            a(f'{l}:')
        return f
    def rdo(c):
        def f(a, va):
            l = a.newlabel('vo'); l2 = a.newlabel('vo')
            x_dma1(a, vXo, nc, c)
            a(f's_cmp_ge_u32 s{sWave}, 4\ns_cbranch_scc0 {l}')
            for e in range(2):
                if e: a(f'v_xor_b32 v{va}, 32, v{va}')
                for kk in range(4):
                    for h in range(2): a(f'ds_read_b64_tr_b16 {A(32 * c + 16 * e + 4 * kk + 2 * h, 2)}, v{va} offset:{kk * 8192 + h * 4096}')
            if c == 0: v_in()
            a(f'{l}:')
        return f
    def pso(c):
        def f(a):
            l = a.newlabel('vo'); l2 = a.newlabel('vo')
            a(f's_cmp_ge_u32 s{sWave}, 4\ns_cbranch_scc0 {l}')
            umm(2 * c); umm(2 * c + 1); ep(2 * c); ep(2 * c + 1)
            a(f's_branch {l2}\n{l}:')
            project4(a, vXr, vBuf, ACC, c)
            if c == 4: v_out()
            a(f'{l2}:')
        return f
    chunks = [dict(pre=(lambda a: srd(a, 12, pWV, WB)) if n == 0 else None, soff=col_soff(8192, 256, sH)(n), stride=8192, reads=rdv(n), post=psv(n)) for n in range(5)]
    def pre(a):
        srd(a, 12, pWO, WB); src_offsets(a, vA, vB, vt, 1280)
    so = lambda c: (lambda a: a(f's_lshl_b32 s{sT0}, s{sH}, 7\ns_lshl_b32 s{sT1}, s{sWave}, 4\ns_add_u32 s{sT0}, s{sT0}, s{sT1}\ns_mul_i32 s{sT0}, s{sT0}, 1280\ns_add_u32 s{sT0}, s{sT0}, {256 * c}'))
    chunks += [dict(pre=pre if c == 0 else None, soff=so(c), stride=1280, reads=rdo(c), post=pso(c), hi_stores=2, var=lambda i: i & 1, vrd=vRdO) for c in range(5)]
    loader(a, chunks, vA, vB, vRd, vRd2, vt, vo, nslots=2, early=lambda: x_dma(a, vXo, nc))
    tstamp(a, cfg, 1, 16, 17)
    a(f's_mov_b32 s{sI}, 2')
    a(f's_cmp_ge_u32 s{sWave}, 4\ns_cbranch_scc1 L_VOX_hi')
    a('L_VOX_lo:')
    fstamp(a, cfg, 0)
    a('s_waitcnt vmcnt(0) lgkmcnt(0)')
    fstamp(a, cfg, 1)
    a('s_barrier')
    fstamp(a, cfg, 2)
    a(f's_sub_u32 s{sT2}, s{sI}, 1\ns_sub_u32 s{sT3}, s{sI}, 2\ns_cmp_le_u32 s{sI}, {cfg.early_pub}\ns_cselect_b32 s{sT2}, s{sT2}, s{sT3}\ns_max_i32 s{sT2}, s{sT2}, 0')
    flag_store(a, vFa, vTmp + 1, sT2, 3)
    a(f's_cmp_ge_u32 s{sI}, {nit}\ns_cbranch_scc1 L_VOX_fin')
    hk = dma_hooks(a, vXo, nc, (1, 4, 7, 10, 13))
    project(a, vXr, vBuf, 4, ACC, 2, hk)
    fstamp(a, cfg, 4)
    v_out()
    a(f's_add_u32 s{sI}, s{sI}, 1\ns_branch L_VOX_lo')
    a('L_VOX_fin:')
    a('s_barrier')
    flag_store(a, vFa, vTmp + 1, sI, 3)
    tstamp(a, cfg, 3, vt, vo)
    fdump(a, cfg, vt, vo)
    a('s_branch L_end')
    a('L_VOX_hi:')
    if cfg.vox_prio: a('s_setprio 1')
    a('L_VOX_hi_loop:')
    fstamp(a, cfg, 0)
    l = a.newlabel('ve')
    a(f's_waitcnt vmcnt(5)\ns_cmp_gt_u32 s{sI}, {cfg.early_pub}\ns_cbranch_scc1 {l}\ns_waitcnt vmcnt(0)\n{l}:')
    fstamp(a, cfg, 1)
    a('s_barrier')
    fstamp(a, cfg, 2)
    v_in()
    a(f's_sub_u32 s{sSeg}, s{sI}, 1\ns_lshl_b32 s{sSeg}, s{sSeg}, 15\ns_xor_b32 s{sSeg}, s{sSeg}, s{sSeg2}\ns_waitcnt lgkmcnt(0)')
    for t in range(10):
        umm(t)
        if t > 0:
            ep(t - 1)
            if t <= 5: x_dma1(a, vXo, nc, t - 1)
    ep(9)
    fstamp(a, cfg, 4)
    a(f's_add_u32 s{sI}, s{sI}, 1')
    a(f's_cmp_le_u32 s{sI}, {nit}\ns_cbranch_scc1 L_VOX_hi_loop')
    a('s_waitcnt vmcnt(0)\ns_barrier')
    fdump(a, cfg, vt, vo)
    a('s_branch L_end')

def gate_wait(a, vaddr, vF):
    a(f'v_and_b32 v{vaddr}, 31, v0\nv_lshlrev_b32 v{vaddr}, 7, v{vaddr}\nv_add_u32 v{vaddr}, {F_G}, v{vaddr}\ns_mov_b32 s{sT2}, 1')
    spin_ge(a, vaddr, vF, sT2)

def late_start(a, cfg, mid=None, claimed=False):
    if not claimed:
        a('s_waitcnt vmcnt(0)\ns_barrier')
        claim_issue(a, vt)
    a('s_waitcnt vmcnt(0)')
    wait_init(a, vt, vo, cfg.presleep); near_par(a, cfg)
    if mid and not cfg.late_gate: mid()
    if cfg.defer_ff and 'QKX' in cfg.roles:
        l = a.newlabel('ls')
        a(f's_cmp_lg_u32 s{sWave}, 0\ns_cbranch_scc1 {l}')
        a(f'v_mov_b32 v{vo}, {F_KX}\ns_mov_b32 s{sT2}, 1')
        spin_ge(a, vo, vt, sT2, 16)
        a(f'{l}:')
    a('s_barrier')
    if mid and cfg.late_gate: mid()

def role_FF1(a, cfg):
    nc = cfg.nc_ff1; nit = 64 // nc
    FB = 640 * 1728 * 2
    a('L_FF1:')
    a(f's_lshl_b32 s{sT0}, s{sH}, 1\ns_add_u32 s{sT0}, s{sT0}, s{sCp}\ns_lshl_b32 s{sT0}, s{sT0}, 7\ns_add_u32 s{sFl0}, s{sT0}, {F_H}')
    if cfg.wopf:
        a('s_waitcnt vmcnt(0)\ns_barrier')
        claim_issue(a, vt)
        a('s_barrier')
        srd(a, 12, pWO, WB)
        a(f's_lshl_b32 s{sT0}, s{sR}, 3\ns_add_u32 s{sT0}, s{sT0}, s{sWave}\ns_lshl_b32 s{sT0}, s{sT0}, 13\nv_lshlrev_b32 v{vt}, 7, v0')
        for i in range(3):
            a(f'buffer_load_dword v{vo}, v{vt}, {T1}, s{sT0} offen')
            if i < 2: a(f's_add_u32 s{sT0}, s{sT0}, {224 * 8192}')
    late_start(a, cfg, claimed=cfg.wopf)
    src_offsets(a, vA, vB, vt, 3456); tr_base(a, vRd, vt, sWave)
    chunks = []
    for m, p in enumerate((pWG, pWU)):
        chunks += [dict(pre=(lambda a, p=p: srd(a, 12, p, FB)) if n == 0 else None, soff=col_soff(3456, 256, sH)(n), stride=3456, reads=std_reads(80 * m + 16 * n)) for n in range(5)]
    loader(a, chunks, vA, vB, vRd, vRd2, vt, vo, claim=False)
    vXr, vL16, vFa, vGa, vG, vTmp, vXo = 2, 1, 9, 8, 4, 12, 6
    vBuf = 16; vAcc = 48; vO = 64
    x_setup(a, vXo, vTmp, nc, vXr)
    x_dma(a, vXo, nc)
    tstamp(a, cfg, 1, vt, vo)
    gate_wait(a, vGa, vTmp)
    a(f'v_lshlrev_b32 v{vL16}, 4, v0\nv_mov_b32 v{vFa}, s{sFl0}')
    a(f'v_and_b32 v{vGa}, 15, v0\nv_lshlrev_b32 v{vGa}, 2, v{vGa}')
    a(f's_lshl_b32 s{sSeg2}, s{sCp}, 7\ns_add_u32 s{sSeg2}, s{sSeg2}, {GATE}')
    a(f's_lshl_b32 s{sT0}, s{sH}, 3\ns_add_u32 s{sT0}, s{sT0}, s{sWave}\ns_lshl_b32 s{sSeg}, s{sT0}, 10\ns_mul_i32 s{sT1}, s{sCp}, {112 * 1024}\ns_add_u32 s{sSeg}, s{sSeg}, s{sT1}\ns_add_u32 s{sSeg}, s{sSeg}, {HB}')
    a(f's_mov_b32 s{sI}, 0')
    a('L_FF1_loop:')
    fstamp(a, cfg, 0)
    a('s_waitcnt vmcnt(1)')
    fstamp(a, cfg, 1)
    a('s_barrier')
    fstamp(a, cfg, 2)
    a(f's_max_u32 s{sT2}, s{sI}, 1\ns_sub_u32 s{sT2}, s{sT2}, 1')
    flag_store(a, vFa, vTmp + 1, sT2, 0)
    hk = dma_hooks(a, vXo, nc, (2, 5, 8, 11, 14))
    hk[0] = lambda: a(f'buffer_load_dword v{vG}, v{vGa}, {WS}, s{sSeg2} offen sc1\nbuffer_load_dword v{vG + 1}, v{vGa}, {WS}, s{sSeg2} offen offset:64 sc1\ns_add_u32 s{sSeg2}, s{sSeg2}, {nc * 128}')
    project(a, vXr, vBuf, 4, [[vAcc, vAcc + 4], [vAcc + 8, vAcc + 12]], 2, hk)
    fstamp(a, cfg, 4)
    toggle_xr(a, vXr, vTmp)
    a(f's_waitcnt vmcnt(5)\nv_sub_f32 v{vG}, 1.0, v{vG}\nv_sub_f32 v{vG + 1}, 1.0, v{vG + 1}')
    for tt in range(2):
        for i in range(4): a(f'v_mul_f32 v{vAcc + 4 * tt + i}, v{vAcc + 4 * tt + i}, v{vG + tt}')
    for q in range(8): a(f'v_mul_f32 v{vAcc + q}, v{vAcc + q}, v{vAcc + 8 + q}')
    for q in range(4): a(f'v_cvt_pk_bf16_f32 v{vO + q}, v{vAcc + 2 * q}, v{vAcc + 2 * q + 1}')
    a(f'buffer_store_dwordx4 {V(vO, 4)}, v{vL16}, {WS}, s{sSeg} offen sc1')
    a(f's_add_u32 s{sSeg}, s{sSeg}, {nc * 112 * 1024}\ns_add_u32 s{sI}, s{sI}, 1')
    a(f's_cmp_lt_u32 s{sI}, {nit}\ns_cbranch_scc1 L_FF1_loop')
    a('s_waitcnt vmcnt(0)\ns_barrier')
    flag_store(a, vFa, vTmp + 1, sI, 0)
    tstamp(a, cfg, 2, vt, vo)
    if cfg.xfin and 'FIN' in cfg.roles:
        a(f's_and_b32 s{sH}, s{sR}, 7\ns_lshr_b32 s{sJ}, s{sR}, 3\ns_cmp_ge_u32 s{sR}, 16\ns_cselect_b32 s{sCp}, 62, 63\ns_cmp_lt_u32 s{sR}, 24\ns_cbranch_scc1 L_FIN2')
    a('s_branch L_end')

def role_QKX(a, cfg):
    nc = cfg.nc_qkx; nit = 64 // nc; LA = cfg.la; NS = LA + 1
    QB = 2 * XBS
    assert QB + NS * 16384 <= 163840
    a('L_QKX:')
    a(f's_lshl_b32 s{sT0}, s{sH}, 1\ns_add_u32 s{sT0}, s{sT0}, s{sCp}\ns_lshl_b32 s{sT0}, s{sT0}, 7\ns_add_u32 s{sFl1}, s{sT0}, {F_PX}\ns_add_u32 s{sFl0}, s{sT0}, {F_KX}')
    x_setup(a, 64, 19, nc, 2)
    src_offsets(a, vA, vB, vt, 8192)
    a(f's_and_b32 s{sT2}, s{sWave}, 3\ns_lshl_b32 s{sT2}, s{sT2}, 1')
    tr_base(a, vRd, vt, sT2)
    def rd(m, n):
        def f(a, va):
            l = a.newlabel('qk')
            a(f's_cmp_ge_u32 s{sWave}, 4\ns_cbranch_scc{1 if m == 0 else 0} {l}')
            std_reads(16 * n)(a, va)
            a(f'v_xor_b32 v{va}, 32, v{va}')
            std_reads(80 + 16 * n)(a, va)
            a(f'{l}:')
            if m == 1: x_dma1(a, 64, nc, n)
        return f
    def ps(m, n):
        def f(a):
            l = a.newlabel('qk')
            a(f's_cmp_ge_u32 s{sWave}, 4\ns_cbranch_scc{1 if m == 0 else 0} {l}')
            project4(a, 2, 24, [[48, 56], [52, 60]], n)
            a(f'{l}:')
        return f
    chunks = []
    for m, p in enumerate((pWK, pWQ)):
        chunks += [dict(pre=(lambda a, p=p: srd(a, 12, p, WB)) if n == 0 else None, soff=col_soff(8192, 256, sH)(n), stride=8192, reads=rd(m, n), post=ps(m, n)) for n in range(5)]
    loader(a, chunks, vA, vB, vRd, vRd2, vt, vo, nslots=2, early=lambda: x_dma(a, 64, nc))
    vXr, vL16, vNeg, vFa, vQw, vTmp, vTmp2, vXo = 2, 1, 4, 8, 9, 12, 13, 0
    vKm, vGa, vPm, vPf = 10, 11, 14, 15
    vBuf = 16; vAcc = 48; vO = 64; vMask = 72
    vS = 84
    tstamp(a, cfg, 1, vt, vo)
    near_par(a, cfg)
    a(f'v_lshlrev_b32 v{vL16}, 4, v0\nv_mov_b32 v{vFa}, s{sFl0}')
    for i in range(4): a(f'v_mov_b32 v{vNeg + i}, -1')
    sQw, sQr, sKmP, sAt = sbL, sbR, sbO, sCO
    a(f's_lshr_b32 s{sT0}, s{sWave}, 2\ns_lshl_b32 s{sT0}, s{sT0}, 13\ns_and_b32 s{sT1}, s{sWave}, 3\ns_lshl_b32 s{sT1}, s{sT1}, 10\ns_add_u32 s{sT0}, s{sT0}, s{sT1}\ns_add_u32 s{sT0}, s{sT0}, {QB}\nv_add_u32 v{vQw}, s{sT0}, v{vL16}')
    a(f's_mov_b32 s{sQw}, 0\ns_mov_b32 s{sQr}, 0')
    a(f's_lshl_b32 s{sSeg}, s{sH}, 19\ns_lshl_b32 s{sT0}, s{sCp}, 13\ns_add_u32 s{sSeg}, s{sSeg}, s{sT0}\ns_add_u32 s{sSeg}, s{sSeg}, s{sT1}\ns_add_u32 s{sSeg}, s{sSeg}, {KX}')
    a(f's_lshl_b32 s{sKmP}, s{sH}, 11\ns_lshl_b32 s{sT0}, s{sCp}, 16\ns_add_u32 s{sKmP}, s{sKmP}, s{sT0}\ns_add_u32 s{sKmP}, s{sKmP}, {KM}')
    a(f's_mov_b32 s{sAt}, s{sCp}')
    a(f'v_and_b32 v{vKm}, 7, v0\nv_lshlrev_b32 v{vKm}, 4, v{vKm}\nv_lshrrev_b32 v{vTmp}, 4, v0\nv_lshl_add_u32 v{vKm}, v{vTmp}, 7, v{vKm}\ns_lshl_b32 s{sT0}, s{sH}, 11\ns_add_u32 s{sT0}, s{sT0}, {KM}\nv_add_u32 v{vKm}, s{sT0}, v{vKm}')
    a(f's_lshl_b32 s{sT0}, s{sWave}, 2\ns_add_u32 s{sT0}, s{sT0}, s{sFl1}\nv_mov_b32 v{vPf}, s{sT0}')
    a(f'v_and_b32 v{vPm}, 15, v0\nv_lshlrev_b32 v{vPm}, 4, v{vPm}\ns_lshr_b32 s{sT0}, s{sH}, 2\ns_lshl_b32 s{sT0}, s{sT0}, 11\ns_and_b32 s{sT1}, s{sH}, 3\ns_lshl_b32 s{sT1}, s{sT1}, 8\ns_add_u32 s{sT0}, s{sT0}, s{sT1}')
    a(f's_lshl_b32 s{sT1}, s{sWave}, 10\ns_add_u32 s{sT0}, s{sT0}, s{sT1}\ns_add_u32 s{sT0}, s{sT0}, {PXM}\nv_add_u32 v{vPm}, s{sT0}, v{vPm}')
    a(f's_lshl_b32 s{sT0}, s{sWave}, 4\nv_and_b32 v{vTmp}, 15, v0\nv_add_u32 v{vTmp}, s{sT0}, v{vTmp}\nv_lshrrev_b32 v{vTmp2}, 4, v0\nv_lshlrev_b32 v{vTmp2}, 2, v{vTmp2}\nv_sub_u32 v{vTmp}, v{vTmp}, v{vTmp2}')
    a(f'v_mov_b32 v{vS}, 0xff7fffff\nv_mov_b32 v{vS + 1}, 0')
    for t in range(2):
        for i in range(4):
            a(f'v_cmp_le_i32 vcc, {16 * t + i}, v{vTmp}\nv_cndmask_b32 v{vMask + 4 * t + i}, v{vS}, v{vS + 1}, vcc')
    a(f'v_cmp_le_u32 vcc, 32, v0')
    for i in range(4): a(f'v_cndmask_b32 v{vMask + 8 + i}, v{vS}, v{vS + 1}, vcc')
    a(f's_mov_b32 s{sC}, {f2u(128 ** -0.5 * 1.4426950408889634)}')
    a(f's_mov_b32 s{sEx}, 0\ns_mov_b32 s{sEx + 1}, 0xffff')
    vP1 = vKm; sUm = sSeg2
    l = a.newlabel('up')
    a(f's_cmp_lt_u32 s{sWave}, 4\ns_cbranch_scc1 {l}')
    a(f'v_and_b32 v{vP1}, 15, v0\nv_lshlrev_b32 v{vP1}, 4, v{vP1}\ns_lshl_b32 s{sT0}, s{sH}, 8\ns_and_b32 s{sT1}, s{sWave}, 3\ns_lshl_b32 s{sT1}, s{sT1}, 16\ns_add_u32 s{sT0}, s{sT0}, s{sT1}\nv_add_u32 v{vP1}, s{sT0}, v{vP1}')
    a(f'v_lshrrev_b32 v{vTmp}, 4, v0\nv_lshl_add_u32 v{vP1}, v{vTmp}, 14, v{vP1}')
    a(f'{l}:')
    a(f's_add_u32 s{sUm}, s{sCp}, 1')
    a(f'v_mov_b32 v{vXo}, v{vO}')
    a(f's_mov_b32 s{sI}, 0')
    a('L_QKX_loop:')
    a(f's_cmp_ge_u32 s{sI}, {nit}\ns_cbranch_scc1 L_QKX_att')
    a('s_waitcnt vmcnt(0)\ns_barrier')
    l = a.newlabel('kp'); l2 = a.newlabel('kp')
    a(f's_cmp_lt_u32 s{sWave}, 4\ns_cbranch_scc1 {l}\ns_cmp_ge_u32 s{sUm}, 64\ns_cbranch_scc1 {l2}')
    um_seg(a, sT2, sUm)
    a(f's_add_u32 s{sT0}, s{sT2}, {16 * 16384}\nbuffer_store_dwordx4 {V(vNeg, 4)}, v{vP1}, {WS}, s{sT2} offen sc1\nbuffer_store_dwordx4 {V(vNeg, 4)}, v{vP1}, {WS}, s{sT0} offen sc1')
    a(f's_cmp_ge_u32 s{sWave}, 6\ns_cbranch_scc1 {l2}\ns_add_u32 s{sT0}, s{sT2}, {32 * 16384}\nbuffer_store_dwordx4 {V(vNeg, 4)}, v{vP1}, {WS}, s{sT0} offen sc1')
    a(f'{l2}:')
    a(f's_cmp_lg_u32 s{sWave}, 7\ns_cbranch_scc1 {l}')
    a(f'buffer_store_dwordx4 {V(vNeg, 4)}, v{vL16}, {WS}, s{sKmP} offen sc1\nbuffer_store_dwordx4 {V(vNeg, 4)}, v{vL16}, {WS}, s{sKmP} offen offset:1024 sc1')
    a(f'{l}:')
    a(f's_add_u32 s{sUm}, s{sUm}, {nc}')
    a(f's_add_u32 s{sKmP}, s{sKmP}, {nc * 65536}')
    a(f's_cmp_eq_u32 s{sI}, 0\ns_cbranch_scc1 L_QKX_skip')
    project(a, vXr, vBuf, 4, [[vAcc, vAcc + 8], [vAcc + 4, vAcc + 12]], 2, dma_hooks(a, vXo, nc))
    a('L_QKX_skip:')
    toggle_xr(a, vXr, vTmp)
    a(f'v_add_u32 v{vTmp}, s{sQw}, v{vQw}')
    for q in range(8): a(f'v_cvt_pk_bf16_f32 v{vO + q}, v{vAcc + 2 * q}, v{vAcc + 2 * q + 1}')
    a(f'ds_write_b128 v{vTmp}, {V(vO, 4)}\nds_write_b128 v{vTmp}, {V(vO + 4, 4)} offset:4096')
    l = a.newlabel('ks')
    a(f's_cmp_ge_u32 s{sWave}, 4\ns_cbranch_scc1 {l}')
    a(f's_add_u32 s{sT0}, s{sSeg}, 4096\nbuffer_store_dwordx4 {V(vO, 4)}, v{vL16}, {WS}, s{sSeg} offen sc1\nbuffer_store_dwordx4 {V(vO + 4, 4)}, v{vL16}, {WS}, s{sT0} offen sc1')
    a(f'{l}:')
    a(f's_add_u32 s{sSeg}, s{sSeg}, {nc * 8192}')
    a(f's_add_u32 s{sQw}, s{sQw}, 16384\ns_cmp_ge_u32 s{sQw}, {NS * 16384}\ns_cselect_b32 s{sQw}, 0, s{sQw}')
    a(f's_add_u32 s{sT3}, s{sI}, 1')
    a('s_waitcnt vmcnt(0) lgkmcnt(0)\ns_barrier')
    flag_store(a, vFa, vTmp + 1, sT3, 7)
    a('L_QKX_att:')
    a(f's_cmp_lt_u32 s{sI}, {LA}\ns_cbranch_scc1 L_QKX_next')
    a(f's_cmp_ge_u32 s{sWave}, 2\ns_cbranch_scc1 L_QKX_next')
    l = a.newlabel('gw')
    a(f's_cmp_lg_u32 s{sI}, {LA}\ns_cbranch_scc1 {l}')
    a(f'v_bfe_u32 v{vGa}, v{vL16}, 4, 5\nv_lshlrev_b32 v{vGa}, 7, v{vGa}\nv_add_u32 v{vGa}, {F_G}, v{vGa}\ns_mov_b32 s{sT2}, 1')
    spin_ge(a, vGa, vTmp, sT2)
    a(f'v_bfe_u32 v{vGa}, v{vL16}, 4, 4\nv_lshlrev_b32 v{vGa}, 2, v{vGa}\ns_lshl_b32 s{sT0}, s{sWave}, 6\ns_add_u32 s{sT0}, s{sT0}, {GATE}\nv_add_u32 v{vGa}, s{sT0}, v{vGa}')
    a(f'{l}:')
    vQ, vK0, vK1, vKM, vG = vBuf, vBuf + 16, vAcc, vBuf + 16, vO
    T0, T1_, M_ = vS, vS + 4, vS + 8
    a(f's_lshl_b32 s{sT0}, s{sAt}, 7\nbuffer_load_dword v{vG}, v{vGa}, {WS}, s{sT0} offen sc1')
    a(f's_add_u32 s{sT0}, s{sQr}, {QB}\nv_add_u32 v{vTmp}, s{sT0}, v{vL16}\ns_lshl_b32 s{sT1}, s{sWave}, 12\nv_add_u32 v{vTmp2}, s{sT1}, v{vTmp}')
    for ks in range(4):
        a(f'ds_read_b128 {V(vQ + 4 * ks, 4)}, v{vTmp2} offset:{8192 + 1024 * ks}\nds_read_b128 {V(vK0 + 4 * ks, 4)}, v{vTmp} offset:{1024 * ks}\nds_read_b128 {V(vK1 + 4 * ks, 4)}, v{vTmp} offset:{4096 + 1024 * ks}')
    for ks in range(4):
        a(f's_waitcnt lgkmcnt({9 - 3 * ks})')
        a(f'v_mfma_f32_16x16x32_bf16 {V(T0, 4)}, {V(vK0 + 4 * ks, 4)}, {V(vQ + 4 * ks, 4)}, {V(vMask, 4) if ks == 0 else V(T0, 4)}')
        a(f'v_mfma_f32_16x16x32_bf16 {V(T1_, 4)}, {V(vK1 + 4 * ks, 4)}, {V(vQ + 4 * ks, 4)}, {V(vMask + 4, 4) if ks == 0 else V(T1_, 4)}')
    a(f's_lshl_b32 s{sT2}, s{sAt}, 16\ns_nop 7')
    poll(a, [f'buffer_load_dwordx4 {V(vKM + 4 * ks, 4)}, v{vKm}, {WS}, s{sT2} offen offset:{512 * ks} sc1' for ks in range(4)], range(vKM, vKM + 16), vTmp, sleep=cfg.km_sleep)
    for ks in range(4):
        a(f'v_mfma_f32_16x16x32_bf16 {V(M_, 4)}, {V(vKM + 4 * ks, 4)}, {V(vQ + 4 * ks, 4)}, {V(vMask + 8, 4) if ks == 0 else V(M_, 4)}')
    mx, t2 = vTmp, vTmp2
    def allred(op):
        a(f'v_mov_b32 v{t2}, v{mx}\nv_permlane32_swap_b32 v{mx}, v{t2}\n{op} v{mx}, v{mx}, v{t2}')
        a(f'v_mov_b32 v{t2}, v{mx}\nv_permlane16_swap_b32 v{mx}, v{t2}\n{op} v{mx}, v{mx}, v{t2}')
    a(f'v_max_f32 v{mx}, v{vS}, v{vS + 1}')
    for i in range(2, 12, 2): a(f'v_max3_f32 v{mx}, v{mx}, v{vS + i}, v{vS + i + 1}')
    allred('v_max_f32')
    a(f'v_mul_f32 v{mx}, s{sC}, v{mx}')
    for i in range(12): a(f'v_fma_f32 v{vS + i}, v{vS + i}, s{sC}, -v{mx}')
    for i in range(12): a(f'v_exp_f32 v{vS + i}, v{vS + i}')
    a(f'v_add_f32 v{mx}, v{vS}, v{vS + 1}')
    for i in range(2, 12): a(f'v_add_f32 v{mx}, v{mx}, v{vS + i}')
    allred('v_add_f32')
    a(f'v_rcp_f32 v{mx}, v{mx}\nv_mul_f32 v{mx}, v{mx}, v{vG}')
    for i in range(12): a(f'v_mul_f32 v{vS + i}, v{vS + i}, v{mx}')
    for q in range(6): a(f'v_cvt_pk_bf16_f32 v{vS + q}, v{vS + 2 * q}, v{vS + 2 * q + 1}')
    a(f'v_permlane16_swap_b32 v{vS + 4}, v{vS + 6}\nv_permlane16_swap_b32 v{vS + 5}, v{vS + 7}')
    a(f's_lshl_b32 s{sT0}, s{sH}, 1\ns_add_u32 s{sT0}, s{sT0}, s{sWave}\ns_lshl_b32 s{sT0}, s{sT0}, 10\ns_add_u32 s{sT0}, s{sT0}, s{sT2}\ns_add_u32 s{sT0}, s{sT0}, {PXX}\ns_lshl_b32 s{sT1}, s{sAt}, 14')
    a(f'buffer_store_dwordx4 {V(vS, 4)}, v{vL16}, {WS}, s{sT0} offen sc1')
    a(f's_mov_b64 exec, s[{sEx}:{sEx + 1}]\nbuffer_store_dwordx4 {V(vS + 4, 4)}, v{vPm}, {WS}, s{sT1} offen sc1')
    a(f's_sub_u32 s{sT0}, s{sI}, {LA - 1}\ns_mov_b64 exec, 1\nv_mov_b32 v{vTmp}, s{sT0}\ns_waitcnt vmcnt(0)\nbuffer_store_dword v{vTmp}, v{vPf}, {WS}, 0 offen sc1\ns_mov_b64 exec, -1')
    a(f's_add_u32 s{sAt}, s{sAt}, {nc}')
    a(f's_add_u32 s{sQr}, s{sQr}, 16384\ns_cmp_ge_u32 s{sQr}, {NS * 16384}\ns_cselect_b32 s{sQr}, 0, s{sQr}')
    a('L_QKX_next:')
    a(f's_add_u32 s{sI}, s{sI}, 1\ns_cmp_lt_u32 s{sI}, {nit + LA}\ns_cbranch_scc1 L_QKX_loop')
    tstamp(a, cfg, 3, vt, vo)
    a('s_branch L_end')

def role_FIN(a, cfg):
    NG = 4
    a('L_FIN:')
    a(f's_lshl_b32 s{sJ}, s{sCp}, 3\ns_add_u32 s{sJ}, s{sJ}, s{sH}\ns_lshl_b32 s{sT0}, s{sJ}, 7\ns_add_u32 s{sFl0}, s{sT0}, {F_G}')
    def gates():
        srd(a, 48, pX, 2048 * 1280); srd(a, 12, pGW, 1280)
        a(f'v_and_b32 v2, 7, v0\nv_lshlrev_b32 v2, 4, v2\nv_lshrrev_b32 v3, 3, v0\nv_mul_u32_u24 v4, 1280, v3\nv_add_u32 v4, v4, v2')
        a(f's_lshl_b32 s{sT2}, s{sJ}, 3\ns_add_u32 s{sT2}, s{sT2}, s{sWave}\ns_mul_i32 s{sT0}, s{sT2}, 10240')
        for i in range(10):
            a(f'buffer_load_dwordx4 {V(16 + 4 * i, 4)}, v4, {T2}, s{sT0} offen offset:{128 * i}\nbuffer_load_dwordx4 {V(56 + 4 * i, 4)}, v2, {T1}, 0 offen offset:{128 * i}')
        a('v_mov_b32 v5, 0\ns_waitcnt vmcnt(0)')
        for i in range(40): a(f'v_dot2_f32_bf16 v5, v{16 + i}, v{56 + i}, v5')
        a('s_nop 2')
        a('v_add_f32_dpp v5, v5, v5 quad_perm:[1,0,3,2] row_mask:0xf bank_mask:0xf\nv_add_f32_dpp v5, v5, v5 quad_perm:[2,3,0,1] row_mask:0xf bank_mask:0xf\nv_add_f32_dpp v5, v5, v5 row_half_mirror row_mask:0xf bank_mask:0xf')
        a(f'v_mul_f32 v5, {hex(f2u(-1.4426950408889634))}, v5\nv_exp_f32 v5, v5\nv_add_f32 v5, 1.0, v5\nv_rcp_f32 v5, v5')
        a(f'v_lshlrev_b32 v3, 2, v3\ns_lshl_b32 s{sT2}, s{sT2}, 5\ns_add_u32 s{sT2}, s{sT2}, {GATE}')
        a(f's_mov_b32 exec_lo, 0x01010101\ns_mov_b32 exec_hi, 0x01010101\nbuffer_store_dword v5, v3, {WS}, s{sT2} offen sc1\ns_mov_b64 exec, -1')
        a(f's_waitcnt vmcnt(0)\ns_barrier\nv_mov_b32 v6, s{sFl0}\ns_mov_b32 s{sT2}, 1')
        flag_store(a, 6, 7, sT2, 1)
    late_start(a, cfg, gates)
    a('L_FIN2:')
    LASTS = 61
    assert cfg.xfin and cfg.fast_tail
    def cm(a, vd, vt2):
        a(f'v_cmp_lt_u32 vcc, 4, v{vd}\nv_lshlrev_b32 v{vd}, 5, v{vd}\nv_mov_b32 v{vt2}, 0x40000000\nv_cndmask_b32 v{vd}, v{vd}, v{vt2}, vcc')
    src_offsets(a, vA, vB, vt, 1280, cm)
    a(f'v_bfe_u32 v{vRd}, v0, 2, 3\nv_lshlrev_b32 v{vRd}, 5, v{vRd}\nv_and_b32 v{vt}, 3, v0\nv_lshl_add_u32 v{vRd}, v{vt}, 3, v{vRd}\nv_lshrrev_b32 v{vt}, 2, v0\nv_lshl_add_u32 v{vRd}, v{vt}, 8, v{vRd}')
    a(f's_and_b32 s{sT0}, s{sWave}, 3\ns_lshl_b32 s{sT0}, s{sT0}, 13\nv_add_u32 v{vRd}, s{sT0}, v{vRd}')
    def rd(n):
        def f(a, va):
            l = a.newlabel('wd')
            a(f's_cmp_ge_u32 s{sWave}, 4\ns_cbranch_scc{1 if n % 2 == 0 else 0} {l}')
            for t in range(5):
                a(f'v_xor_b32 v{vo}, {32 * t}, v{va}')
                for h in range(2): a(f'ds_read_b64_tr_b16 {A(20 * (n // 2) + 4 * t + 2 * h, 2)}, v{vo} offset:{4096 * h}')
            a(f'{l}:')
        return f
    chunks = [dict(pre=(lambda a: srd(a, 12, pWD, 1728 * 1280)) if n == 0 else None, soff=col_soff(1280, 160, sH)(n), stride=1280, reads=rd(n), var=lambda i: i & 1) for n in range(14)]
    loader(a, chunks, vA, vB, vRd, vRd2, vt, vo, claim=False)
    tstamp(a, cfg, 1, vt, vo)
    srd(a, 12, pOUT, 2048 * 1280)
    vL16, vFh, vFu, vFp, vUm, vUm2, vRr, vOo, vTmp, vRw = 1, 2, 3, 4, 5, 6, 7, 8, 9, 10
    vAcc = 12; vBuf = 32
    acc = lambda t, tt: V(vAcc + 4 * t, 4) if tt == 0 else A(140 + 4 * t, 4)
    sS = sI
    a(f'v_lshlrev_b32 v{vL16}, 4, v0')
    cpar = lambda nc: f's_and_b32 s{sT1}, s{sCp}, {nc - 1}'
    a(cpar(cfg.nc_ff1)); a(f's_lshl_b32 s{sT1}, s{sT1}, 7\ns_add_u32 s{sT1}, s{sT1}, {F_H}\nv_min_u32 v{vFh}, 13, v0\nv_lshlrev_b32 v{vFh}, 8, v{vFh}\nv_add_u32 v{vFh}, s{sT1}, v{vFh}')
    a(cpar(cfg.nc_vox)); a(f's_lshl_b32 s{sT1}, s{sT1}, 7\ns_lshl_b32 s{sT0}, s{sWave}, 10\ns_add_u32 s{sT1}, s{sT1}, s{sT0}\ns_add_u32 s{sT1}, s{sT1}, {F_UX}\nv_and_b32 v{vFu}, 3, v0\nv_lshlrev_b32 v{vFu}, 8, v{vFu}\nv_add_u32 v{vFu}, s{sT1}, v{vFu}')
    a(cpar(cfg.nc_qkx)); a(f's_lshl_b32 s{sT1}, s{sT1}, 7\ns_lshl_b32 s{sT0}, s{sWave}, 10\ns_add_u32 s{sT1}, s{sT1}, s{sT0}\ns_add_u32 s{sT1}, s{sT1}, {F_PX}')
    a(f'v_bfe_u32 v{vFp}, v0, 1, 2\nv_lshlrev_b32 v{vFp}, 8, v{vFp}\nv_and_b32 v{vTmp}, 1, v0\nv_lshl_add_u32 v{vFp}, v{vTmp}, 2, v{vFp}\nv_add_u32 v{vFp}, s{sT1}, v{vFp}')
    a(f's_lshl_b32 s{sT0}, s{sWave}, 10\ns_mul_i32 s{sT1}, s{sH}, {5 * 16384}\ns_add_u32 s{sT0}, s{sT0}, s{sT1}\nv_add_u32 v{vUm}, s{sT0}, v{vL16}')
    a(f's_mul_i32 s{sT0}, s{sWave}, 10240\nv_add_u32 v{vRw}, s{sT0}, v{vL16}')
    a(f's_lshl_b32 s{sT0}, s{sWave}, 6\nv_add_u32 v{vTmp}, s{sT0}, v0\nv_mul_u32_u24 v{vRr}, 6554, v{vTmp}\nv_lshrrev_b32 v{vRr}, 16, v{vRr}')
    a(f'v_mul_u32_u24 v{vOo}, 10, v{vRr}\nv_sub_u32 v{vTmp}, v{vTmp}, v{vOo}')
    a(f'v_mul_u32_u24 v{vOo}, 1280, v{vRr}\nv_lshl_add_u32 v{vOo}, v{vTmp}, 4, v{vOo}\ns_mul_i32 s{sT0}, s{sH}, 160\nv_add_u32 v{vOo}, s{sT0}, v{vOo}')
    a(f'v_lshrrev_b32 v{vUm2}, 4, v{vRr}\nv_and_b32 v{vRr}, 15, v{vRr}\nv_lshlrev_b32 v{vRr}, 4, v{vRr}\nv_lshl_add_u32 v{vRr}, v{vUm2}, 10, v{vRr}')
    a(f'v_lshrrev_b32 v{vUm2}, 1, v{vTmp}\nv_lshl_add_u32 v{vRr}, v{vUm2}, 11, v{vRr}\nv_and_b32 v{vUm2}, 1, v{vTmp}\nv_lshl_add_u32 v{vRr}, v{vUm2}, 9, v{vRr}')
    sU = [sbL, sbR, sbO, sCL, sCR]
    sM = [sCO, sPL, sPO, sNL, sNO]
    a(f's_lshl_b32 s{sT3}, s{sWave}, 2')
    ux_head(a, cfg, sT2, sT3)
    for t in range(5):
        a(f's_mul_i32 s{sT3}, s{sH}, 5\ns_add_u32 s{sT3}, s{sT3}, {t}\ns_mov_b32 s{sU[t]}, s{sT2}')
        ux_tile(a, cfg, sU[t], sT3)
        a(f's_lshl_b32 s{sT1}, s{sCp}, 15\ns_xor_b32 s{sU[t]}, s{sU[t]}, s{sT1}')
    a(f's_mov_b32 s{sS}, s{sCp}')
    sh = lambda nc: nc - 1
    a('L_FIN_loop:')
    um_seg(a, sM[0], sS)
    for t in range(1, 5): a(f's_add_u32 s{sM[t]}, s{sM[0]}, {t * 16384}')
    a(f's_lshr_b32 s{sT2}, s{sS}, {sh(cfg.nc_ff1)}\ns_add_u32 s{sT2}, s{sT2}, 1')
    spin_ge(a, vFh, vTmp, sT2, 8)
    a(f's_mul_i32 s{sT2}, s{sS}, {112 * 1024}\ns_lshl_b32 s{sT0}, s{sWave}, 11\ns_add_u32 s{sT2}, s{sT2}, s{sT0}\ns_add_u32 s{sT2}, s{sT2}, {HB}')
    for n in range(7):
        if n == 6:
            a(f's_cmp_ge_u32 s{sWave}, 6\ns_cselect_b32 s{sT0}, 0, 16384\ns_add_u32 s{sT2}, s{sT2}, s{sT0}')
        a(f'buffer_load_dwordx4 {V(vBuf + 8 * n, 4)}, v{vL16}, {WS}, s{sT2} offen sc1\nbuffer_load_dwordx4 {V(vBuf + 8 * n + 4, 4)}, v{vL16}, {WS}, s{sT2} offen offset:1024 sc1')
        if n < 5: a(f's_add_u32 s{sT2}, s{sT2}, 16384')
    for n in range(7):
        b = vBuf + 8 * n
        a(f's_waitcnt vmcnt({12 - 2 * n})')
        a(f'v_swap_b32 v{b + 2}, v{b + 4}\nv_swap_b32 v{b + 3}, v{b + 5}')
        for t in range(5):
            for tt in range(2):
                a(f'v_mfma_f32_16x16x32_bf16 {acc(t, tt)}, {A(20 * n + 4 * t, 4)}, {V(b + 4 * tt, 4)}, {"0" if n == 0 else acc(t, tt)}')
    a(f's_lshr_b32 s{sT2}, s{sS}, {sh(cfg.nc_vox)}\ns_add_u32 s{sT2}, s{sT2}, 1')
    spin_ge(a, vFu, vTmp, sT2, 8)
    ub = lambda k: vBuf + 28 * (k & 1)
    def ldU(k):
        for t in range(5): a(f'buffer_load_dwordx4 {V(ub(k) + 4 * t, 4)}, v{vL16}, {WS}, s{sU[t]} offen offset:{1024 * k} sc1')
    sP = sT3
    def ldP(k):
        for tt in range(2): a(f'buffer_load_dwordx4 {V(ub(k) + 20 + 4 * tt, 4)}, v{vL16}, {WS}, s{sP} offen offset:{2048 * (k & 1) + 1024 * tt} sc1')
        if k & 1: a(f's_add_u32 s{sP}, s{sP}, 4096')
    def mm(k):
        for t in range(5):
            for tt in range(2):
                a(f'v_mfma_f32_16x16x32_bf16 {acc(t, tt)}, {V(ub(k) + 4 * t, 4)}, {V(ub(k) + 20 + 4 * tt, 4)}, {acc(t, tt)}')
    if cfg.fast_tail:
        a(f's_cmp_gt_u32 s{sS}, {LASTS - NG}\ns_cbranch_scc1 L_FIN_last')
        def last():
            a('L_FIN_last:')
            for k in range(4):
                for t in range(5): a(f'buffer_load_dwordx4 {A(20 * k + 4 * t, 4)}, v{vL16}, {WS}, s{sU[t]} offen offset:{1024 * k} sc1')
            vM_, vPm_ = vBuf + 40, vBuf + 32
            a(f's_lshl_b32 s{sP}, s{sS}, 16\ns_lshl_b32 s{sT0}, s{sWave}, 13\ns_add_u32 s{sP}, s{sP}, s{sT0}\ns_add_u32 s{sP}, s{sP}, {PXX}')
            a(f's_lshl_b32 s{sT4}, s{sS}, 14\ns_lshl_b32 s{sT0}, s{sWave}, 11\ns_add_u32 s{sT4}, s{sT4}, s{sT0}\ns_add_u32 s{sT4}, s{sT4}, {PXM}')
            ldm = [f'buffer_load_dwordx4 {V(vM_ + 4 * t, 4)}, v{vUm}, {WS}, s{sM[t]} offen sc1' for t in range(5)]
            a(f's_lshr_b32 s{sT2}, s{sS}, 1\ns_add_u32 s{sT2}, s{sT2}, 1')
            a(f's_cmp_eq_u32 s{sS}, 63\ns_cbranch_scc1 L_FIN_63')
            spin_ge(a, vFp, vTmp, sT2, 3)
            a(f's_add_u32 s{sT2}, s{sP}, 4096')
            for i in range(8): a(f'buffer_load_dwordx4 {V(vBuf + 4 * i, 4)}, v{vL16}, {WS}, s{sP if i < 4 else sT2} offen offset:{1024 * (i & 3)} sc1')
            for tt in range(2): a(f'buffer_load_dwordx4 {V(vPm_ + 4 * tt, 4)}, v{vL16}, {WS}, s{sT4} offen offset:{1024 * tt} sc1')
            for l in ldm: a(l)
            for k in range(4):
                a(f's_waitcnt vmcnt({13 - 2 * k})')
                for t in range(5):
                    for tt in range(2): a(f'v_mfma_f32_16x16x32_bf16 {acc(t, tt)}, {A(20 * k + 4 * t, 4)}, {V(vBuf + 8 * k + 4 * tt, 4)}, {acc(t, tt)}')
            poll(a, ldm, range(vM_, vM_ + 20), vTmp, first_issued=True)
            for t in range(5):
                for tt in range(2): a(f'v_mfma_f32_16x16x32_bf16 {acc(t, tt)}, {V(vM_ + 4 * t, 4)}, {V(vPm_ + 4 * tt, 4)}, {acc(t, tt)}')
            a('s_nop 7\ns_branch L_FIN_red')
            a('L_FIN_63:')
            sTT = sJ
            l = a.newlabel('tt')
            a(f's_cmp_eq_u32 s{sTT}, 0\ns_cbranch_scc1 {l}')
            for i in range(20): a(f'v_accvgpr_read_b32 v{vAcc + i}, a{140 + i}')
            a(f'{l}:')
            a(f's_lshl_b32 s{sT0}, s{sTT}, 10\ns_add_u32 s{sP}, s{sP}, s{sT0}\ns_add_u32 s{sT4}, s{sT4}, s{sT0}')
            a(f'v_add_u32 v{vFu}, {F_KX - F_UX}, v{vFu}')
            spin_ge(a, vFu, vTmp, sT2, 8)
            poll(a, ldm, range(vM_, vM_ + 20), vTmp, sleep=4)
            a(f's_add_u32 s{sT2}, s{sP}, 4096')
            ldx = [f'buffer_load_dwordx4 {V(vBuf + 4 * k, 4)}, v{vL16}, {WS}, s{sP if k < 2 else sT2} offen offset:{2048 * (k & 1)} sc1' for k in range(4)]
            poll(a, [f'buffer_load_dwordx4 {V(vPm_, 4)}, v{vL16}, {WS}, s{sT4} offen sc1'], range(vPm_, vPm_ + 4), vTmp)
            a('s_barrier')
            for l in ldx: a(l)
            for t in range(5): a(f'v_mfma_f32_16x16x32_bf16 {acc(t, 0)}, {V(vM_ + 4 * t, 4)}, {V(vPm_, 4)}, {acc(t, 0)}')
            for k in range(4):
                check(a, ldx[k:k + 1], range(vBuf + 4 * k, vBuf + 4 * k + 4), vTmp, 3 - k)
                for t in range(5): a(f'v_mfma_f32_16x16x32_bf16 {acc(t, 0)}, {A(20 * k + 4 * t, 4)}, {V(vBuf + 4 * k, 4)}, {acc(t, 0)}')
            for t in range(5): a(f'ds_write_b128 v{vRw}, {acc(t, 0)} offset:{2 * t * 1024}')
            a(f's_mul_i32 s{sT0}, s{sTT}, 20480\nv_add_u32 v{vOo}, s{sT0}, v{vOo}\ns_waitcnt lgkmcnt(0)\ns_barrier')
            a(f's_cmp_ge_u32 s{sWave}, 3\ns_cbranch_scc1 L_FIN_nored\ns_cmp_lt_u32 s{sWave}, 2\ns_cbranch_scc1 L_FIN_red2\ns_mov_b32 exec_hi, 0\ns_branch L_FIN_red2')
            a.flush()
        a.defer(last)
    ldU(0); ldU(1)
    a(f's_lshr_b32 s{sT2}, s{sS}, {sh(cfg.nc_qkx)}\ns_add_u32 s{sT2}, s{sT2}, 1')
    spin_ge(a, vFp, vTmp, sT2, 2)
    a(f's_lshl_b32 s{sP}, s{sS}, 16\ns_lshl_b32 s{sT0}, s{sWave}, 13\ns_add_u32 s{sP}, s{sP}, s{sT0}\ns_add_u32 s{sP}, s{sP}, {PXX}')
    a(f's_lshl_b32 s{sT4}, s{sS}, 14\ns_lshl_b32 s{sT0}, s{sWave}, 11\ns_add_u32 s{sT4}, s{sT4}, s{sT0}\ns_add_u32 s{sT4}, s{sT4}, {PXM}')
    ldP(0); ldP(1)
    a('s_waitcnt vmcnt(2)'); mm(0); ldU(2); ldP(2)
    a('s_waitcnt vmcnt(7)'); mm(1); ldU(3); ldP(3)
    a('s_waitcnt vmcnt(7)'); mm(2)
    ldM = [f'buffer_load_dwordx4 {V(ub(0) + 4 * t, 4)}, v{vUm}, {WS}, s{sM[t]} offen sc1' for t in range(5)]
    for tt in range(2): a(f'buffer_load_dwordx4 {V(ub(0) + 20 + 4 * tt, 4)}, v{vL16}, {WS}, s{sT4} offen offset:{1024 * tt} sc1')
    for l in ldM: a(l)
    a('s_waitcnt vmcnt(7)'); mm(3)
    poll(a, ldM, range(ub(0), ub(0) + 20), vTmp, first_issued=True)
    mm(0)
    a(f's_add_u32 s{sT0}, s{sS}, {NG}\ns_xor_b32 s{sT0}, s{sT0}, s{sS}\ns_lshl_b32 s{sT0}, s{sT0}, 15')
    for t in range(5): a(f's_xor_b32 s{sU[t]}, s{sU[t]}, s{sT0}')
    a('L_FIN_red:')
    a('s_barrier')
    for t in range(5):
        for tt in range(2): a(f'ds_write_b128 v{vRw}, {acc(t, tt)} offset:{(2 * t + tt) * 1024}')
    a('s_waitcnt lgkmcnt(0)\ns_barrier')
    l = 'L_FIN_nored'
    a(f's_cmp_ge_u32 s{sWave}, 5\ns_cbranch_scc1 {l}')
    a('L_FIN_red2:')
    a(f'v_add_u32 v{vTmp}, {4 * 10240}, v{vRr}')
    for w in range(8):
        for h in range(2): a(f'ds_read_b128 {V(vBuf + 8 * w + 4 * h, 4)}, v{vRr if w < 4 else vTmp} offset:{(w & 3) * 10240 + 256 * h}')
    for w in range(1, 8):
        a(f's_waitcnt lgkmcnt({min(15, 14 - 2 * w)})')
        for i in range(0, 8, 2): a(f'v_pk_add_f32 {V(vBuf + i, 2)}, {V(vBuf + i, 2)}, {V(vBuf + 8 * w + i, 2)}')
    for q in range(4): a(f'v_cvt_pk_bf16_f32 v{vBuf + q}, v{vBuf + 2 * q}, v{vBuf + 2 * q + 1}')
    a(f's_mul_i32 s{sT0}, s{sS}, {XBS}\nbuffer_store_dwordx4 {V(vBuf, 4)}, v{vOo}, {T1}, s{sT0} offen')
    a(f'{l}:')
    a(f's_add_u32 s{sS}, s{sS}, {NG}\ns_cmp_le_u32 s{sS}, {LASTS}\ns_cbranch_scc1 L_FIN_loop')
    tstamp(a, cfg, 3, vt, vo)
    a('s_branch L_end')
    a.flush()
```
